```python
import torch

def _softmax(x, axis=-1):
    return torch.softmax(x, dim=axis)

def _gelu(x):
    return torch.nn.functional.gelu(x, approximate='tanh')

def _silu(x):
    return torch.nn.functional.silu(x)

def _sigmoid(x):
    return torch.sigmoid(x)

def _layernorm(x, axis=-1, eps=1e-05):
    m = x.mean(dim=axis, keepdim=True)
    v = x.var(dim=axis, keepdim=True, unbiased=False)
    return (x - m) / torch.sqrt(v + eps)

def _scatter_add(tgt, idx, src, axis=0):
    return tgt.clone().index_add_(axis, idx, src)

def _segment_sum(src, seg, n):
    out = torch.zeros((n,) + src.shape[1:], dtype=src.dtype)
    return out.index_add_(0, seg, src)

def _pad(x, pw):
    flat = tuple((v for pair in reversed(pw) for v in pair))
    return torch.nn.functional.pad(x, flat)
kernel_name = 'interleave_layers__memory_aug_recurrent_mem_tr__glu_gated_geglu__prompt'

def setup_inputs():

    _w = lambda a: (lambda t: t.to(torch.bfloat16) if t.is_floating_point() else t)(torch.as_tensor(a))

    def _A_setup():
        B, S, Dm = (1, 2048, 1024)
        H, Dh = (32, 128)
        M, seg = (8, 32)
        seg = min(seg, S)
        S = S // seg * seg
        return {'x': _w((lambda *s: torch.randn(*s, dtype=torch.bfloat16) * 0.05)(B, S, Dm)), 'mem0': _w((lambda *s: torch.randn(*s, dtype=torch.bfloat16) * 0.2)(B, M, Dm)), 'Wq': _w((lambda *s: torch.randn(*s, dtype=torch.bfloat16) * 1.6)(Dm, H, Dh) * Dm ** (-0.5)), 'Wk': _w((lambda *s: torch.randn(*s, dtype=torch.bfloat16) * 1.6)(Dm, H, Dh) * Dm ** (-0.5)), 'Wv': _w((lambda *s: torch.randn(*s, dtype=torch.bfloat16) * 0.2)(Dm, H, Dh) * Dm ** (-0.5)), 'Wo': _w((lambda *s: torch.randn(*s, dtype=torch.bfloat16) * 0.2)(H, Dh, Dm) * (H * Dh) ** (-0.5)), 'seg_len': seg}
    _A_in = _A_setup()

    def _B_setup():
        B, S, Dm, Df = (1, 2048, 1024, 3584)
        return {'x': _w((lambda *s: torch.randn(*s, dtype=torch.bfloat16) * 0.05)(B, S, Dm)), 'w_gate': _w((lambda *s: torch.randn(*s, dtype=torch.bfloat16) * 0.4)(Dm, Df) * Dm ** (-0.5)), 'w_up': _w((lambda *s: torch.randn(*s, dtype=torch.bfloat16) * 0.4)(Dm, Df) * Dm ** (-0.5)), 'w_down': _w((lambda *s: torch.randn(*s, dtype=torch.bfloat16) * 0.4)(Df, Dm) * Df ** (-0.5))}
    _B_in = _B_setup()
    return {'A_x': _A_in['x'], 'A_mem0': _A_in['mem0'], 'A_Wq': _A_in['Wq'], 'A_Wk': _A_in['Wk'], 'A_Wv': _A_in['Wv'], 'A_Wo': _A_in['Wo'], 'A_seg_len': _A_in['seg_len'], 'B_x': _B_in['x'], 'B_w_gate': _B_in['w_gate'], 'B_w_up': _B_in['w_up'], 'B_w_down': _B_in['w_down']}

def reference(A_x, A_mem0, A_Wq, A_Wk, A_Wv, A_Wo, A_seg_len, B_x, B_w_gate, B_w_up, B_w_down):

    def _A_ref(x, mem0, Wq, Wk, Wv, Wo, seg_len):
        B, S, Dm = x.shape
        H, Dh = (Wq.shape[1], Wq.shape[2])
        M = mem0.shape[1]
        scale = Dh ** (-0.5)
        n_seg = S // seg_len
        L = M + seg_len
        idx = torch.arange(L)
        mask = (idx[:, None] < M) | (idx[:, None] >= idx[None, :])
        mem = mem0
        outs = []
        for s in range(n_seg):
            xs = x[:, s * seg_len:(s + 1) * seg_len, :].clone()
            h = torch.concatenate([mem, xs], axis=1)
            q = torch.einsum('btd,dhe->bhte', h, Wq)
            k = torch.einsum('btd,dhe->bhte', h, Wk)
            v = torch.einsum('btd,dhe->bhte', h, Wv)
            scores = torch.einsum('bhqe,bhke->bhqk', q, k) * scale
            scores = torch.where(mask[None, None], scores, -1000000000.0)
            p = _softmax(scores, axis=-1)
            o = torch.einsum('bhqk,bhke->bhqe', p, v)
            o = torch.einsum('bhte,hed->btd', o, Wo)
            mem = o[:, :M, :].clone()
            outs.append(o[:, M:, :])
        return torch.concatenate(outs, axis=1)

    def _B_ref(x, w_gate, w_up, w_down):
        g = torch.einsum('bsd,df->bsf', x, w_gate)
        u = torch.einsum('bsd,df->bsf', x, w_up)
        h = _gelu(g) * u
        return torch.einsum('bsf,fd->bsd', h, w_down)
    x = A_x
    x = x + _A_ref(_layernorm(x, axis=-1), A_mem0, A_Wq, A_Wk, A_Wv, A_Wo, A_seg_len)
    x = x + _B_ref(_layernorm(x, axis=-1), B_w_gate, B_w_up, B_w_down)
    x = x + _A_ref(_layernorm(x, axis=-1), A_mem0, A_Wq, A_Wk, A_Wv, A_Wo, A_seg_len)
    x = x + _B_ref(_layernorm(x, axis=-1), B_w_gate, B_w_up, B_w_down)
    return x
```

```python
import re

class Ins:
    __slots__=('text','op','ops','mods','wr','rd','cls','label','target','srcC','nops')
    def __init__(s,text):
        s.text=text; s.label=None; s.target=None; s.wr=set(); s.rd=set(); s.cls=''; s.srcC=set(); s.op=''; s.ops=[]; s.mods=''
        s.nops=1

_reg=re.compile(r'^(-)?(?:abs\()?([vas])(?:(\d+)|\[(\d+):(\d+)\])\)?$')
def regs(tok):
    tok=tok.strip()
    if tok=='vcc': return {('s','vcc_lo'),('s','vcc_hi')}
    if tok=='exec': return {('s','exec_lo'),('s','exec_hi')}
    if tok in('vcc_lo','vcc_hi','exec_lo','exec_hi','m0'): return {('s',tok)}
    m=_reg.match(tok)
    if not m: return set()
    k=m.group(2)
    if m.group(3) is not None: return {(k,int(m.group(3)))}
    return {(k,i) for i in range(int(m.group(4)),int(m.group(5))+1)}

TRANS=('v_exp_f32','v_log_f32','v_rcp_f32','v_rsq_f32','v_sqrt_f32','v_sin_f32','v_cos_f32')
def parse(text):
    i=Ins(text)
    t=text.split(';')[0].strip()
    if t.endswith(':'):
        i.label=t[:-1]; i.cls='label'; i.nops=0; return i
    if t.startswith('.') or not t:
        i.cls='dir'; i.nops=0; return i
    p=t.split(None,1); op=p[0]; i.op=op
    rest=p[1] if len(p)>1 else ''
    parts=[x.strip() for x in rest.split(',')] if rest else []
    if parts:
        last=parts[-1].split(None,1)
        parts[-1]=last[0]; i.mods=last[1] if len(last)>1 else ''
    i.ops=parts
    R=[regs(x) for x in parts]
    U=lambda l: set().union(*l) if l else set()
    if op.startswith('v_mfma'):
        i.cls='mfma'; i.wr=R[0]; i.rd=R[1]|R[2]; i.srcC=R[3]
    elif op.startswith('v_smfmac'):
        i.cls='mfma'; i.wr=R[0]; i.rd=R[1]|R[2]|R[3]; i.srcC=R[0]
    elif op.startswith('v_cmp'):
        i.cls='valu'; i.wr=R[0]; i.rd=U(R[1:])
    elif op.startswith('v_permlane'):
        i.cls='valu'; i.wr=R[0]|R[1]; i.rd=R[0]|R[1]
    elif op.startswith('v_readfirstlane') or op.startswith('v_readlane'):
        i.cls='valu'; i.wr=R[0]; i.rd=U(R[1:])
    elif op.startswith('v_add_co') or op.startswith('v_addc_co') or op.startswith('v_sub_co'):
        i.cls='valu'; i.wr=R[0]|R[1]; i.rd=U(R[2:])
    elif op=='v_nop':
        i.cls='valu'
    elif op.startswith('v_'):
        i.cls='valu'; i.wr=R[0]; i.rd=U(R[1:])
        if op.startswith('v_fmac') or op.startswith('v_pk_fmac') or '_dpp' in op or op.startswith('v_writelane'): i.rd=i.rd|R[0]
    elif op.startswith('buffer_') or op.startswith('global_'):
        i.cls='vmem'
        if 'load' in op and not re.search(r'\blds\b',i.mods) and '_lds_' not in op:
            i.wr=R[0]; i.rd=U(R[1:])
        elif 'atomic' in op and 'sc0' in i.mods:
            i.wr=R[0]; i.rd=U(R)
        else:
            i.rd=U(R)
            if 'load' in op: i.rd=i.rd|{('s','m0')}
    elif op.startswith('ds_'):
        i.cls='ds'
        if 'read' in op or 'permute' in op or 'swizzle' in op: i.wr=R[0]; i.rd=U(R[1:])
        else: i.rd=U(R)
    elif op.startswith('s_'):
        i.cls='salu'
        if op=='s_nop': i.nops=int(parts[0],0)+1
        elif op in('s_branch',) or op.startswith('s_cbranch'):
            i.target=parts[0]; i.cls='branch'
        elif op.startswith('s_cmp') or op.startswith('s_bitcmp'): i.rd=U(R)
        elif op in('s_waitcnt','s_barrier','s_endpgm','s_sleep','s_setprio'): pass
        else:
            i.wr=R[0] if R else set(); i.rd=U(R[1:])
            if 'saveexec' in op: i.wr=i.wr|regs('exec')
    else:
        raise ValueError('unknown op '+text)
    return i

def passes(op):
    if '32x32' in op: return 8
    if '4x4' in op: return 2
    return 4
def isV(s): return {r for r in s if r[0] in 'va'}
def isS(s): return {r for r in s if r[0]=='s'}

def need(p,c):
    n=0
    if p.cls=='valu':
        pv=isV(p.wr); ps=isS(p.wr)
        if pv:
            if c.cls=='mfma' and pv&(c.rd|c.srcC): n=max(n,2)
            if c.cls=='valu':
                if c.op.startswith('v_permlane') and pv&c.rd: n=max(n,2)
                if '_dpp' in c.op and pv&c.rd: n=max(n,2)
                if (c.op.startswith('v_readfirstlane') or c.op.startswith('v_readlane')) and pv&c.rd: n=max(n,1)
            if p.op.startswith('v_dot') and c.cls in('valu','vmem','ds','mfma') and pv&(c.rd|c.wr|c.srcC):
                if c.op==p.op and not pv&(regs(c.ops[1])|regs(c.ops[2])): pass
                else: n=max(n,3)
            if p.op.startswith(TRANS) and c.cls in('valu','vmem','ds') and pv&c.rd: n=max(n,1)
        if ps:
            if c.cls=='valu' and ps&c.rd: n=max(n,4 if 'lane' in c.op else 2)
            if c.cls=='valu' and c.op.startswith('v_cndmask') and ps&regs('vcc'): n=max(n,2)
            if c.cls=='vmem' and ps&c.rd: n=max(n,5)
            if c.cls=='salu' and ps&c.rd: n=max(n,1)
            if c.cls=='branch' and 'vcc' in c.op and ps&regs('vcc'): n=max(n,1)
    if p.cls=='mfma':
        k=passes(p.op); idx={2:0,4:1,8:2,16:3}[k]
        if c.cls=='mfma':
            if p.wr&c.rd: n=max(n,(5,8,12,20)[idx])
            if p.wr&c.srcC:
                if p.wr==c.srcC and passes(c.op)==k: n=max(n,(2,0,0,0)[idx])
                else: n=max(n,(4,6,10,18)[idx])
            elif p.wr&c.wr:
                n=max(n,(4,6,10,18)[idx])
        elif c.cls in('valu','vmem','ds'):
            if p.wr&(c.rd|c.wr): n=max(n,(5,8,12,20)[idx])
            if c.cls=='valu' and p.srcC&c.wr: n=max(n,(1,3,7,15)[idx])
    if p.cls=='salu' and ('s','m0') in p.wr and c.cls=='vmem' and ('s','m0') in c.rd: n=max(n,1)
    if p.cls=='salu' and p.wr&regs('exec') and c.cls=='valu' and '_dpp' in c.op: n=max(n,1)
    if p.cls=='vmem' and 'store' in p.op and ('x4' in p.op or 'x3' in p.op):
        d=regs(p.ops[0]) if p.op.startswith('buffer_') else regs(p.ops[1])
        if d&c.wr: n=max(n,2)
    return n

class Asm:
    def __init__(s):
        s.L=[]; s.uid=0
    def __call__(s,text):
        for t in text.split('\n'):
            t=t.strip()
            if t: s.L.append(t)
    def lab(s,base):
        s.uid+=1; return f'L{base}_{s.uid}'
    def fix(s):
        I=[parse(t) for t in s.L]
        MAXW=20
        srcs={}
        labels={}
        for k,x in enumerate(I):
            if x.label:
                assert x.label not in labels, 'dup label '+x.label
                labels[x.label]=k
            if x.target: srcs.setdefault(x.target,[]).append(k)
        for t in srcs: assert t in labels, 'missing label '+t
        pad=[0]*len(I)
        for k,c in enumerate(I):
            if c.cls in('label','dir') or not (c.rd or c.wr or c.srcC or c.cls=='branch'): continue
            worst=0
            stack=[(k-1,0,True)]; seen=set()
            while stack:
                j,d,fall=stack.pop()
                while j>=0 and d<MAXW:
                    if (j,d) in seen: break
                    seen.add((j,d))
                    p=I[j]
                    if p.cls=='label':
                        for b in srcs.get(p.label,[]): stack.append((b,d,False))
                        j-=1; fall=True; continue
                    if p.cls=='dir': j-=1; continue
                    if fall and p.op in('s_branch','s_endpgm'): break
                    fall=True
                    w=need(p,c)
                    if w>d: worst=max(worst,w-d)
                    d+=p.nops+pad[j]; j-=1
            pad[k]=worst
        out=[]; added=0
        for k,x in enumerate(I):
            w=pad[k]
            while w>0:
                m=min(w,16); out.append(f's_nop {m-1}'); w-=m; added+=1
            out.append(x.text)
        return out, added
```

```python
import sys, struct
from asmlib import Asm
from layout import *

KNAME = 'interleave_layers__memory_aug_recurrent_mem_tr__glu_gated_geglu__prompt_kernel'

class Cfg:
    L = 10
    LK = 20
    NEND = 128
    roles = {'X0', 'K', 'V', 'QK', 'VM', 'WM', 'QA', 'WO', 'GU', 'DN'}
    stamps = False
    TIMEOUT = 1 << 20
    force_safe = False
    PF = 2

def fbits(x):
    return '0x%08x' % struct.unpack('<I', struct.pack('<f', x))[0]

def v(i, n=1): return f'v{i}' if n == 1 else f'v[{i}:{i+n-1}]'
def s(i, n=1): return f's{i}' if n == 1 else f's[{i}:{i+n-1}]'
def wreg(i, n, vbase):
    if i < 256: return f'a{i}' if n == 1 else f'a[{i}:{i+n-1}]'
    return v(vbase + i - 256, n)

WS = 's[4:7]'; WSC = 's[8:11]'; W1 = 's[12:15]'; W2 = 's[16:19]'; DBG = 's[20:23]'
P_X, P_MEM0, P_WQ, P_WK, P_WV, P_WO, P_WG, P_WU, P_WD, P_OUT, P_DBG, P_WS = 24, 26, 28, 30, 32, 34, 36, 38, 40, 42, 44, 46
sW, sIdx, sG = 48, 49, 50
sN, sNx, sBuf, sSrc, sM0, sNeed, sFl, sPFl = 52, 53, 54, 55, 56, 57, 58, 59
sT0, sT1, sT2, sT3 = 60, 61, 62, 63
sRdy, sWoff = 64, 65
sC = 66
sST = 80
sTO, sCode = 96, 97

SOFTC = 128 ** -0.5 * 1.4426950408889634

class Gen:
    def __init__(g, cfg):
        g.c = cfg; g.a = Asm(); g.tail = []

    def srd(g, base, ptr, size):
        a = g.a
        a(f's_mov_b32 s{base}, s{ptr}'); a(f's_and_b32 s{base+1}, s{ptr+1}, 0xffff')
        a(f's_mov_b32 s{base+2}, {size:#x}'); a(f's_mov_b32 s{base+3}, 0x20000')

    def next_n(g, dst, src, L, t0=sT0, t1=sT1):
        return [f's_add_u32 s{dst}, s{src}, 1',
                f's_add_u32 s{t0}, s{src}, {64-L}',
                f's_cmp_ge_u32 s{src}, {L}',
                f's_cselect_b32 s{t0}, s{t0}, s{dst}',
                f's_add_i32 s{t1}, s{src}, {L-63}',
                f's_cmp_lt_u32 s{t1}, 64',
                f's_cselect_b32 s{t1}, s{t1}, s{dst}',
                f's_cmp_lt_u32 s{src}, 64',
                f's_cselect_b32 s{dst}, s{t0}, s{t1}']

    def need_fl(g, n, need, fl):
        return [f's_and_b32 s{need}, s{n}, 63', f's_add_u32 s{need}, s{need}, 1',
                f's_lshr_b32 s{fl}, s{n}, 6', f's_and_b32 s{fl}, s{fl}, 1', f's_mul_i32 s{fl}, s{fl}, {FL_L:#x}',
                f's_cmp_lt_u32 s{n}, {g.c.NEND}', f's_cselect_b32 s{need}, s{need}, 0x7fffffff']

    def timeout(g, code, back):
        lab = g.a.lab('rt')
        g.tail.append([f'{lab}:', f's_add_u32 s{sTO}, s{sTO}, 1', f's_cmp_lt_u32 s{sTO}, {g.c.TIMEOUT}',
                       f's_cbranch_scc1 {back}', f's_mov_b32 s{sCode}, {code}', 's_branch L_fail'])
        return lab

    def flush_tail(g):
        for b in g.tail:
            for t in b: g.a(t)
        g.tail = []

    def spin_flags(g, vPoll, vOff, need, fl, code):
        a = g.a; l = a.lab('spin')
        a(f'{l}:')
        a(f'buffer_load_dword v{vPoll}, v{vOff}, {WS}, s{fl} offen sc1')
        a('s_waitcnt vmcnt(0)')
        a(f'v_cmp_le_u32 vcc, s{need}, v{vPoll}')
        a('s_cmp_eq_u64 vcc, -1')
        a(f's_cbranch_scc0 {g.timeout(code, l)}')

    def lane0_off(g, dst, soff, nl=1, stride=0):
        a = g.a
        if stride: a(f'v_mul_u32_u24 v{dst}, {stride}, v0'); a(f'v_add_u32 v{dst}, s{soff}, v{dst}')
        else: a(f'v_mov_b32 v{dst}, s{soff}')
        a(f'v_mov_b32 v1, {OOB:#x}')
        a(f'v_cmp_gt_u32 vcc, {nl}, v0')
        a(f'v_cndmask_b32 v{dst}, v1, v{dst}, vcc')

    def zero_flags(g, vMy, layers=(0, 1)):
        a = g.a
        a('v_mov_b32 v1, 0')
        for l in layers:
            a(f's_mov_b32 s{sT0}, {l*FL_L:#x}')
            a(f'buffer_store_dword v1, v{vMy}, {WS}, s{sT0} offen sc1')

    def arrive(g, chain=False):
        a = g.a; l = a.lab('arr')
        a('s_waitcnt vmcnt(0)'); a('s_barrier')
        a(f's_cmp_lg_u32 s{sW}, 0'); a(f's_cbranch_scc1 {l}')
        a(f's_mov_b32 s{sT0}, 0')
        g.lane0_off(2, sT0)
        if chain:
            a(f's_getreg_b32 s{sT1}, hwreg(HW_REG_XCC_ID)'); a(f's_and_b32 s{sT1}, s{sT1}, 15')
            a(f's_lshl_b32 s{sT1}, 1, s{sT1}'); a(f'v_mov_b32 v3, s{sT1}')
            a(f's_lshl_b32 s{sT2}, s{sG}, 2'); a(f's_add_u32 s{sT2}, s{sT2}, 4')
            a(f'buffer_atomic_or v3, v2, {DBG}, s{sT2} offen sc1')
            a('s_waitcnt vmcnt(0)')
        a('v_mov_b32 v3, 1')
        a(f'buffer_atomic_add v3, v2, {DBG}, 0 offen sc1')
        a(f'{l}:')

    def wait_start(g, vt, code):
        a = g.a; l = a.lab('ws')
        a(f'v_mov_b32 v{vt+4}, 0')
        a(f'{l}:')
        a(f'buffer_load_dwordx4 {v(vt,4)}, v{vt+4}, {DBG}, 0 offen sc1')
        a('s_waitcnt vmcnt(0)')
        a(f'v_cmp_le_u32 vcc, 0x100, v{vt}')
        a('s_cmp_eq_u64 vcc, -1')
        a(f's_cbranch_scc0 {g.timeout(code, l)}')

    def load_weights(g, chunks, nslots, slot_bytes, sStage):
        a = g.a; n = len(chunks)
        def issue(c):
            ch = chunks[c]
            for t in ch.get('pre', []): a(t)
            for i, (srd, va, sb, imm) in enumerate(ch['dma']):
                a(f's_add_u32 m0, s{sStage}, {(c % nslots)*slot_bytes + i*1024}')
                a(f's_add_u32 s{sT3}, s{sb}, {imm:#x}')
                a(f'buffer_load_dwordx4 v{va}, {srd}, s{sT3} offen lds')
        for c in range(min(nslots, n)): issue(c)
        for c in range(n):
            after = sum(len(chunks[k]['dma']) for k in range(c + 1, min(n, c + nslots)))
            assert after <= 63
            a(f's_waitcnt vmcnt({after})')
            for dest, vtr, imm in chunks[c]['reads']:
                a(f'ds_read_b64_tr_b16 {dest}, v{vtr} offset:{(c % nslots)*slot_bytes + imm}')
            a('s_waitcnt lgkmcnt(0)')
            for t in chunks[c].get('post', []): a(t)
            if c + nslots < n: issue(c + nslots)
        a('s_waitcnt lgkmcnt(0)')

    def stamp(g, i, real=True):
        if not g.c.stamps: return []
        return [f's_memrealtime {s(sST+2*i,2)}' if real else f's_memtime {s(sST+2*i,2)}']

    def stamp_store(g, vt, nst):
        if not g.c.stamps: return
        a = g.a
        a('s_waitcnt lgkmcnt(0)')
        for i in range(8): a(f'v_mov_b32 v{vt+i}, s{sST+2*min(i,nst-1)}')
        a(f's_lshl_b32 s{sT0}, s2, 12'); a(f's_lshl_b32 s{sT1}, s{sN}, 5'); a(f's_add_u32 s{sT0}, s{sT0}, s{sT1}')
        a(f's_add_u32 s{sT0}, s{sT0}, {STAMP:#x}')
        a(f's_cmp_eq_u32 s{sW}, 0'); a(f's_cselect_b32 s{sT0}, s{sT0}, {OOB:#x}')
        a(f'v_mov_b32 v{vt+8}, 0')
        a(f'buffer_store_dwordx4 {v(vt,4)}, v{vt+8}, {WS}, s{sT0} offen')
        a(f'buffer_store_dwordx4 {v(vt+4,4)}, v{vt+8}, {WS}, s{sT0} offen offset:16')
        a('s_nop 1')

    def v_j(g, d): g.a(f'v_and_b32 v{d}, 15, v0')
    def v_g(g, d): g.a(f'v_lshrrev_b32 v{d}, 4, v0')

    def tr_addr(g, d, rowpitch, gmul, colmul, sStage, chain=None):
        a = g.a
        a('v_lshrrev_b32 v1, 4, v0'); a('v_bfe_u32 v2, v0, 2, 2'); a('v_and_b32 v3, 3, v0')
        if chain is None:
            a(f'v_mul_u32_u24 v1, {gmul}, v1'); a('v_add_u32 v1, v1, v2')
        else:
            m_g1, m_g0, m_r1 = chain
            a('v_lshrrev_b32 v4, 1, v1'); a(f'v_mul_u32_u24 v4, {m_g1}, v4')
            a('v_and_b32 v1, 1, v1'); a(f'v_mul_u32_u24 v1, {m_g0}, v1'); a('v_add_u32 v1, v1, v4')
            a('v_lshrrev_b32 v4, 1, v2'); a(f'v_mul_u32_u24 v4, {m_r1}, v4'); a('v_add_u32 v1, v1, v4')
            a('v_and_b32 v2, 1, v2'); a('v_add_u32 v1, v1, v2')
        a(f'v_mul_u32_u24 v1, {rowpitch}, v1'); a(f'v_mul_u32_u24 v3, {colmul}, v3')
        a(f'v_add3_u32 v{d}, v1, v3, s{sStage}')

    def dma_addr64(g, d, pitch):
        a = g.a
        a('v_lshrrev_b32 v1, 2, v0'); a(f'v_mul_u32_u24 v1, {pitch}, v1')
        a('v_and_b32 v2, 3, v0'); a('v_lshlrev_b32 v2, 4, v2'); a(f'v_add_u32 v{d}, v1, v2')

    def colsum(g, NK, NT, vbase, vCS, wA, vOnes):
        a = g.a
        for i in range(4): a(f'v_mov_b32 v{vOnes+i}, 0x3f803f80')
        for ks in range(NK):
            for n in range(NT):
                w = wreg((ks*NT+n)*4, 4, vbase); d = v(vCS+4*n, 4); c = '0' if ks == 0 else d
                if wA: a(f'v_mfma_f32_16x16x32_bf16 {d}, {w}, {v(vOnes,4)}, {c}')
                else:  a(f'v_mfma_f32_16x16x32_bf16 {d}, {v(vOnes,4)}, {w}, {c}')

    def stat_addr(g, d, vori):
        a = g.a
        if not vori:
            a('v_and_b32 v1, 31, v0'); a('v_lshrrev_b32 v2, 5, v0')
        else:
            a('v_bfe_u32 v1, v0, 2, 1'); a('v_lshlrev_b32 v1, 4, v1')
            a('v_lshrrev_b32 v2, 4, v0'); a('v_lshlrev_b32 v2, 2, v2'); a('v_add_u32 v1, v1, v2')
            a('v_and_b32 v2, 3, v0'); a('v_add_u32 v1, v1, v2'); a('v_bfe_u32 v2, v0, 3, 1')
        a('v_lshlrev_b32 v1, 3, v1'); a('v_lshlrev_b32 v2, 10, v2'); a(f'v_add_u32 v{d}, v1, v2')

    def stat_loads(g, S, vAddr, base):
        return [[f's_lshl_b32 s{sT2}, s{sN}, 11', f's_add_u32 s{sT2}, s{sT2}, {base:#x}'] +
                [f'buffer_load_dwordx2 {v(S+2*i,2)}, v{vAddr}, {WS}, s{sT2} offen offset:{256*i} sc1' for i in range(4)]]

    def stat_math(g, S, R, vori):
        o = [f'v_add_f32 v{S}, v{S}, v{S+2}', f'v_add_f32 v{S+1}, v{S+1}, v{S+3}',
             f'v_add_f32 v{S+4}, v{S+4}, v{S+6}', f'v_add_f32 v{S+5}, v{S+5}, v{S+7}',
             f'v_add_f32 v{S}, v{S}, v{S+4}', f'v_add_f32 v{S+1}, v{S+1}, v{S+5}']
        if not vori:
            o += [f'v_permlane32_swap_b32 v{S}, v{S+1}', f'v_add_f32 v{S}, v{S}, v{S+1}', f'v_mov_b32 v{S+1}, v{S}',
                  f'v_permlane32_swap_b32 v{S}, v{S+1}']
        else:
            o += [f'v_add_f32_dpp v{S+2}, v{S}, v{S} row_ror:8 row_mask:0xf bank_mask:0xf',
                  f'v_add_f32_dpp v{S+3}, v{S+1}, v{S+1} row_ror:8 row_mask:0xf bank_mask:0xf',
                  f'v_mov_b32 v{S}, v{S+2}', f'v_mov_b32 v{S+1}, v{S+3}']
        k = fbits(1.0/1024)
        o += [f'v_mul_f32 v{S}, {k}, v{S}', f'v_mul_f32 v{S+1}, {k}, v{S+1}',
              f'v_fma_f32 v{S+1}, -v{S}, v{S}, v{S+1}', f'v_max_f32 v{S+1}, 0, v{S+1}',
              f'v_cvt_pk_bf16_f32 v{S+2}, v{S}, v{S+1}',
              f'v_lshlrev_b32 v{S}, 16, v{S+2}', f'v_and_b32 v{S+1}, 0xffff0000, v{S+2}',
              f'v_add_f32 v{S+1}, {fbits(1e-5)}, v{S+1}',
              f'v_cvt_pk_bf16_f32 v{S+1}, v{S+1}, v{S+1}', f'v_lshlrev_b32 v{S+1}, 16, v{S+1}',
              f'v_sqrt_f32 v{S+1}, v{S+1}',
              f'v_cvt_pk_bf16_f32 v{S+1}, v{S+1}, v{S+1}', f'v_lshlrev_b32 v{S+1}, 16, v{S+1}',
              f'v_rcp_f32 v{R}, v{S+1}',
              f'v_mul_f32 v{R+2}, v{S}, v{R}', f'v_sub_f32 v{R+2}, 0, v{R+2}',
              f'v_mov_b32 v{R+1}, v{R}', f'v_mov_b32 v{R+3}, v{R+2}']
        if not vori:
            o += [f'v_permlane16_swap_b32 v{R}, v{R+1}', f'v_permlane16_swap_b32 v{R+2}, v{R+3}']
        else:
            o += [f'v_mov_b32 v{S}, v{R}', f'v_mov_b32 v{S+1}, v{R+2}',
                  f'v_mov_b32_dpp v{R}, v{S} row_ror:4 row_mask:0xf bank_mask:0xa',
                  f'v_mov_b32_dpp v{R+1}, v{S} row_ror:4 row_mask:0xf bank_mask:0x5',
                  f'v_mov_b32_dpp v{R+2}, v{S+1} row_ror:4 row_mask:0xf bank_mask:0xa',
                  f'v_mov_b32_dpp v{R+3}, v{S+1} row_ror:4 row_mask:0xf bank_mask:0x5']
        return o

    def row_stats(g, X, D, T):
        a = g.a
        a(f'v_mov_b32 v{T}, 0x3f803f80')
        for i in range(len(X[0])):
            for t in range(2):
                c0 = '0' if i == 0 else f'v{D+t}'; c1 = '0' if i == 0 else f'v{D+2+t}'
                a(f'v_dot2_f32_bf16 v{D+t}, v{X[t][i]}, v{T}, {c0}')
                a(f'v_dot2_f32_bf16 v{D+2+t}, v{X[t][i]}, v{X[t][i]}, {c1}')
        a(f'v_permlane32_swap_b32 v{D}, v{D+1}'); a(f'v_permlane32_swap_b32 v{D+2}, v{D+3}')
        a(f'v_add_f32 v{D}, v{D}, v{D+1}'); a(f'v_add_f32 v{D+2}, v{D+2}, v{D+3}')
        a(f'v_permlane16_swap_b32 v{D}, v{D+2}')
        a(f'v_add_f32 v{D}, v{D}, v{D+2}')

    def stat_store_addr(g, d):
        a = g.a
        a('v_lshrrev_b32 v1, 5, v0'); a('v_lshlrev_b32 v1, 7, v1')
        a('v_and_b32 v2, 15, v0'); a('v_lshlrev_b32 v2, 3, v2'); a('v_add_u32 v1, v1, v2')
        a('v_bfe_u32 v2, v0, 4, 1'); a('v_lshlrev_b32 v2, 2, v2'); a(f'v_add_u32 v{d}, v1, v2')

    def half_tile_addr(g, d, sTile):
        a = g.a
        a(f's_lshr_b32 s{sT0}, s{sTile}, 1'); a(f's_lshl_b32 s{sT0}, s{sT0}, 11')
        a(f's_and_b32 s{sT1}, s{sTile}, 1'); a(f's_lshl_b32 s{sT1}, s{sT1}, 9'); a(f's_add_u32 s{sT0}, s{sT0}, s{sT1}')
        a('v_bfe_u32 v1, v0, 4, 1'); a('v_lshlrev_b32 v1, 10, v1')
        a('v_lshrrev_b32 v2, 5, v0'); a('v_lshlrev_b32 v2, 8, v2'); a('v_add_u32 v1, v1, v2')
        a('v_and_b32 v2, 15, v0'); a('v_lshlrev_b32 v2, 4, v2'); a(f'v_add3_u32 v{d}, v1, v2, s{sT0}')

    def poll_addr(g, d, sFirst, count, group):
        a = g.a
        a(f'v_min_u32 v1, {count-1}, v0'); a(f'v_add_u32 v1, s{sFirst}, v1')
        a(f'v_mul_u32_u24 v1, {FS}, v1'); a(f'v_add_u32 v{d}, {FOFF[group]}, v1')

    def my_flag(g, d, sIndex, group, nl=1):
        a = g.a
        a(f's_mul_i32 s{sT0}, s{sIndex}, {FS}'); a(f's_add_u32 s{sT0}, s{sT0}, {FOFF[group]}')
        g.lane0_off(d, sT0, nl, FS if nl > 1 else 0)

    def ws_loop(g, name, NK, NT, wA, vbase, R, lag, src_base, src_stride, sSrcC, code,
                KP, KM, top=(), pre=(), post=(), extra=None, epi=None, cinit=None, pub_shift=0, mid=None):
        a = g.a; c = g.c; PF = c.PF; nset = PF + 1
        BUF = NK * 2048; nd = NK // 2
        TOP, TOP2, SLOW, EXIT = (f'L{name}_{x}' for x in ('top', 'top2', 'slow', 'exit'))
        fr = lambda ks, t: v(R['fr'] + ((ks % nset) * 2 + t) * 4, 4)
        def rd(ks, t):
            off = ks * 2048 + t * 1024
            return f'ds_read_b128 {fr(ks,t)}, v{R["rd"] + (off >> 16)} offset:{off & 0xffff}'
        def prep():
            o = [f's_mul_i32 s{sSrc}, s{sNx}, {src_stride:#x}', f's_add_u32 s{sSrc}, s{sSrc}, {src_base:#x}']
            if sSrcC is not None: o.append(f's_add_u32 s{sSrc}, s{sSrc}, s{sSrcC}')
            o += [f's_sub_u32 s{sM0}, {BUF}, s{sBuf}', f's_add_u32 s{sM0}, s{sM0}, s{sWoff}']
            return o
        def dma(srd):
            o = []
            for i in range(nd):
                grp = []
                if i % 4 == 0:
                    if i: grp.append(f's_add_u32 s{sSrc}, s{sSrc}, 4096')
                    grp.append(f's_add_u32 m0, s{sM0}, {i*1024}')
                grp.append(f'buffer_load_dwordx4 v{R["dma"]}, {srd}, s{sSrc} offen offset:{(i%4)*1024} sc1 lds')
                o.append(grp)
            return o
        pub = f'buffer_store_dword v{R["fval"]}, v{R["my"]}, {WS}, s{sPFl} offen sc1'
        a(f's_mul_i32 s{sWoff}, s{sW}, {nd*1024}')
        a(f'v_add_u32 v{R["dma"]}, s{sWoff}, v{R["l16"]}')
        a(f's_mov_b32 s{sNx}, 0'); a(f's_mov_b32 s{sBuf}, {BUF}'); a(f's_mov_b32 s{sN}, 0')
        a(f's_mov_b32 s{sPFl}, {OOB:#x}'); a(f'v_mov_b32 v{R["fval"]}, 0')
        for t in g.need_fl(sNx, sNeed, sFl): a(t)
        a(f's_branch {SLOW}')
        a('.p2align 6')
        a(f'{TOP}:')
        wait_at = len(a.L); a('s_waitcnt vmcnt(0)')
        a(f'{TOP2}:')
        a('s_barrier')
        a(f's_sub_u32 s{sBuf}, {BUF}, s{sBuf}')
        a(f'v_add_u32 v{R["rd"]}, s{sBuf}, v{R["l16"]}')
        for ks in range(PF):
            for t in range(2): a(rd(ks, t))
        if BUF > 65536: a(f'v_add_u32 v{R["rd"]+1}, 0x10000, v{R["rd"]}')
        a(f's_mov_b32 s{sN}, s{sNx}')
        for t in g.stamp(0): a(t)
        for t in g.next_n(sNx, sN, lag): a(t)
        items = []
        items.append((0, g.need_fl(sNx, sNeed, sFl)))
        for grp in top: items.append((0, grp))
        items.append((KP, [f'buffer_load_dword v{R["poll"]}, v{R["poff"]}, {WS}, s{sFl} offen sc1']))
        for k, t in pre: items.append((k, t if isinstance(t, list) else [t]))
        items.append((KP, prep()))
        m = ['s_waitcnt vmcnt(0)', pub, f'v_cmp_le_u32 vcc, s{sNeed}, v{R["poll"]}', 's_cmp_eq_u64 vcc, -1',
             f's_cselect_b32 s10, {WS_BYTES:#x}, 0', f's_cselect_b32 s{sRdy}, 1, 0'] + g.stamp(1)
        items.append((KM, m))
        if mid:
            for grp in mid: items.append((KM, grp))
        pf = dma(WSC) + (extra(WSC) if extra else [])
        span = NK - 2 - (KM + 1)
        for i, grp in enumerate(pf): items.append((KM + 1 + (i * span) // len(pf), grp))
        np_ = len(post)
        for i, t in enumerate(post): items.append((KM + 1 + (i * (span - 2)) // max(np_, 1), [t]))
        items.sort(key=lambda x: x[0])
        fifo = [(k, t) for k, grp in items for t in grp]
        for ks in range(NK):
            a(f's_waitcnt lgkmcnt({2*(PF-1) if ks+PF <= NK else 2*(NK-1-ks)})')
            mand = [rd(ks + PF, 0), rd(ks + PF, 1)] if ks + PF < NK else []
            k = 0
            for t in range(2):
                for n in range(NT):
                    d = v(R['acc'] + (t * NT + n) * 4, 4)
                    cc = d if ks else (cinit(t, n) if cinit else '0')
                    w = wreg((ks * NT + n) * 4, 4, vbase)
                    if wA: a(f'v_mfma_f32_16x16x32_bf16 {d}, {w}, {fr(ks,t)}, {cc}')
                    else:  a(f'v_mfma_f32_16x16x32_bf16 {d}, {fr(ks,t)}, {w}, {cc}')
                    k += 1
                    slots = 1 if k == 2 * NT else 2
                    if mand: a(mand.pop(0)); slots -= 1
                    while slots > 0 and fifo and fifo[0][0] <= ks:
                        a(fifo.pop(0)[1]); slots -= 1
        for _, t in fifo: a(t)
        for t in g.stamp(2): a(t)
        nst = epi()
        a.L[wait_at] = f's_waitcnt vmcnt({nst})'
        for t in g.stamp(3): a(t)
        g.stamp_store(R['fr'], 4)
        a(f's_and_b32 s{sT0}, s{sN}, 63'); a(f's_add_u32 s{sT0}, s{sT0}, 1'); a(f'v_mov_b32 v{R["fval"]}, s{sT0}')
        if pub_shift == 0:
            a(f's_lshr_b32 s{sPFl}, s{sN}, 6'); a(f's_mul_i32 s{sPFl}, s{sPFl}, {FL_L:#x}')
        else:
            a(f's_cmp_lt_u32 s{sN}, 64'); a(f's_mov_b32 s{sPFl}, {OOB:#x}'); a(f's_cselect_b32 s{sPFl}, {FL_L:#x}, s{sPFl}')
        a(f's_cmp_lg_u32 s{sRdy}, 0'); a(f's_cbranch_scc1 {TOP}')
        a('s_waitcnt vmcnt(0)'); a(pub)
        a(f's_cmp_ge_u32 s{sNx}, {c.NEND}'); a(f's_cbranch_scc1 {EXIT}')
        a(f'{SLOW}:')
        g.spin_flags(R['poll'], R['poff'], sNeed, sFl, code)
        for t in prep(): a(t)
        for grp in dma(WS) + (extra(WS) if extra else []):
            for t in grp: a(t)
        a('s_waitcnt vmcnt(0)'); a(f's_branch {TOP2}')
        a(f'{EXIT}:'); a('s_waitcnt vmcnt(0)'); a('s_endpgm')
        g.flush_tail()

    def role_x0(g):
        a = g.a
        a('L_X0:')
        g.srd(12, P_X, 0x400000)
        xw = sC; vIn, vOut, vSt, vMy, D, T, X = 4, 5, 6, 7, 8, 12, 16
        a(f's_lshl_b32 s{xw}, s{sIdx}, 2'); a(f's_add_u32 s{xw}, s{xw}, s{sW}')
        a(f's_lshl_b32 s{sC+1}, s{xw}, 2')
        g.my_flag(vMy, sC + 1, 'XA', 4)
        g.zero_flags(vMy, (0,))
        g.arrive()
        g.v_j(1); a('v_lshlrev_b32 v1, 11, v1'); g.v_g(2); a('v_lshlrev_b32 v2, 4, v2')
        a(f's_lshl_b32 s{sT0}, s{xw}, 8'); a(f'v_add3_u32 v{vIn}, v1, v2, s{sT0}')
        a(f's_lshl_b32 s{sT0}, s{xw}, 13'); a(f'v_lshlrev_b32 v1, 4, v0'); a(f'v_add_u32 v{vOut}, s{sT0}, v1')
        g.stat_store_addr(vSt); a(f's_lshl_b32 s{sT0}, s{xw}, 8'); a(f'v_add_u32 v{vSt}, s{sT0}, v{vSt}')
        a(f's_mov_b32 s{sN}, 0')
        a('L_X0_loop:')
        reg = lambda b, ks, t: X + b * 32 + (ks * 2 + t) * 4
        for b in range(4):
            for t in range(2):
                a(f's_lshl_b32 s{sT0}, s{sN}, 16'); a(f's_add_u32 s{sT0}, s{sT0}, {b*65536 + t*32768}')
                for ks in range(4):
                    a(f'buffer_load_dwordx4 {v(reg(b,ks,t),4)}, v{vIn}, {W1}, s{sT0} offen offset:{ks*64}')
        a('s_waitcnt vmcnt(0)')
        for b in range(4):
            for h in range(2):
                a(f's_lshl_b32 s{sT0}, s{sN}, 16'); a(f's_add_u32 s{sT0}, s{sT0}, {XA + b*65536 + h*4096:#x}')
                for i in range(4):
                    a(f'buffer_store_dwordx4 {v(reg(b,2*h+i//2,i%2),4)}, v{vOut}, {WS}, s{sT0} offen offset:{i*1024} sc1')
            g.row_stats([[reg(b, ks, t) + i for ks in range(4) for i in range(4)] for t in range(2)], D, T)
            a(f's_lshl_b32 s{sT0}, s{sN}, 11'); a(f's_add_u32 s{sT0}, s{sT0}, {SA + b*2048:#x}')
            a(f'buffer_store_dword v{D}, v{vSt}, {WS}, s{sT0} offen sc1')
        a(f's_add_u32 s{sN}, s{sN}, 4')
        a(f'v_mov_b32 v{T+1}, s{sN}')
        a('s_waitcnt vmcnt(0)')
        a(f'buffer_store_dword v{T+1}, v{vMy}, {WS}, 0 offen sc1')
        a(f's_cmp_lt_u32 s{sN}, 64'); a('s_cbranch_scc1 L_X0_loop')
        a('s_waitcnt vmcnt(0)'); a('s_endpgm')
        g.flush_tail()

    def role_kv(g, isV):
        a = g.a; name = 'V' if isV else 'K'
        a(f'L_{name}:')
        g.srd(12, P_WV if isV else P_WK, 0x800000)
        VB = 128
        R = dict(acc=8, fr=32, rd=104, l16=105, dma=106, poff=107, poll=108, my=109, fval=110)
        CS, TMP, RS, vStat, vOut = 56, 68, 92, 111, 112
        S = 96
        wv, T0, stage = sC, sC + 1, sC + 2
        a(f's_lshl_b32 s{wv}, s{sIdx}, 2'); a(f's_add_u32 s{wv}, s{wv}, s{sW}'); a(f's_mul_i32 s{T0}, s{wv}, 3')
        g.my_flag(R['my'], wv, name); g.zero_flags(R['my']); g.arrive()
        a(f's_mul_i32 s{stage}, s{sW}, 40960')
        vA = 8
        for i in range(3):
            a(f'v_add_u32 v1, {64*i}, v0'); a('v_mul_u32_u24 v2, 171, v1'); a('v_lshrrev_b32 v2, 10, v2')
            a('v_mul_u32_u24 v3, 6, v2'); a('v_sub_u32 v3, v1, v3')
            a('v_lshlrev_b32 v2, 13, v2'); a('v_lshlrev_b32 v3, 4, v3'); a(f'v_add_u32 v{vA+i}, v2, v3')
        g.tr_addr(vA + 3, 96, 8, 8, stage)
        a(f's_lshl_b32 s{sC+3}, s{T0}, 5')
        chunks = [dict(dma=[(W1, vA + i, sC + 3, ks * 32 * 8192) for i in range(3)],
                       reads=[(wreg((ks * 3 + n) * 4 + 2 * hh, 2, VB), vA + 3, hh * 384 + n * 32) for n in range(3) for hh in range(2)])
                  for ks in range(32)]
        g.load_weights(chunks, 12, 3072, stage)
        g.colsum(32, 3, VB, CS, not isV, 8)
        a(f'v_lshlrev_b32 v{R["l16"]}, 4, v0')
        g.stat_addr(vStat, isV)
        a(f's_lshl_b32 s{sT2}, s{sW}, 3'); g.poll_addr(R['poff'], sT2, 8, 'XA')
        for n in range(3):
            a(f's_add_u32 s{sT2}, s{T0}, {n}')
            if isV:
                a(f's_lshl_b32 s{sT0}, s{sT2}, 10'); a(f'v_add_u32 v{vOut+n}, s{sT0}, v{R["l16"]}')
            else:
                g.half_tile_addr(vOut + n, sT2)
            a(f's_cmp_lt_u32 s{sT2}, 256'); a(f's_cselect_b32 s{sT0}, 0, {OOB:#x}'); a(f'v_add_u32 v{vOut+n}, s{sT0}, v{vOut+n}')
        g.wait_start(8, 1)
        a('s_barrier')
        post = g.stat_math(S, RS, isV)
        q = lambda r: f'quad_perm:[{r},{r},{r},{r}] row_mask:0xf bank_mask:0xf'
        for t in range(2):
            for n in range(3):
                for r in range(4):
                    d = TMP + (t * 3 + n) * 4 + r
                    if isV: post.append(f'v_mul_f32_dpp v{d}, v{RS+2+t}, v{CS+4*n} {q(r)}')
                    else:   post.append(f'v_mul_f32 v{d}, v{RS+2+t}, v{CS+4*n+r}')
        def epi():
            a(f's_lshl_b32 s{sT2}, s{sN}, 18'); a(f's_add_u32 s{sT2}, s{sT2}, {(VX if isV else KX):#x}')
            for n in range(3):
                o = R['fr'] + 4 * n
                for t in range(2):
                    d = TMP + (t * 3 + n) * 4; ac = R['acc'] + (t * 3 + n) * 4
                    for r in range(4):
                        if isV: a(f'v_fmac_f32_dpp v{d+r}, v{RS+t}, v{ac+r} {q(r)}')
                        else:   a(f'v_fmac_f32 v{d+r}, v{RS+t}, v{ac+r}')
                    a(f'v_cvt_pk_bf16_f32 v{o+2*t}, v{d}, v{d+1}'); a(f'v_cvt_pk_bf16_f32 v{o+2*t+1}, v{d+2}, v{d+3}')
            for n in range(3):
                o = R['fr'] + 4 * n
                if not isV:
                    a(f'v_permlane16_swap_b32 v{o}, v{o+2}'); a(f'v_permlane16_swap_b32 v{o+1}, v{o+3}')
                a(f'buffer_store_dwordx4 {v(o,4)}, v{vOut+n}, {WS}, s{sT2} offen sc1')
            return 3
        g.ws_loop(name, 32, 3, not isV, VB, R, g.c.LK, XA, 65536, None, 2 + isV, KP=4, KM=11,
                  top=g.stat_loads(S, vStat, SA), post=post, epi=epi)

    def build(g):
        a = g.a; c = g.c
        a('.amdgcn_target "amdgcn-amd-amdhsa--gfx950"')
        a('.text'); a(f'.globl {KNAME}'); a('.p2align 8'); a(f'.type {KNAME},@function'); a(f'{KNAME}:')
        a('s_cmp_ge_u32 s2, 0x100'); a('s_cbranch_scc1 L_done')
        a('s_load_dwordx8 s[24:31], s[0:1], 0'); a('s_load_dwordx4 s[32:35], s[0:1], 32')
        a('s_load_dwordx8 s[36:43], s[0:1], 64'); a('s_load_dwordx4 s[44:47], s[0:1], 96')
        a('v_lshrrev_b32 v1, 6, v0'); a(f'v_readfirstlane_b32 s{sW}, v1'); a('v_and_b32 v0, 63, v0')
        a(f's_and_b32 s{sG}, s2, 7'); a(f's_lshr_b32 s{sIdx}, s2, 3')
        a(f's_mov_b32 s{sTO}, 0'); a(f's_mov_b32 s{sN}, 0')
        a('s_waitcnt lgkmcnt(0)')
        g.srd(4, P_WS, WS_BYTES); g.srd(8, P_WS, WS_BYTES); g.srd(20, P_DBG, 256)
        table = [(2, 0, 32, 'QA', 0), (3, 0, 22, 'K', 0), (3, 22, 10, 'V', 0), (4, 0, 12, 'V', 10),
                 (4, 12, 16, 'DNP', 0), (4, 28, 2, 'X0', 0), (5, 0, 32, 'GU', 0), (6, 0, 24, 'GU', 32),
                 (6, 24, 8, 'DNF', 0), (7, 0, 24, 'WOP', 0), (7, 24, 8, 'WOF', 0)]
        for G in (0, 1): table += [(G, 0, 16, 'QK', 0), (G, 16, 8, 'VM', 0), (G, 24, 8, 'WM', 0)]
        a(f's_lshl_b32 s{sT0}, s{sG}, 5'); a(f's_add_u32 s{sT0}, s{sT0}, s{sIdx}')
        for x, f, n, role, off in table:
            if role[:2] not in c.roles and role not in c.roles: continue
            l = a.lab('disp')
            a(f's_sub_u32 s{sIdx}, s{sT0}, {x*32+f}'); a(f's_cmp_ge_u32 s{sIdx}, {n}'); a(f's_cbranch_scc1 {l}')
            if off: a(f's_add_u32 s{sIdx}, s{sIdx}, {off}')
            a(f's_branch L_{role}'); a(f'{l}:')
        g.arrive()
        a('s_waitcnt vmcnt(0)')
        a('L_done:'); a('s_endpgm')
        a('L_fail:')
        a(f's_lshl_b32 s{sT0}, s2, 16'); a(f's_lshl_b32 s{sT1}, s{sW}, 8'); a(f's_or_b32 s{sT0}, s{sT0}, s{sT1}')
        a(f's_or_b32 s{sT0}, s{sT0}, s{sN}'); a(f's_bitset1_b32 s{sT0}, 31')
        a(f'v_mov_b32 v1, s{sT0}'); a(f's_lshl_b32 s{sT1}, s{sCode}, 2'); a(f's_add_u32 s{sT1}, s{sT1}, 16'); a('v_mov_b32 v2, 0')
        a(f'buffer_store_dword v1, v2, {DBG}, s{sT1} offen sc1'); a('s_waitcnt vmcnt(0)'); a('s_endpgm')
        if 'X0' in c.roles: g.role_x0()
        if 'K' in c.roles: g.role_kv(False)
        if 'V' in c.roles: g.role_kv(True)
        import roles2
        roles2.emit(g)
        a('.section .rodata,"a"'); a('.p2align 6'); a(f'.amdhsa_kernel {KNAME}')
        for t in ('next_free_vgpr 512', 'next_free_sgpr 102', 'accum_offset 256', 'group_segment_fixed_size 0',
                  'kernarg_size 112', 'user_sgpr_count 2', 'user_sgpr_kernarg_segment_ptr 1', 'system_sgpr_workgroup_id_x 1'):
            a('.amdhsa_' + t)
        a('.end_amdhsa_kernel')
        lines, added = a.fix()
        head = ['; Persistent weight-stationary dataflow kernel (generated by my own script, gen/gen.py).',
                '; @launch grid=(256,1,1) block=(256,1,1) lds=163840']
        return '\n'.join(head + lines) + '\n'

def make(**kw):
    c = Cfg()
    for k, val in kw.items(): setattr(c, k, val)
    return Gen(c).build()

if __name__ == '__main__':
    out = sys.argv[1] if len(sys.argv) > 1 else 'interleave_layers__memory_aug_recurrent_mem_tr__glu_gated_geglu__prompt.s'
    open(out, 'w').write(make())
    print('wrote', out)
```

```python
FS=16
FCNT=dict(XA=32,XB=32,K=96,V=96,M=128,O=128,H=224,PW=96,PD=64)
FOFF={}; _o=0
for k,v in FCNT.items():
    FOFF[k]=_o*FS; _o+=v
FL_L=0x20000
assert _o*FS<=FL_L
RING=0x40000; RING_SZ=0x70000
R_MEM=0; R_OM=0x10000; R_TW=0x30000; R_VML=0x50000
SA=0x200000; SB=0x240000; STAMP=0x280000
XA=0x400000; XB=0xC00000; KX=0x1400000; VX=0x3400000; KVM=0x5400000
OX=0x6400000; HH=0x8400000; PW=0xA000000; PD=0xD000000
WS_BYTES=0x10000000
HH_U=112*2048
OOB=0x40000000
DN_K0=(0,38,76); DN_NK=(38,38,36)
```

```python
from gen import *

def role_gu(g):
    a = g.a
    a('L_GU:')
    g.srd(12, P_WG, 0x700000); g.srd(16, P_WU, 0x700000)
    R = dict(acc=8, fr=32, rd=104, l16=105, dma=106, poff=107, poll=108, my=109, fval=110)
    CS, TMP, RS, S, vStat, vOut, E = 56, 68, 92, 96, 111, 112, 116
    gw, stage = sC, sC + 2
    a(f's_lshl_b32 s{gw}, s{sIdx}, 2'); a(f's_add_u32 s{gw}, s{gw}, s{sW}')
    g.my_flag(R['my'], gw, 'H'); g.zero_flags(R['my']); g.arrive()
    a(f's_mul_i32 s{stage}, s{sW}, 40960')
    vA = 8
    a('v_lshrrev_b32 v1, 1, v0'); a('v_mul_u32_u24 v1, 7168, v1'); a('v_and_b32 v2, 1, v0'); a('v_lshlrev_b32 v2, 4, v2')
    a(f'v_add_u32 v{vA}, v1, v2')
    g.tr_addr(vA + 1, 32, 8, 8, stage)
    a(f's_lshl_b32 s{sC+3}, s{gw}, 5')
    chunks = [dict(dma=[((W1, W2)[n], vA, sC + 3, (2 * c2 + k) * 32 * 7168) for k in range(2) for n in range(2)],
                   reads=[(wreg(((2 * c2 + k) * 2 + n) * 4 + 2 * hh, 2, 0), vA + 1, (2 * k + n) * 1024 + hh * 128)
                          for k in range(2) for n in range(2) for hh in range(2)])
              for c2 in range(16)]
    g.load_weights(chunks, 10, 4096, stage)
    g.colsum(32, 2, 0, CS, True, 8)
    a(f'v_lshlrev_b32 v{R["l16"]}, 4, v0')
    g.stat_addr(vStat, False)
    a(f's_lshl_b32 s{sT2}, s{sW}, 3'); g.poll_addr(R['poff'], sT2, 8, 'XB')
    g.half_tile_addr(vOut, gw)
    ca = -2.0 * 0.7978845608028654 * 1.4426950408889634
    a(f's_mov_b32 s{sC+4}, {fbits(ca*0.044715)}'); a(f'v_mov_b32 v{vOut+1}, {fbits(ca)}')
    g.wait_start(8, 1)
    a('s_barrier')
    post = g.stat_math(S, RS, False)
    for t in range(2):
        for n in range(2):
            for r in range(4):
                post.append(f'v_mul_f32 v{TMP+(t*2+n)*4+r}, v{RS+2+t}, v{CS+4*n+r}')
    def epi():
        a(f's_mul_i32 s{sT2}, s{sN}, {HH_U:#x}'); a(f's_add_u32 s{sT2}, s{sT2}, {HH:#x}')
        idx = [(t, r) for t in range(2) for r in range(4)]
        G = lambda t, r: TMP + t * 8 + r
        U = lambda t, r: TMP + t * 8 + 4 + r
        for t in range(2):
            for n in range(2):
                for r in range(4):
                    a(f'v_fmac_f32 v{TMP+(t*2+n)*4+r}, v{RS+t}, v{R["acc"]+(t*2+n)*4+r}')
        for i, (t, r) in enumerate(idx): a(f'v_mul_f32 v{E+i}, v{G(t,r)}, v{G(t,r)}')
        for i, (t, r) in enumerate(idx): a(f'v_fma_f32 v{E+i}, v{E+i}, s{sC+4}, v{vOut+1}')
        for i, (t, r) in enumerate(idx): a(f'v_mul_f32 v{E+i}, v{E+i}, v{G(t,r)}')
        for i, (t, r) in enumerate(idx):
            a(f'v_exp_f32 v{E+i}, v{E+i}'); a(f'v_mul_f32 v{U(t,r)}, v{U(t,r)}, v{G(t,r)}')
        for i, (t, r) in enumerate(idx): a(f'v_add_f32 v{E+i}, 1.0, v{E+i}')
        for i, (t, r) in enumerate(idx): a(f'v_rcp_f32 v{E+i}, v{E+i}')
        for i, (t, r) in enumerate(idx): a(f'v_mul_f32 v{E+i}, v{E+i}, v{U(t,r)}')
        o = R['fr']
        for i in range(4): a(f'v_cvt_pk_bf16_f32 v{o+i}, v{E+2*i}, v{E+2*i+1}')
        a(f'v_permlane16_swap_b32 v{o}, v{o+2}'); a(f'v_permlane16_swap_b32 v{o+1}, v{o+3}')
        a(f'buffer_store_dwordx4 {v(o,4)}, v{vOut}, {WS}, s{sT2} offen sc1')
        return 1
    g.ws_loop('GU', 32, 2, True, 0, R, g.c.L, XB, 65536, None, 4, KP=1, KM=11,
              top=g.stat_loads(S, vStat, SB), post=post, epi=epi)

def role_proj(g, kind, fin):
    a = g.a; name = kind + ('F' if fin else 'P')
    isWO = kind == 'WO'
    nparts = 3 if isWO else 2
    NK = 32 if isWO else (36 if fin else 38)
    a(f'L_{name}:')
    g.srd(12, P_WO if isWO else P_WD, 0x800000 if isWO else 0x700000)
    VB = 208
    R = dict(acc=8, fr=32, rd=104, l16=106, dma=107, poff=108, poll=109, my=110, fval=111)
    vP, vSt, vX, vRow, vL4 = 112, 113, 114, 115, 116
    PR, RES, TMP = 120, 168, 176
    part, col, cw, stage, k0, src = sC, sC + 1, sC + 2, sC + 3, sC + 4, sC + 5
    if fin:
        a(f's_mov_b32 s{part}, {nparts}'); a(f's_mov_b32 s{col}, s{sIdx}')
    else:
        a(f's_lshr_b32 s{part}, s{sIdx}, 3'); a(f's_and_b32 s{col}, s{sIdx}, 7')
    a(f's_lshl_b32 s{cw}, s{col}, 2'); a(f's_add_u32 s{cw}, s{cw}, s{sW}')
    a(f's_mul_i32 s{k0}, s{part}, {32 if isWO else 38}')
    a(f's_lshl_b32 s{src}, s{k0}, 11')
    pg = 'PW' if isWO else 'PD'
    if fin:
        g.my_flag(R['my'], cw, 'XB' if isWO else 'XA'); g.zero_flags(R['my'], (0, 1) if isWO else (1,))
    else:
        a(f's_lshl_b32 s{sT2}, s{part}, 5'); a(f's_add_u32 s{sT2}, s{sT2}, s{cw}')
        g.my_flag(R['my'], sT2, pg); g.zero_flags(R['my'])
    g.arrive()
    a(f's_mul_i32 s{stage}, s{sW}, 40960')
    vA = 8
    g.dma_addr64(vA, 2048)
    g.tr_addr(vA + 1, 64, 4 if isWO else 8, 16, stage)
    a(f's_lshl_b32 s{sC+6}, s{k0}, 16'); a(f's_lshl_b32 s{sT0}, s{cw}, 6'); a(f's_add_u32 s{sC+6}, s{sC+6}, s{sT0}')
    hhs = 1024 if isWO else 256
    chunks = [dict(dma=[(W1, vA, sC + 6, (c2 * 64 + i * 16) * 2048) for i in range(4)],
                   reads=[(wreg(((2 * c2 + k) * 2 + n) * 4 + 2 * hh, 2, VB), vA + 1, k * 2048 + hh * hhs + n * 8)
                          for k in range(2) for n in range(2) for hh in range(2)])
              for c2 in range(NK // 2)]
    g.load_weights(chunks, 10, 4096, stage)
    a(f'v_lshlrev_b32 v{R["l16"]}, 4, v0')
    if isWO:
        a(f's_lshl_b32 s{sT2}, s{sW}, 3'); a(f's_add_u32 s{sT2}, s{sT2}, s{k0}'); g.poll_addr(R['poff'], sT2, 8, 'O')
    else:
        a(f's_mul_i32 s{sT2}, s{sW}, {NK//2}'); a(f's_and_b32 s{sT2}, s{sT2}, -2')
        a(f's_lshl_b32 s{sT1}, s{k0}, 1'); a(f's_add_u32 s{sT2}, s{sT2}, s{sT1}')
        g.poll_addr(R['poff'], sT2, 18 if fin else 20, 'H')
    a(f's_lshl_b32 s{sT0}, s{cw}, 12'); a(f'v_add_u32 v{vP}, s{sT0}, v{R["l16"]}')
    pbase = PW if isWO else PD; pstride = nparts * 0x20000
    src_base, src_stride = (OX, 0x40000) if isWO else (HH, HH_U)
    if not fin:
        a(f's_lshl_b32 s{sC+7}, s{part}, 17'); a(f's_add_u32 s{sC+7}, s{sC+7}, {pbase:#x}')
        g.wait_start(8, 1); a('s_barrier')
        def epi():
            a(f's_mul_i32 s{sT2}, s{sN}, {pstride:#x}'); a(f's_add_u32 s{sT2}, s{sT2}, s{sC+7}')
            for i in range(4):
                a(f'buffer_store_dwordx4 {v(R["acc"]+4*i,4)}, v{vP}, {WS}, s{sT2} offen offset:{i*1024} sc1')
            return 4
        g.ws_loop(name, NK, 2, True, VB, R, g.c.L, src_base, src_stride, src, 5 if isWO else 7, KP=1, KM=11, epi=epi)
        return
    a('v_subrev_u32 v1, 32, v0'); a(f'v_min_u32 v1, {nparts-1}, v1'); a('v_lshlrev_b32 v1, 5, v1'); a(f'v_add_u32 v1, s{cw}, v1')
    a(f'v_mul_u32_u24 v1, {FS}, v1'); a(f'v_add_u32 v1, {FOFF[pg]}, v1')
    a('v_cmp_gt_u32 vcc, 32, v0'); a(f'v_cndmask_b32 v{R["poff"]}, v1, v{R["poff"]}, vcc')
    a(f's_lshl_b32 s{sT0}, s{cw}, 11'); a(f'v_add_u32 v{vX}, s{sT0}, v{R["l16"]}')
    g.stat_store_addr(vSt); a(f's_lshl_b32 s{sT0}, s{col}, 8')
    a(f's_cmp_eq_u32 s{sW}, 0'); a(f's_cselect_b32 s{sT0}, s{sT0}, {OOB:#x}'); a(f'v_add_u32 v{vSt}, s{sT0}, v{vSt}')
    LST = 2 * NK * 2048
    a(f'v_lshlrev_b32 v{vL4}, 2, v0'); a(f'v_add_u32 v{vL4}, {LST}, v{vL4}')
    a(f's_lshl_b32 s{sT0}, s{sW}, 8'); a(f'v_add_u32 v{vL4+1}, s{sT0}, v{vL4}')
    if not isWO:
        g.srd(16, P_OUT, 0x400000)
        g.v_j(1); a('v_lshlrev_b32 v1, 11, v1'); g.v_g(2); a('v_lshlrev_b32 v2, 4, v2')
        a(f's_lshl_b32 s{sT0}, s{cw}, 6'); a(f'v_add3_u32 v{vRow}, v1, v2, s{sT0}')
    g.wait_start(8, 1); a('s_barrier')
    rbase = XA if isWO else XB
    def extra(srd):
        o = []
        for p in range(nparts):
            for i in range(4):
                grp = []
                if i == 0:
                    grp = [f's_mul_i32 s{sC+8}, s{sNx}, {pstride:#x}', f's_add_u32 s{sC+8}, s{sC+8}, {pbase + p*0x20000:#x}']
                o.append(grp + [f'buffer_load_dwordx4 {v(PR+p*16+i*4,4)}, v{vP}, {srd}, s{sC+8} offen offset:{i*1024} sc1'])
        o.append([f's_lshl_b32 s{sC+8}, s{sNx}, 16', f's_add_u32 s{sC+8}, s{sC+8}, {rbase:#x}',
                  f'buffer_load_dwordx4 {v(RES,4)}, v{vX}, {srd}, s{sC+8} offen sc1'])
        o.append([f'buffer_load_dwordx4 {v(RES+4,4)}, v{vX}, {srd}, s{sC+8} offen offset:1024 sc1'])
        return o
    pre = []
    for i in range(16):
        src_ = RES + i // 2
        pre.append(f'v_lshlrev_b32 v{TMP+i}, 16, v{src_}' if i % 2 == 0 else f'v_and_b32 v{TMP+i}, 0xffff0000, v{src_}')
    for p in range(1, nparts):
        for i in range(16): pre.append(f'v_add_f32 v{TMP+i}, v{TMP+i}, v{PR+p*16+i}')
    pre = [(1 + (i * 9) // len(pre), t) for i, t in enumerate(pre)]
    def epi():
        o = R['fr']; D = o + 8
        for i in range(16): a(f'v_add_f32 v{TMP+i}, v{TMP+i}, v{R["acc"]+i}')
        for i in range(8): a(f'v_cvt_pk_bf16_f32 v{o+i}, v{TMP+2*i}, v{TMP+2*i+1}')
        def ws_stores(base):
            a(f's_lshl_b32 s{sT2}, s{sN}, 16'); a(f's_add_u32 s{sT2}, s{sT2}, {base:#x}')
            for t in range(2): a(f'buffer_store_dwordx4 {v(o+4*t,4)}, v{vX}, {WS}, s{sT2} offen offset:{t*1024} sc1')
        if isWO:
            ws_stores(XB)
        else:
            l1, l2 = a.lab('dnl'), a.lab('dnj')
            a(f's_cmp_ge_u32 s{sN}, 64'); a(f's_cbranch_scc1 {l1}')
            ws_stores(XA + 64 * 65536)
            a(f's_branch {l2}'); a(f'{l1}:')
            a(f's_and_b32 s{sT2}, s{sN}, 63'); a(f's_lshl_b32 s{sT2}, s{sT2}, 16')
            a(f'buffer_store_dwordx4 {v(o,4)}, v{vRow}, {W2}, s{sT2} offen')
            a(f's_add_u32 s{sT2}, s{sT2}, 0x8000')
            a(f'buffer_store_dwordx4 {v(o+4,4)}, v{vRow}, {W2}, s{sT2} offen')
            a(f'{l2}:')
        g.row_stats([[o + 4 * t + i for i in range(4)] for t in range(2)], D, D + 4)
        a(f'ds_write_b32 v{vL4+1}, v{D}')
        a('s_waitcnt lgkmcnt(0)'); a('s_barrier')
        a(f'ds_read2st64_b32 {v(D,2)}, v{vL4} offset0:0 offset1:1'); a(f'ds_read2st64_b32 {v(D+2,2)}, v{vL4} offset0:2 offset1:3')
        a(f's_lshl_b32 s{sT2}, s{sN}, 11')
        if isWO: a(f's_add_u32 s{sT2}, s{sT2}, {SB:#x}')
        else:
            a(f's_add_u32 s{sT2}, s{sT2}, {SA + 64*2048:#x}'); a(f's_cmp_lt_u32 s{sN}, 64'); a(f's_cselect_b32 s{sT2}, s{sT2}, {OOB:#x}')
        a('s_waitcnt lgkmcnt(0)')
        a(f'v_add_f32 v{D}, v{D}, v{D+1}'); a(f'v_add_f32 v{D+2}, v{D+2}, v{D+3}'); a(f'v_add_f32 v{D}, v{D}, v{D+2}')
        a(f'buffer_store_dword v{D}, v{vSt}, {WS}, s{sT2} offen sc1')
        return 3
    g.ws_loop(name, NK, 2, True, VB, R, g.c.L, src_base, src_stride, src, 6 if isWO else 8, KP=1, KM=11,
              pre=pre, extra=extra, epi=epi, cinit=lambda t, n: v(PR + (t * 2 + n) * 4, 4), pub_shift=0 if isWO else 1)

def softmax(g, S, T, P, sScale, between=()):
    a = g.a
    for i in range(4): a(f'v_max3_f32 v{T+i}, v{S+3*i}, v{S+3*i+1}, v{S+3*i+2}')
    a(f'v_max3_f32 v{T}, v{T}, v{T+1}, v{T+2}'); a(f'v_max_f32 v{T}, v{T}, v{T+3}')
    a(f'v_mov_b32 v{T+1}, v{T}'); a(f'v_permlane16_swap_b32 v{T}, v{T+1}'); a(f'v_max_f32 v{T}, v{T}, v{T+1}')
    a(f'v_mov_b32 v{T+1}, v{T}'); a(f'v_permlane32_swap_b32 v{T}, v{T+1}'); a(f'v_max_f32 v{T}, v{T}, v{T+1}')
    a(f'v_mul_f32 v{T}, s{sScale}, v{T}')
    for i in range(12): a(f'v_fma_f32 v{S+i}, v{S+i}, s{sScale}, -v{T}')
    for i in range(12):
        a(f'v_exp_f32 v{S+i}, v{S+i}')
        if i >= 2 and i % 2 == 0: a(f'v_cvt_pk_bf16_f32 v{P+i//2-1}, v{S+i-2}, v{S+i-1}')
    for t in between: a(t)
    a(f'v_cvt_pk_bf16_f32 v{P+5}, v{S+10}, v{S+11}')

def softmax_sum(S, T):
    o = []
    for i in range(4): o += [f'v_add_f32 v{S+3*i}, v{S+3*i}, v{S+3*i+1}']
    for i in range(4): o += [f'v_add_f32 v{S+3*i}, v{S+3*i}, v{S+3*i+2}']
    o += [f'v_add_f32 v{S}, v{S}, v{S+3}', f'v_add_f32 v{S+6}, v{S+6}, v{S+9}', f'v_add_f32 v{T}, v{S}, v{S+6}',
          f'v_mov_b32 v{T+1}, v{T}', f'v_permlane16_swap_b32 v{T}, v{T+1}', f'v_add_f32 v{T}, v{T}, v{T+1}',
          f'v_mov_b32 v{T+1}, v{T}', f'v_permlane32_swap_b32 v{T}, v{T+1}', f'v_add_f32 v{T}, v{T}, v{T+1}',
          f'v_rcp_f32 v{T}, v{T}']
    return o

NEG = fbits(-1e30)

def role_qa(g):
    a = g.a
    a('L_QA:')
    g.srd(12, P_WQ, 0x800000); g.srd(16, P_WS, WS_BYTES)
    R = dict(acc=8, fr=32, rd=104, l16=105, dma=106, poff=107, poll=108, my=109, fval=110)
    CS, TMP, RS, S8, vStat = 56, 68, 92, 96, 111
    vA2, vA1, vP2, vPoll2, vQw, vQr, vKx, vKm, vVx, vVm, vOut = 112, 113, 114, 115, 116, 117, 118, 119, 120, 121, 122
    MK, Q, KXr, KMr, VXr, VMr, S, P = 124, 136, 152, 184, 200, 216, 224, 236
    O, T = 8, 244
    QX, AT = 131072, 139264
    hw, stage, sNeed2, sFl2, sRdy2, sSc = sC, sC + 2, sC + 4, sC + 5, sC + 6, sC + 7
    a(f's_lshl_b32 s{hw}, s{sIdx}, 2'); a(f's_add_u32 s{hw}, s{hw}, s{sW}')
    g.my_flag(R['my'], hw, 'O'); g.zero_flags(R['my']); g.arrive()
    a(f's_mul_i32 s{stage}, s{sW}, 40960')
    vA = 8
    g.dma_addr64(vA, 8192)
    g.tr_addr(vA + 1, 64, 8, 16, stage)
    a(f's_lshl_b32 s{sC+3}, s{hw}, 6')
    chunks = [dict(dma=[(W1, vA, sC + 3, (c2 * 64 + i * 16) * 8192) for i in range(4)],
                   reads=[(wreg(((2 * c2 + k) * 2 + n) * 4 + 2 * hh, 2, 0), vA + 1, k * 2048 + hh * 256 + n * 8)
                          for k in range(2) for n in range(2) for hh in range(2)])
              for c2 in range(16)]
    g.load_weights(chunks, 10, 4096, stage)
    g.colsum(32, 2, 0, CS, True, 8)
    l16 = R['l16']
    a(f'v_lshlrev_b32 v{l16}, 4, v0')
    g.stat_addr(vStat, False)
    a(f's_lshl_b32 s{sT2}, s{sW}, 3'); g.poll_addr(R['poff'], sT2, 8, 'XA')
    a(f's_lshl_b32 s{sT2}, s{sIdx}, 2'); g.poll_addr(vP2, sT2, 4, 'M')
    a(f's_lshl_b32 s{sT0}, s{hw}, 11'); a(f'v_add_u32 v{vA2}, s{sT0}, v{l16}')
    a(f's_lshl_b32 s{sT0}, s{hw}, 10'); a(f'v_add_u32 v{vA1}, s{sT0}, v{l16}')
    a(f's_lshl_b32 s{sT0}, s{sW}, 11'); a(f's_add_u32 s{sT0}, s{sT0}, {QX}'); a(f'v_add_u32 v{vQw}, s{sT0}, v{l16}')
    a(f's_and_b32 s{sC+8}, s{sW}, 1'); a(f's_lshr_b32 s{sC+9}, s{sW}, 1')
    a(f's_lshl_b32 s{sT0}, s{sC+8}, 10'); a(f's_add_u32 s{sT0}, s{sT0}, {QX}'); a(f'v_add_u32 v{vQr}, s{sT0}, v{l16}')
    a(f'v_add_u32 v{vKx}, {AT}, v{l16}')
    g.v_g(1); a('v_lshlrev_b32 v1, 7, v1'); a('v_and_b32 v2, 7, v0'); a('v_lshlrev_b32 v2, 4, v2'); a('v_add_u32 v1, v1, v2')
    a(f'v_add_u32 v{vKm}, {AT+16384}, v1')
    a(f's_lshl_b32 s{sT0}, s{sC+9}, 12'); a(f's_add_u32 s{sT0}, s{sT0}, {AT+8192}'); a(f'v_add_u32 v{vVx}, s{sT0}, v{l16}')
    a('v_and_b32 v1, 31, v0'); a('v_lshlrev_b32 v1, 4, v1')
    a(f's_lshl_b32 s{sT0}, s{sC+9}, 10'); a(f's_add_u32 s{sT0}, s{sT0}, {AT+16384+2048}'); a(f'v_add_u32 v{vVm}, s{sT0}, v1')
    a(f's_lshl_b32 s{sT0}, s{sIdx}, 13'); a(f's_lshl_b32 s{sT1}, s{sC+9}, 12'); a(f's_add_u32 s{sT0}, s{sT0}, s{sT1}')
    a(f's_lshl_b32 s{sT1}, s{sC+8}, 10'); a(f's_add_u32 s{sT0}, s{sT0}, s{sT1}'); a(f'v_add_u32 v{vOut}, s{sT0}, v{l16}')
    g.v_j(1); a(f's_lshl_b32 s{sT0}, s{sC+8}, 4'); a(f'v_add_u32 v1, s{sT0}, v1')
    g.v_g(2); a('v_lshlrev_b32 v2, 2, v2'); a(f'v_mov_b32 v4, {NEG}')
    for kt in range(2):
        for r in range(4):
            a(f'v_add_u32 v3, {16*kt+r}, v2'); a('v_cmp_gt_u32 vcc, v3, v1'); a(f'v_cndmask_b32 v{MK+4*kt+r}, 0, v4, vcc')
    a('v_cmp_lt_u32 vcc, 31, v0')
    for r in range(4): a(f'v_cndmask_b32 v{MK+8+r}, 0, v4, vcc')
    a(f's_mov_b32 s{sSc}, {fbits(SOFTC)}')
    g.wait_start(8, 1)
    a('s_barrier')
    post = g.stat_math(S8, RS, False)
    for t in range(2):
        for n in range(2):
            for r in range(4):
                post.append(f'v_mul_f32 v{TMP+(t*2+n)*4+r}, v{RS+2+t}, v{CS+4*n+r}')
    def att_dma(srd):
        return [[f's_lshl_b32 s{sC+10}, s{sN}, 18', f's_add_u32 s{sC+10}, s{sC+10}, {KX:#x}',
                 f's_lshl_b32 s{sC+11}, s{sW}, 11', f's_add_u32 m0, s{sC+11}, {AT}',
                 f'buffer_load_dwordx4 v{vA2}, {srd}, s{sC+10} offen sc1 lds'],
                [f'buffer_load_dwordx4 v{vA2}, {srd}, s{sC+10} offen offset:1024 sc1 lds'],
                [f's_add_u32 s{sC+10}, s{sC+10}, {VX-KX:#x}', f's_add_u32 m0, s{sC+11}, {AT+8192}',
                 f'buffer_load_dwordx4 v{vA2}, {srd}, s{sC+10} offen sc1 lds'],
                [f'buffer_load_dwordx4 v{vA2}, {srd}, s{sC+10} offen offset:1024 sc1 lds'],
                [f's_lshl_b32 s{sC+10}, s{sN}, 17', f's_add_u32 s{sC+10}, s{sC+10}, {KVM:#x}',
                 f's_lshr_b32 s{sC+11}, s{sC+11}, 1', f's_add_u32 m0, s{sC+11}, {AT+16384}',
                 f'buffer_load_dwordx4 v{vA1}, {srd}, s{sC+10} offen sc1 lds']]
    top = g.stat_loads(S8, vStat, SA) + [g.need_fl(sN, sNeed2, sFl2)]
    pre = [(1, f'buffer_load_dword v{vPoll2}, v{vP2}, {WS}, s{sFl2} offen sc1')]
    mid = [[f'v_cmp_le_u32 vcc, s{sNeed2}, v{vPoll2}', 's_cmp_eq_u64 vcc, -1',
            f's_cselect_b32 s18, {WS_BYTES:#x}, 0', f's_cselect_b32 s{sRdy2}, 1, 0']] + att_dma(W2)
    def epi():
        o = R['fr']
        for t in range(2):
            for n in range(2):
                d = TMP + (t * 2 + n) * 4
                for r in range(4): a(f'v_fmac_f32 v{d+r}, v{RS+t}, v{R["acc"]+(t*2+n)*4+r}')
                a(f'v_cvt_pk_bf16_f32 v{o+4*t+2*n}, v{d}, v{d+1}'); a(f'v_cvt_pk_bf16_f32 v{o+4*t+2*n+1}, v{d+2}, v{d+3}')
            a(f'ds_write_b128 v{vQw}, {v(o+4*t,4)} offset:{t*1024}')
        l1 = a.lab('qa')
        a(f's_cmp_lg_u32 s{sRdy2}, 0'); a(f's_cbranch_scc1 {l1}')
        g.spin_flags(vPoll2, vP2, sNeed2, sFl2, 10)
        for grp in att_dma(WS):
            for t in grp: a(t)
        a('s_waitcnt vmcnt(0)')
        a(f'{l1}:')
        a('s_waitcnt vmcnt(16) lgkmcnt(0)'); a('s_barrier')
        for es in range(4):
            a(f'ds_read_b128 {v(Q+4*es,4)}, v{vQr} offset:{es*2048}')
            for kt in range(2): a(f'ds_read_b128 {v(KXr+(es*2+kt)*4,4)}, v{vKx} offset:{es*2048+kt*1024}')
            a(f'ds_read_b128 {v(KMr+4*es,4)}, v{vKm} offset:{es*512}')
            if es == 2: break
        for es in range(4):
            a(f's_waitcnt lgkmcnt({(8,8,8,6)[es]})')
            for kt in range(3):
                A = v(KXr + (es * 2 + kt) * 4, 4) if kt < 2 else v(KMr + 4 * es, 4)
                c = v(MK + 4 * kt, 4) if es == 0 else v(S + 4 * kt, 4)
                a(f'v_mfma_f32_16x16x32_bf16 {v(S+4*kt,4)}, {A}, {v(Q+4*es,4)}, {c}')
            if es == 0:
                a(f'ds_read_b128 {v(Q+12,4)}, v{vQr} offset:{3*2048}')
                for kt in range(2): a(f'ds_read_b128 {v(KXr+(6+kt)*4,4)}, v{vKx} offset:{3*2048+kt*1024}')
                a(f'ds_read_b128 {v(KMr+12,4)}, v{vKm} offset:{3*512}')
            if es == 1:
                for i in range(4): a(f'ds_read_b128 {v(VXr+4*i,4)}, v{vVx} offset:{i*1024}')
            if es == 2:
                for i in range(2): a(f'ds_read_b128 {v(VMr+4*i,4)}, v{vVm} offset:{i*512}')
        a(f's_lshl_b32 s{sT2}, s{sN}, 18'); a(f's_add_u32 s{sT2}, s{sT2}, {OX:#x}')
        softmax(g, S, T, P, sSc)
        a('s_waitcnt lgkmcnt(0)')
        ss = softmax_sum(S, T)
        for i in range(4):
            a(f'v_mfma_f32_16x16x32_bf16 {v(O+4*i,4)}, {v(VXr+4*i,4)}, {v(P,4)}, 0')
            for _ in range(2): a(ss.pop(0))
        for i in range(4):
            a(f'v_mfma_f32_16x16x16_bf16 {v(O+4*i,4)}, {v(VMr+2*i,2)}, {v(P+4,2)}, {v(O+4*i,4)}')
            for _ in range(2): a(ss.pop(0))
        for t in ss: a(t)
        for i in range(16): a(f'v_mul_f32 v{O+i}, v{T}, v{O+i}')
        for i in range(8): a(f'v_cvt_pk_bf16_f32 v{o+i}, v{O+2*i}, v{O+2*i+1}')
        for i in range(2): a(f'buffer_store_dwordx4 {v(o+4*i,4)}, v{vOut}, {WS}, s{sT2} offen offset:{i*2048} sc1')
        return 2
    g.ws_loop('QA', 32, 2, True, 0, R, g.c.L, XA, 65536, None, 9, KP=1, KM=11,
              top=top, pre=pre, post=post, mid=mid, epi=epi)

def emit(g):
    r = g.c.roles
    if 'GU' in r: role_gu(g)
    if 'WO' in r: role_proj(g, 'WO', False); role_proj(g, 'WO', True)
    if 'DN' in r: role_proj(g, 'DN', False); role_proj(g, 'DN', True)
    if 'QA' in r: role_qa(g)
    import roles3
    roles3.emit(g)
```

```python
from gen import *
from roles2 import softmax, softmax_sum, NEG

VB = 96
RESW = 24576
STG = 98304
sR0, sStage, sWb = sC, sC + 1, sC + 2
sN1, sN2 = sNx, sC + 3

class Lg:
    def __init__(s, a): s.a = a; s.q = []
    def rd(s, tag, text): s.q.append(tag); return text
    def wait(s, tag):
        if tag not in s.q: return None
        i = len(s.q) - 1 - s.q[::-1].index(tag)
        n = len(s.q) - 1 - i; s.q = s.q[i + 1:]
        assert n <= 15
        return f's_waitcnt lgkmcnt({n})'

def glue(l):
    o = []
    for t in l:
        if t.startswith('s_cselect'): o[-1] += '\n' + t
        else: o.append(t)
    return o

def frag_map(resident, nsteps, ntiles):
    m = {}; r = 0; l = 0
    for st in range(nsteps):
        for n in range(ntiles):
            if resident(st, n): m[st, n] = ('l', l); l += 1
            else: m[st, n] = ('r', r); r += 8
    assert l == 12 and r == 416
    return m

def chain_setup(g, vIdx, vL16, vRes):
    a = g.a
    a(f's_mul_i32 s{sR0}, s{sG}, {RING_SZ:#x}'); a(f's_add_u32 s{sR0}, s{sR0}, {RING:#x}')
    a(f's_lshl_b32 s{sStage}, s{sW}, 14'); a(f's_add_u32 s{sStage}, s{sStage}, {STG}')
    a(f'v_lshlrev_b32 v{vL16}, 4, v0')
    a(f's_mul_i32 s{sT0}, s{sW}, {RESW}'); a(f'v_add_u32 v{vRes}, s{sT0}, v{vL16}')
    a('v_mov_b32 v1, 0x4444'); a('v_mov_b32 v2, 0xeeee'); a('v_and_b32 v3, 8, v0'); a('v_cmp_eq_u32 vcc, 0, v3')
    a(f'v_cndmask_b32 v{vIdx}, v2, v1, vcc')

def poison_init(g, vAddr, sOff, sub, slot_bytes, width, first=0):
    a = g.a
    for i in range(4): a(f'v_mov_b32 v{16+i}, -1')
    for l in range(2):
        for sl in range(first, 4):
            a(f's_add_u32 s{sT0}, s{sR0}, {l*2*RING_SZ + sub + sl*slot_bytes:#x}'); a(f's_add_u32 s{sT0}, s{sT0}, s{sOff}')
            a(f'buffer_store_dwordx{width} {v(16,width)}, v{vAddr}, {WS}, s{sT0} offen sc1')

def chain_load(g, fm, chunk_src, nsteps, npairs, vRes, rowmap, qimm, pitch):
    a = g.a
    vA, vTr, TMPR = 20, 21, 24
    g.dma_addr64(vA, pitch)
    g.tr_addr(vTr, 64, 0, 8, sStage, chain=rowmap)
    chunks = []
    for st in range(nsteps):
        for p in range(npairs):
            srd, pre, sb, imm, tiles = chunk_src(st, p)
            ch = dict(pre=pre, dma=[(srd, vA, sb, imm + i * 16 * pitch) for i in range(4)], reads=[], post=[])
            for k, n in enumerate(tiles):
                kind, idx = fm[st, n]
                for q in range(4):
                    dest = wreg(idx + 2 * q, 2, VB) if kind == 'r' else v(TMPR + 8 * k + 2 * q, 2)
                    ch['reads'].append((dest, vTr, qimm(q) * 64 + k * 32))
                if kind == 'l':
                    for hh in range(2):
                        ch['post'].append(f'ds_write_b128 v{vRes}, {v(TMPR+8*k+4*hh,4)} offset:{idx*2048+hh*1024}')
            if ch['post']: ch['post'].append('s_waitcnt lgkmcnt(0)')
            chunks.append(ch)
    g.load_weights(chunks, 4, 4096, sStage)

def pick_mode(g, name):
    a = g.a
    g.wait_start(16, 1)
    a(f'v_readfirstlane_b32 s{sT0}, v17'); a(f'v_readfirstlane_b32 s{sT1}, v18')
    a(f's_cmp_eq_u32 s{sG}, 0'); a(f's_cselect_b32 s{sT0}, s{sT0}, s{sT1}')
    a(f's_bcnt1_i32_b32 s{sRdy}, s{sT0}')
    if g.c.force_safe: a(f's_mov_b32 s{sRdy}, 2')
    a('s_barrier')

def ring_off(dst, n, sub, shift, add, extra):
    o = [f's_add_u32 s{dst}, s{n}, {add}', f's_and_b32 s{dst}, s{dst}, 3'] if add else [f's_and_b32 s{dst}, s{n}, 3']
    o += [f's_lshl_b32 s{dst}, s{dst}, {shift}', f's_add_u32 s{dst}, s{dst}, s{sBuf}']
    if sub: o.append(f's_add_u32 s{dst}, s{dst}, {sub:#x}')
    if extra is not None: o.append(f's_add_u32 s{dst}, s{dst}, s{extra}')
    return o

def ring_base(n):
    return [f's_cmp_lt_u32 s{n}, 64', f's_cselect_b32 s{sBuf}, 0, {2*RING_SZ:#x}', f's_add_u32 s{sBuf}, s{sBuf}, s{sR0}']

def check4(t, d):
    return [f'v_max3_u32 v{t}, v{d}, v{d+1}, v{d+2}', f'v_max_u32 v{t}, v{t}, v{d+3}', f'v_cmp_eq_u32 vcc, -1, v{t}']

def gather_mem(g, G, vL16, sMem, T, code, first=()):
    a = g.a; l = a.lab('gm'); l2 = a.lab('gm2')
    for i in range(4): a(f'buffer_load_dwordx4 {v(G+4*i,4)}, v{vL16}, {WS}, s{sMem} offen offset:{i*1024} sc1')
    for t in first: a(t)
    a(f's_branch {l2}')
    a(f'{l}:')
    for i in range(4): a(f'buffer_load_dwordx4 {v(G+4*i,4)}, v{vL16}, {WS}, s{sMem} offen offset:{i*1024} sc1')
    a(f'{l2}:')
    for i in range(4):
        a(f's_waitcnt vmcnt({3-i})')
        d = G + 4 * i
        if i == 0: a(f'v_max3_u32 v{T}, v{d}, v{d+1}, v{d+2}'); a(f'v_max_u32 v{T}, v{T}, v{d+3}')
        else: a(f'v_max3_u32 v{T}, v{T}, v{d}, v{d+1}'); a(f'v_max3_u32 v{T}, v{T}, v{d+2}, v{d+3}')
    a(f'v_cmp_eq_u32 vcc, -1, v{T}')
    a(f's_cbranch_vccnz {g.timeout(code, l)}')

def proj16(g, fm, order, ACC, G, AF, WB, vIdx, vStg, vRes, vT, early, late):
    a = g.a; lg = Lg(a)
    af = lambda st: v(G + 4 * st, 4) if st < 4 else v(AF + 4 * (st % 3), 4)
    def mm(st, n):
        kind, idx = fm[st, n]
        B = wreg(idx, 8, VB) if kind == 'r' else v(WB + 8 * (idx % 2), 8)
        return f'v_smfmac_f32_16x16x64_bf16 {v(ACC+4*n,4)}, {af(st)}, {B}, v{vIdx}'
    def rdA(st):
        o = [f'v_xor_b32 v{vT}, {(st>>2)<<12}, v{vStg}'] if st % 4 == 0 else []
        return o + [lg.rd(('A', st), f'ds_read_b128 {af(st)}, v{vT} offset:{(st&3)*1024}')]
    def rdW(st):
        idx = st - 4
        return [lg.rd(('W', st), f'ds_read_b128 {v(WB+8*(idx%2)+4*hh,4)}, v{vRes} offset:{idx*2048+hh*1024}') for hh in range(2)]
    for i in range(4): a(f'ds_write_b128 v{vStg}, {v(G+4*i,4)} offset:{i*1024}')
    for n in order: a(mm(0, n))
    a('s_waitcnt lgkmcnt(0)'); a('s_barrier')
    fill = rdA(4) + rdW(4) + rdA(5) + rdW(5) + rdA(6) + list(early)
    per = -(-len(fill) // 12)
    for st in range(1, 4):
        for n in order:
            a(mm(st, n))
            for _ in range(max(per, 2)):
                if fill: a(fill.pop(0))
    for t in fill: a(t)
    carry = []
    for st in range(4, 16):
        w = lg.wait(('A', st))
        if w: a(w)
        for k, n in enumerate(order):
            if k == 3:
                w = lg.wait(('W', st))
                if w: a(w)
            a(mm(st, n))
            if k == 0 and st >= 5 and st + 1 < 16:
                for t in rdW(st + 1): a(t)
            if k == 1 and st >= 5 and st + 2 < 16:
                for t in rdA(st + 2): a(t)
            if k == 2:
                for t in late(lg, st): a(t)
    return lg

def role_qk(g):
    a = g.a; c = g.c
    a('L_QK:')
    g.srd(12, P_WQ, 0x800000); g.srd(16, P_WK, 0x800000)
    vIdx, vL16, vStg, vRes, vXw, vXr, vOst, vKm, vVm, vPoff, vMy, vPoll, vMask = 5, 6, 7, 8, 9, 10, 11, 12, 13, 14, 15, 4, 3
    vT0, vT1, vT2 = 0, 1, 2
    ACC, G, AF, WB, KX2, VMf = 16, 32, 48, 60, 76, 92
    F, S, VXf, P, T2, O, OUT, PZ = 48, 64, 16, 24, 30, 32, 40, 44
    KVB, EXC = 114688, 147456
    hw, sOo, sVo, sKV, sSc, sMem, sW12, sFv = sC + 4, sC + 5, sC + 6, sC + 7, sC + 8, sC + 9, sC + 10, sC + 11
    chain_setup(g, vIdx, vL16, vRes)
    a(f's_lshl_b32 s{hw}, s{sG}, 4'); a(f's_add_u32 s{hw}, s{hw}, s{sIdx}'); a(f's_lshl_b32 s{hw}, s{hw}, 2'); a(f's_add_u32 s{hw}, s{hw}, s{sW}')
    g.my_flag(vMy, hw, 'M'); g.zero_flags(vMy)
    g.v_g(1); a('v_lshlrev_b32 v1, 8, v1'); a('v_and_b32 v2, 7, v0'); a('v_lshlrev_b32 v2, 4, v2'); a('v_add_u32 v1, v1, v2')
    a(f'v_mov_b32 v3, {OOB:#x}'); a('v_and_b32 v4, 8, v0'); a('v_cmp_eq_u32 vcc, 0, v4')
    a(f'v_cndmask_b32 v{vOst}, v1, v3, vcc')
    g.v_g(1); a('v_lshlrev_b32 v1, 7, v1'); a('v_add_u32 v1, v1, v2'); a(f'v_cndmask_b32 v{vKm}, v3, v1, vcc')
    a(f's_lshl_b32 s{sOo}, s{sIdx}, 11'); a(f's_lshr_b32 s{sT0}, s{sW}, 1'); a(f's_lshl_b32 s{sT0}, s{sT0}, 10'); a(f's_add_u32 s{sOo}, s{sOo}, s{sT0}')
    a(f's_and_b32 s{sT0}, s{sW}, 1'); a(f's_lshl_b32 s{sT0}, s{sT0}, 7'); a(f's_add_u32 s{sOo}, s{sOo}, s{sT0}')
    poison_init(g, vOst, sOo, R_OM, 0x8000, 4)
    g.arrive(chain=True)
    fm = frag_map(lambda st, n: st >= 4 and n == 3, 16, 4)
    def src(st, p):
        pre = []
        if p == 0:
            pre = [f's_xor_b32 s{sWb}, s{sW}, {st>>2}', f's_lshl_b32 s{sWb}, s{sWb}, 21', f's_lshl_b32 s{sT0}, s{hw}, 6',
                   f's_add_u32 s{sWb}, s{sWb}, s{sT0}']
        return (W1, W2)[p], pre, sWb, (st & 3) * 64 * 8192, (2 * p, 2 * p + 1)
    chain_load(g, fm, src, 16, 2, vRes, (16, 4, 8), lambda q: 32 * (q >> 1) + 2 * (q & 1), 8192)
    a(f's_lshl_b32 s{sW12}, s{sW}, 12'); a(f's_add_u32 s{sT0}, s{sW12}, {STG}'); a(f'v_add_u32 v{vStg}, s{sT0}, v{vL16}')
    def exbase(src_):
        a(f'v_lshlrev_b32 v1, 10, v{src_}'); a(f'v_and_b32 v3, 1, v{src_}'); a('v_lshlrev_b32 v3, 5, v3'); a('v_add_u32 v1, v1, v3')
        a(f'v_lshrrev_b32 v3, 1, v{src_}'); a('v_lshlrev_b32 v3, 7, v3'); a('v_add_u32 v1, v1, v3')
    g.v_g(2); exbase(2); g.v_j(2); a('v_lshlrev_b32 v2, 3, v2')
    a(f's_lshl_b32 s{sT0}, s{sW}, 8'); a(f's_add_u32 s{sT0}, s{sT0}, {EXC}'); a(f'v_add3_u32 v{vXw}, v1, v2, s{sT0}')
    a('v_and_b32 v2, 3, v0'); exbase(2); g.v_g(2); a('v_lshlrev_b32 v2, 6, v2'); a('v_add_u32 v1, v1, v2')
    a('v_bfe_u32 v2, v0, 2, 2'); a('v_lshlrev_b32 v2, 3, v2'); a('v_add_u32 v1, v1, v2'); a(f'v_add_u32 v{vXr}, {EXC}, v1')
    a('v_and_b32 v1, 31, v0'); a(f'v_lshlrev_b32 v{vVm}, 4, v1')
    a(f's_lshl_b32 s{sVo}, s{sIdx}, 2'); a(f's_add_u32 s{sVo}, s{sVo}, s{sW}'); a(f's_lshl_b32 s{sVo}, s{sVo}, 9')
    a('v_and_b32 v1, 1, v0'); a(f's_lshl_b32 s{sT0}, s{hw}, 1'); a(f'v_add_u32 v1, s{sT0}, v1')
    a('v_mul_u32_u24 v1, 683, v1'); a('v_lshrrev_b32 v1, 11, v1'); a(f'v_mul_u32_u24 v1, {FS}, v1')
    a('v_bfe_u32 v2, v0, 1, 1'); a(f'v_mul_u32_u24 v2, {FOFF["V"]-FOFF["K"]}, v2'); a('v_add_u32 v1, v1, v2')
    a(f'v_add_u32 v{vPoff}, {FOFF["K"]}, v1')
    a(f'v_mov_b32 v1, {NEG}'); a('v_cmp_lt_u32 vcc, 31, v0'); a(f'v_cndmask_b32 v{vMask}, 0, v1, vcc')
    a(f's_mov_b32 s{sSc}, {fbits(SOFTC)}')
    pick_mode(g, 'QK')
    def kv_dma(n):
        return [f's_lshl_b32 s{sT2}, s{n}, 18', f's_lshl_b32 s{sT3}, s{hw}, 11', f's_add_u32 s{sT2}, s{sT2}, s{sT3}',
                f's_add_u32 s{sT2}, s{sT2}, {KX:#x}', f's_cmp_lt_u32 s{n}, {c.NEND}', f's_cselect_b32 s{sT2}, s{sT2}, {OOB:#x}',
                f's_sub_u32 s{sT3}, {2*KVB+16384}, s{sKV}', f's_lshr_b32 s{sT1}, s{sW12}, 1', f's_add_u32 s{sT3}, s{sT3}, s{sT1}',
                f's_mov_b32 m0, s{sT3}',
                f'buffer_load_dwordx4 v{vL16}, {WS}, s{sT2} offen sc1 lds',
                f'buffer_load_dwordx4 v{vL16}, {WS}, s{sT2} offen offset:1024 sc1 lds',
                f's_add_u32 s{sT2}, s{sT2}, {VX-KX:#x}', f's_add_u32 m0, s{sT3}, 8192',
                f'buffer_load_dwordx4 v{vL16}, {WS}, s{sT2} offen sc1 lds',
                f'buffer_load_dwordx4 v{vL16}, {WS}, s{sT2} offen offset:1024 sc1 lds']
    def need0(n):
        return g.need_fl(n, sNeed, sFl)[:-1] + [f's_cselect_b32 s{sNeed}, s{sNeed}, 0']
    a(f's_mov_b32 s{sN}, 0'); a(f's_mov_b32 s{sKV}, {KVB+16384}')
    for t in need0(sN): a(t)
    g.spin_flags(vPoll, vPoff, sNeed, sFl, 11)
    for t in kv_dma(sN): a(t)
    a(f's_mov_b32 s{sKV}, {KVB}')
    for t in g.next_n(sN1, sN, c.L) + need0(sN1): a(t)
    a(f'buffer_load_dword v{vPoll}, v{vPoff}, {WS}, s{sFl} offen sc1')
    a(f's_mov_b32 s{sPFl}, {OOB:#x}'); a(f's_mov_b32 s{sFv}, 0')
    a(f's_cmp_lg_u32 s{sRdy}, 1'); a('s_cbranch_scc1 LQK_top_s')
    for mode in ('f', 's'):
        LS = '' if mode == 'f' else ' sc1'
        TOP = f'LQK_top_{mode}'
        a('.p2align 6'); a(f'{TOP}:')
        for t in ring_base(sN) + ring_off(sMem, sN, R_MEM, 14, 0, sW12): a(t)
        gather_mem(g, G, vL16, sMem, vT0, 12, first=[f'v_mov_b32 v{ACC+i}, 0' for i in range(16)] + g.stamp(0))
        for t in g.stamp(1): a(t)
        lk, lk2 = a.lab('kvs'), a.lab('kvc')
        early = [f'v_mov_b32 v{vT1}, s{sFv}', f'buffer_store_dword v{vT1}, v{vMy}, {WS}, s{sPFl} offen sc1',
                 f'v_cmp_le_u32 vcc, s{sNeed}, v{vPoll}', 's_cmp_eq_u64 vcc, -1', f's_cbranch_scc0 {lk}\n{lk2}:'] + kv_dma(sN1) + \
                [f'v_add_u32 v{vT1}, s{sKV}, v{vL16}']
        g.tail.append([f'{lk}:', f'buffer_load_dword v{vPoll}, v{vPoff}, {WS}, s{sFl} offen sc1', 's_waitcnt vmcnt(0)',
                       f'v_cmp_le_u32 vcc, s{sNeed}, v{vPoll}', 's_cmp_eq_u64 vcc, -1', f's_cbranch_scc1 {lk2}',
                       f's_branch {g.timeout(13, lk)}'])
        kxr = lambda i: (G + 4 * i) if i < 4 else (KX2 + 4 * (i - 4))
        def late(lg, st):
            if st < 7 or st > 14: return []
            i = st - 7
            return [lg.rd(('K', i), f'ds_read_b128 {v(kxr(i),4)}, v{vT1} offset:{i*1024}')]
        proj16(g, fm, (0, 2, 1, 3), ACC, G, AF, WB, vIdx, vStg, vRes, vT0, early, late)
        for t in g.stamp(2): a(t)
        for t in ring_off(sMem, sN, R_VML, 15, 0, sVo): a(t)
        for n in range(2):
            q, k = ACC + 4 * n, ACC + 8 + 4 * n
            for r in range(4): a(f'v_permlane32_swap_b32 v{k+r}, v{q+r}')
            for r in range(4): a(f'v_add_f32 v{k+r}, v{k+r}, v{q+r}')
            a(f'v_cvt_pk_bf16_f32 v{q}, v{k}, v{k+1}'); a(f'v_cvt_pk_bf16_f32 v{q+1}, v{k+2}, v{k+3}')
            a(f'ds_write_b64 v{vXw}, {v(q,2)} offset:{n*128}')
        for r in range(4): a(f'v_mov_b32 v{S+8+r}, v{vMask}')
        a(f's_lshr_b32 s{sT0}, s{sW12}, 1'); a(f'v_add_u32 v{vT1}, s{sT0}, v{vT1}')
        a('s_waitcnt lgkmcnt(0)'); a('s_barrier')
        for es in range(4):
            for hh in range(2): a(f'ds_read_b64_tr_b16 {v(F+4*es+2*hh,2)}, v{vXr} offset:{es*256+hh*32}')
        for i in range(2): a(f'ds_read_b128 {v(VXf+4*i,4)}, v{vT1} offset:{8192+i*1024}')
        for es in range(4):
            a(f's_waitcnt lgkmcnt({8-2*es})')
            for kt in range(3):
                A = v(kxr(es * 2 + kt), 4) if kt < 2 else v(F + 4 * es, 4)
                cc = '0' if (es == 0 and kt < 2) else v(S + 4 * kt, 4)
                a(f'v_mfma_f32_16x16x32_bf16 {v(S+4*kt,4)}, {A}, {v(F+4*es,4)}, {cc}')
        vml = f'buffer_load_dwordx4 {v(VMf,4)}, v{vVm}, {WS}, s{sMem} offen sc1'
        a(vml)
        for t in ring_off(sT2, sN, R_OM, 15, 0, sOo): a(t)
        for t in g.stamp(3): a(t)
        softmax(g, S, P, P, sSc)
        a('s_waitcnt lgkmcnt(0)')
        ss = softmax_sum(S, T2)
        for i in range(2):
            a(f'v_mfma_f32_16x16x32_bf16 {v(O+4*i,4)}, {v(VXf+4*i,4)}, {v(P,4)}, 0')
            for _ in range(2): a(ss.pop(0))
        lv, lv2 = a.lab('vm'), a.lab('vmr')
        a(f'{lv}:'); a('s_waitcnt vmcnt(0)')
        for t in check4(vT0, VMf): a(t)
        a(f's_cbranch_vccnz {lv2}')
        g.tail.append([f'{lv2}:', vml, f's_branch {g.timeout(14, lv)}'])
        for i in range(2):
            a(f'v_mfma_f32_16x16x16_bf16 {v(O+4*i,4)}, {v(VMf+2*i,2)}, {v(P+4,2)}, {v(O+4*i,4)}')
        for t in ss: a(t)
        for i in range(8): a(f'v_mul_f32 v{O+i}, v{T2}, v{O+i}')
        for i in range(4): a(f'v_cvt_pk_bf16_f32 v{OUT+i}, v{O+2*i}, v{O+2*i+1}')
        a(f'buffer_store_dwordx4 {v(OUT,4)}, v{vOst}, {WS}, s{sT2} offen{LS}')
        for t in g.stamp(4): a(t)
        a(f's_lshr_b32 s{sT0}, s{sW12}, 4'); a(f'v_add_u32 v{vT0}, s{sT0}, v{vXr}')
        for hh in range(2): a(f'ds_read_b64_tr_b16 {v(KX2+2*hh,2)}, v{vT0} offset:{hh*32}')
        for i in range(4): a(f'v_mov_b32 v{PZ+i}, -1')
        for t in ring_off(sT2, sN, R_OM, 15, 2, sOo): a(t)
        a(f'buffer_store_dwordx4 {v(PZ,4)}, v{vOst}, {WS}, s{sT2} offen{LS}')
        a(f's_lshl_b32 s{sT2}, s{sN}, 17'); a(f's_lshr_b32 s{sT0}, s{hw}, 2'); a(f's_lshl_b32 s{sT0}, s{sT0}, 12')
        a(f's_add_u32 s{sT2}, s{sT2}, s{sT0}'); a(f's_lshr_b32 s{sT0}, s{sW12}, 3'); a(f's_add_u32 s{sT2}, s{sT2}, s{sT0}')
        a(f's_add_u32 s{sT2}, s{sT2}, {KVM:#x}')
        a(f'buffer_store_dwordx4 {v(VMf,4)}, v{vVm}, {WS}, s{sT2} offen offset:2048 sc1')
        a('s_waitcnt lgkmcnt(0)')
        a(f'buffer_store_dwordx4 {v(KX2,4)}, v{vKm}, {WS}, s{sT2} offen sc1')
        g.stamp_store(F, 5)
        for t in g.next_n(sN2, sN1, c.L) + need0(sN2): a(t)
        a(f'buffer_load_dword v{vPoll}, v{vPoff}, {WS}, s{sFl} offen sc1')
        a(f's_and_b32 s{sFv}, s{sN}, 63'); a(f's_add_u32 s{sFv}, s{sFv}, 1')
        a(f's_lshr_b32 s{sPFl}, s{sN}, 6'); a(f's_mul_i32 s{sPFl}, s{sPFl}, {FL_L:#x}')
        a(f's_sub_u32 s{sKV}, {2*KVB+16384}, s{sKV}')
        a(f's_add_u32 s{sT0}, s{sN}, 1')
        a(f's_mov_b32 s{sN}, s{sN1}'); a(f's_mov_b32 s{sN1}, s{sN2}')
        a(f's_cmp_lg_u32 s{sT0}, s{sN}'); a(f's_cbranch_scc1 {TOP}')
        a(f'v_mov_b32 v{vT1}, s{sFv}'); a('s_waitcnt vmcnt(0)')
        a(f'buffer_store_dword v{vT1}, v{vMy}, {WS}, s{sPFl} offen sc1')
        a(f's_cmp_lt_u32 s{sN}, {c.NEND}'); a(f's_cbranch_scc1 {TOP}')
        a('s_waitcnt vmcnt(0)'); a('s_endpgm')
        g.flush_tail()

def role_vm(g):
    a = g.a; c = g.c
    a('L_VM:')
    g.srd(12, P_WV, 0x800000)
    vIdx, vL16, vStg, vRes, vT0 = 5, 6, 7, 8, 0
    ACC, G, AF, WB, OUT, PZ = 16, 32, 48, 60, 76, 80
    sVo, sMem, sW12, sCol = sC + 4, sC + 5, sC + 6, sC + 7
    chain_setup(g, vIdx, vL16, vRes)
    a(f's_lshl_b32 s{sVo}, s{sIdx}, 2'); a(f's_add_u32 s{sVo}, s{sVo}, s{sW}')
    a(f's_lshl_b32 s{sCol}, s{sG}, 5'); a(f's_add_u32 s{sCol}, s{sCol}, s{sVo}'); a(f's_lshl_b32 s{sCol}, s{sCol}, 7')
    a(f's_lshl_b32 s{sVo}, s{sVo}, 10')
    poison_init(g, vL16, sVo, R_VML, 0x8000, 4)
    g.arrive(chain=True)
    fm = frag_map(lambda st, n: st >= 4 and n == 3, 16, 4)
    def src(st, p):
        pre = []
        if p == 0:
            pre = [f's_xor_b32 s{sWb}, s{sW}, {st>>2}', f's_lshl_b32 s{sWb}, s{sWb}, 21', f's_add_u32 s{sWb}, s{sWb}, s{sCol}']
        return W1, pre, sWb, (st & 3) * 64 * 8192 + p * 64, (2 * p, 2 * p + 1)
    chain_load(g, fm, src, 16, 2, vRes, (16, 4, 8), lambda q: 32 * (q >> 1) + 2 * (q & 1), 8192)
    a(f's_lshl_b32 s{sW12}, s{sW}, 12'); a(f's_add_u32 s{sT0}, s{sW12}, {STG}'); a(f'v_add_u32 v{vStg}, s{sT0}, v{vL16}')
    for i in range(4): a(f'v_mov_b32 v{PZ+i}, -1')
    pick_mode(g, 'VM')
    a(f's_mov_b32 s{sN}, 0')
    a(f's_cmp_lg_u32 s{sRdy}, 1'); a('s_cbranch_scc1 LVM_top_s')
    for mode in ('f', 's'):
        LS = '' if mode == 'f' else ' sc1'
        TOP = f'LVM_top_{mode}'
        a('.p2align 6'); a(f'{TOP}:')
        for t in ring_base(sN) + ring_off(sMem, sN, R_MEM, 14, 0, sW12): a(t)
        gather_mem(g, G, vL16, sMem, vT0, 15, first=[f'v_mov_b32 v{ACC+i}, 0' for i in range(16)] + g.stamp(0))
        for t in g.stamp(1): a(t)
        early = ring_off(sMem, sN, R_VML, 15, 0, sVo) + ring_off(sT2, sN, R_VML, 15, 2, sVo) + g.next_n(sN1, sN, c.L)
        proj16(g, fm, (0, 2, 1, 3), ACC, G, AF, WB, vIdx, vStg, vRes, vT0, early, lambda lg, st: [])
        for t in g.stamp(2): a(t)
        for n in range(2):
            x, y = ACC + 4 * n, ACC + 8 + 4 * n
            for r in range(4): a(f'v_permlane32_swap_b32 v{x+r}, v{y+r}')
            for r in range(4): a(f'v_add_f32 v{x+r}, v{x+r}, v{y+r}')
            a(f'v_cvt_pk_bf16_f32 v{OUT+2*n}, v{x}, v{x+1}'); a(f'v_cvt_pk_bf16_f32 v{OUT+2*n+1}, v{x+2}, v{x+3}')
        a(f'buffer_store_dwordx4 {v(OUT,4)}, v{vL16}, {WS}, s{sMem} offen{LS}')
        a(f'buffer_store_dwordx4 {v(PZ,4)}, v{vL16}, {WS}, s{sT2} offen{LS}')
        for t in g.stamp(3): a(t)
        g.stamp_store(AF, 4)
        a(f'v_xor_b32 v{vStg}, 0x4000, v{vStg}')
        a(f's_mov_b32 s{sN}, s{sN1}')
        a(f's_cmp_lt_u32 s{sN}, {c.NEND}'); a(f's_cbranch_scc1 {TOP}')
        a('s_waitcnt vmcnt(0)'); a('s_endpgm')
        g.flush_tail()

def role_wm(g):
    a = g.a; c = g.c
    a('L_WM:')
    g.srd(12, P_WO, 0x800000); g.srd(16, P_MEM0, 0x4000)
    vIdx, vL16, vRes, vRw, vRr, vL8, vT0 = 5, 6, 8, 9, 10, 11, 0
    PZ = 12
    ACC, GA, WB = 16, 48, 80
    RED, REDSZ = STG, 17408
    sTo, sMo, sW13, sOm, sOm2, sTw, sTp, sTr, sMs, sMp = (sC + 4 + i for i in range(10))
    chain_setup(g, vIdx, vL16, vRes)
    a(f'v_lshlrev_b32 v{vL8}, 3, v0')
    a(f's_lshl_b32 s{sMo}, s{sIdx}, 2'); a(f's_add_u32 s{sMo}, s{sMo}, s{sW}')
    a(f's_lshl_b32 s{sTo}, s{sMo}, 10')
    a('v_bfe_u32 v1, v0, 1, 3'); a('v_lshlrev_b32 v1, 11, v1'); a('v_and_b32 v2, 48, v0'); a('v_add_u32 v1, v1, v2')
    a('v_and_b32 v2, 1, v0'); a('v_lshlrev_b32 v2, 3, v2'); a('v_add_u32 v1, v1, v2')
    a(f's_lshl_b32 s{sT0}, s{sMo}, 6')
    a(f'buffer_load_dwordx2 v[20:21], v1, {W2}, s{sT0} offen')
    a(f's_lshl_b32 s{sMo}, s{sMo}, 9')
    poison_init(g, vL16, sTo, R_TW, 0x8000, 4)
    poison_init(g, vL8, sMo, R_MEM, 0x4000, 2, first=1)
    a('s_waitcnt vmcnt(0)')
    for l in range(2):
        a(f's_add_u32 s{sT0}, s{sR0}, {l*2*RING_SZ + R_MEM:#x}'); a(f's_add_u32 s{sT0}, s{sT0}, s{sMo}')
        a(f'buffer_store_dwordx2 v[20:21], v{vL8}, {WS}, s{sT0} offen sc1')
    g.arrive(chain=True)
    fm = frag_map(lambda st, n: n == 7 or (n == 3 and st >= 4), 8, 8)
    a(f's_lshl_b32 s{sWb}, s{sG}, 2'); a(f's_add_u32 s{sWb}, s{sWb}, s{sW}'); a(f's_lshl_b32 s{sWb}, s{sWb}, 20')
    a(f's_lshl_b32 s{sT0}, s{sIdx}, 8'); a(f's_add_u32 s{sWb}, s{sWb}, s{sT0}')
    chain_load(g, fm, lambda st, p: (W1, [], sWb, st * 64 * 2048 + p * 64, (2 * p, 2 * p + 1)), 8, 4, vRes,
               (4, 16, 32), lambda q: 8 * (q >> 1) + 2 * (q & 1), 2048)
    a('v_lshrrev_b32 v1, 5, v0'); a('v_mul_u32_u24 v1, 2176, v1')
    a('v_bfe_u32 v2, v0, 2, 2'); a('v_mul_u32_u24 v2, 544, v2'); a('v_add_u32 v2, v1, v2')
    a('v_and_b32 v3, 3, v0'); a('v_lshlrev_b32 v3, 5, v3'); a('v_add_u32 v2, v2, v3')
    a('v_and_b32 v3, 16, v0'); a('v_add_u32 v2, v2, v3')
    a(f's_lshl_b32 s{sT0}, s{sW}, 7'); a(f's_add_u32 s{sT0}, s{sT0}, {RED}'); a(f'v_add_u32 v{vRw}, s{sT0}, v2')
    a('v_bfe_u32 v2, v0, 4, 1'); a('v_lshlrev_b32 v2, 1, v2'); a('v_and_b32 v3, 1, v0'); a('v_add_u32 v2, v2, v3')
    a('v_mul_u32_u24 v2, 544, v2'); a('v_add_u32 v2, v1, v2')
    a('v_bfe_u32 v3, v0, 1, 3'); a('v_lshlrev_b32 v3, 2, v3'); a('v_add_u32 v2, v2, v3')
    a(f's_mul_i32 s{sT0}, s{sW}, 4352'); a(f's_add_u32 s{sT0}, s{sT0}, {RED}'); a(f'v_add_u32 v{vRr}, s{sT0}, v2')
    a(f's_lshl_b32 s{sW13}, s{sW}, 13')
    for i in range(4): a(f'v_mov_b32 v{PZ+i}, -1')
    a(f's_mov_b32 s{sSrc}, {REDSZ}')
    a(f's_cmp_eq_u32 s{sG}, 0'); a(f's_mov_b32 s{sM0}, {RING_SZ:#x}'); a(f's_cselect_b32 s{sM0}, s{sM0}, {(-RING_SZ)&0xffffffff:#x}')
    pick_mode(g, 'WM')
    a(f's_mov_b32 s{sN}, 0')
    a(f's_cmp_lg_u32 s{sRdy}, 1'); a('s_cbranch_scc1 LWM_top_s')
    uses = [(st, n) for st in range(8) for n in range(8) if fm[st, n][0] == 'l']
    for mode in ('f', 's'):
        LS = '' if mode == 'f' else ' sc1'
        TOP = f'LWM_top_{mode}'
        a('.p2align 6'); a(f'{TOP}:')
        lg = Lg(a)
        ld = lambda i: f'buffer_load_dwordx4 {v(GA+4*i,4)}, v{vL16}, {WS}, s{sOm if i < 4 else sOm2} offen offset:{(i&3)*1024} sc1'
        rdW = lambda u: [lg.rd(('W', u), f'ds_read_b128 {v(WB+8*(u%2)+4*hh,4)}, v{vRes} offset:{u*2048+hh*1024}') for hh in range(2)]
        for t in ring_base(sN) + ring_off(sOm, sN, R_OM, 15, 0, sW13): a(t)
        a(ld(0)); a(ld(1))
        a(f's_add_u32 s{sOm2}, s{sOm}, 4096')
        for t in rdW(0) + rdW(1): a(t)
        for i in range(32): a(f'v_mov_b32 v{ACC+i}, 0')
        for t in g.stamp(0): a(t)
        l0, l0r = a.lab('w0'), a.lab('w0r')
        a(f'{l0}:'); a('s_waitcnt vmcnt(1)')
        for t in check4(vT0, GA): a(t)
        a(f's_cbranch_vccnz {l0r}')
        g.tail.append([f'{l0r}:', ld(0), ld(1), f's_branch {g.timeout(16, l0)}'])
        for i in range(2, 8): a(ld(i))
        for t in g.stamp(1): a(t)
        fill = ring_off(sTw, sN, R_TW, 15, 0, sTo) + ring_off(sTp, sN, R_TW, 15, 2, sTo) + [f's_add_u32 s{sTr}, s{sTw}, s{sM0}'] + \
               ring_off(sMs, sN, R_MEM, 14, 1, sMo) + ring_off(sMp, sN, R_MEM, 14, 3, sMo) + g.next_n(sN1, sN, c.L)
        fill = glue(fill)
        pend = []
        for st in range(8):
            for n in range(8):
                kind, idx = fm[st, n]
                if kind == 'l':
                    w = lg.wait(('W', idx))
                    if w: a(w)
                B = wreg(idx, 8, VB) if kind == 'r' else v(WB + 8 * (idx % 2), 8)
                a(f'v_smfmac_f32_16x16x64_bf16 {v(ACC+4*n,4)}, {v(GA+4*st,4)}, {B}, v{vIdx}')
                had = bool(pend)
                for t in pend: a(t)
                pend = []
                if kind == 'l' and idx + 2 < 12: pend = rdW(idx + 2)
                if st < 7:
                    i = st + 1
                    ck = check4(vT0, GA + 4 * i)
                    if n == 5: a(f's_waitcnt vmcnt({7-i})'); a(ck[0])
                    if n == 6: a(ck[1]); a(ck[2])
                    if n == 7:
                        lb, lc, lb2 = a.lab('wb'), a.lab('wc'), a.lab('wb2')
                        a(f's_cbranch_vccnz {lb}'); a(f'{lc}:')
                        g.tail.append([f'{lb}:'] + [ld(k) for k in range(i, 8)] + [f's_waitcnt vmcnt({7-i})'] + ck +
                                      [f's_cbranch_vccz {lc}', f's_branch {g.timeout(17, lb)}'])
                if n < 5 and not had:
                    for _ in range(2):
                        if fill: a(fill.pop(0))
        for t in fill: a(t)
        for t in g.stamp(2): a(t)
        for p in range(4):
            x, y = ACC + 8 * p, ACC + 8 * p + 4
            for r in range(4): a(f'v_permlane32_swap_b32 v{x+r}, v{y+r}')
            for r in range(4): a(f'v_add_f32 v{x+r}, v{x+r}, v{y+r}')
            a(f'ds_write_b128 v{vRw}, {v(x,4)} offset:{p*4352}')
        a('s_waitcnt lgkmcnt(0)'); a('s_barrier')
        for sr in range(4):
            for y2 in range(2):
                a(f'ds_read2_b32 {v(GA+4*sr+2*y2,2)}, v{vRr} offset0:{sr*32+y2*16} offset1:{sr*32+y2*16+8}')
        a('s_waitcnt lgkmcnt(4)')
        for y in range(4): a(f'v_add_f32 v{GA+y}, v{GA+y}, v{GA+4+y}')
        a('s_waitcnt lgkmcnt(0)')
        for y in range(4): a(f'v_add_f32 v{GA+8+y}, v{GA+8+y}, v{GA+12+y}')
        for y in range(4): a(f'v_add_f32 v{GA+y}, v{GA+y}, v{GA+8+y}')
        a(f'buffer_store_dwordx4 {v(GA,4)}, v{vL16}, {WS}, s{sTw} offen sc1')
        for t in g.stamp(3): a(t)
        a(f'buffer_store_dwordx4 {v(PZ,4)}, v{vL16}, {WS}, s{sTp} offen sc1')
        a(f'v_add_u32 v{vRw}, s{sSrc}, v{vRw}'); a(f'v_add_u32 v{vRr}, s{sSrc}, v{vRr}'); a(f's_sub_u32 s{sSrc}, 0, s{sSrc}')
        lt = a.lab('tw')
        a(f'{lt}:')
        a(f'buffer_load_dwordx4 {v(GA+4,4)}, v{vL16}, {WS}, s{sTr} offen sc1')
        a('s_waitcnt vmcnt(0)')
        ck = check4(vT0, GA + 4)
        a(ck[0]); a(ck[1]); a(ck[2])
        for y in range(4): a(f'v_add_f32 v{GA+8+y}, v{GA+y}, v{GA+4+y}')
        a(f's_cbranch_vccnz {g.timeout(18, lt)}')
        for y in range(2): a(f'v_cvt_pk_bf16_f32 v{GA+12+y}, v{GA+8+2*y}, v{GA+9+2*y}')
        a(f'buffer_store_dwordx2 {v(GA+12,2)}, v{vL8}, {WS}, s{sMs} offen{LS}')
        for t in g.stamp(4): a(t)
        a(f'buffer_store_dwordx2 {v(PZ,2)}, v{vL8}, {WS}, s{sMp} offen{LS}')
        g.stamp_store(GA + 16, 5)
        a(f's_mov_b32 s{sN}, s{sN1}')
        a(f's_cmp_lt_u32 s{sN}, {c.NEND}'); a(f's_cbranch_scc1 {TOP}')
        a('s_waitcnt vmcnt(0)'); a('s_endpgm')
        g.flush_tail()

def emit(g):
    r = g.c.roles
    if 'QK' in r: role_qk(g)
    if 'VM' in r: role_vm(g)
    if 'WM' in r: role_wm(g)
```

```python
import sys
sys.path.insert(0,'gen')
import gen
out = sys.argv[1] if len(sys.argv) > 1 else 'interleave_layers__memory_aug_recurrent_mem_tr__glu_gated_geglu__prompt.s'
kw = eval('dict(%s)' % (sys.argv[2] if len(sys.argv) > 2 else ''))
open(out, 'w').write(gen.make(**kw)); print('fifo left', gen.LAST.left)
print('wrote', out)
```

```python
import re

class Ins:
    __slots__=('text','op','ops','mods','wr','rd','cls','label','target','srcC','nops')
    def __init__(s,text):
        s.text=text; s.label=None; s.target=None; s.wr=set(); s.rd=set(); s.cls=''; s.srcC=set(); s.op=''; s.ops=[]; s.mods=''
        s.nops=1

_reg=re.compile(r'^(-)?(?:abs\()?([vas])(?:(\d+)|\[(\d+):(\d+)\])\)?$')
def regs(tok):
    tok=tok.strip()
    if tok=='vcc': return {('s','vcc_lo'),('s','vcc_hi')}
    if tok=='exec': return {('s','exec_lo'),('s','exec_hi')}
    if tok in('vcc_lo','vcc_hi','exec_lo','exec_hi','m0'): return {('s',tok)}
    m=_reg.match(tok)
    if not m: return set()
    k=m.group(2)
    if m.group(3) is not None: return {(k,int(m.group(3)))}
    return {(k,i) for i in range(int(m.group(4)),int(m.group(5))+1)}

TRANS=('v_exp_f32','v_log_f32','v_rcp_f32','v_rsq_f32','v_sqrt_f32','v_sin_f32','v_cos_f32')
def parse(text):
    i=Ins(text)
    t=text.split(';')[0].strip()
    if t.endswith(':'):
        i.label=t[:-1]; i.cls='label'; i.nops=0; return i
    if t.startswith('.') or not t:
        i.cls='dir'; i.nops=0; return i
    p=t.split(None,1); op=p[0]; i.op=op
    rest=p[1] if len(p)>1 else ''
    mm=re.search(r'\s(op_sel|op_sel_hi|neg_lo|neg_hi|quad_perm):',rest)
    tailm=''
    if mm: tailm=rest[mm.start():]; rest=rest[:mm.start()]
    parts=[x.strip() for x in rest.split(',')] if rest else []
    if parts:
        last=parts[-1].split(None,1)
        parts[-1]=last[0]; i.mods=(last[1] if len(last)>1 else '')+tailm
    i.ops=parts
    R=[regs(x) for x in parts]
    U=lambda l: set().union(*l) if l else set()
    if op.startswith('v_mfma'):
        i.cls='mfma'; i.wr=R[0]; i.rd=R[1]|R[2]; i.srcC=R[3]
    elif op.startswith('v_smfmac'):
        i.cls='mfma'; i.wr=R[0]; i.rd=R[1]|R[2]|R[3]; i.srcC=R[0]
    elif op.startswith('v_cmp'):
        i.cls='valu'; i.wr=R[0]; i.rd=U(R[1:])
    elif op.startswith('v_permlane'):
        i.cls='valu'; i.wr=R[0]|R[1]; i.rd=R[0]|R[1]
    elif op.startswith('v_readfirstlane') or op.startswith('v_readlane'):
        i.cls='valu'; i.wr=R[0]; i.rd=U(R[1:])
    elif op.startswith('v_add_co') or op.startswith('v_addc_co') or op.startswith('v_sub_co'):
        i.cls='valu'; i.wr=R[0]|R[1]; i.rd=U(R[2:])
    elif op=='v_nop':
        i.cls='valu'
    elif op.startswith('v_'):
        i.cls='valu'; i.wr=R[0]; i.rd=U(R[1:])
        if op.startswith('v_fmac') or op.startswith('v_pk_fmac') or '_dpp' in op or op.startswith('v_writelane'): i.rd=i.rd|R[0]
    elif op.startswith('buffer_') or op.startswith('global_'):
        i.cls='vmem'
        if op=='buffer_wbl2': pass
        elif 'load' in op and not re.search(r'\blds\b',i.mods) and '_lds_' not in op:
            i.wr=R[0]; i.rd=U(R[1:])
        elif 'atomic' in op and 'sc0' in i.mods:
            i.wr=R[0]; i.rd=U(R)
        else:
            i.rd=U(R)
            if 'load' in op: i.rd=i.rd|{('s','m0')}
    elif op.startswith('ds_'):
        i.cls='ds'
        if 'read' in op or 'permute' in op or 'swizzle' in op: i.wr=R[0]; i.rd=U(R[1:])
        else: i.rd=U(R)
    elif op.startswith('s_'):
        i.cls='salu'
        if op=='s_nop': i.nops=int(parts[0],0)+1
        elif op in('s_branch',) or op.startswith('s_cbranch'):
            i.target=parts[0]; i.cls='branch'
        elif op.startswith('s_cmp') or op.startswith('s_bitcmp'): i.rd=U(R)
        elif op in('s_waitcnt','s_barrier','s_endpgm','s_sleep','s_setprio'): pass
        else:
            i.wr=R[0] if R else set(); i.rd=U(R[1:])
            if 'saveexec' in op: i.wr=i.wr|regs('exec')
    else:
        raise ValueError('unknown op '+text)
    return i

def passes(op):
    if '32x32' in op: return 8
    if '4x4' in op: return 2
    return 4
def isV(s): return {r for r in s if r[0] in 'va'}
def isS(s): return {r for r in s if r[0]=='s'}

def need(p,c):
    n=0
    if p.cls=='valu':
        pv=isV(p.wr); ps=isS(p.wr)
        if pv:
            if c.cls=='mfma' and pv&(c.rd|c.srcC): n=max(n,2)
            if c.cls=='valu':
                if c.op.startswith('v_permlane') and pv&c.rd: n=max(n,2)
                if '_dpp' in c.op and pv&c.rd: n=max(n,2)
                if (c.op.startswith('v_readfirstlane') or c.op.startswith('v_readlane')) and pv&c.rd: n=max(n,1)
            if p.op.startswith('v_dot') and c.cls in('valu','vmem','ds','mfma') and pv&(c.rd|c.wr|c.srcC):
                if c.op==p.op and not pv&(regs(c.ops[1])|regs(c.ops[2])): pass
                else: n=max(n,3)
            if p.op.startswith(TRANS) and c.cls in('valu','vmem','ds') and pv&c.rd: n=max(n,1)
        if ps:
            if c.cls=='valu' and ps&c.rd: n=max(n,4 if 'lane' in c.op else 2)
            if c.cls=='valu' and c.op.startswith('v_cndmask') and ps&regs('vcc'): n=max(n,2)
            if c.cls=='vmem' and ps&c.rd: n=max(n,5)
            if c.cls=='salu' and ps&c.rd: n=max(n,1)
            if c.cls=='branch' and 'vcc' in c.op and ps&regs('vcc'): n=max(n,1)
    if p.cls=='mfma':
        k=passes(p.op); idx={2:0,4:1,8:2,16:3}[k]
        if c.cls=='mfma':
            if p.wr&c.rd: n=max(n,(5,8,12,20)[idx])
            if p.wr&c.srcC:
                if p.wr==c.srcC and c.op==p.op: n=max(n,(2,0,0,0)[idx])
                else: n=max(n,(4,6,10,18)[idx])
            elif p.wr&c.wr:
                n=max(n,(4,6,10,18)[idx])
        elif c.cls in('valu','vmem','ds'):
            if p.wr&(c.rd|c.wr): n=max(n,(5,8,12,20)[idx])
            if c.cls=='valu' and p.srcC&c.wr: n=max(n,(1,3,7,15)[idx])
    if p.cls=='salu' and ('s','m0') in p.wr and c.cls=='vmem' and ('s','m0') in c.rd: n=max(n,1)
    if p.cls=='salu' and p.wr&regs('exec') and c.cls=='valu' and '_dpp' in c.op: n=max(n,1)
    if p.cls=='vmem' and 'store' in p.op and ('x4' in p.op or 'x3' in p.op):
        d=regs(p.ops[0]) if p.op.startswith('buffer_') else regs(p.ops[1])
        if d&c.wr: n=max(n,2)
    return n

class Asm:
    def __init__(s):
        s.L=[]; s.uid=0
    def __call__(s,text):
        for t in text.split('\n'):
            t=t.strip()
            if t: s.L.append(t)
    def lab(s,base):
        s.uid+=1; return f'L{base}_{s.uid}'
    def fix(s):
        I=[parse(t) for t in s.L]
        MAXW=20
        srcs={}
        labels={}
        for k,x in enumerate(I):
            if x.label:
                assert x.label not in labels, 'dup label '+x.label
                labels[x.label]=k
            if x.target: srcs.setdefault(x.target,[]).append(k)
        for t in srcs: assert t in labels, 'missing label '+t
        pad=[0]*len(I)
        for k,c in enumerate(I):
            if c.cls in('label','dir') or not (c.rd or c.wr or c.srcC or c.cls=='branch'): continue
            worst=0
            stack=[(k-1,0,True)]; seen=set()
            while stack:
                j,d,fall=stack.pop()
                while j>=0 and d<MAXW:
                    if (j,d) in seen: break
                    seen.add((j,d))
                    p=I[j]
                    if p.cls=='label':
                        for b in srcs.get(p.label,[]): stack.append((b,d,False))
                        j-=1; fall=True; continue
                    if p.cls=='dir': j-=1; continue
                    if fall and p.op in('s_branch','s_endpgm'): break
                    fall=True
                    w=need(p,c)
                    if w>d: worst=max(worst,w-d)
                    d+=p.nops+pad[j]; j-=1
            pad[k]=worst
        out=[]; added=0
        for k,x in enumerate(I):
            w=pad[k]
            while w>0:
                m=min(w,16); out.append(f's_nop {m-1}'); w-=m; added+=1
            out.append(x.text)
        return out, added
```

```python
import sys, struct
from asmlib import Asm
from layout import *

KNAME = 'interleave_layers__memory_aug_recurrent_mem_tr__glu_gated_geglu__prompt_kernel'

class Cfg:
    L = 12
    LM = 51
    LK = 19
    NEND = 128
    roles = {'AT', 'P', 'QK', 'VM', 'WM', 'WO', 'GU', 'DN'}
    stamps = False
    light = False
    fine = ()
    TIMEOUT = 1 << 20
    force_safe = False
    place = 6
    x = ()
    CALT = 24000
    local = False
    QT = 2
    DNNP = 40
    DLAG = (0, 1, 2, 3, 4, 5)
    DL = dict(GU=32, WO=8, DN=48)
    mini = False
    ring = 0
    ATE = 8
    probe = None
    PF = 3
    XS = 2
    NP = 4
    CK = 17
    B2 = 28
    WMP = 2
    TWP = 1
    TWD = 15
    T_KV = dict(ahead=True, block=True, KP=1, KT=8.5, KA=8, KM=22, KS=21, KD=(0.5, 11, 21), KP2=19.5, dv=72)
    T_GU = dict(ahead=True, pipe=True, block=True, KP=1, KT=6, KA=13, KM=10, KS=20, KD=(0.5, 16), KP2=16.5, dv=60, quota=lambda ks: 3 if ks < 15 else 2)
    T_WOP = dict(ahead=True, block=True, KP=1, KA=1, KM=14, KD=(1.5, 21), KP2=22, dv=60)
    T_WOF = dict(ahead=True, LW=True, KP=0, K0=9, KA=12, KM=11.5, KL=16, KD=(0.5, 9), KP2=9.5, dv=52, quota=lambda ks: 4)
    T_DNP = dict(ahead=True, block=True, KP=1, KA=1, KM=14, KD=(1.5, 23), KP2=26, dv=60)
    T_DNF = dict(ahead=True, LW=True, KP=1, K0=6, KA=12, KM=11.5, KL=21, KD=(0.5, 18), KP2=18.5, dv=52)
    QM = 8
    QS = 9
    delay = {'DN', 'GU'}

def fbits(x):
    return '0x%08x' % struct.unpack('<I', struct.pack('<f', x))[0]

def v(i, n=1): return f'v{i}' if n == 1 else f'v[{i}:{i+n-1}]'
def s(i, n=1): return f's{i}' if n == 1 else f's[{i}:{i+n-1}]'
def wreg(i, n, vbase):
    if i < 256: return f'a{i}' if n == 1 else f'a[{i}:{i+n-1}]'
    return v(vbase + i - 256, n)

WS = 's[4:7]'; WSC = 's[8:11]'; W1 = 's[12:15]'; W2 = 's[16:19]'; DBG = 's[20:23]'
P_X, P_MEM0, P_WQ, P_WK, P_WV, P_WO, P_WG, P_WU, P_WD, P_OUT, P_DBG, P_WS = 24, 26, 28, 30, 32, 34, 36, 38, 40, 42, 44, 46
sW, sIdx, sG = 48, 49, 50
sN, sNx, sBuf, sSrc, sM0, sNeed, sFl, sPFl = 52, 53, 54, 55, 56, 57, 58, 59
sT0, sT1, sT2, sT3 = 60, 61, 62, 63
sRdy, sWoff = 64, 65
sC = 66
sST = 80
sTO, sCode, sOth, sCnt, sRound, sXcc = 96, 97, 98, 99, 100, 101

SOFTC = 128 ** -0.5 * 1.4426950408889634

def p_order(n0, m1):
    n0 = min(n0, 64); rest = 64 - n0; m1 = max(m1, rest)
    o = list(range(n0)); k = 0
    for u in range(64):
        o.append(64 + u)
        while k < rest and (k + 1) * m1 <= (u + 1) * rest: o.append(n0 + k); k += 1
    assert sorted(o) == list(range(128))
    return o

class Gen:
    def __init__(g, cfg):
        g.c = cfg; g.a = Asm(); g.left = {}; g.tail = []

    def srd(g, base, ptr, size):
        a = g.a
        a(f's_mov_b32 s{base}, s{ptr}'); a(f's_and_b32 s{base+1}, s{ptr+1}, 0xffff')
        a(f's_mov_b32 s{base+2}, {size:#x}'); a(f's_mov_b32 s{base+3}, 0x20000')

    def seq_init(g, L):
        return [f's_mov_b32 s{sOth}, 64', f's_mov_b32 s{sCnt}, {(-L-1) & 0xffffffff:#x}']

    def next_n(g, dst, src, L):
        return [f's_add_u32 s{sT0}, s{src}, 1', f's_add_u32 s{sCnt}, s{sCnt}, 1',
                f's_cmp_lt_u32 s{sCnt}, {max(127-2*L, 0)}',
                f's_cselect_b32 s{dst}, s{sOth}, s{sT0}', f's_cselect_b32 s{sOth}, s{sT0}, s{sOth}']

    def fl_of(g, n, fl):
        assert FL_L == 64 << 11
        if g.c.NEND == 64: return [f's_mov_b32 s{fl}, 0']
        return [f's_and_b32 s{fl}, s{n}, 64', f's_lshl_b32 s{fl}, s{fl}, 11']

    def timeout(g, code, back):
        lab = g.a.lab('rt')
        g.tail.append([f'{lab}:', f's_add_u32 s{sTO}, s{sTO}, 1', f's_cmp_lt_u32 s{sTO}, {g.c.TIMEOUT}',
                       f's_cbranch_scc1 {back}', f's_mov_b32 s{sCode}, {code}', 's_branch L_fail'])
        return lab

    def flush_tail(g):
        for b in g.tail:
            for t in b: g.a(t)
        g.tail = []

    def spin_flags(g, vPoll, vOff, need, fl, code):
        a = g.a; l = a.lab('spin')
        a(f'{l}:')
        a(f'buffer_load_dword v{vPoll}, v{vOff}, {WS}, s{fl} offen sc1')
        a('s_waitcnt vmcnt(0)')
        a(f'v_cmp_lt_u32 vcc, s{need}, v{vPoll}')
        a('s_cmp_eq_u64 vcc, -1')
        a(f's_cbranch_scc0 {g.timeout(code, l)}')

    def lane0_off(g, dst, soff, nl=1, stride=0):
        a = g.a
        if stride: a(f'v_mul_u32_u24 v{dst}, {stride}, v0'); a(f'v_add_u32 v{dst}, s{soff}, v{dst}')
        else: a(f'v_mov_b32 v{dst}, s{soff}')
        a(f'v_mov_b32 v1, {OOB:#x}')
        a(f'v_cmp_gt_u32 vcc, {nl}, v0')
        a(f'v_cndmask_b32 v{dst}, v1, v{dst}, vcc')

    def zero_flags(g, vMy, layers=(0, 1)):
        a = g.a
        a('v_mov_b32 v1, 0')
        for l in layers:
            a(f's_mov_b32 s{sT0}, {l*FL_L:#x}')
            a(f'buffer_store_dword v1, v{vMy}, {WS}, s{sT0} offen sc1')

    def arrive(g, chain=False):
        a = g.a; l = a.lab('arr')
        a('s_waitcnt vmcnt(0)'); a('s_barrier')
        a(f's_cmp_lg_u32 s{sW}, 0'); a(f's_cbranch_scc1 {l}')
        a(f's_mov_b32 s{sT0}, 0')
        g.lane0_off(2, sT0)
        a(f's_sub_u32 s{sT1}, s{sXcc}, s2'); a(f's_and_b32 s{sT1}, s{sT1}, 7')
        a(f's_lshl_b32 s{sT1}, s{sT1}, 2'); a(f's_add_u32 s{sT1}, s{sT1}, 128')
        a(f's_cmp_eq_u32 s{sRound}, 0'); a(f's_cselect_b32 s{sT1}, s{sT1}, 0')
        a('v_mov_b32 v3, 1')
        a(f'buffer_atomic_add v3, v2, {DBG}, s{sT1} offen sc1')
        a(f'{l}:')

    def wait_start(g, vt, code):
        a = g.a; l, l1, l2 = a.lab('ws'), a.lab('ws1'), a.lab('ws2')
        a(f'v_mov_b32 v{vt+8}, 0')
        a(f's_cmp_lg_u32 s{sRound}, 0'); a(f's_cbranch_scc1 {l1}')
        a(f'{l}:')
        a(f'buffer_load_dwordx4 {v(vt,4)}, v{vt+8}, {DBG}, 0 offen offset:128 sc1')
        a(f'buffer_load_dwordx4 {v(vt+4,4)}, v{vt+8}, {DBG}, 0 offen offset:144 sc1')
        a('s_waitcnt vmcnt(0)')
        a(f'v_add3_u32 v{vt+9}, v{vt}, v{vt+1}, v{vt+2}'); a(f'v_add3_u32 v{vt+9}, v{vt+9}, v{vt+3}, v{vt+4}')
        a(f'v_add3_u32 v{vt+9}, v{vt+9}, v{vt+5}, v{vt+6}'); a(f'v_add_u32 v{vt+9}, v{vt+9}, v{vt+7}')
        a(f'v_cmp_le_u32 vcc, 0x100, v{vt+9}')
        a('s_cmp_eq_u64 vcc, -1')
        a(f's_cbranch_scc0 {g.timeout(code, l)}')
        a(f'v_or3_b32 v{vt+9}, v{vt}, v{vt+1}, v{vt+2}'); a(f'v_or3_b32 v{vt+9}, v{vt+9}, v{vt+3}, v{vt+4}')
        a(f'v_or3_b32 v{vt+9}, v{vt+9}, v{vt+5}, v{vt+6}'); a(f'v_or_b32 v{vt+9}, v{vt+9}, v{vt+7}')
        a(f'v_cmp_eq_u32 vcc, {0x7fffffff if g.c.force_safe else 0x100}, v{vt+9}')
        a('s_cmp_eq_u64 vcc, -1')
        a(f's_cbranch_scc1 {l2}'); a('s_branch L_restart')
        a(f'{l1}:')
        a(f'buffer_load_dword v{vt}, v{vt+8}, {DBG}, 0 offen sc1')
        a('s_waitcnt vmcnt(0)')
        a(f'v_cmp_le_u32 vcc, 0x100, v{vt}')
        a('s_cmp_eq_u64 vcc, -1')
        a(f's_cbranch_scc0 {g.timeout(code, l1)}')
        a(f'{l2}:')

    def loaded(g):
        a = g.a; l = a.lab('ldd')
        a(f's_cmp_lg_u32 s{sW}, 0'); a(f's_cbranch_scc1 {l}')
        a(f's_mov_b32 s{sT0}, 12')
        g.lane0_off(2, sT0)
        a('v_mov_b32 v3, 1')
        a(f'buffer_atomic_add v3, v2, {DBG}, 0 offen sc1')
        a(f'{l}:')

    def wait_loaded(g, role, count):
        count = g.c.DL[role]
        if role not in g.c.delay or not {'QK', 'VM', 'WM'} <= g.c.roles: return
        a = g.a; l = a.lab('wl')
        g.wait_start(8, 1)
        a('v_mov_b32 v1, 12')
        a(f'{l}:')
        a(f'buffer_load_dword v2, v1, {DBG}, 0 offen sc1')
        a('s_waitcnt vmcnt(0)')
        a(f'v_cmp_le_u32 vcc, {count}, v2')
        a('s_cmp_eq_u64 vcc, -1')
        a(f's_cbranch_scc0 {g.timeout(19, l)}')

    def load_weights(g, chunks, nslots, slot_bytes, sStage):
        a = g.a; n = len(chunks)
        def issue(c):
            ch = chunks[c]
            for t in ch.get('pre', []): a(t)
            for i, (srd, va, sb, imm) in enumerate(ch['dma']):
                a(f's_add_u32 m0, s{sStage}, {(c % nslots)*slot_bytes + i*1024}')
                a(f's_add_u32 s{sT3}, s{sb}, {imm:#x}')
                a(f'buffer_load_dwordx4 v{va}, {srd}, s{sT3} offen lds')
        for c in range(min(nslots, n)): issue(c)
        for c in range(n):
            after = sum(len(chunks[k]['dma']) for k in range(c + 1, min(n, c + nslots)))
            assert after <= 63
            a(f's_waitcnt vmcnt({after})')
            for dest, vtr, imm in chunks[c]['reads']:
                a(f'ds_read_b64_tr_b16 {dest}, v{vtr} offset:{(c % nslots)*slot_bytes + imm}')
            a('s_waitcnt lgkmcnt(0)')
            for t in chunks[c].get('post', []): a(t)
            if c + nslots < n: issue(c + nslots)
        for t in g.stamp(5): a(t)
        a('s_waitcnt lgkmcnt(0)')

    def endpgm(g):
        a = g.a
        if g.c.light:
            a(f's_memrealtime {s(sST,2)}'); a(f's_mov_b32 s{sN}, 0')
            g.stamp_store(8, 3, True)
        a('s_waitcnt vmcnt(0)'); a('s_endpgm')

    def mini_init(g, vA):
        if not g.c.mini: return
        a = g.a
        a(f's_lshl_b32 s{sT0}, s2, 12'); a(f's_add_u32 s{sT0}, s{sT0}, {STAMP:#x}')
        a(f's_cmp_eq_u32 s{sW}, 2'); a(f's_cselect_b32 s{sST+6}, s{sT0}, {OOB:#x}'); a(f'v_mov_b32 v{vA}, 0')
        a(f'v_mov_b32 v{vA+1}, s{sST+14}'); a(f'buffer_store_dword v{vA+1}, v{vA}, {WS}, s{sST+6} offen offset:28'); a('s_waitcnt vmcnt(0)')
    def mini_take(g): return [f's_memrealtime {s(sST,2)}'] if g.c.mini else []
    def mini_put(g, vA):
        if not g.c.mini: return []
        return [f's_lshl_b32 s{sST+7}, s{sN}, 5', f's_add_u32 s{sST+7}, s{sST+7}, s{sST+6}', f'v_mov_b32 v{vA+1}, s{sST}',
                f'buffer_store_dword v{vA+1}, v{vA}, {WS}, s{sST+7} offen']

    def light_start(g):
        if g.c.light: g.a(f's_memtime {s(sST+2,2)}'); g.a(f's_memrealtime {s(sST+4,2)}'); g.a('s_waitcnt lgkmcnt(0)')

    def stamp(g, i, real=True):
        if g.c.mini and i == 7: return [f's_memrealtime {s(sST+14,2)}']
        if g.c.light and i in (5, 7): return [f's_memrealtime {s(sST+2*i,2)}']
        if not g.c.stamps: return []
        if g.c.fine: return [f's_memtime {s(sST+2*i,2)}'] if i in g.c.fine else []
        return [f's_memrealtime {s(sST+2*i,2)}' if real else f's_memtime {s(sST+2*i,2)}']

    def stamp_store(g, vt, nst, force=False):
        if not g.c.stamps and not force: return
        a = g.a
        a('s_waitcnt lgkmcnt(0)')
        if g.c.fine:
            a(f's_memtime {s(sST+14,2)}'); a(f's_memrealtime {s(sST,2)}'); a('s_waitcnt lgkmcnt(0)')
            for i in range(8): a(f'v_mov_b32 v{vt+i}, s{sST+2*i}')
            a(f's_lshl_b32 s{sT0}, s2, 2'); a(f's_add_u32 s{sT0}, s{sT0}, s{sW}'); a(f's_lshl_b32 s{sT0}, s{sT0}, 12')
            a(f's_lshl_b32 s{sT1}, s{sN}, 5'); a(f's_add_u32 s{sT0}, s{sT0}, s{sT1}'); a(f's_add_u32 s{sT0}, s{sT0}, {0xF000000:#x}')
        else:
            a(f's_memtime {s(sST+12,2)}'); a('s_waitcnt lgkmcnt(0)')
            for i in range(8): a(f'v_mov_b32 v{vt+i}, s{sST+2*(i if i >= 5 else min(i,nst-1))}')
            a(f's_lshl_b32 s{sT0}, s2, 12'); a(f's_lshl_b32 s{sT1}, s{sN}, 5'); a(f's_add_u32 s{sT0}, s{sT0}, s{sT1}')
            a(f's_add_u32 s{sT0}, s{sT0}, {STAMP + (0x100000 if force else 0):#x}')
            a(f's_cmp_eq_u32 s{sW}, 0'); a(f's_cselect_b32 s{sT0}, s{sT0}, {OOB:#x}')
        a(f'v_mov_b32 v{vt+8}, 0')
        a(f'buffer_store_dwordx4 {v(vt,4)}, v{vt+8}, {WS}, s{sT0} offen')
        a(f'buffer_store_dwordx4 {v(vt+4,4)}, v{vt+8}, {WS}, s{sT0} offen offset:16')
        a('s_nop 1')

    def v_j(g, d): g.a(f'v_and_b32 v{d}, 15, v0')
    def v_g(g, d): g.a(f'v_lshrrev_b32 v{d}, 4, v0')

    def tr_addr(g, d, rowpitch, gmul, colmul, sStage, chain=None):
        a = g.a
        a('v_lshrrev_b32 v1, 4, v0'); a('v_bfe_u32 v2, v0, 2, 2'); a('v_and_b32 v3, 3, v0')
        if chain is None:
            a(f'v_mul_u32_u24 v1, {gmul}, v1'); a('v_add_u32 v1, v1, v2')
        else:
            m_g1, m_g0, m_r1 = chain
            a('v_lshrrev_b32 v4, 1, v1'); a(f'v_mul_u32_u24 v4, {m_g1}, v4')
            a('v_and_b32 v1, 1, v1'); a(f'v_mul_u32_u24 v1, {m_g0}, v1'); a('v_add_u32 v1, v1, v4')
            a('v_lshrrev_b32 v4, 1, v2'); a(f'v_mul_u32_u24 v4, {m_r1}, v4'); a('v_add_u32 v1, v1, v4')
            a('v_and_b32 v2, 1, v2'); a('v_add_u32 v1, v1, v2')
        a(f'v_mul_u32_u24 v1, {rowpitch}, v1'); a(f'v_mul_u32_u24 v3, {colmul}, v3')
        a(f'v_add3_u32 v{d}, v1, v3, s{sStage}')

    def dma_addr64(g, d, pitch):
        a = g.a
        a('v_lshrrev_b32 v1, 2, v0'); a(f'v_mul_u32_u24 v1, {pitch}, v1')
        a('v_and_b32 v2, 3, v0'); a('v_lshlrev_b32 v2, 4, v2'); a(f'v_add_u32 v{d}, v1, v2')

    def colsum(g, NK, NT, vbase, vCS, wA, vOnes):
        a = g.a
        for i in range(4): a(f'v_mov_b32 v{vOnes+i}, 0x3f803f80')
        for ks in range(NK):
            for n in range(NT):
                w = wreg((ks*NT+n)*4, 4, vbase); d = v(vCS+4*n, 4); c = '0' if ks == 0 else d
                if wA: a(f'v_mfma_f32_16x16x32_bf16 {d}, {w}, {v(vOnes,4)}, {c}')
                else:  a(f'v_mfma_f32_16x16x32_bf16 {d}, {v(vOnes,4)}, {w}, {c}')

    def stat_addr(g, d, vori):
        a = g.a
        if not vori:
            a('v_and_b32 v1, 31, v0'); a('v_lshrrev_b32 v2, 5, v0')
        else:
            a('v_bfe_u32 v1, v0, 2, 1'); a('v_lshlrev_b32 v1, 4, v1')
            a('v_lshrrev_b32 v2, 4, v0'); a('v_lshlrev_b32 v2, 2, v2'); a('v_add_u32 v1, v1, v2')
            a('v_and_b32 v2, 3, v0'); a('v_add_u32 v1, v1, v2'); a('v_bfe_u32 v2, v0, 3, 1')
        a('v_lshlrev_b32 v1, 4, v1'); a('v_lshlrev_b32 v2, 10, v2'); a(f'v_add_u32 v{d}, v1, v2')

    def stat_loads(g, S, vAddr, base):
        return [[f's_lshl_b32 s{sT2}, s{sN}, 11', f's_add_u32 s{sT2}, s{sT2}, {base:#x}'] +
                [f'buffer_load_dwordx4 {v(S+4*i,4)}, v{vAddr}, {WS}, s{sT2} offen offset:{512*i} sc1 ; @s' for i in range(2)]]

    def stat_math(g, S, R, vori):
        o = [f'v_add_f32 v{S}, v{S}, v{S+2}', f'v_add_f32 v{S+1}, v{S+1}, v{S+3}',
             f'v_add_f32 v{S+4}, v{S+4}, v{S+6}', f'v_add_f32 v{S+5}, v{S+5}, v{S+7}',
             f'v_add_f32 v{S}, v{S}, v{S+4}', f'v_add_f32 v{S+1}, v{S+1}, v{S+5}']
        if not vori:
            o += [f'v_permlane32_swap_b32 v{S}, v{S+1}', f'v_add_f32 v{S}, v{S}, v{S+1}', f'v_mov_b32 v{S+1}, v{S}',
                  f'v_permlane32_swap_b32 v{S}, v{S+1}']
        else:
            o += [f'v_add_f32_dpp v{S+2}, v{S}, v{S} row_ror:8 row_mask:0xf bank_mask:0xf',
                  f'v_add_f32_dpp v{S+3}, v{S+1}, v{S+1} row_ror:8 row_mask:0xf bank_mask:0xf',
                  f'v_mov_b32 v{S}, v{S+2}', f'v_mov_b32 v{S+1}, v{S+3}']
        k = fbits(1.0/1024)
        o += [f'v_mul_f32 v{S}, {k}, v{S}', f'v_mul_f32 v{S+1}, {k}, v{S+1}',
              f'v_fma_f32 v{S+1}, -v{S}, v{S}, v{S+1}', f'v_max_f32 v{S+1}, 0, v{S+1}',
              f'v_cvt_pk_bf16_f32 v{S+2}, v{S}, v{S+1}',
              f'v_lshlrev_b32 v{S}, 16, v{S+2}', f'v_and_b32 v{S+1}, 0xffff0000, v{S+2}',
              f'v_add_f32 v{S+1}, {fbits(1e-5)}, v{S+1}',
              f'v_cvt_pk_bf16_f32 v{S+1}, v{S+1}, v{S+1}', f'v_lshlrev_b32 v{S+1}, 16, v{S+1}',
              f'v_sqrt_f32 v{S+1}, v{S+1}',
              f'v_cvt_pk_bf16_f32 v{S+1}, v{S+1}, v{S+1}', f'v_lshlrev_b32 v{S+1}, 16, v{S+1}',
              f'v_rcp_f32 v{R}, v{S+1}',
              f'v_sub_f32 v{R+2}, 0, v{S}',
              f'v_mov_b32 v{R+1}, v{R}', f'v_mov_b32 v{R+3}, v{R+2}']
        if not vori:
            o += [f'v_permlane16_swap_b32 v{R}, v{R+1}', f'v_permlane16_swap_b32 v{R+2}, v{R+3}']
        else:
            o += [f'v_mov_b32 v{S}, v{R}', f'v_mov_b32 v{S+1}, v{R+2}',
                  f'v_mov_b32_dpp v{R}, v{S} row_ror:4 row_mask:0xf bank_mask:0xa',
                  f'v_mov_b32_dpp v{R+1}, v{S} row_ror:4 row_mask:0xf bank_mask:0x5',
                  f'v_mov_b32_dpp v{R+2}, v{S+1} row_ror:4 row_mask:0xf bank_mask:0xa',
                  f'v_mov_b32_dpp v{R+3}, v{S+1} row_ror:4 row_mask:0xf bank_mask:0x5']
        return o

    def row_stats(g, X, D, one):
        o = []
        for i in range(len(X[0])):
            for t in range(2):
                c0 = '0' if i == 0 else f'v{D+t}'; c1 = '0' if i == 0 else f'v{D+2+t}'
                o.append(f'v_dot2_f32_bf16 v{D+t}, v{X[t][i]}, {one}, {c0}')
                o.append(f'v_dot2_f32_bf16 v{D+2+t}, v{X[t][i]}, v{X[t][i]}, {c1}')
        return ['\n'.join(o), '@brk', f'v_permlane32_swap_b32 v{D}, v{D+1}', f'v_permlane32_swap_b32 v{D+2}, v{D+3}',
                    f'v_add_f32 v{D}, v{D}, v{D+1}', f'v_add_f32 v{D+2}, v{D+2}, v{D+3}', '@brk',
                    f'v_permlane16_swap_b32 v{D}, v{D+2}', f'v_add_f32 v{D}, v{D}, v{D+2}']

    def stat_store_addr(g, d, sSlice):
        a = g.a
        a('v_lshrrev_b32 v1, 5, v0'); a('v_lshlrev_b32 v1, 8, v1')
        a('v_and_b32 v2, 15, v0'); a('v_lshlrev_b32 v2, 4, v2'); a('v_add_u32 v1, v1, v2')
        a('v_bfe_u32 v2, v0, 4, 1'); a('v_lshlrev_b32 v2, 2, v2')
        a(f's_lshr_b32 s{sT0}, s{sSlice}, 1'); a(f's_lshl_b32 s{sT0}, s{sT0}, 9')
        a(f's_and_b32 s{sT1}, s{sSlice}, 1'); a(f's_lshl_b32 s{sT1}, s{sT1}, 3'); a(f's_add_u32 s{sT0}, s{sT0}, s{sT1}')
        a(f'v_add3_u32 v{d}, v1, v2, s{sT0}')

    def half_tile_addr(g, d, sTile):
        a = g.a
        a(f's_lshr_b32 s{sT0}, s{sTile}, 1'); a(f's_lshl_b32 s{sT0}, s{sT0}, 11')
        a(f's_and_b32 s{sT1}, s{sTile}, 1'); a(f's_lshl_b32 s{sT1}, s{sT1}, 9'); a(f's_add_u32 s{sT0}, s{sT0}, s{sT1}')
        a('v_bfe_u32 v1, v0, 4, 1'); a('v_lshlrev_b32 v1, 10, v1')
        a('v_lshrrev_b32 v2, 5, v0'); a('v_lshlrev_b32 v2, 8, v2'); a('v_add_u32 v1, v1, v2')
        a('v_and_b32 v2, 15, v0'); a('v_lshlrev_b32 v2, 4, v2'); a(f'v_add3_u32 v{d}, v1, v2, s{sT0}')

    def coop_load(g, NK, groups, pitch, vtr, reads):
        a = g.a; ng = len(groups); sz = ng * 4096; per = 65536 // sz; ns = min(163840 // sz, 3 * per, 62 // ng + 1); vA = vtr + 3
        a('v_lshrrev_b32 v1, 3, v0'); a(f's_lshl_b32 s{sT0}, s{sW}, 3'); a(f'v_add_u32 v1, s{sT0}, v1'); a(f'v_mul_u32_u24 v1, {pitch}, v1')
        a('v_and_b32 v2, 7, v0'); a('v_lshlrev_b32 v2, 4, v2'); a(f'v_add_u32 v{vA}, v1, v2')
        for i in (1, 2): a(f'v_add_u32 v{vtr+i}, {i*per*sz}, v{vtr}')
        a(f's_lshl_b32 s{sT2}, s{sW}, 10')
        def issue(ks):
            for i, (srd, sb) in enumerate(groups):
                a(f's_add_u32 m0, s{sT2}, {(ks % ns)*sz + i*4096}')
                a(f's_add_u32 s{sT3}, s{sb}, {ks*32*pitch:#x}')
                a(f'buffer_load_dwordx4 v{vA}, {srd}, s{sT3} offen lds')
        for ks in range(min(ns, NK)): issue(ks)
        issued = min(ns, NK)
        for ks in range(NK):
            a(f's_waitcnt vmcnt({(issued - 1 - ks) * ng}) lgkmcnt(0)'); a('s_barrier')
            if ks and issued < NK: issue(issued); issued += 1
            sl = ks % ns
            for dest, imm in reads(ks): a(f'ds_read_b64_tr_b16 {dest}, v{vtr + sl // per} offset:{(sl % per)*sz + imm}')
        for t in g.stamp(5): a(t)
        a('s_waitcnt lgkmcnt(0)')

    def poll_addr(g, d, sFirst, count, group):
        a = g.a
        a(f'v_min_u32 v1, {count-1}, v0'); a(f'v_add_u32 v1, s{sFirst}, v1')
        a(f'v_mul_u32_u24 v1, {4 if group == "XA" else FS}, v1'); a(f'v_add_u32 v{d}, {FOFF[group]}, v1')

    def my_flag(g, d, sIndex, group, nl=1, wave0=False):
        a = g.a
        fs = 4 if group == 'XA' else FS
        a(f's_mul_i32 s{sT0}, s{sIndex}, {fs}'); a(f's_add_u32 s{sT0}, s{sT0}, {FOFF[group]}')
        g.lane0_off(d, sT0, nl, fs if nl > 1 else 0)
        if wave0: g.wave0_off(d, 1)

    def resolve_vm(g, lo, hi):
        L = g.a.L
        isvm = lambda t: t.startswith('buffer_') and '@alt' not in t
        for k in range(lo, hi):
            if not L[k].startswith('@vm '): continue
            p = L[k].split(); tag = '@' + p[1]; n = 0; j = k
            while True:
                j = j - 1 if j > lo else hi - 1
                assert j != k, 'tag not found ' + tag
                if isvm(L[j]):
                    if tag in L[j].split(';')[-1].split(): break
                    n += 1
            assert n <= 63
            L[k] = f's_waitcnt vmcnt({n})' + (' ' + ' '.join(p[2:]) if len(p) > 2 else '')

    def resolve_lg(g, lo, hi, q):
        L = g.a.L; q = list(q)
        for k in range(lo, hi):
            t = L[k]
            if t.startswith('ds_'):
                q.append(t.split('#')[1].strip() if '#' in t else '')
                L[k] = t.split('#')[0].rstrip(' ;')
            elif t.startswith('@lg '):
                tag = t.split()[1]
                if tag not in q: L[k] = ''; continue
                p = len(q) - 1 - q[::-1].index(tag)
                q = q[p + 1:]
                L[k] = f's_waitcnt lgkmcnt({min(len(q), 15)})'
            elif 'lgkmcnt(0)' in t: q = []

    def wave0_off(g, d, w=0):
        a = g.a
        a(f's_cmp_eq_u32 s{sW}, {w}'); a(f's_cselect_b32 s{sT0}, 0, {OOB:#x}'); a(f'v_or_b32 v{d}, s{sT0}, v{d}')

    def spin0(g, vPoll, vOff, n, fl, code):
        l, l2 = g.a.lab('sp'), g.a.lab('spd')
        return [f's_cmp_lg_u32 s{sW}, 0', f's_cbranch_scc1 {l2}', f'{l}:',
                f'buffer_load_dword v{vPoll}, v{vOff}, {WS}, s{fl} offen sc1', 's_waitcnt vmcnt(0)',
                f'v_cmp_lt_u32 vcc, s{n}, v{vPoll}', 's_cmp_eq_u64 vcc, -1', f's_cbranch_scc0 {g.timeout(code, l)}',
                f'{l2}:', 's_barrier']

    def ws_loop(g, name, NK, NT, wA, vbase, R, seq, src_base, src_stride, sSrcC, code, T, PL,
                D, so, off, top=(), post=(), pub_shift=0, late=None, pipe=False, mneed=None, local=False):
        a = g.a; c = g.c; PF = T.get('PF', c.PF)
        ahead, KP, KM, KD = T['ahead'], T.get('KP', 0), T['KM'], T['KD']; lock = not ahead
        BUF = NK * 2048; nd = NK // 2
        TOP, SLOW, EXIT = (f'L{name}_{x}' for x in ('top', 'slow', 'exit'))
        sNxx, sW0, sFl2, sPL = 24, 25, 26, 27
        P0, P1 = R['poll'], R['poll'] + 1
        n4 = NK % (PF + 1)
        sets = list(range(PF + 2)) * n4 + list(range(PF + 1)) * ((NK - (PF + 2) * n4) // (PF + 1))
        assert len(sets) == NK and R['fr'] + 8 * (max(sets) + 1) <= R['res']
        fr = lambda ks, t: v(R['fr'] + (sets[ks % NK] * 2 + t) * 4, 4)
        def rd(ks, t):
            off_ = (ks % NK) * 2048 + t * 1024
            return f'ds_read_b128 {fr(ks,t)}, v{R["rd"] + (off_ >> 16)} offset:{off_ & 0xffff} # f{ks}'
        def prep(slow=False):
            o = [f's_mul_i32 s{sSrc}, s{sNx}, {src_stride:#x}']
            o.append(f's_add_u32 s{sSrc}, s{sSrc}, s{sSrcC}' if sSrcC is not None else f's_add_u32 s{sSrc}, s{sSrc}, {src_base:#x}')
            o += [f's_add_u32 s{sM0}, s{sW0}, s{sBuf}' if slow else f's_sub_u32 s{sM0}, s{sWoff}, s{sBuf}']
            return o
        gs = 4 if nd >= 16 else 2; ng = 4; rem = nd - gs * ng; sQ, sSo = 28, 32
        inbuf = PL is None
        if inbuf:
            assert ahead and not late and rem > 0 and T['KP2'] > KM >= nd // 2 + 1
            PL = (nd - 1) * 1024; vPL0 = R['pl'] + 1; sPL0 = 41
        def dma(srd):
            o = []
            for q, cnt in ([(0, gs), (1, gs), (2, gs), (3, gs), (-1, rem)] if inbuf else [(0, gs), (-1, rem), (1, gs), (2, gs), (3, gs)]):
                for i in range(cnt):
                    grp = []
                    if i == 0:
                        x = f's{sQ+q}' if q >= 0 else f'{gs*ng*1024}'
                        grp = [f's_add_u32 m0, s{sM0}, {x}', f's_add_u32 s{sSo}, s{sSrc}, {x}']
                    grp.append(f'buffer_load_dwordx4 v{R["dma"]}, {srd}, s{sSo} offen offset:{i*1024} sc1 lds ; @e')
                    o.append(grp)
            return o
        rdp = f'ds_read_b32 v{P0}, v{R["pl"]} # p0'
        def poll_main(n, tag):
            f = g.fl_of(n, sFl)
            return f[:-1] + [f's_mov_b32 m0, s{sPL}', f[-1], f'buffer_load_dword v{R["poff"]}, {WS}, s{sFl} offen sc1 lds ; {tag}']
        ev_main = [f'v_cmp_lt_u32 vcc, s{sNx}, v{P0}', 's_cmp_eq_u64 vcc, -1', f's_cselect_b32 s10, {WS_BYTES:#x}, 0']
        pub = f'buffer_store_dword v{R["fval"]}, v{R["my"]}, {WS}, s{sPFl} offen sc1'
        def pubs():
            if not local: return [pub]
            l1, l2 = a.lab('wb'), a.lab('wbc')
            g.tail.append([f'{l1}:', 'buffer_wbl2 sc1', 's_waitcnt vmcnt(0)', pub, f's_branch {l2}'])
            return [f's_cmp_lg_u32 s{sRound}, 0', f's_cbranch_scc1 {l1}\n' + pub.replace(' sc1', '') + f'\n{l2}:']
        if pub_shift == 0: fv = [f's_add_u32 s{sT0}, s{sN}, 1', f's_mov_b32 s{sPFl}, s{sFl2}', f'v_mov_b32 v{R["fval"]}, s{sT0}']
        else: fv = [f's_add_u32 s{sT0}, s{sN}, 65', f'v_mov_b32 v{R["fval"]}, s{sT0}', f's_cmp_lt_u32 s{sN}, 64',
                    f's_mov_b32 s{sPFl}, {OOB:#x}', f's_cselect_b32 s{sPFl}, {FL_L:#x}, s{sPFl}']
        xpub = '@pub' in D
        if xpub:
            sFvN, sPFlN = 41, 42
            shift = [f'v_mov_b32 v{R["fval"]}, s{sFvN}', f's_mov_b32 s{sPFl}, s{sPFlN}']
            fv = shift + [f's_add_u32 s{sFvN}, s{sN}, 1', f's_mov_b32 s{sPFlN}, s{sFl2}']
            D = [pub if t == '@pub' else t for t in D]
            a(f's_mov_b32 s{sFvN}, 0'); a(f's_mov_b32 s{sPFlN}, {OOB:#x}')
        seq_init, next_n = seq
        if sSrcC is not None: a(f's_add_u32 s{sSrcC}, s{sSrcC}, {src_base:#x}')
        a(f's_mul_i32 s{sW0}, s{sW}, {nd*1024}')
        a(f'v_add_u32 v{R["dma"]}, s{sW0}, v{R["l16"]}')
        a(f's_add_u32 s{sWoff}, s{sW0}, {BUF}')
        for q in range(4):
            if 'norot' in c.x: a(f's_mov_b32 s{sQ+q}, {q*gs*1024}'); continue
            a(f's_add_u32 s{sQ+q}, s{sIdx}, {q}'); a(f's_and_b32 s{sQ+q}, s{sQ+q}, 3'); a(f's_mul_i32 s{sQ+q}, s{sQ+q}, {gs*1024}')
        a(f's_lshl_b32 s{sPL}, s{sW}, 9'); a(f's_add_u32 s{sPL}, s{sPL}, {PL}')
        a(f'v_lshrrev_b32 v{R["pl"]}, 2, v{R["l16"]}'); a(f'v_add_u32 v{R["pl"]}, {PL}, v{R["pl"]}')
        if inbuf:
            a(f's_cmp_eq_u32 s{sW}, 0'); a(f's_mov_b32 s{sPL0}, {PL-1024}'); a(f's_cselect_b32 s{sPL0}, {PL}, s{sPL0}'); a(f'v_mov_b32 v{vPL0}, v{R["pl"]}')
            a(f's_add_u32 s{sPL}, s{sPL0}, {BUF}'); a(f'v_add_u32 v{R["pl"]}, {BUF}, v{vPL0}')
        g.wave0_off(R['poff'])
        if lock:
            a(f'v_mov_b32 v{P0}, 0'); a(f'ds_write_b32 v{R["pl"]}, v{P0}'); a(f'ds_write_b32 v{R["pl"]}, v{P0} offset:2048'); a('s_waitcnt lgkmcnt(0)')
        if late: g.wave0_off(late['poff'])
        a(f's_mov_b32 s{sNx}, 0'); a(f's_mov_b32 s{sBuf}, 0'); a(f's_mov_b32 s{sN}, 0')
        a(f'v_mov_b32 v{R["rd"]}, v{R["l16"]}')
        a(f's_mov_b32 s{sPFl}, {OOB:#x}'); a(f'v_mov_b32 v{R["fval"]}, 0')
        for t in seq_init + off: a(t)
        if late: g.srd(12, P_WS, WS_BYTES)
        if ahead:
            for t in next_n(sNxx, sNx): a(t)
        if c.probe:
            for i_ in range(8): a(f's_mov_b32 s{33+i_}, 0')
        g.mini_init(2)
        g.light_start()
        a(f's_branch {SLOW}')
        a('.p2align 6')
        lo = len(a.L)
        a(f'{TOP}:')
        free = []
        chain = []
        head = [f's_mov_b32 s{sN}, s{sNx}'] + g.stamp(0) + g.mini_take()
        sRn = 51
        ev2 = [f'v_cmp_lt_u32 vcc, s{sNxx}, v{P0}', 's_cmp_eq_u64 vcc, -1', f's_cselect_b32 s{sRn}, {WS_BYTES:#x}, 0']
        blk = T.get('block')
        if ahead: head += [f's_mov_b32 s{sNx}, s{sNxx}', f's_mov_b32 s10, s{sRn}'] + prep()
        if BUF > 65536: head.append(f'v_add_u32 v{R["rd"]+1}, 0x10000, v{R["rd"]}')
        free.append((-2, head, None, 'head'))
        assert inbuf or PL % 4096 == 0
        if lock:
            seqf = next_n(sNx, sN) + [f's_cmp_lg_u32 s{sT0}, s{sNx}', f's_cselect_b32 s10, {WS_BYTES:#x}, 0'] + g.fl_of(sNx, sFl) + \
                   [f's_lshr_b32 s{sT1}, s{sFl}, 6', f's_add_u32 m0, s{sPL}, s{sT1}', f'v_add_u32 v{P1}, s{sT1}, v{R["pl"]}']
            lpoll = f'buffer_load_dword v{R["poff"]}, {WS}, s{sFl} offen sc1 lds'
            free.append((-1, seqf, None, 'fl'))
            chain.append((-1, [lpoll], 'fl', None))
            free.append((T['KB'] - 2, g.fl_of(sN, sFl2) + prep(), None, 'prep'))
            lb, lc, ll, l0 = a.lab('blk'), a.lab('blkc'), a.lab('blkl'), a.lab('blk0')
            chain.append((T['KB'] - 1.5, [f'ds_read_b32 v{P0}, v{P1} # p'], 'fl', None))
            chain.append((T['KB'], ['@lg p'] + ev_main[:2] + [f's_cbranch_scc0 {lb}\n{lc}:'] + g.stamp(1), 'prep', None))
            g.tail.append([f'{lb}:', 's_cmp_eq_u32 s10, 0', f's_cbranch_scc1 {lc}', f'{ll}:', f's_cmp_lg_u32 s{sW}, 0', f's_cbranch_scc1 {l0}',
                           lpoll, f'{l0}:', f'ds_read_b32 v{P0}, v{P1}', 's_waitcnt lgkmcnt(0)'] + ev_main[:2] +
                          [f's_cbranch_scc1 {lc}', f's_branch {g.timeout(code, ll)}'])
            if 'KP2' in T:
                chain.append((T['KP2'], [f's_lshr_b32 s{sT1}, s{sFl2}, 6', f's_add_u32 m0, s{sPL}, s{sT1}', 's_nop 0',
                                         lpoll.replace(f's{sFl} ', f's{sFl2} ')], None, None))
            assert KD[0] > T['KB'] and not late and not pipe
        else:
            tog = [f's_xor_b32 s{sPL}, s{sPL}, 2048', f'v_xor_b32 v{R["pl"]}, 2048, v{R["pl"]}']
            seqf = g.fl_of(sN, sFl2) + tog
            if inbuf:
                tog = [f's_add_u32 s{sPL}, s{sPL}, 256', f'v_add_u32 v{R["pl"]}, 256, v{R["pl"]}']
                seqf = g.fl_of(sN, sFl2) + [f's_add_u32 s{sPL}, s{sPL0}, s{sBuf}', f'v_add_u32 v{R["pl"]}, s{sBuf}, v{vPL0}']
            free.append((KP - 1.5, seqf, None, 'fl'))
        afterM = False; prev = None; lastst = None
        for i, t in enumerate(D):
            kk = T.get('K0', 0) + (i * (T['KA'] - T.get('K0', 0))) / len(D)
            if t == '@M': afterM = True; continue
            if afterM: kk = KM + 0.005
            if t.startswith('buffer_'): chain.append((kk, [t], prev, f'd{i}')); lastst = f'd{i}'
            else: free.append((kk, [t], 'M' if afterM else None, f'd{i}'))
            prev = f'd{i}'
        for grp in top: chain.append((T.get('KT', 0), grp, 'head', 'top'))
        if late: chain.append((KP, [f's_add_u32 m0, s{sPL}, 256', 's_nop 0', f'buffer_load_dword v{late["poff"]}, {WS}, s{sFl2} offen sc1 lds ; @m'], 'fl', None))
        m = (['@lg a'] if mneed is not None else []) + (['s_nop 0'] if pipe and ahead and not late else ['@vm m', '@mbar'])
        if late: m.append(f'ds_read_b32 v{P1}, v{R["pl"]} offset:256 # p')
        chain.append((KM, m + ([] if lock else g.stamp(1)), None if mneed is None else f'd{mneed}', 'M'))
        if not pipe: chain.append((KM, pubs(), None, 'pub'))
        KE = KM + 0.01
        if late:
            chain.append((KE, ['@gap', '@lg p', f'v_cmp_lt_u32 vcc, s{sN}, v{P1}', 's_cmp_eq_u64 vcc, -1', f's_cselect_b32 s14, {WS_BYTES:#x}, 0'], None, None))
            for grp in late['loads'](W1, '@late @e' if late.get('lds') else '@late'): chain.append((T.get('KL', KE), grp, None, None))
        pf = dma(WSC)
        n1 = T.get('N1', gs + rem) if len(KD) == 3 else 0
        for i, grp in enumerate(pf):
            kk = KD[0] + i * T.get('D1', 0.8) if i < n1 else KD[-2] + ((i - n1) * (KD[-1] - KD[-2])) / (nd - n1)
            chain.append((kk, grp, 'M' if inbuf and i == nd - 1 else 'head', None))
            assert not (inbuf and i == nd - 1) or kk > KM
        if ahead:
            chain.append((T['KP2'], next_n(sNxx, sNx) + poll_main(sNxx, '@e'), 'fl', None))
        free.append((NK - PF - 2, so, lastst, None))
        if not pipe: free.append((NK - PF - 1.5, fv, 'pub', None))
        k2 = T.get('KS', KM); np_ = len(post); span = NK - PF - 2.5 - k2
        assert not post or k2 >= T['KA']
        if post: free.append((k2, ['@vm s'], 'top', None))
        for i, t in enumerate(post): free.append((k2 + (i * span) / max(np_, 1), [t], None, None))
        if 'novmw' in c.x: chain = [(k, [t for t in grp if t != '@vm m'], n_, g_) for k, grp, n_, g_ in chain]
        if 'nodma' in c.x: chain = [(k, [t for t in grp if not (t.startswith('buffer_load_dwordx4') and ' lds' in t and '@late' not in t)] or ['s_nop 0'], n_, g_) for k, grp, n_, g_ in chain]
        if 'nod' in c.x: free = [(k, ['s_nop 0'] if (g_ or '').startswith('d') and grp[0].startswith('v_') else grp, n_, g_) for k, grp, n_, g_ in free]
        free.sort(key=lambda x: x[0]); chain.sort(key=lambda x: x[0])
        ch2 = []
        for k, grp, nd_, gv in chain:
            subs = [[]]
            for t in grp:
                subs[-1].append(t)
                if t.startswith('buffer_'): subs.append([])
            subs = [x for x in subs if x]
            for i, x in enumerate(subs): ch2.append((k, x, nd_, gv if i == len(subs) - 1 else None))
        chain = []; own = None
        for k, x, nd_, gv in ch2:
            isd = x[-1].startswith(f'buffer_load_dwordx4 v{R["dma"]},')
            m0w = [t for t in x if ' m0,' in t]
            if isd and m0w: own = m0w[0]; clean = True
            elif isd and not clean: x = [own] + x; clean = True
            elif m0w: clean = False
            chain.append((k, x, nd_, gv))
        marks = {None}; st = dict(t=0, tm=-16, tv=-999, tM=0, cur=[], gv=None)
        DV = T.get('dv', 72)
        scalar = lambda t: t.startswith(('s_', '@'))
        def after(t):
            if t.startswith('v_mfma'):
                tm = max(st['t'], st['tm'] + 16); return tm + 4, tm
            if scalar(t): return st['t'] + 4, st['tm']
            if t.startswith(('v_dot', 'v_pk')): return max(st['t'], st['tm'] + 28) + 4, st['tm']
            return max(st['t'], st['tm'] + 8) + (8 if t.startswith(('v_exp', 'v_rcp', 'v_sqrt', 'v_perml')) else 4), st['tm']
        def emit(t):
            for u in t.split('\n'):
                if u == '@mbar': u = 's_barrier'; st['tM'] = st['t']; st['kM'] = (st['k'], st['t'])
                a(u)
                if u.endswith(':'): continue
                st['t'], st['tm'] = after(u)
                if u.startswith('buffer_'):
                    st['tv'] = st['t'] + (20 if u.startswith('buffer_store_dwordx4') else 0)
                    if u != pub: st['kv'] = (st['k'], st['t'])
                    if u.startswith('buffer_store') and u != pub: st['ks'] = (st['k'], st['t'])
        def cands(pos, force):
            o = []
            if chain and chain[0][2] in marks and (force or chain[0][0] <= pos):
                grp = chain[0][1]; ok = True
                if not force:
                    if grp[-1].startswith('buffer_') and st['t'] + 4 * len(grp) < st['tv'] + DV: ok = False
                    if grp[0] == '@gap' and st['t'] < st['tM'] + 100: ok = False
                if ok: o.append(chain)
            if free and free[0][2] in marks and (force or free[0][0] <= pos): o.append(free)
            return o
        first = lambda q: [t for t in q[0][1] if t != '@gap'][0]
        def peek(pos, force=False, want=None):
            if st['cur']: return None, st['cur'][0]
            for q in cands(pos, force):
                if want is None or want(first(q)): return q, first(q)
            return None, None
        def take(q):
            if q is not None:
                it = q.pop(0); st['cur'] = [t for t in it[1] if t != '@gap']; st['gv'] = it[3]
            t = st['cur'].pop(0)
            if not st['cur']: marks.add(st['gv'])
            return t
        def flush():
            n = 0
            while st['cur'] or chain or free:
                q, t = peek(99, True)
                assert t is not None, (name, chain[:1], free[:1])
                t = take(q)
                if t != '@brk': emit(t); n += 1
            return n
        quota = T.get('quota', lambda ks: 2)
        left = 0; carry = []
        st['k'] = 0; emit('@lg f0')
        for ks in range(NK):
            st['k'] = ks
            if c.probe and ks in c.probe:
                emit(f's_memtime {s(sST+2*c.probe.index(ks),2)}'); g.left.setdefault(name + '_t', []).append(st['t'])
            mand = carry + [rd(ks + PF, 0), rd(ks + PF, 1)]; carry = []
            if ks == NK - PF:
                carry = ([rdp] if ahead else []) + mand
                mand = []
                free.append((0, [f's_sub_u32 s{sBuf}, {BUF}, s{sBuf}', f'v_add_u32 v{R["rd"]}, s{sBuf}, v{R["l16"]}'], None, None))
            k = 0
            for t in range(2):
                for n in range(NT):
                    d = v(R['acc'] + (t * NT + n) * 4, 4)
                    cc = d if ks else '0'
                    if ks == NK - 1: d = v(R['res'] + (t * NT + n) * 4, 4)
                    w = wreg((ks * NT + n) * 4, 4, vbase)
                    if wA: emit(f'v_mfma_f32_16x16x32_bf16 {d}, {w}, {fr(ks,t)}, {cc}')
                    else:  emit(f'v_mfma_f32_16x16x32_bf16 {d}, {fr(ks,t)}, {w}, {cc}')
                    k += 1
                    pos = ks + k / (2 * NT); B = 8 + 4 * quota(ks)
                    if ks == NK - PF and k == 2 * NT:
                        left += flush()
                        for t_ in [f'@lg f{NK-1}', 's_nop 0' if 'novme' in c.x else '@vm e', 's_barrier']: emit(t_)
                        if c.probe:
                            acc_ = []
                            for i_ in range(len(c.probe) - 1):
                                acc_ += [f's_sub_u32 s{sT1}, s{sST+2*i_+2}, s{sST+2*i_}', f's_add_u32 s{33+i_}, s{33+i_}, s{sT1}']
                            acc_ += [f's_sub_u32 s{sT1}, s{sST}, s43', f's_min_u32 s{sT1}, s{sT1}, 1500', f's_add_u32 s40, s40, s{sT1}', f's_mov_b32 s43, s{sST+2*len([k_ for k_ in c.probe if k_ <= NK-PF])-2}'] if name != 'DNF_' else []
                            free.append((0, acc_, None, None))
                        if PF == 2:
                            for t_ in carry[:2]: emit(t_)
                            carry = carry[2:]
                        free.append((0, g.stamp(2) + (fv if xpub else [pub] + fv if pipe else []) + g.mini_put(2) + ['s_nop 0'], None, None))
                        fin = []
                        if ahead: fin = ['@lg p0'] + ev2
                        if ahead and blk:
                            fin += [f's_add_u32 s{sT1}, s{sNx}, 1', f's_cmp_eq_u32 s{sT1}, s{sNxx}'] if blk is True else [f's_cmp_ge_u32 s{sNxx}, {blk}']
                            fin += [f's_cselect_b32 s{sNeed}, -1, s{sRn}', f's_and_b32 s{sNeed}, s{sNeed}, s10']
                            if late: fin.append(f's_and_b32 s{sRdy}, s{sNeed}, s14')
                        else: fin += [f's_and_b32 s{sRdy}, s10, s14'] if late else ['s_cmp_lg_u32 s10, 0']
                        free.append((NK - 1 + (0.2 if PF > 2 else 0.7), fin, None, None))
                        continue
                    if k == 2 * NT and ks + 1 < NK: emit(f'@lg f{ks+1}')
                    else:
                        q, t_ = peek(pos, want=lambda x: scalar(x) and x != '@brk')
                        if t_ is not None and scalar(t_) and t_ != '@brk': emit(take(q))
                    for _ in range(2 if len(mand) > 2 else 1):
                        if mand: emit(mand.pop(0))
                    while True:
                        q, t_ = peek(pos)
                        if t_ is None: break
                        if t_ == '@brk': take(q); break
                        if '\n' not in t_ and not t_.startswith('v_mfma') and after(t_)[0] > st['tm'] + B: break
                        emit(take(q))
                        if '\n' in t_: break
        left += flush()
        g.left[name] = dict(left=left, M=st.get('kM'), st=st.get('ks'), lastvm=st.get('kv'), t=st['t'])
        q0 = [f'f{k}' for k in range(PF) for t in range(2)]
        g.resolve_lg(lo, len(a.L), q0)
        if c.stamps:
            a(f's_cselect_b32 s{sRdy}, 1, 0')
            for t in g.stamp(3): a(t)
            g.stamp_store(R['acc'], 4)
            a(f's_cmp_lg_u32 s{sRdy}, 0')
        a(f's_cbranch_scc1 {TOP}')
        hi_ = len(a.L); g.resolve_vm(lo, hi_)
        if late:
            l1 = a.lab('lw')
            a('s_cmp_lg_u32 s14, 0'); a(f's_cbranch_scc1 {l1}')
            a('s_waitcnt vmcnt(0)')
            if xpub: a('s_barrier'); a(pub)
            for t in g.spin0(P1, late['poff'], sN, sFl2, late['code']) + [t for grp in late['loads'](WS, '') for t in grp]: a(t)
            if T.get('LW'):
                k_ = max(k for k in range(lo, hi_) if '@late' in a.L[k])
                a(f's_mov_b32 s{sT1}, {OOB:#x}')
                for k in range(k_ + 1, hi_):
                    if a.L[k].startswith('buffer_'): a(pub.replace(f's{sPFl} ', f's{sT1} '))
            else: a('s_waitcnt vmcnt(0)')
            a(f's_cmp_lg_u32 s{sNeed if blk else 10}, 0'); a(f's_cbranch_scc1 {TOP}')
            a(f'{l1}:')
        k0 = len(a.L)
        for t in D:
            if t == '@M': a('s_waitcnt lgkmcnt(0)'); a('s_barrier')
            elif t.startswith('@vm'): a('s_waitcnt vmcnt(0)')
            elif t != '@brk': a(t)
        g.resolve_lg(k0, len(a.L), [])
        for t in off + (shift if xpub else []): a(t)
        lgo = a.lab('go')
        if lock:
            a('s_waitcnt vmcnt(0)'); a('s_barrier'); a(pub)
            a(f's_cmp_ge_u32 s{sNx}, {c.NEND}'); a(f's_cbranch_scc1 {EXIT}')
        else:
            if blk:
                l2 = a.lab('sc')
                a('s_cmp_lg_u32 s10, 0'); a(f's_cbranch_scc1 {l2}')
                g.tail.append([f'{l2}:'] + tog + poll_main(sNxx, '') + ['s_waitcnt vmcnt(0) lgkmcnt(0)', 's_barrier', rdp.split('#')[0]] + pubs() +
                              [f's_mov_b32 s{sRn}, {WS_BYTES:#x}', 's_waitcnt lgkmcnt(0)'] + ev2[:2] + [f's_cbranch_scc1 {TOP}'] +
                              g.spin0(P0, R['poff'], sNxx, sFl, code) + [f's_branch {TOP}'])
            for t in tog: a(t)
            for t in poll_main(sNx, '') + prep(True): a(t)
            a('s_waitcnt vmcnt(0) lgkmcnt(0)'); a('s_barrier'); a(rdp.split('#')[0])
            for t in pubs(): a(t)
            a(f's_cmp_ge_u32 s{sNx}, {c.NEND}'); a(f's_cbranch_scc1 {EXIT}')
            for t in tog: a(t)
            a('s_waitcnt lgkmcnt(0)'); a(ev_main[0]); a(ev_main[1]); a(f's_cbranch_scc1 {lgo}')
        a(f'{SLOW}:')
        for t in g.fl_of(sNx, sFl) + prep(True) + g.spin0(P0, R['poff'], sNx, sFl, code): a(t)
        a(f'{lgo}:')
        for grp in dma(WS):
            for t in grp: a(t)
        if ahead:
            for t in poll_main(sNxx, ''): a(t)
        a('s_waitcnt vmcnt(0)'); a('s_barrier')
        for t in ([rdp] if ahead else []) + [rd(k, t) for k in range(PF) for t in range(2)]: a(t.split('#')[0])
        if ahead:
            a(f's_waitcnt lgkmcnt({2*PF})')
            for t in ev2: a(t)
        a(f's_branch {TOP}')
        a(f'{EXIT}:')
        if c.probe:
            for i_ in range(8): a(f'v_mov_b32 v{8+i_}, s{33+i_}')
            a(f's_lshl_b32 s{sT0}, s2, 12'); a(f's_add_u32 s{sT0}, s{sT0}, {STAMP+32:#x}'); a(f's_lshl_b32 s{sT1}, s{sW}, 5'); a(f's_add_u32 s{sT0}, s{sT0}, s{sT1}')
            a('v_mov_b32 v16, 0'); a(f'buffer_store_dwordx4 v[8:11], v16, {WS}, s{sT0} offen'); a(f'buffer_store_dwordx4 v[12:15], v16, {WS}, s{sT0} offen offset:16')
            a('s_waitcnt vmcnt(0)')
        g.endpgm()
        g.flush_tail()

    def mask_seq(g, order):
        bits = sum(1 << i for i in range(127) if order[i] // 64 != order[i + 1] // 64 and not (order[i] == 63 and order[i + 1] == 64))
        init = [f's_mov_b32 s{44+i}, {(bits >> (32*i)) & 0xffffffff:#x}' for i in range(4)] + [f's_mov_b32 s{sOth}, 64', f's_mov_b32 s{sCnt}, 0']
        def nxt(dst, src):
            return [f's_add_u32 s{sT0}, s{src}, 1', f's_bitcmp1_b64 s[44:45], s{sCnt}',
                    f's_cselect_b32 s{dst}, s{sOth}, s{sT0}', f's_cselect_b32 s{sOth}, s{sT0}, s{sOth}',
                    f's_add_u32 s{sCnt}, s{sCnt}, 1', f's_cmp_eq_u32 s{sCnt}, 64', 's_cselect_b64 s[44:45], s[46:47], s[44:45]',
                    f's_min_u32 s{sCnt}, s{sCnt}, 127']
        return init, nxt

    def lag(g, role):
        return min(g.c.L + g.c.DLAG[('AT', 'WOP', 'WOF', 'GU', 'DNP', 'DNF').index(role)], 64)

    def lag_seq(g, L):
        return g.seq_init(L), (lambda dst, src: g.next_n(dst, src, L))

    def near_side(g, part):
        a = g.a; l = a.lab('ns'); lp = a.lab('nsl')
        a(f's_cmp_lg_u32 s{sW}, 3'); a(f's_cbranch_scc1 {l}'); a(f's_cmp_lg_u32 s{sIdx}, 0'); a(f's_cbranch_scc1 {l}')
        a(f's_mov_b32 s{sT0}, {CAL:#x}'); g.lane0_off(2, sT0)
        m0, m1, cnt = sNeed, sFl, sPFl
        if part == 0: a(f's_mov_b32 s{m0}, -1'); a(f's_mov_b32 s{m1}, -1')
        a(f's_mov_b32 s{cnt}, 0'); a(f's_mov_b32 s{sT2}, 0x2000')
        a(f'{lp}:')
        for m, so in ((m0, '0'), (m1, f's{sT2}')):
            a(f's_memtime {s(sC+10,2)}'); a('s_waitcnt lgkmcnt(0)')
            a(f'buffer_store_dword v0, v2, {WS}, {so} offen sc1'); a('s_waitcnt vmcnt(0)')
            a(f's_memtime {s(sC+12,2)}'); a('s_waitcnt lgkmcnt(0)')
            a(f's_sub_u32 s{sT1}, s{sC+12}, s{sC+10}'); a(f's_min_u32 s{m}, s{m}, s{sT1}'); a(f's_add_u32 s{cnt}, s{cnt}, s{sT1}')
        a(f's_cmp_lt_u32 s{cnt}, {(5000, g.c.CALT)[part]}'); a(f's_cbranch_scc1 {lp}')
        if part == 1:
            a(f's_cmp_lt_u32 s{m1}, s{m0}'); a(f's_cselect_b32 s{sT1}, 1, 0')
            a(f's_lshr_b32 s{sT2}, s{sXcc}, 2'); a(f's_xor_b32 s{sT1}, s{sT1}, s{sT2}'); a(f's_add_u32 s{sT1}, s{sT1}, 1')
            if 'flip' in g.c.x: a(f's_xor_b32 s{sT1}, s{sT1}, 3')
            a(f'v_mov_b32 v3, s{sT1}'); a(f's_mov_b32 s{sT0}, 4'); g.lane0_off(2, sT0)
            a(f'buffer_store_dword v3, v2, {DBG}, 0 offen sc1')
            if g.c.light or g.c.stamps:
                a(f's_lshl_b32 s{m1}, s{m1}, 16'); a(f's_or_b32 s{m0}, s{m0}, s{m1}'); a(f'v_mov_b32 v3, s{m0}')
                a(f'buffer_store_dword v3, v2, {DBG}, 0 offen offset:4 sc1')
        a(f'{l}:')

    def role_p(g):
        a = g.a; c = g.c
        a('L_P:')
        VB = 128
        R = dict(acc=8, fr=32, res=64, rd=112, l16=113, dma=114, poff=115, poll=4, pl=116, my=117, fval=118)
        CS, RES, RS, S, vStat, vOut = 88, 64, 100, 104, 119, 120
        sOut, sGam = sC + 4, sC + 5
        g.my_flag(R['my'], sIdx, 'P', wave0=True); g.zero_flags(R['my']); g.arrive()
        srds = (8, 12, 16)
        for n in range(3):
            gm = sGam + n; d = srds[n]
            a(f's_mul_i32 s{gm}, s{sIdx}, 3'); a(f's_add_u32 s{gm}, s{gm}, {n}')
            a(f's_cmp_lt_u32 s{gm}, 64'); a(f's_cselect_b32 s{d}, s{P_WQ}, s{P_WK}'); a(f's_cselect_b32 s{d+1}, s{P_WQ+1}, s{P_WK+1}')
            a(f's_cmp_lt_u32 s{gm}, 128'); a(f's_cselect_b32 s{d}, s{d}, s{P_WV}'); a(f's_cselect_b32 s{d+1}, s{d+1}, s{P_WV+1}')
            a(f's_and_b32 s{d+1}, s{d+1}, 0xffff'); a(f's_mov_b32 s{d+2}, 0x800000'); a(f's_mov_b32 s{d+3}, 0x20000')
            a(f's_and_b32 s{sC+n}, s{gm}, 63'); a(f's_lshl_b32 s{sC+n}, s{sC+n}, 7')
        a(f's_lshl_b32 s{sT1}, s{sW}, 5'); g.tr_addr(8, 128, 8, 8, sT1)
        g.coop_load(32, [(s(srds[n], 4), sC + n) for n in range(3)], 8192, 8,
                    lambda ks: [(wreg((ks * 3 + n) * 4 + 2 * hh, 2, VB), n * 4096 + hh * 512) for n in range(3) for hh in range(2)])
        g.srd(8, P_WS, WS_BYTES)
        g.colsum(32, 3, VB, CS, True, 8)
        a(f'v_lshlrev_b32 v{R["l16"]}, 4, v0')
        g.stat_addr(vStat, False)
        a(f's_mov_b32 s{sT2}, 0'); g.poll_addr(R['poff'], sT2, 64, 'XA')
        for n in range(3):
            a(f's_and_b32 s{sT2}, s{sGam+n}, 63'); a(f's_lshl_b32 s{sT2}, s{sT2}, 2'); a(f's_add_u32 s{sT2}, s{sT2}, s{sW}')
            g.half_tile_addr(vOut + n, sT2)
            a(f's_lshr_b32 s{sT0}, s{sGam+n}, 6'); a(f's_mul_i32 s{sT0}, s{sT0}, {KX-QX:#x}'); a(f'v_add_u32 v{vOut+n}, s{sT0}, v{vOut+n}')
        g.wait_start(8, 1)
        a('s_barrier')
        post = g.stat_math(S, RS, False)
        def ln(n):
            o = []
            for t in range(2):
                d = RES + (t * 3 + n) * 4
                o += [f'v_fmac_f32 v{d+r}, v{RS+2+t}, v{CS+4*n+r}' for r in range(4)]
                o += [f'v_mul_f32 v{d+r}, v{RS+t}, v{d+r}' for r in range(4)]
            return o
        cv = lambda n: [f'v_cvt_pk_bf16_f32 v{RES+4*n+2*t+h}, v{RES+(t*3+n)*4+2*h}, v{RES+(t*3+n)*4+2*h+1}' for t in range(2) for h in range(2)]
        sw = lambda n: [f'v_permlane16_swap_b32 v{RES+4*n}, v{RES+4*n+2}', f'v_permlane16_swap_b32 v{RES+4*n+1}, v{RES+4*n+3}']
        sto = lambda n: [f'buffer_store_dwordx4 {v(RES+4*n,4)}, v{vOut+n}, {WS}, s{sOut} offen sc1 ; @m']
        D = ln(0) + cv(0) + ln(1)[:2] + sw(0) + sto(0) + ln(1)[2:] + cv(1) + ln(2)[:2] + sw(1) + sto(1) + ln(2)[2:] + cv(2) + ['@brk'] + sw(2) + sto(2)
        so = [f's_lshl_b32 s{sOut}, s{sN}, 18', f's_add_u32 s{sOut}, s{sOut}, {QX:#x}']
        g.ws_loop('P', 32, 3, True, VB, R, g.mask_seq(p_order(c.LK, c.LM)), XA, 65536, None, 2, c.T_KV, 131072,
                  D, so, [f's_mov_b32 s{sOut}, {OOB:#x}'], top=g.stat_loads(S, vStat, SA), post=post)

    def build(g):
        a = g.a; c = g.c
        a('.amdgcn_target "amdgcn-amd-amdhsa--gfx950"')
        a('.text'); a(f'.globl {KNAME}'); a('.p2align 8'); a(f'.type {KNAME},@function'); a(f'{KNAME}:')
        a('s_cmp_ge_u32 s2, 0x100'); a('s_cbranch_scc1 L_done')
        for t in g.stamp(7): a(t)
        a('v_lshrrev_b32 v1, 6, v0'); a(f'v_readfirstlane_b32 s{sW}, v1')
        a(f's_getreg_b32 s{sXcc}, hwreg(HW_REG_XCC_ID)'); a(f's_and_b32 s{sXcc}, s{sXcc}, 7')
        a(f's_mov_b32 s{sG}, s{sXcc}'); a(f's_mov_b32 s{sRound}, 0'); a(f's_mov_b32 s{sTO}, 0')
        a('s_branch L_begin')
        a('L_restart:')
        a(f's_and_b32 s{sG}, s2, 7'); a(f's_mov_b32 s{sRound}, 1')
        a('s_barrier')
        a('L_begin:')
        a('s_load_dwordx8 s[24:31], s[0:1], 0'); a('s_load_dwordx4 s[32:35], s[0:1], 32')
        a('s_load_dwordx8 s[36:43], s[0:1], 64'); a('s_load_dwordx4 s[44:47], s[0:1], 96')
        a('v_mbcnt_lo_u32_b32 v0, -1, 0'); a('v_mbcnt_hi_u32_b32 v0, -1, v0')
        a(f's_lshr_b32 s{sIdx}, s2, 3'); a(f's_mov_b32 s{sN}, 0')
        a('s_waitcnt lgkmcnt(0)')
        g.srd(4, P_WS, WS_BYTES); g.srd(8, P_WS, WS_BYTES); g.srd(20, P_DBG, 256)
        table = role_table(c.place)
        a(f's_lshl_b32 s{sT0}, s{sG}, 5'); a(f's_add_u32 s{sT0}, s{sT0}, s{sIdx}')
        for x, f, n, role, off in table:
            if role[:2] not in c.roles and role not in c.roles: continue
            l = a.lab('disp')
            a(f's_sub_u32 s{sIdx}, s{sT0}, {x*32+f}'); a(f's_cmp_ge_u32 s{sIdx}, {n}'); a(f's_cbranch_scc1 {l}')
            if off: a(f's_add_u32 s{sIdx}, s{sIdx}, {off}')
            a(f's_branch L_{role}'); a(f'{l}:')
        g.arrive()
        g.wait_start(8, 1)
        a('L_done:'); a('s_endpgm')
        g.flush_tail()
        a('L_fail:')
        a(f's_lshl_b32 s{sT0}, s2, 16'); a(f's_lshl_b32 s{sT1}, s{sW}, 8'); a(f's_or_b32 s{sT0}, s{sT0}, s{sT1}')
        a(f's_or_b32 s{sT0}, s{sT0}, s{sN}'); a(f's_bitset1_b32 s{sT0}, 31')
        a(f'v_mov_b32 v1, s{sT0}'); a(f's_lshl_b32 s{sT1}, s{sCode}, 2'); a(f's_add_u32 s{sT1}, s{sT1}, 16'); a('v_mov_b32 v2, 0')
        a(f'buffer_store_dword v1, v2, {DBG}, s{sT1} offen sc1'); a('s_waitcnt vmcnt(0)'); a('s_endpgm')
        if 'P' in c.roles: g.role_p()
        import roles2
        roles2.emit(g)
        a('.section .rodata,"a"'); a('.p2align 6'); a(f'.amdhsa_kernel {KNAME}')
        for t in ('next_free_vgpr 512', 'next_free_sgpr 102', 'accum_offset 256', 'group_segment_fixed_size 0',
                  'kernarg_size 112', 'user_sgpr_count 2', 'user_sgpr_kernarg_segment_ptr 1', 'system_sgpr_workgroup_id_x 1'):
            a('.amdhsa_' + t)
        a('.end_amdhsa_kernel')
        a.L = [t for t in a.L if t]
        import re
        if c.ring:
            out = []; nrep = 0
            keep = {f'{x:#x}' for x in (XA, SA, SA + 64 * 2048)}
            for k, t in enumerate(a.L):
                m_ = re.match(r'^s_(lshl_b32|mul_i32) (s\d+), (s5[23]), (1[1-9]|0x\w+)$', t)
                if m_:
                    nx = next(u for u in a.L[k+1:] if u.startswith(f's_add_u32 {m_.group(2)}, {m_.group(2)},'))
                    cst = nx.split(',')[-1].strip()
                    try: small = int(cst, 0) < XB and int(cst, 0) != SB
                    except ValueError: small = False
                    if not small:
                        big = m_.group(4) == '18' and 'OXMARK' not in nx
                        out.append(f's_and_b32 {m_.group(2)}, {m_.group(3)}, {c.ring:#x}')
                        t = t.replace(m_.group(3), m_.group(2)); nrep += 1
                out.append(t)
            a.L = out; g.left['ring'] = nrep
        if 'free' in c.x:
            a.L = [re.sub(r'^v_cmp_lt_u32 vcc, (s\d+), v\d+$', r'v_mov_b32 v1, 128\nv_cmp_lt_u32 vcc, \1, v1', t) for t in a.L]
            a.L = [u for t in a.L for u in t.split('\n')]
            if 'hot' in c.x: a.L = [re.sub(r'^s_(lshl_b32|mul_i32) (s\d+), s5[23], (1[1-9]|0x\w+)$', r's_mov_b32 \2, 0', t) for t in a.L]
            if 'nost' in c.x: a.L = [t.replace('s[4:7]', 's[20:23]') if t.startswith('buffer_store_dwordx4') and '@' in t else t for t in a.L]
        lines, added = a.fix()
        head = ['; Persistent weight-stationary dataflow kernel (generated by my own script, gen/gen.py).',
                '; @launch grid=(256,1,1) block=(256,1,1) lds=163840']
        return '\n'.join(head + lines) + '\n'

def make(**kw):
    c = Cfg()
    for k, val in kw.items(): setattr(c, k, val)
    global LAST
    LAST = Gen(c)
    return LAST.build()

if __name__ == '__main__':
    out = sys.argv[1] if len(sys.argv) > 1 else 'interleave_layers__memory_aug_recurrent_mem_tr__glu_gated_geglu__prompt.s'
    open(out, 'w').write(make())
    print('wrote', out)
```

```python
FS=16
FCNT=dict(XA=16,XB=8,P=64,M=128,O=64,H=56,PW=32,PD=32)
FOFF={}; _o=0
for k,v in FCNT.items():
    FOFF[k]=_o*FS; _o+=v
FL_L=0x20000
assert _o*FS<=FL_L
CAL=0x40000
TWB=0x80000; TW_SZ=0x40000
SA=0x180000; SB=0x1C0000
RING=0x200000; RING_SZ=0x50000
R_MEM=0; R_OM=0x10000; R_VML=0x30000
STAMP=0xF400000
XA=0x400000; XB=0xC00000; QX=0x1400000; KX=0x3400000; VX=0x5400000; KVM=0x7400000
OX=0x8400000; HH=0xA400000; PW=0xC000000; PD=0xD800000
WS_BYTES=0x10000000
HH_U=112*2048
OOB=0x40000000
WO_NP=36; DN_NP=38

def role_table(place):
    if True:
        mix = {0: dict(P=(24,24,16,0,0,0), AT=(8,8,0,0,0,0), GU=(0,0,0,24,24,8),
                       WOP=(0,0,8,0,0,16), WOF=(0,0,0,0,0,8), DNP=(0,0,0,8,8,0), DNF=(0,0,8,0,0,0)),
               1: dict(P=(12,12,10,10,10,10), AT=(4,4,2,2,2,2), GU=(8,8,12,12,12,4),
                       WOP=(8,8,0,0,0,8), WOF=(0,0,0,0,0,8), DNP=(0,0,8,8,0,0), DNF=(0,0,0,0,8,0)),
               2: dict(P=(16,16,8,8,8,8), AT=(8,8,0,0,0,0), GU=(0,0,16,16,16,8),
                       WOP=(8,8,0,0,0,8), WOF=(0,0,0,0,0,8), DNP=(0,0,8,8,0,0), DNF=(0,0,0,0,8,0)),
               3: dict(P=(16,16,16,16,0,0), AT=(4,4,4,4,0,0), GU=(12,12,12,12,8,0),
                       WOP=(0,0,0,0,0,24), WOF=(0,0,0,0,0,8), DNP=(0,0,0,0,16,0), DNF=(0,0,0,0,8,0)),
               4: dict(P=(14,14,14,14,8,0), AT=(4,4,4,4,0,0), GU=(14,14,14,14,0,0),
                       WOP=(0,0,0,0,0,24), WOF=(0,0,0,0,0,8), DNP=(0,0,0,0,16,0), DNF=(0,0,0,0,8,0)),
               5: dict(P=(22,0,21,0,21,0), AT=(5,0,6,0,5,0), GU=(5,32,5,8,6,0),
                       WOP=(0,0,0,0,0,24), WOF=(0,0,0,0,0,8), DNP=(0,0,0,16,0,0), DNF=(0,0,0,8,0,0)),
               6: dict(P=(22,0,21,0,21,0), AT=(2,6,2,4,2,0), GU=(8,26,9,4,9,0),
                       WOP=(0,0,0,0,0,24), WOF=(0,0,0,0,0,8), DNP=(0,0,0,16,0,0), DNF=(0,0,0,8,0,0)),
               7: dict(P=(18,10,18,0,18,0), AT=(3,7,3,0,3,0), GU=(11,15,11,8,11,0),
                       WOP=(0,0,0,0,0,24), WOF=(0,0,0,0,0,8), DNP=(0,0,0,16,0,0), DNF=(0,0,0,8,0,0)),
               8: dict(P=(24,0,20,0,20,0), AT=(8,0,4,0,4,0), GU=(0,32,0,16,0,8),
                       WOP=(0,0,0,0,0,24), WOF=(0,0,8,0,0,0), DNP=(0,0,0,16,0,0), DNF=(0,0,0,0,8,0)),
               9: dict(P=(22,0,22,0,20,0), AT=(2,6,2,4,2,0), GU=(8,26,8,12,2,0),
                       WOP=(0,0,0,0,0,24), WOF=(0,0,0,0,0,8), DNP=(0,0,0,16,0,0), DNF=(0,0,0,0,8,0)),
               10: dict(P=(22,0,22,0,20,0), AT=(3,3,2,3,2,3), GU=(7,29,0,13,2,5),
                       WOP=(0,0,0,0,0,24), WOF=(0,0,8,0,0,0), DNP=(0,0,0,16,0,0), DNF=(0,0,0,0,8,0))}[place]
        table = []; nxt = [0]*6
        for role, cnt in mix.items():
            off = 0
            for x, n in enumerate(cnt):
                if n: table.append((2+x, nxt[x], n, role, off)); nxt[x] += n; off += n
        assert max(nxt) <= 32, nxt
    for G in (0, 1): table += [(G, 0, 16, 'QK', 0), (G, 16, 8, 'VM', 0), (G, 24, 8, 'WM', 0)]
    return table
```

```python
from gen import *

def ln_apply(RES, RS, CS, ts=(0, 1)):
    o = []
    for t in ts:
        o += [f'v_fmac_f32 v{RES+t*8+i}, v{RS+2+t}, v{CS+i}' for i in range(8)]
        o += [f'v_mul_f32 v{RES+t*8+i}, v{RS+t}, v{RES+t*8+i}' for i in range(8)]
    return o

def role_gu(g):
    a = g.a
    a('L_GU:')
    g.srd(12, P_WG, 0x700000); g.srd(16, P_WU, 0x700000)
    R = dict(acc=8, fr=32, res=64, rd=104, l16=105, dma=106, poff=107, poll=4, pl=108, my=109, fval=110)
    CS, RES, RS, S, vStat, vOut, E = 80, 64, 92, 96, 111, 112, 116
    gw, stage = sC, sC + 2
    a(f's_lshl_b32 s{gw}, s{sIdx}, 2'); a(f's_add_u32 s{gw}, s{gw}, s{sW}')
    g.my_flag(R['my'], sIdx, 'H', wave0=True); g.zero_flags(R['my']); g.arrive()
    g.wait_loaded('GU', 32)
    a(f's_lshl_b32 s{sC+3}, s{sIdx}, 7')
    a(f's_lshl_b32 s{sT1}, s{sW}, 5'); g.tr_addr(8, 128, 8, 8, sT1)
    g.coop_load(32, [(W1, sC + 3), (W2, sC + 3)], 7168, 8,
                lambda ks: [(wreg((ks * 2 + n) * 4 + 2 * hh, 2, 0), n * 4096 + hh * 512) for n in range(2) for hh in range(2)])
    g.colsum(32, 2, 0, CS, True, 8)
    a(f'v_lshlrev_b32 v{R["l16"]}, 4, v0')
    g.stat_addr(vStat, False)
    a(f's_mov_b32 s{sT2}, 0'); g.poll_addr(R['poff'], sT2, 8, 'XB')
    g.half_tile_addr(vOut, gw)
    ca = -2.0 * 0.7978845608028654 * 1.4426950408889634
    a(f's_mov_b32 s{sC+4}, {fbits(ca*0.044715)}'); a(f'v_mov_b32 v{vOut+1}, {fbits(ca)}')
    g.wait_start(8, 1)
    a('s_barrier')
    post = g.stat_math(S, RS, False)
    sOut = sC + 5
    idx = [(t, r) for t in range(2) for r in range(4)]
    G = lambda t, r: RES + t * 8 + r
    U = lambda t, r: RES + t * 8 + 4 + r
    D = ln_apply(RES, RS, CS)
    D += [f'v_mul_f32 v{E+i}, v{G(t,r)}, v{G(t,r)}' for i, (t, r) in enumerate(idx)]
    D += [f'v_fma_f32 v{E+i}, v{E+i}, s{sC+4}, v{vOut+1}' for i, (t, r) in enumerate(idx)]
    D += [f'v_mul_f32 v{E+i}, v{E+i}, v{G(t,r)}' for i, (t, r) in enumerate(idx)]
    for i, (t, r) in enumerate(idx): D += [f'v_exp_f32 v{E+i}, v{E+i}', f'v_mul_f32 v{U(t,r)}, v{U(t,r)}, v{G(t,r)}']
    D += [f'v_add_f32 v{E}, 1.0, v{E}']
    for i in range(8): D += ([f'v_add_f32 v{E+i+1}, 1.0, v{E+i+1}'] if i < 7 else []) + [f'v_rcp_f32 v{E+i}, v{E+i}']
    D += [f'v_mul_f32 v{E+i}, v{E+i}, v{U(t,r)}' for i, (t, r) in enumerate(idx)]
    o = 124
    D += [f'v_cvt_pk_bf16_f32 v{o+i}, v{E+2*i}, v{E+2*i+1}' for i in (0, 2, 1, 3)]
    D += ['@brk', f'v_permlane16_swap_b32 v{o}, v{o+2}', f'v_permlane16_swap_b32 v{o+1}, v{o+3}',
          f'buffer_store_dwordx4 {v(o,4)}, v{vOut}, {WS}, s{sOut} offen sc1 ; ' + ('@e' if g.c.T_GU.get('pipe') else '@m')]
    so = [f's_mul_i32 s{sOut}, s{sN}, {HH_U:#x}', f's_add_u32 s{sOut}, s{sOut}, {HH:#x}']
    g.ws_loop('GU', 32, 2, True, 0, R, g.lag_seq(g.lag('GU')), XB, 65536, None, 4, g.c.T_GU, 131072,
              D, so, [f's_mov_b32 s{sOut}, {OOB:#x}'], top=g.stat_loads(S, vStat, SB), post=post, pipe=g.c.T_GU.get('pipe'))

def role_proj(g, kind, fin):
    a = g.a; name = kind + ('F' if fin else 'P')
    isWO = kind == 'WO'
    nparts = 3 if isWO else 2
    NP = WO_NP if isWO else g.c.DNNP
    NK = ((128 if isWO else 112) - nparts * NP) if fin else NP
    a(f'L_{name}:')
    if name == 'DNP': g.near_side(0)
    g.srd(12, P_WO if isWO else P_WD, 0x800000 if isWO else 0x700000)
    VB = 192
    R = dict(acc=8, fr=32, res=72, rd=104, l16=106, dma=107, poff=113, poll=108, pl=120, my=110, fval=111)
    vP, vSt, vX, vRow, vL4, vP2 = 112, 114, 115, 116, 117, 119
    RES, PR, OUT = 72, 124, 156
    part, col, cw, stage, k0, src = sC, sC + 1, sC + 2, sC + 3, sC + 4, sC + 5
    if fin:
        a(f's_mov_b32 s{part}, {nparts}'); a(f's_mov_b32 s{col}, s{sIdx}')
    else:
        a(f's_lshr_b32 s{part}, s{sIdx}, 3'); a(f's_and_b32 s{col}, s{sIdx}, 7')
    a(f's_lshl_b32 s{cw}, s{col}, 2'); a(f's_add_u32 s{cw}, s{cw}, s{sW}')
    a(f's_mul_i32 s{k0}, s{part}, {NP}')
    a(f's_lshl_b32 s{src}, s{k0}, 11')
    pg = 'PW' if isWO else 'PD'
    if fin:
        if isWO: g.my_flag(R['my'], col, 'XB', wave0=True)
        else: a(f's_lshl_b32 s{sT2}, s{col}, 3'); g.my_flag(R['my'], sT2, 'XA', 8, wave0=True)
        pass; g.zero_flags(R['my'], (0, 1) if isWO else (1,))
    else:
        a(f's_lshl_b32 s{sT2}, s{col}, 2'); a(f's_add_u32 s{sT2}, s{sT2}, s{part}')
        g.my_flag(R['my'], sT2, pg, wave0=True); g.zero_flags(R['my'])
    g.arrive()
    if name == 'DNP': g.near_side(1)
    g.wait_loaded(kind, 8 if isWO else 48)
    a(f's_lshr_b32 s{sT1}, s{sW}, 1'); a(f's_lshl_b32 s{sT1}, s{sT1}, 12'); a(f's_and_b32 s{sT0}, s{sW}, 1'); a(f's_lshl_b32 s{sT0}, s{sT0}, 6')
    a(f's_add_u32 s{sT1}, s{sT1}, s{sT0}'); g.tr_addr(8, 128, 4 if isWO else 8, 16, sT1)
    a(f's_lshl_b32 s{sC+6}, s{k0}, 16'); a(f's_lshl_b32 s{sT0}, s{col}, 8'); a(f's_add_u32 s{sC+6}, s{sC+6}, s{sT0}'); a(f's_add_u32 s{stage}, s{sC+6}, 128')
    hhs = 2048 if isWO else 512
    g.coop_load(NK, [(W1, sC + 6), (W1, stage)], 2048, 8,
                lambda ks: [(wreg((ks * 2 + n) * 4 + 2 * hh, 2, VB), hh * hhs + n * 8) for n in range(2) for hh in range(2)])
    a(f'v_lshlrev_b32 v{R["l16"]}, 4, v0')
    sh = 1
    assert NP % (4 if isWO else 2) == 0 and NK % (4 if isWO else 2) == 0
    a(f's_lshr_b32 s{sT2}, s{k0}, {sh}'); g.poll_addr(R['poff'], sT2, NK >> sh, 'O' if isWO else 'H')
    a(f's_lshl_b32 s{sT0}, s{cw}, 11'); a(f'v_add_u32 v{vP}, s{sT0}, v{R["l16"]}')
    pbase = PW if isWO else PD; pstride = nparts * 0x10000
    src_base, src_stride = (OX, 0x40000) if isWO else (HH, HH_U)
    T = getattr(g.c, 'T_' + name); PL = 2 * NK * 2048 if NK < 40 else None
    if not fin:
        a(f's_lshl_b32 s{sC+7}, s{part}, 16'); a(f's_add_u32 s{sC+7}, s{sC+7}, {pbase:#x}')
        g.wait_start(8, 1); a('s_barrier')
        sOut = sC + 8
        local = g.c.local and len({x for x, f, n, r, o in role_table(g.c.place) if r[:2] == kind}) == 1
        D = []
        for t in range(2):
            D += [f'v_cvt_pk_bf16_f32 v{OUT+4*t+i}, v{RES+8*t+2*i}, v{RES+8*t+2*i+1}' for i in range(4)]
            D.append(f'buffer_store_dwordx4 {v(OUT+4*t,4)}, v{vP}, {WS}, s{sOut} offen offset:{t*1024}{"" if local else " sc1"} ; @m')
        so = [f's_mul_i32 s{sOut}, s{sN}, {pstride:#x}', f's_add_u32 s{sOut}, s{sOut}, s{sC+7}']
        g.ws_loop(name, NK, 2, True, VB, R, g.lag_seq(g.lag(name)), src_base, src_stride, src, 5 if isWO else 7, T, PL,
                  D, so, [f's_mov_b32 s{sOut}, {OOB:#x}'], local=local)
        return
    a(f's_lshl_b32 s{sT2}, s{col}, 2'); g.poll_addr(vP2, sT2, nparts, pg)
    g.stat_store_addr(vSt, col); g.wave0_off(vSt)
    LST = PL + 4096
    a(f'v_lshlrev_b32 v{vL4}, 2, v0'); a(f'v_add_u32 v{vL4}, {LST}, v{vL4}')
    a(f's_lshl_b32 s{sT0}, s{sW}, 8'); a(f'v_add_u32 v{vL4+1}, s{sT0}, v{vL4}')
    sL, sOne, sO0, sO1, sSt = sC + 7, sC + 10, sC + 11, sC + 12, sC + 13
    a(f's_mov_b32 s{sOne}, 0x3f803f80')
    SEL = 24
    a('v_bfe_u32 v1, v0, 2, 2'); g.v_g(2); a('v_cmp_eq_u32 vcc, v1, v2')
    a('v_and_b32 v1, 1, v0'); a('v_lshlrev_b32 v1, 4, v1'); a('v_mov_b32 v2, 0x3f80'); a('v_lshlrev_b32 v1, v1, v2')
    a('v_cndmask_b32 v1, 0, v1, vcc'); a('v_and_b32 v2, 2, v0'); a('v_cmp_eq_u32 vcc, 0, v2')
    a(f'v_cndmask_b32 v{SEL}, 0, v1, vcc'); a(f'v_sub_u32 v{SEL+1}, v1, v{SEL}')
    for i in (2, 3, 4, 5): a(f'v_mov_b32 v{SEL+i}, 0')
    a(f'v_mov_b32 v{SEL+6}, v{SEL}'); a(f'v_mov_b32 v{SEL+7}, v{SEL+1}')
    if not isWO:
        g.srd(16, P_WS, WS_BYTES); a(f's_and_b32 s{sC+9}, s{P_OUT+1}, 0xffff'); a(f's_mov_b32 s{sC+8}, s{P_OUT}')
        g.v_j(1); a('v_lshlrev_b32 v1, 11, v1'); g.v_g(2); a('v_lshlrev_b32 v2, 4, v2')
        a(f's_lshl_b32 s{sT0}, s{cw}, 6'); a(f'v_add3_u32 v{vRow}, v1, v2, s{sT0}'); a(f'v_mov_b32 v{vX}, v{vP}')
    g.wait_start(8, 1); a('s_barrier')
    rbase = XA if isWO else XB
    def loads(srd, tag):
        o = [[f's_lshl_b32 s{sL}, s{sN}, 16', f's_add_u32 s{sL}, s{sL}, {rbase:#x}'] +
             [f'buffer_load_dwordx4 {v(PR+nparts*8+t*4,4)}, v{vP}, {srd}, s{sL} offen offset:{t*1024} sc1 ; {tag}' for t in range(2)]]
        for p in range(nparts):
            grp = [f's_mul_i32 s{sL}, s{sN}, {pstride:#x}', f's_add_u32 s{sL}, s{sL}, {pbase:#x}'] if p == 0 else \
                  [f's_add_u32 s{sL}, s{sL}, 0x10000']
            o.append(grp + [f'buffer_load_dwordx4 {v(PR+p*8+t*4,4)}, v{vP}, {srd}, s{sL} offen offset:{t*1024} sc1 ; {tag}' for t in range(2)])
        return o
    o = OUT; SD = o + 8
    D = ['@vm late']
    valu = T.get('valu', 0)
    for p in range(valu):
        for i in range(8):
            x = PR + p * 8 + i
            D += [f'v_lshlrev_b32 v{OUT+12+(i&1)}, 16, v{x}', f'v_and_b32 v{x}, 0xffff0000, v{x}',
                  f'v_add_f32 v{RES+2*i}, v{RES+2*i}, v{OUT+12+(i&1)}', f'v_add_f32 v{RES+2*i+1}, v{RES+2*i+1}, v{x}']
    for p in range(valu, nparts + 1):
        for t in range(2):
            for n in range(2):
                d = v(RES + (t * 2 + n) * 4, 4)
                D.append(f'v_mfma_f32_16x16x32_bf16 {d}, {v(SEL+4*n,4)}, {v(PR+p*8+t*4,4)}, {d}')
    D += ['@brk', '@brk']
    for t in range(2):
        D += [f'v_cvt_pk_bf16_f32 v{o+i}, v{RES+2*i}, v{RES+2*i+1}' for i in range(4 * t, 4 * t + 4)]
        if isWO: D.append(f'buffer_store_dwordx4 {v(o+4*t,4)}, v{vP}, {WS}, s{sO0} offen offset:{t*1024} sc1 ; @e')
        else: D.append(f'buffer_store_dwordx4 {v(o+4*t,4)}, v{vX}, {W2}, s{(sO0, sO1)[t]} offen sc1 ; @e')
    D += g.row_stats([[o + 4 * t + i for i in range(4)] for t in range(2)], SD, f's{sOne}')
    D.append(f'ds_write_b32 v{vL4+1}, v{SD} # a')
    mneed = len(D) - 1
    D += ['@M', f'ds_read2st64_b32 {v(SD,2)}, v{vL4} offset0:0 offset1:1 # b', f'ds_read2st64_b32 {v(SD+2,2)}, v{vL4} offset0:2 offset1:3 # b',
          '@brk', '@brk', '@brk', '@brk', '@lg b',
          f'v_add_f32 v{SD}, v{SD}, v{SD+1}', f'v_add_f32 v{SD+2}, v{SD+2}, v{SD+3}', f'v_add_f32 v{SD}, v{SD}, v{SD+2}',
          f'buffer_store_dword v{SD}, v{vSt}, {WS}, s{sSt} offen sc1 ; @e']
    if isWO:
        so = [f's_lshl_b32 s{sO0}, s{sN}, 16', f's_add_u32 s{sO0}, s{sO0}, {XB:#x}', f's_lshl_b32 s{sSt}, s{sN}, 11', f's_add_u32 s{sSt}, s{sSt}, {SB:#x}']
        off = [f's_mov_b32 s{sO0}, {OOB:#x}', f's_mov_b32 s{sSt}, {OOB:#x}']
    else:
        so = [f's_and_b32 s{sO0}, s{sN}, 63', f's_lshl_b32 s{sO0}, s{sO0}, 16', f's_lshl_b32 s{sSt}, s{sN}, 11',
              f's_add_u32 s{sSt}, s{sSt}, {SA + 64*2048:#x}', f's_mov_b32 s{sO1}, 0x8000', f's_cmp_lt_u32 s{sN}, 64',
              f's_cselect_b32 s16, s4, s{sC+8}', f's_cselect_b32 s17, s5, s{sC+9}', 's_cselect_b32 s18, s6, 0x400000',
              f's_cselect_b32 s{sSt}, s{sSt}, {OOB:#x}', f's_cselect_b32 s{sO1}, 0x400, s{sO1}', f's_cselect_b32 s{sT1}, {XA + 64*65536:#x}, 0',
              's_cselect_b64 vcc, -1, 0', f's_add_u32 s{sO0}, s{sO0}, s{sT1}', f's_add_u32 s{sO1}, s{sO1}, s{sO0}',
              f'v_cndmask_b32 v{vX}, v{vRow}, v{vP}, vcc']
        off = [f's_mov_b32 s{sO0}, {OOB:#x}', f's_mov_b32 s{sO1}, {OOB:#x}', f's_mov_b32 s{sSt}, {OOB:#x}']
    g.ws_loop(name, NK, 2, True, VB, R, g.lag_seq(g.lag(name)), src_base, src_stride, src, 6 if isWO else 8, T, PL, D, so, off,
              pub_shift=0 if isWO else 1, late=dict(poff=vP2, loads=loads, code=20 if isWO else 21), pipe=True, mneed=mneed)

def softmax_l(S, T, P, sScale):
    o = [f'v_max3_f32 v{T+i}, v{S+3*i}, v{S+3*i+1}, v{S+3*i+2}' for i in range(4)]
    o += [f'v_max3_f32 v{T}, v{T}, v{T+1}, v{T+2}', f'v_max_f32 v{T}, v{T}, v{T+3}',
          f'v_mov_b32 v{T+1}, v{T}', '@brk', f'v_permlane16_swap_b32 v{T}, v{T+1}', f'v_max_f32 v{T}, v{T}, v{T+1}',
          f'v_mov_b32 v{T+1}, v{T}', '@brk', f'v_permlane32_swap_b32 v{T}, v{T+1}', f'v_max_f32 v{T}, v{T}, v{T+1}',
          f'v_mul_f32 v{T}, s{sScale}, v{T}']
    o += [f'v_fma_f32 v{S+i}, v{S+i}, s{sScale}, -v{T}' for i in range(12)]
    for i in range(12):
        o.append(f'v_exp_f32 v{S+i}, v{S+i}')
        if i >= 2 and i % 2 == 0: o.append(f'v_cvt_pk_bf16_f32 v{P+i//2-1}, v{S+i-2}, v{S+i-1}')
    o += ['@brk', f'v_cvt_pk_bf16_f32 v{P+5}, v{S+10}, v{S+11}']
    return o

def softmax(g, S, T, P, sScale):
    for t in softmax_l(S, T, P, sScale):
        if t != '@brk': g.a(t)

def softmax_sum(S, T):
    o = []
    for i in range(4): o += [f'v_add_f32 v{S+3*i}, v{S+3*i}, v{S+3*i+1}']
    for i in range(4): o += [f'v_add_f32 v{S+3*i}, v{S+3*i}, v{S+3*i+2}']
    o += [f'v_add_f32 v{S}, v{S}, v{S+3}', f'v_add_f32 v{S+6}, v{S+6}, v{S+9}', f'v_add_f32 v{T}, v{S}, v{S+6}',
          f'v_mov_b32 v{T+1}, v{T}', f'v_permlane16_swap_b32 v{T}, v{T+1}', f'v_add_f32 v{T}, v{T}, v{T+1}',
          f'v_mov_b32 v{T+1}, v{T}', f'v_permlane32_swap_b32 v{T}, v{T+1}', f'v_add_f32 v{T}, v{T}, v{T+1}',
          f'v_rcp_f32 v{T}, v{T}']
    return o

NEG = fbits(-1e30)

def role_at(g):
    a = g.a; c = g.c
    a('L_AT:')
    if 'DN' not in c.roles: g.near_side(0); g.near_side(1)
    aw, tq, hd = sC, sC + 1, sC + 2
    a(f's_lshl_b32 s{aw}, s{sIdx}, 2'); a(f's_add_u32 s{aw}, s{aw}, s{sW}'); a(f's_and_b32 s{tq}, s{sW}, 1'); a(f's_lshr_b32 s{hd}, s{aw}, 1')
    vMy, vMx = 4, 5
    g.my_flag(vMy, aw, 'O'); g.zero_flags(vMy)
    xs, cl = sC + 3, sC + 4
    a(f's_and_b32 s{xs}, s{aw}, 7'); a(f's_lshr_b32 s{cl}, s{aw}, 3')
    a(f's_lshl_b32 s{sT2}, s{xs}, 3'); a(f's_add_u32 s{sT2}, s{sT2}, s{cl}'); g.my_flag(vMx, sT2, 'XA')
    a(f'v_mov_b32 v1, s{cl}'); a(f'buffer_store_dword v1, v{vMx}, {WS}, 0 offen sc1')
    g.srd(12, P_X, 0x400000)
    vIn, vOut, vSt, D, T, X = 6, 7, 20, 24, 28, 32
    g.v_j(1); a('v_lshlrev_b32 v1, 11, v1'); g.v_g(2); a('v_lshlrev_b32 v2, 4, v2')
    a(f's_lshl_b32 s{sT0}, s{xs}, 8'); a(f'v_add3_u32 v{vIn}, v1, v2, s{sT0}')
    a(f's_mov_b32 s{sN}, s{cl}')
    reg = lambda b, ks, t: X + b * 32 + (ks * 2 + t) * 4
    def loads(b, ahead):
        for t in range(2):
            a(f's_lshl_b32 s{sT0}, s{sN}, 16'); a(f's_add_u32 s{sT0}, s{sT0}, {ahead*8*65536 + t*32768}')
            for ks in range(4):
                a(f'buffer_load_dwordx4 {v(reg(b,ks,t),4)}, v{vIn}, {W1}, s{sT0} offen offset:{ks*64}')
    def stores(b, k):
        for h in range(2):
            a(f's_lshl_b32 s{sT0}, s{sN}, 16'); a(f's_add_u32 s{sT0}, s{sT0}, {XA + k*8*65536 + h*4096:#x}')
            for i in range(4):
                a(f'buffer_store_dwordx4 {v(reg(b,2*h+i//2,i%2),4)}, v{vOut}, {WS}, s{sT0} offen offset:{i*1024} sc1')
        for t_ in g.row_stats([[reg(b, ks, t) + i for ks in range(4) for i in range(4)] for t in range(2)], D, f'v{T}'):
            if t_ != '@brk': a(t_)
        a(f's_lshl_b32 s{sT0}, s{sN}, 11'); a(f's_add_u32 s{sT0}, s{sT0}, {SA + k*8*2048:#x}')
        a(f'buffer_store_dword v{D}, v{vSt}, {WS}, s{sT0} offen sc1')
    def done(k):
        a(f's_add_u32 s{sT0}, s{sN}, {8*k+8}'); a(f's_min_u32 s{sT0}, s{sT0}, 64'); a(f'v_mov_b32 v{T+1}, s{sT0}')
        a(f'buffer_store_dword v{T+1}, v{vMx}, {WS}, 0 offen sc1')
    loads(0, 0)
    a(f's_lshl_b32 s{sT0}, s{xs}, 13'); a(f'v_lshlrev_b32 v1, 4, v0'); a(f'v_add_u32 v{vOut}, s{sT0}, v1')
    g.stat_store_addr(vSt, xs)
    a(f'v_mov_b32 v{T}, 0x3f803f80')
    g.arrive()
    stores(0, 0)
    for k in range(1, 5): loads(k, k)
    a('s_waitcnt vmcnt(32)'); done(0)
    a('s_waitcnt vmcnt(25)'); stores(1, 1); a('s_waitcnt vmcnt(26)'); stores(2, 2)
    loads(5, 5); loads(6, 6); loads(0, 7)
    a('s_waitcnt vmcnt(24)'); done(2)
    stores(3, 3); stores(4, 4)
    a('s_waitcnt vmcnt(19)'); stores(5, 5)
    a('s_waitcnt vmcnt(9)'); done(4)
    stores(6, 6); stores(0, 7)
    a('s_waitcnt vmcnt(0)'); done(7)
    g.wait_start(8, 1)
    for t in g.stamp(5): a(t)
    if not {'QK', 'P'} <= c.roles: g.endpgm(); g.flush_tail(); return
    vL16, vT1, vKm, vVm, vTr, vPo, vPa, vPoll, vF = 6, 7, 8, 9, 10, 11, 12, 13, 14
    MK, Q, Q2, KXr, KMr, VXr, VMr, S, P, T, ONE, SUM, O, OUT = 16, 28, 44, 60, 92, 108, 140, 156, 168, 176, 180, 184, 188, 220
    sSc, sH13, sH12, sE, sE2, sLds, sFlN, sO = (sC + 5 + i for i in range(8))
    a('s_waitcnt vmcnt(0)')
    a(f'v_lshlrev_b32 v{vL16}, 4, v0')
    a(f's_cmp_eq_u32 s{tq}, 0'); a(f's_cselect_b32 s{sT0}, {OOB:#x}, 0'); a(f'v_add_u32 v{vT1}, s{sT0}, v{vL16}')
    g.v_g(1); a('v_lshlrev_b32 v1, 7, v1'); a('v_and_b32 v2, 7, v0'); a('v_lshlrev_b32 v2, 4, v2'); a(f'v_add_u32 v{vKm}, v1, v2')
    a('v_and_b32 v1, 31, v0'); a(f'v_lshlrev_b32 v{vVm}, 4, v1')
    a(f's_lshl_b32 s{sLds}, s{sW}, 13'); v_tr_addr(g, vTr); a(f'v_add_u32 v{vTr}, s{sLds}, v{vTr}')
    a(f's_lshl_b32 s{sT2}, s{hd}, 2'); g.poll_addr(vPo, sT2, 4, 'M')
    a('v_bfe_u32 v1, v0, 1, 2'); a('v_min_u32 v1, 2, v1'); a('v_lshlrev_b32 v1, 6, v1'); a('v_and_b32 v2, 1, v0'); a('v_add_u32 v1, v1, v2')
    a(f's_lshl_b32 s{sT0}, s{hd}, 1'); a(f'v_add_u32 v1, s{sT0}, v1'); a('v_mul_u32_u24 v1, 683, v1'); a('v_lshrrev_b32 v1, 11, v1')
    a(f'v_mul_u32_u24 v1, {FS}, v1'); a(f'v_add_u32 v1, {FOFF["P"]}, v1')
    a('v_cmp_gt_u32 vcc, 32, v0'); a(f'v_cndmask_b32 v{vPo}, v1, v{vPo}, vcc')
    a(f's_lshl_b32 s{sH13}, s{hd}, 13'); a(f's_lshl_b32 s{sH12}, s{hd}, 12'); a(f's_add_u32 s{sH12}, s{sH12}, {KVM:#x}')
    g.v_j(1); a(f's_lshl_b32 s{sT0}, s{tq}, 4'); a(f'v_add_u32 v1, s{sT0}, v1')
    g.v_g(2); a('v_lshlrev_b32 v2, 2, v2'); a(f'v_mov_b32 v{vF}, {NEG}')
    for kt in range(2):
        for r in range(4):
            a(f'v_add_u32 v3, {16*kt+r}, v2'); a('v_cmp_gt_u32 vcc, v3, v1'); a(f'v_cndmask_b32 v{MK+4*kt+r}, 0, v{vF}, vcc')
    a('v_cmp_lt_u32 vcc, 31, v0')
    for r in range(4): a(f'v_cndmask_b32 v{MK+8+r}, 0, v{vF}, vcc')
    for i in range(4): a(f'v_mov_b32 v{ONE+i}, 0x3f803f80')
    a(f's_mov_b32 s{sSc}, {fbits(SOFTC)}'); a(f's_lshl_b32 s{tq}, s{tq}, 10')
    def early(srd):
        o = []
        for i in range(8):
            pre = [f's_lshl_b32 s{sE}, s{sNx}, 18', f's_add_u32 s{sE}, s{sE}, s{sH13}', f's_add_u32 s{sE}, s{sE}, {KX:#x}', f's_add_u32 s{sE2}, s{sE}, 4096'] if i == 0 else []
            o.append(pre + [f'buffer_load_dwordx4 {v(KXr+4*i,4)}, v{vT1 if i & 1 else vL16}, {srd}, s{sE if i < 4 else sE2} offen offset:{(i&3)*1024} sc1'])
        for es in range(4):
            pre = {0: [f's_sub_u32 s{sE2}, s{sE}, {KX-QX:#x}', f's_add_u32 s{sE2}, s{sE2}, s{tq}'], 2: [f's_add_u32 s{sE2}, s{sE2}, 4096']}.get(es, [])
            o.append(pre + [f'buffer_load_dwordx4 {v(Q+4*es,4)}, v{vL16}, {srd}, s{sE2} offen offset:{(es&1)*2048} sc1'])
        for hf in range(2):
            for i in range(4):
                pre = [f's_add_u32 m0, s{sLds}, {hf*4096}', f's_add_u32 s{sE2}, s{sE}, {VX-KX+hf*4096:#x}'] if i == 0 else []
                o.append(pre + [f'buffer_load_dwordx4 v{vT1 if i & 1 else vL16}, {srd}, s{sE2} offen offset:{i*1024} sc1 lds'])
        return o
    sN2 = 24
    def poll_prep(n, nx):
        for t in g.fl_of(n, sFl) + g.fl_of(nx, sFlN): a(t)
        a('s_mov_b32 vcc_lo, -1'); a('s_mov_b32 vcc_hi, 0')
        a(f'v_mov_b32 v1, s{sFlN}'); a(f'v_mov_b32 v2, s{sFl}'); a('v_cndmask_b32 v1, v1, v2, vcc'); a(f'v_add_u32 v{vPa}, v1, v{vPo}')
        a(f'v_mov_b32 v1, s{nx}'); a(f'v_mov_b32 v2, s{n}'); a(f'v_cndmask_b32 v{vF}, v1, v2, vcc')
    poll = f'buffer_load_dword v{vPoll}, v{vPa}, {WS}, 0 offen sc1'
    pub = f'buffer_store_dword v15, v{vMy}, {WS}, s{sPFl} offen sc1'
    for t in g.seq_init(g.lag('AT')): a(t)
    a(f's_mov_b32 s{sN}, 0'); a(f's_mov_b32 s{sNx}, 0'); a(f's_mov_b32 s{sPFl}, {OOB:#x}'); a('v_mov_b32 v15, 0')
    for t in g.next_n(sN2, sNx, g.lag('AT')): a(t)
    g.mini_init(236); g.light_start()
    a('LAT_slow:')
    poll_prep(sNx, sNx)
    a('LAT_slow2:')
    a(poll); a('s_waitcnt vmcnt(0)'); a(f'v_cmp_lt_u32 vcc, v{vF}, v{vPoll}'); a('s_cmp_eq_u32 vcc_hi, -1')
    a(f's_cbranch_scc0 {g.timeout(9, "LAT_slow2")}')
    for grp in early(WS):
        for t in grp: a(t)
    poll_prep(sNx, sN2); a(poll)
    a('s_waitcnt vmcnt(0)')
    a('.p2align 6'); a('LAT_top:')
    a(f's_mov_b32 s{sN}, s{sNx}'); a(f's_mov_b32 s{sNx}, s{sN2}')
    for t in g.stamp(0): a(t)
    a(f's_lshl_b32 s{sT2}, s{sN}, 17'); a(f's_add_u32 s{sT2}, s{sT2}, s{sH12}')
    def kvm():
        for es in range(4): a(f'buffer_load_dwordx4 {v(KMr+4*es,4)}, v{vKm}, {WS}, s{sT2} offen offset:{es*512} sc1')
        for i in range(4): a(f'buffer_load_dwordx4 {v(VMr+4*i,4)}, v{vVm}, {WS}, s{sT2} offen offset:{2048+i*512} sc1')
    def xpart(younger):
        a(f's_waitcnt vmcnt({younger + 4 + (2 if c.stamps else 0) + (1 if c.mini else 0)})')
        for et in range(8):
            for t in range(2): a(f'ds_read_b64_tr_b16 {v(VXr+4*et+2*t,2)}, v{vTr} offset:{(et>>1)*2048 + t*1024 + (et&1)*512}')
            es, kt = et >> 1, et & 1
            a(f'v_mfma_f32_16x16x32_bf16 {v(S+4*kt,4)}, {v(KXr+4*et,4)}, {v(Q+4*es,4)}, {v(MK+4*kt,4) if es == 0 else v(S+4*kt,4)}')
        for i in range(16): a(f'v_mov_b32 v{Q2+i}, v{Q+i}')
    a(f'v_cmp_lt_u32 vcc, v{vF}, v{vPoll}'); a('s_cmp_eq_u64 vcc, -1'); a('s_cbranch_scc0 LAT_look')
    for t in g.stamp(1) + g.mini_take(): a(t)
    kvm(); xpart(8); a('s_waitcnt lgkmcnt(0)'); a('s_branch LAT_go')
    a('LAT_look:')
    a(poll); xpart(1)
    a('s_waitcnt vmcnt(0) lgkmcnt(0)')
    a(pub)
    a(f'v_cmp_lt_u32 vcc, v{vF}, v{vPoll}'); a('s_cmp_eq_u32 vcc_lo, -1'); a('s_cbranch_scc1 LAT_seen')
    a('LAT_spin:')
    a(poll); a('s_waitcnt vmcnt(0)'); a(f'v_cmp_lt_u32 vcc, v{vF}, v{vPoll}'); a('s_cmp_eq_u32 vcc_lo, -1')
    a(f's_cbranch_scc0 {g.timeout(10, "LAT_spin")}')
    a('LAT_seen:')
    for t in g.stamp(1) + g.mini_take(): a(t)
    kvm()
    a('LAT_go:')
    a('s_cmp_eq_u32 vcc_hi, -1'); a(f's_cselect_b32 s10, {WS_BYTES:#x}, 0')
    a(f's_mov_b32 s{sT3}, s{sFl}')
    for t in g.next_n(sN2, sNx, g.lag('AT')): a(t)
    poll_prep(sNx, sN2)
    a(f's_lshl_b32 s{sO}, s{sN}, 18'); a(f's_add_u32 s{sO}, s{sO}, s{sH13}'); a(f's_add_u32 s{sO}, s{sO}, s{tq}'); a(f's_add_u32 s{sO}, s{sO}, {OX:#x}')
    E = early(WSC); NE0 = c.ATE
    for grp in E[:NE0]:
        for t in grp: a(t)
    E = E[NE0:]
    a(f's_waitcnt vmcnt({4 + NE0})')
    a(pub); a(poll)
    a(f's_add_u32 s{sT0}, s{sN}, 1'); a(f'v_mov_b32 v15, s{sT0}'); a(f's_mov_b32 s{sPFl}, s{sT3}'); a(f's_add_u32 s{sT1}, s{sO}, 4096')
    for t in g.stamp(2): a(t)
    body = [f'v_mfma_f32_16x16x32_bf16 {v(S+8,4)}, {v(KMr+4*es,4)}, {v(Q2+4*es,4)}, {v(MK+8,4) if es == 0 else v(S+8,4)}' for es in range(4)]
    body += [t for t in softmax_l(S, T, P, sSc) if t != '@brk']
    body.append(f'v_mfma_f32_16x16x32_bf16 {v(SUM,4)}, {v(ONE,4)}, {v(P,4)}, 0')
    body += [f'v_mfma_f32_16x16x32_bf16 {v(O+4*i,4)}, {v(VXr+4*i,4)}, {v(P,4)}, 0' for i in range(8)]
    body.append('@vm')
    body.append(f'v_mfma_f32_16x16x16_bf16 {v(SUM,4)}, {v(ONE,2)}, {v(P+4,2)}, {v(SUM,4)}')
    body += [f'v_mfma_f32_16x16x16_bf16 {v(O+4*i,4)}, {v(VMr+2*i,2)}, {v(P+4,2)}, {v(O+4*i,4)}' for i in range(8)]
    tt = 0; nxt = 0; n_e = NE0; step = 640 / max(len(E), 1)
    for t in body:
        if t == '@vm': t = f's_waitcnt vmcnt({2 + n_e})'
        a(t); tt += 16 if t.startswith('v_mfma') else 8 if t.startswith(('v_exp', 'v_perm')) else 4
        if E and tt >= nxt:
            for u in E.pop(0): a(u)
            n_e += 1; nxt += step
    for grp in E:
        for u in grp: a(u)
    a(f'v_rcp_f32 v{T}, v{SUM}')
    for h in range(4):
        for i in range(8 * h, 8 * h + 8, 2): a(f'v_pk_mul_f32 {v(O+i,2)}, {v(O+i,2)}, {v(T,2)} op_sel_hi:[1,0]')
        for i in range(4 * h, 4 * h + 4): a(f'v_cvt_pk_bf16_f32 v{OUT+i}, v{O+2*i}, v{O+2*i+1}')
        a(f'buffer_store_dwordx4 {v(OUT+4*h,4)}, v{vL16}, {WS}, s{sO if h < 2 else sT1} offen offset:{(h&1)*2048} sc1')
    for t in g.stamp(3): a(t)
    if c.mini: a('s_waitcnt lgkmcnt(0)')
    for t in g.mini_put(236): a(t)
    g.stamp_store(O, 4)
    a(f's_waitcnt vmcnt({20 - NE0 + 4 + (2 if c.stamps else 0) + (1 if c.mini else 0)})')
    a('s_cmp_lg_u32 s10, 0'); a('s_cbranch_scc1 LAT_top')
    a('s_waitcnt vmcnt(0)'); a(pub)
    a(f's_cmp_lt_u32 s{sNx}, {c.NEND}'); a('s_cbranch_scc1 LAT_slow')
    g.endpgm(); g.flush_tail()

def v_tr_addr(g, d):
    a = g.a
    a('v_bfe_u32 v1, v0, 1, 1'); a('v_lshlrev_b32 v1, 8, v1'); a('v_lshrrev_b32 v2, 2, v0'); a('v_lshlrev_b32 v2, 4, v2'); a('v_add_u32 v1, v1, v2')
    a('v_and_b32 v2, 1, v0'); a('v_lshlrev_b32 v2, 3, v2'); a(f'v_add_u32 v{d}, v1, v2')

def emit(g):
    r = g.c.roles
    if 'GU' in r: role_gu(g)
    if 'WO' in r: role_proj(g, 'WO', False); role_proj(g, 'WO', True)
    if 'DN' in r: role_proj(g, 'DN', False); role_proj(g, 'DN', True)
    if 'AT' in r: role_at(g)
    import roles3
    roles3.emit(g)
```

```python
from gen import *
from roles2 import NEG, v_tr_addr

VB = 96
RESW = 24576
STG = 98304
sR0, sStage, sWb = sC, sC + 1, sC + 2
sN1, sN2 = sNx, sC + 3

class Lg:
    def __init__(s, a): s.a = a; s.q = []
    def rd(s, tag, text): s.q.append(tag); return text
    def wait(s, tag):
        if tag not in s.q: return None
        i = len(s.q) - 1 - s.q[::-1].index(tag)
        n = len(s.q) - 1 - i; s.q = s.q[i + 1:]
        assert n <= 15
        return f's_waitcnt lgkmcnt({n})'

def glue(l):
    o = []
    for t in l:
        if t.startswith('s_cselect'): o[-1] += '\n' + t
        else: o.append(t)
    return o

def frag_map(resident, nsteps, ntiles):
    m = {}; r = 0; l = 0
    for st in range(nsteps):
        for n in range(ntiles):
            if resident(st, n): m[st, n] = ('l', l); l += 1
            else: m[st, n] = ('r', r); r += 8
    assert l == 12 and r == 416
    return m

def chain_setup(g, vIdx, vL16, vRes):
    a = g.a
    a(f's_mul_i32 s{sR0}, s{sG}, {RING_SZ:#x}'); a(f's_add_u32 s{sR0}, s{sR0}, {RING:#x}')
    a(f's_lshl_b32 s{sStage}, s{sW}, 14'); a(f's_add_u32 s{sStage}, s{sStage}, {STG}')
    a(f'v_lshlrev_b32 v{vL16}, 4, v0')
    a(f's_mul_i32 s{sT0}, s{sW}, {RESW}'); a(f'v_add_u32 v{vRes}, s{sT0}, v{vL16}')
    a('v_mov_b32 v1, 0x4444'); a('v_mov_b32 v2, 0xeeee'); a('v_and_b32 v3, 8, v0'); a('v_cmp_eq_u32 vcc, 0, v3')
    a(f'v_cndmask_b32 v{vIdx}, v2, v1, vcc')

def poison_init(g, vAddr, sOff, sub, slot_bytes, width, first=0):
    a = g.a
    for i in range(4): a(f'v_mov_b32 v{16+i}, -1')
    for l in range(2):
        for sl in range(first, 4):
            a(f's_add_u32 s{sT0}, s{sR0}, {l*2*RING_SZ + sub + sl*slot_bytes:#x}'); a(f's_add_u32 s{sT0}, s{sT0}, s{sOff}')
            a(f'buffer_store_dwordx{width} {v(16,width)}, v{vAddr}, {WS}, s{sT0} offen sc1')

def chain_load(g, fm, chunk_src, nsteps, nquads, vRes, rowmap, grow, pitch):
    a = g.a
    vA, vTr, TMPR = 20, 21, 24
    a('v_lshrrev_b32 v1, 3, v0'); a(f'v_mul_u32_u24 v1, {pitch}, v1')
    a('v_and_b32 v2, 7, v0'); a('v_lshlrev_b32 v2, 4, v2'); a(f'v_add_u32 v{vA}, v1, v2')
    g.tr_addr(vTr, 128, 0, 8, sStage, chain=rowmap)
    chunks = []
    for st in range(nsteps):
        for p in range(nquads):
            for hq in range(2):
                pre, sb, imm = chunk_src(st, p)
                ch = dict(pre=pre if hq == 0 else [], dma=[(W1, vA, sb, imm + grow(hq, i) * pitch) for i in range(4)], reads=[], post=[])
                for k in range(4):
                    kind, idx = fm[st, 4 * p + k]
                    for q in range(2):
                        dest = wreg(idx + 4 * hq + 2 * q, 2, VB) if kind == 'r' else v(TMPR + 4 * k + 2 * q, 2)
                        ch['reads'].append((dest, vTr, 2 * q * 128 + k * 32))
                    if kind == 'l':
                        ch['post'].append(f'ds_write_b128 v{vRes}, {v(TMPR+4*k,4)} offset:{idx*2048+hq*1024}')
                if ch['post']: ch['post'].append('s_waitcnt lgkmcnt(0)')
                chunks.append(ch)
    g.load_weights(chunks, 4, 4096, sStage)

def pick_mode(g, name):
    a = g.a
    g.wait_start(48, 1, False)
    a(f's_add_u32 s{sRdy}, s{sRound}, 1')
    for t in g.seq_init(g.c.L): a(t)
    g.light_start()
    a('s_barrier')

sX = 24

def ring_calc(n, base, s15=None, s15x=None, s14=None, add14=0, s14x=None):
    o = [f's_cmp_lt_u32 s{n}, 64', f's_cselect_b32 s{base}, 0, {2*RING_SZ:#x}', f's_add_u32 s{base}, s{base}, s{sR0}']
    if s15 is not None:
        o += [f's_and_b32 s{s15}, s{n}, 3', f's_lshl_b32 s{s15}, s{s15}, 15']
        if s15x is not None: o += [f's_xor_b32 s{s15x}, s{s15}, 0x10000', f's_add_u32 s{s15x}, s{s15x}, s{base}']
        o += [f's_add_u32 s{s15}, s{s15}, s{base}']
    if s14 is not None:
        o += [f's_add_u32 s{s14}, s{n}, {add14}', f's_and_b32 s{s14}, s{s14}, 3'] if add14 else [f's_and_b32 s{s14}, s{n}, 3']
        o += [f's_lshl_b32 s{s14}, s{s14}, 14']
        if s14x is not None: o += [f's_xor_b32 s{s14x}, s{s14}, 0x8000', f's_add_u32 s{s14x}, s{s14x}, s{base}']
        o += [f's_add_u32 s{s14}, s{s14}, s{base}']
    return o

def check4(t, d):
    return [f'v_max3_u32 v{t}, v{d}, v{d+1}, v{d+2}', f'v_max_u32 v{t}, v{t}, v{d+3}', f'v_cmp_eq_u32 vcc, -1, v{t}']

def tick(g, code):
    lab = g.a.lab('to')
    g.tail.append([f'{lab}:', f's_mov_b32 s{sCode}, {code}', 's_branch L_fail'])
    return [f's_add_u32 s{sTO}, s{sTO}, 1', f's_cmp_ge_u32 s{sTO}, {g.c.TIMEOUT}', f's_cbranch_scc1 {lab}']

def gm_loads(G, vL16, sMem, lo, hi):
    return [f'buffer_load_dwordx4 {v(G+4*i,4)}, v{vL16}, {WS}, s{sMem} offen offset:{i*1024} sc1' for i in range(lo, hi)]

def gm_check(G, T, lo, hi, younger):
    o = []
    for i in range(lo, hi):
        o.append(f's_waitcnt vmcnt({hi-1-i+younger})')
        d = G + 4 * i
        if i == lo: o += [f'v_max3_u32 v{T}, v{d}, v{d+1}, v{d+2}', f'v_max_u32 v{T}, v{T}, v{d+3}']
        else: o += [f'v_max3_u32 v{T}, v{T}, v{d}, v{d+1}', f'v_max3_u32 v{T}, v{T}, v{d+2}, v{d+3}']
    o.append(f'v_cmp_eq_u32 vcc, -1, v{T}')
    return o

def step_order(NP):
    return [(q, i) for q in range(4) for i in range(NP)] + [(q, i) for q in range(4) for i in range(NP, 4)]

def w_pre(WB, vRes):
    return [f'ds_read_b128 {v(WB+8*u+4*hh,4)}, v{vRes} offset:{u*2048+hh*1024}' for u in range(2) for hh in range(2)]

def proj16(g, fm, ACC, G, AF, WB, vIdx, vStg, vRes, vT, vC, vL16, sMem, code, reads, extra, endfill, fold):
    a = g.a; lg = Lg(a); NP = g.c.NP
    order = step_order(NP)
    oth = [st for st in range(16) if order[st][0]]
    af = lambda st: v(G + 4 * order[st][1], 4) if order[st][0] == 0 else v(AF + 4 * (oth.index(st) % 3), 4)
    def mm(st, n):
        kind, idx = fm[st, n]
        B = wreg(idx, 8, VB) if kind == 'r' else v(WB + 8 * (idx % 2), 8)
        return f'v_smfmac_f32_16x16x64_bf16 {v(ACC+4*n,4)}, {af(st)}, {B}, v{vIdx}'
    cur = [None]
    def xr(st):
        q = order[st][0]
        if cur[0] == q: return []
        cur[0] = q; return [f'v_xor_b32 v{vT}, {q<<12}, v{vStg}']
    rdA = lambda st: xr(st) + [('A', st, f'ds_read_b128 {af(st)}, v{vT} offset:{order[st][1]*1024}')]
    rdW = lambda st: [('W', st, f'ds_read_b128 {v(WB+8*((st-1)%2)+4*hh,4)}, v{vRes} offset:{(st-1)*2048+hh*1024}') for hh in range(2)]
    wr = lambda i: ('S', i, f'ds_write_b128 v{vStg}, {v(G+4*i,4)} offset:{i*1024}')
    seq = [(st, n) for st in range(13) for n in (0, 2, 1, 3)] + [(st, n) for p in range(2) for st in (13, 14, 15) for n in (p, p + 2)]
    lastuse = {}
    for pos, (st, n) in enumerate(seq): lastuse[st] = pos
    B1 = {1: 3, 2: 5, 4: 7}[NP]
    CK, B2 = g.c.CK, g.c.B2
    fixed = {}
    def put(pos, items): fixed.setdefault(pos, []).extend(items)
    for i in range(NP): put(i, [wr(i)])
    late = gm_loads(G, vL16, sMem, NP, 4)
    for k, t in enumerate(late): put(k if NP == 2 else 2 * k, [t])
    put(B1 - 1, xr(oth[0]))
    put(B1, [('wait', 'S', NP - 1), 's_barrier'] + (g.stamp(5) if g.c.fine else []))
    q = []
    if NP < 4:
        lb, lc = a.lab('lf'), a.lab('lfc')
        ck = gm_check(G, vC, NP, 4, 0)
        ck = [t for t in ck if not t.startswith('s_waitcnt')]
        g.tail.append([f'{lb}:'] + late + tick(g, code) + ['s_waitcnt vmcnt(0)'] + ck + [f's_cbranch_vccz {lc}', f's_branch {lb}'])
        q = [(CK, t) for t in ['@late'] + ck + [f's_cbranch_vccnz {lb}\n{lc}:'] + [wr(i) for i in range(NP, 4)]]
        q += [(B2, ('wait', 'S', 3)), (B2, 's_barrier')]
    q2 = list(extra); lastvm = max([p for p in fixed if any(t in late for t in fixed[p])] + [-9]); nvm = 0
    reads = list(reads); endfill = list(endfill)
    f0 = fold(0, False)
    nA = 0; bar2 = NP == 4; checked = NP == 4
    def emit(t):
        if isinstance(t, tuple):
            if t[0] == 'wait':
                w = lg.wait((t[1], t[2]))
                if w: a(w)
            else: a(lg.rd((t[0], t[1]), t[2]))
        else: a(t)
    def drain(cond):
        nonlocal bar2, checked
        while q and cond():
            t = q.pop(0)[1]
            if t == '@late':
                assert not any('vcc' in x[1] or 'scc' in x[1] for x in q2)
                t = f's_waitcnt vmcnt({nvm})'
            emit(t)
            if t == 's_barrier': bar2 = True
            if isinstance(t, str) and t.startswith('s_cbranch_vccnz'): checked = True
    lg.q = [('W', 1), ('W', 1), ('W', 2), ('W', 2)]
    for pos, (st, n) in enumerate(seq):
        k = pos % 4; stp = pos // 4
        if order[st][0] == 0 and order[st][1] >= NP: drain(lambda: not checked)
        if order[st][0] and oth.index(st) >= nA:
            if order[st][1] >= NP: drain(lambda: not bar2)
            for t in rdA(st): emit(t)
            nA += 1
        tags = [('A', st)]
        if fm[st, n][0] == 'l': tags += [('W', st), ('A', st + 1)]
        best = None
        for t in tags:
            if t in lg.q and (best is None or lg.q.index(t) > lg.q.index(best)): best = t
        if best == ('A', st + 1) and lg.q.index(best) >= len(lg.q) - 2: best = ('W', st) if ('W', st) in lg.q else None
        if best: a(lg.wait(best))
        a(mm(st, n))
        f = list(fixed.get(pos, []))
        if 2 <= stp <= 11 and k == 0: f += rdW(stp + 1)
        room = 2 - (1 if (k == 2 and 1 <= stp <= 12) else 0)
        for t in f: emit(t)
        room -= len(f)
        while pos >= B1 and nA < len(oth) and (room > 0 or pos == B1) and (nA < 3 or lastuse[oth[nA - 3]] <= pos) and \
                (order[oth[nA]][1] < NP or bar2):
            r = rdA(oth[nA])
            for t in r: emit(t)
            nA += 1; room -= len(r)
            if pos == B1: break
        while room > 0 and pos > B1 and reads and reads[0][0] <= pos:
            emit(('X', pos, reads.pop(0)[1])); room -= 1
        cnt = [room]
        def more():
            if cnt[0] <= 0 or q[0][0] > pos: return False
            cnt[0] -= 1; return True
        drain(more); room = cnt[0]
        while room > 0 and q2 and q2[0][0] <= pos:
            if q2[0][1].startswith('buffer_'):
                if pos < lastvm + g.c.XS: break
                lastvm = pos; nvm += 1
            a(q2.pop(0)[1]); room -= 1
        if 57 <= pos <= 59:
            while room > 0: a(endfill.pop(0) if endfill else 's_nop 0'); room -= 1
        if pos >= 60:
            while room > 0 and f0: a(f0.pop(0)); room -= 1
    assert not reads and not q and not q2, (reads, q, q2)
    for t in f0 + endfill + fold(1, True): a(t)

def fold_add(x, y, packed):
    o = [f'v_permlane32_swap_b32 v{x+r}, v{y+r}' for r in range(4)]
    if packed: return o + [f'v_pk_add_f32 {v(x+r,2)}, {v(x+r,2)}, {v(y+r,2)}' for r in (0, 2)]
    return o + [f'v_add_f32 v{x+r}, v{x+r}, v{y+r}' for r in range(4)]

def mem_weights(g, vRes, sCol):
    fm = frag_map(lambda st, n: 1 <= st <= 12 and n == 3, 16, 4)
    def src(st, p):
        q, i = step_order(g.c.NP)[st]
        pre = [f's_xor_b32 s{sWb}, s{sW}, {q}', f's_lshl_b32 s{sWb}, s{sWb}, 21', f's_add_u32 s{sWb}, s{sWb}, s{sCol}']
        return pre, sWb, i * 64 * 8192
    chain_load(g, fm, src, 16, 1, vRes, (16, 4, 8), lambda hq, i: 32 * hq + 8 * i, 8192)
    g.loaded()
    return fm

def role_qk(g):
    a = g.a; c = g.c
    a('L_QK:')
    a(f's_cmp_lt_u32 s{sW}, 2'); a(f's_cselect_b32 s{P_WQ}, s{P_WQ}, s{P_WK}'); a(f's_cselect_b32 s{P_WQ+1}, s{P_WQ+1}, s{P_WK+1}')
    g.srd(12, P_WQ, 0x800000)
    vIdx, vL16, vStg, vRes, vXw, vXr, vOst, vKm, vVm, vPoff, vMy, vPoll, vMask = 5, 6, 7, 8, 9, 10, 11, 12, 13, 14, 15, 4, 3
    vT0, vT1, vVt, vT2 = 0, 1, 2, 81
    ACC, G, AF, WB, KX2, VMf = 16, 32, 48, 60, 76, 92
    F, S, VXf, P, T2, O, OUT, PZ = 48, 64, 16, 24, 30, 48, 56, 60
    KVB, EXC = 114688, 147456
    hw, cO, cV, sKV, sW8, sW12, sFv, cK, cM, sW11 = (sC + 4 + i for i in range(10))
    sMem, sVm, sO, sOp, sKm, sDk, sDv, sMk, sB = (sX + i for i in range(9))
    sSc, sMemN, sFl2, sPF2 = sX + 10, sX + 12, sX + 13, sX + 14
    chain_setup(g, vIdx, vL16, vRes)
    a(f's_lshl_b32 s{hw}, s{sG}, 4'); a(f's_add_u32 s{hw}, s{hw}, s{sIdx}'); a(f's_lshl_b32 s{hw}, s{hw}, 2'); a(f's_add_u32 s{hw}, s{hw}, s{sW}')
    g.my_flag(vMy, hw, 'M'); g.zero_flags(vMy)
    g.v_g(1); a('v_lshlrev_b32 v1, 8, v1'); a('v_and_b32 v2, 7, v0'); a('v_lshlrev_b32 v2, 4, v2'); a('v_add_u32 v1, v1, v2')
    a(f'v_mov_b32 v3, {OOB:#x}'); a('v_and_b32 v4, 8, v0'); a('v_cmp_eq_u32 vcc, 0, v4')
    a(f'v_cndmask_b32 v{vOst}, v1, v3, vcc')
    g.v_g(1); a('v_lshlrev_b32 v1, 7, v1'); a('v_add_u32 v1, v1, v2'); a(f'v_cndmask_b32 v{vKm}, v3, v1, vcc')
    a(f's_lshl_b32 s{cO}, s{sIdx}, 11'); a(f's_lshr_b32 s{sT0}, s{sW}, 1'); a(f's_lshl_b32 s{sT0}, s{sT0}, 10'); a(f's_add_u32 s{cO}, s{cO}, s{sT0}')
    a(f's_and_b32 s{sT0}, s{sW}, 1'); a(f's_lshl_b32 s{sT0}, s{sT0}, 7'); a(f's_add_u32 s{cO}, s{cO}, s{sT0}')
    poison_init(g, vOst, cO, R_OM, 0x8000, 4)
    g.arrive(chain=True)
    a(f's_add_u32 s{cO}, s{cO}, {R_OM:#x}')
    a(f's_lshr_b32 s{cK}, s{hw}, 2'); a(f's_lshl_b32 s{cK}, s{cK}, 8'); a(f's_and_b32 s{sT0}, s{sW}, 1'); a(f's_lshl_b32 s{sT0}, s{sT0}, 7')
    a(f's_add_u32 s{cK}, s{cK}, s{sT0}')
    fm = mem_weights(g, vRes, cK)
    a(f's_lshl_b32 s{sW12}, s{sW}, 12'); a(f's_lshl_b32 s{sW11}, s{sW}, 11')
    a(f's_add_u32 s{sT0}, s{sW12}, {STG}'); a(f'v_add_u32 v{vStg}, s{sT0}, v{vL16}')
    def exbase(src_):
        a(f'v_lshlrev_b32 v1, 10, v{src_}'); a(f'v_and_b32 v3, 1, v{src_}'); a('v_lshlrev_b32 v3, 5, v3'); a('v_add_u32 v1, v1, v3')
        a(f'v_lshrrev_b32 v3, 1, v{src_}'); a('v_lshlrev_b32 v3, 7, v3'); a('v_add_u32 v1, v1, v3')
    a('v_bfe_u32 v2, v0, 4, 1'); a(f's_and_b32 s{sT0}, s{sW}, 2'); a(f's_xor_b32 s{sT0}, s{sT0}, 2'); a(f'v_add_u32 v2, s{sT0}, v2')
    exbase(2); a('v_and_b32 v2, 47, v0'); a('v_lshlrev_b32 v2, 3, v2')
    a(f's_and_b32 s{sT0}, s{sW}, 1'); a(f's_lshl_b32 s{sT0}, s{sT0}, 9'); a(f's_add_u32 s{sT0}, s{sT0}, {EXC}'); a(f'v_add3_u32 v{vXw}, v1, v2, s{sT0}')
    a('v_and_b32 v2, 3, v0'); exbase(2); g.v_g(2); a('v_lshlrev_b32 v2, 6, v2'); a('v_add_u32 v1, v1, v2')
    a('v_bfe_u32 v2, v0, 2, 2'); a('v_lshlrev_b32 v2, 3, v2'); a('v_add_u32 v1, v1, v2'); a(f'v_add_u32 v{vXr}, {EXC}, v1')
    a('v_and_b32 v1, 31, v0'); a(f'v_lshlrev_b32 v{vVm}, 4, v1')
    a(f's_lshl_b32 s{cV}, s{sIdx}, 2'); a(f's_add_u32 s{cV}, s{cV}, s{sW}'); a(f's_lshl_b32 s{cV}, s{cV}, 9'); a(f's_add_u32 s{cV}, s{cV}, {R_VML:#x}')
    a(f's_lshl_b32 s{cK}, s{hw}, 11'); a(f's_add_u32 s{cK}, s{cK}, {KX:#x}')
    a(f's_lshr_b32 s{cM}, s{hw}, 2'); a(f's_lshl_b32 s{cM}, s{cM}, 12'); a(f's_lshl_b32 s{sT0}, s{sW}, 9'); a(f's_add_u32 s{cM}, s{cM}, s{sT0}')
    a(f's_add_u32 s{cM}, s{cM}, {KVM:#x}')
    a('v_and_b32 v1, 1, v0'); a('v_lshlrev_b32 v1, 6, v1'); a(f's_lshr_b32 s{sT0}, s{hw}, 1'); a(f's_add_u32 s{sT0}, s{sT0}, 64'); a(f'v_add_u32 v1, s{sT0}, v1')
    a('v_mul_u32_u24 v1, 683, v1'); a('v_lshrrev_b32 v1, 11, v1'); a(f'v_mul_u32_u24 v1, {g.c.FS}, v1')
    a(f'v_add_u32 v{vPoff}, {FOFF["P"]}, v1')
    v_tr_addr(g, vVt); a(f'v_add_u32 v{vVt}, s{sW11}, v{vVt}')
    a(f'v_mov_b32 v1, {NEG}'); a('v_cmp_lt_u32 vcc, 31, v0'); a(f'v_cndmask_b32 v{vMask}, 0, v1, vcc')
    a(f's_mov_b32 s{sSc}, {fbits(SOFTC)}'); a(f's_mov_b32 s{sSc+1}, s{sSc}'); a(f's_lshl_b32 s{sW8}, s{sW}, 8')
    pick_mode(g, 'QK')
    def kv_prep(n):
        return [f's_lshl_b32 s{sDk}, s{n}, 18', f's_add_u32 s{sDk}, s{sDk}, s{cK}', f's_cmp_lt_u32 s{n}, {c.NEND}',
                f's_cselect_b32 s{sDk}, s{sDk}, {OOB:#x}', f's_add_u32 s{sDv}, s{sDk}, {VX-KX:#x}',
                f's_sub_u32 s{sMk}, {2*KVB+16384}, s{sKV}', f's_add_u32 s{sMk}, s{sMk}, s{sW11}']
    kv_dma = [f's_mov_b32 m0, s{sMk}',
              f'buffer_load_dwordx4 v{vL16}, {WS}, s{sDk} offen sc1 lds',
              f'buffer_load_dwordx4 v{vL16}, {WS}, s{sDk} offen offset:1024 sc1 lds',
              f's_add_u32 m0, s{sMk}, 8192',
              f'buffer_load_dwordx4 v{vL16}, {WS}, s{sDv} offen sc1 lds',
              f'buffer_load_dwordx4 v{vL16}, {WS}, s{sDv} offen offset:1024 sc1 lds']
    def need0(n):
        return g.fl_of(n, sFl) + [f's_cmp_lt_u32 s{n}, {c.NEND}', f's_cselect_b32 s{sNeed}, s{n}, 0']
    def phase_scalars():
        return ring_calc(sN, sB, s15=sO, s15x=sOp) + [f's_add_u32 s{sVm}, s{sO}, s{cV}', f's_add_u32 s{sO}, s{sO}, s{cO}',
                f's_add_u32 s{sOp}, s{sOp}, s{cO}'] + kv_prep(sN1) + need0(sN1) + g.next_n(sN2, sN1, c.L) + g.fl_of(sN2, sFl2) + \
               ring_calc(sN1, sB, s14=sMemN) + [f's_add_u32 s{sMemN}, s{sMemN}, s{sW12}', f'v_add_u32 v{vT1}, s{sKV}, v{vL16}']
    a(f's_mov_b32 s{sN}, 0'); a(f's_mov_b32 s{sKV}, {KVB+16384}')
    for t in need0(sN): a(t)
    g.spin_flags(vPoll, vPoff, sNeed, sFl, 11)
    for t in kv_prep(sN) + kv_dma: a(t)
    a(f's_mov_b32 s{sKV}, {KVB}')
    for t in g.next_n(sN1, sN, c.L): a(t)
    a(f's_mov_b32 s{sPFl}, {OOB:#x}'); a(f's_mov_b32 s{sPF2}, {OOB:#x}'); a(f's_mov_b32 s{sKm}, {OOB:#x}'); a(f's_mov_b32 s{sFv}, 0')
    for t in w_pre(WB, vRes) + [f'v_mov_b32 v{ACC+i}, 0' for i in range(16)] + phase_scalars(): a(t)
    a(f'buffer_load_dword v{vPoll}, v{vPoff}, {WS}, s{sFl} offen sc1')
    a(f's_add_u32 s{sMem}, s{sR0}, s{sW12}')
    a(f's_cmp_lg_u32 s{sRdy}, 1'); a('s_cbranch_scc1 LQK_poll_s')
    for mode in ('f', 's'):
        LS = '' if mode == 'f' else ' sc1'
        POLL, GO = f'LQK_poll_{mode}', f'LQK_go_{mode}'
        a('.p2align 6'); a(f'{POLL}:')
        if 'slqk' in c.x: a('s_sleep 2')
        for t in gm_loads(G, vL16, sMem, 0, c.NP) + tick(g, 12) + gm_check(G, vT0, 0, c.NP, 0): a(t)
        a(f's_cbranch_vccnz {POLL}')
        a(f'{GO}:')
        for t in g.stamp(1): a(t)
        lk, lk2 = a.lab('kvs'), a.lab('kvc')
        pub = f'buffer_store_dword v{vT2}, v{vMy}, {WS}, s{sPFl} offen sc1'
        kvm_st = [f'buffer_store_dwordx4 {v(VMf,4)}, v{vVm}, {WS}, s{sKm} offen offset:2048 sc1',
                  f'buffer_store_dwordx4 {v(KX2,4)}, v{vKm}, {WS}, s{sKm} offen sc1']
        poll = f'buffer_load_dword v{vPoll}, v{vPoff}, {WS}, s{sFl2} offen sc1'
        extra = [(2, t) for t in [f'v_cmp_lt_u32 vcc, s{sNeed}, v{vPoll}', kv_dma[0], 's_cmp_eq_u64 vcc, -1', f's_cbranch_scc0 {lk}\n{lk2}:']]
        extra += sorted([(c.QM, t) for t in kv_dma[1:] + [poll]] + [(c.QS, t) for t in (kvm_st + [pub], kvm_st, [])[c.QT]], key=lambda x: x[0])
        if c.QT == 2: extra += [(30, 's_waitcnt vmcnt(5)'), (30, pub)]
        g.tail.append([f'{lk}:', f'buffer_load_dword v{vPoll}, v{vPoff}, {WS}, s{sFl} offen sc1', 's_waitcnt vmcnt(0)',
                       f'v_cmp_lt_u32 vcc, s{sNeed}, v{vPoll}', 's_cmp_eq_u64 vcc, -1', f's_cbranch_scc1 {lk2}',
                       f's_branch {g.timeout(13, lk)}'])
        kxr = lambda i: (G + 4 * i) if i < 4 else (KX2 + 4 * (i - 4))
        reads = [(p, f'ds_read_b128 {v(kxr(i),4)}, v{vT1} offset:{i*1024}') for p, i in
                 ((46, 0), (48, 1), (50, 2), (52, 3), (53, 4), (54, 5), (55, 6), (56, 7))]
        def fold(p, packed):
            x, y = ACC + 4 * p, ACC + 8 + 4 * p
            return fold_add(x, y, packed) + \
                   [f'v_cvt_pk_bf16_f32 v{y}, v{x}, v{x+1}', f'v_cvt_pk_bf16_f32 v{y+1}, v{x+2}, v{x+3}', f'ds_write_b64 v{vXw}, {v(y,2)} offset:{p*128}']
        endfill = [f'v_add_u32 v{vT1}, s{sKV}, v{vVt}'] + [f'v_mov_b32 v{S+8+r}, v{vMask}' for r in range(4)] + g.stamp(2)
        proj16(g, fm, ACC, G, AF, WB, vIdx, vStg, vRes, vT0, KX2 + 4, vL16, sMem, 22, reads, extra, endfill, fold)
        a('s_waitcnt lgkmcnt(0)'); a('s_barrier')
        for t in (g.stamp(6) if c.fine else []): a(t)
        for es in range(4):
            for hh in range(2): a(f'ds_read_b64_tr_b16 {v(F+4*es+2*hh,2)}, v{vXr} offset:{es*256+hh*32}')
        for i in range(4): a(f'ds_read_b64_tr_b16 {v(VXf+2*i,2)}, v{vT1} offset:{8192 + (i&1)*1024 + (i>>1)*512}')
        vml = f'buffer_load_dwordx4 {v(VMf,4)}, v{vVm}, {WS}, s{sVm} offen sc1'
        for es in range(4):
            a(f's_waitcnt lgkmcnt({10-2*es})')
            for kt in range(3):
                A = v(kxr(es * 2 + kt), 4) if kt < 2 else v(F + 4 * es, 4)
                cc = '0' if (es == 0 and kt < 2) else v(S + 4 * kt, 4)
                a(f'v_mfma_f32_16x16x32_bf16 {v(S+4*kt,4)}, {A}, {v(F+4*es,4)}, {cc}')
        ONE, SUM, T = G + 4, G + 8, G + 12
        a(vml)
        a(f'v_add_u32 v{vT1}, s{sW8}, v{vXr}')
        for hh in range(2): a(f'ds_read_b64_tr_b16 {v(KX2+2*hh,2)}, v{vT1} offset:{hh*32}')
        for t in g.stamp(3): a(t)
        for i in range(2): a(f'v_mov_b32 v{ONE+i}, 0x3f803f80')
        for i in range(4): a(f'v_max3_f32 v{T+i}, v{S+3*i}, v{S+3*i+1}, v{S+3*i+2}')
        a(f'v_max3_f32 v{T}, v{T}, v{T+1}, v{T+2}')
        a(f'v_max_f32 v{T+1}, v{T}, v{T+3}'); a(f'v_max_f32 v{T}, v{T}, v{T+3}')
        for i in range(2, 4): a(f'v_mov_b32 v{ONE+i}, 0x3f803f80')
        a(f'v_permlane16_swap_b32 v{T}, v{T+1}')
        a(f'v_max_f32 v{T+2}, v{T}, v{T+1}'); a(f'v_max_f32 v{T}, v{T}, v{T+1}')
        a('s_waitcnt lgkmcnt(0)')
        a(f'v_permlane32_swap_b32 v{T}, v{T+2}')
        if 'vm1' not in c.x: a(vml)
        a(f'v_max_f32 v{T}, v{T}, v{T+2}'); a(f'v_mul_f32 v{T}, s{sSc}, v{T}')
        for i in range(0, 12, 2):
            a(f'v_pk_fma_f32 {v(S+i,2)}, {v(S+i,2)}, {s(sSc,2)}, {v(T,2)} op_sel_hi:[1,1,0] neg_lo:[0,0,1] neg_hi:[0,0,1]')
        ex = lambda i: a(f'v_exp_f32 v{S+i}, v{S+i}')
        cv = lambda i: a(f'v_cvt_pk_bf16_f32 v{P+i}, v{S+2*i}, v{S+2*i+1}')
        ex(0); ex(1); ex(2); cv(0); ex(3); ex(4); cv(1); ex(5); ex(6); cv(2); ex(7); ex(8); cv(3); ex(9); ex(10)
        a(f'v_mfma_f32_16x16x32_bf16 {v(SUM,4)}, {v(ONE,4)}, {v(P,4)}, 0')
        cv(4); ex(11)
        a(f'v_mfma_f32_16x16x32_bf16 {v(O,4)}, {v(VXf,4)}, {v(P,4)}, 0')
        cv(5)
        a(f'v_mfma_f32_16x16x32_bf16 {v(O+4,4)}, {v(VXf+4,4)}, {v(P,4)}, 0')
        lv, lv2 = a.lab('vm'), a.lab('vmr')
        a('s_waitcnt vmcnt(0)' if 'vm1' in c.x else 's_waitcnt vmcnt(1)')
        a(f'v_mfma_f32_16x16x16_bf16 {v(SUM,4)}, {v(ONE,2)}, {v(P+4,2)}, {v(SUM,4)}')
        a(f'{lv}:')
        for t in check4(vT0, VMf): a(t)
        if 'novm' not in c.x: a(f's_cbranch_vccnz {lv2}')
        g.tail.append([f'{lv2}:', vml] + tick(g, 14) + ['s_waitcnt vmcnt(0)' if 'vm1' in c.x else 's_waitcnt vmcnt(1)', f's_branch {lv}'])
        for i in range(2):
            a(f'v_mfma_f32_16x16x16_bf16 {v(O+4*i,4)}, {v(VMf+2*i,2)}, {v(P+4,2)}, {v(O+4*i,4)}')
        a(f'v_mov_b32 v{PZ}, -1')
        a(f'v_rcp_f32 v{T}, v{SUM}')
        for i in range(1, 4): a(f'v_mov_b32 v{PZ+i}, -1')
        for i in range(0, 8, 2): a(f'v_pk_mul_f32 {v(O+i,2)}, {v(O+i,2)}, {v(T,2)} op_sel_hi:[1,0]')
        for i in range(4): a(f'v_cvt_pk_bf16_f32 v{OUT+i}, v{O+2*i}, v{O+2*i+1}')
        a(f'buffer_store_dwordx4 {v(OUT,4)}, v{vOst}, {WS}, s{sO} offen{LS}')
        for t in g.stamp(4): a(t)
        a(f's_mov_b32 s{sMem}, s{sMemN}')
        for t in gm_loads(G, vL16, sMem, 0, c.NP): a(t)
        a(f'buffer_store_dwordx4 {v(PZ,4)}, v{vOst}, {WS}, s{sOp} offen{LS}')
        g.stamp_store(F, 5)
        for t in w_pre(WB, vRes): a(t)
        a(f'v_mov_b32 v{vT2}, s{sFv}'); a(f's_mov_b32 s{sPFl}, s{sPF2}')
        if c.QT == 1: a(pub)
        a(f's_add_u32 s{sFv}, s{sN}, 1')
        for t in g.fl_of(sN, sPF2): a(t)
        a(f's_lshl_b32 s{sKm}, s{sN}, 17'); a(f's_add_u32 s{sKm}, s{sKm}, s{cM}')
        if c.QT == 2:
            for t in kvm_st: a(t)
            a(f'v_mov_b32 v{vT2}, s{sFv}'); a(f's_mov_b32 s{sPFl}, s{sPF2}')
        a(f's_sub_u32 s{sKV}, {2*KVB+16384}, s{sKV}')
        a(f's_mov_b32 s{sN}, s{sN1}'); a(f's_mov_b32 s{sN1}, s{sN2}')
        for t in phase_scalars() + [f'v_mov_b32 v{ACC+i}, 0' for i in range(16)] + g.stamp(0): a(t)
        l1 = a.lab('qkn')
        a(f's_cmp_eq_u32 s{sFv}, s{sN}'); a(f's_cbranch_scc1 {l1}')
        for t in gm_check(G, vT0, 0, c.NP, 1 + c.QT + (2 if c.stamps else 0)): a(t)
        a(f's_cbranch_vccz {GO}'); a(f's_branch {POLL}')
        a(f'{l1}:')
        if c.QT == 0: a(pub)
        if c.QT < 2:
            for t in kvm_st: a(t)
        a(f'v_mov_b32 v{vT2}, s{sFv}'); a(f's_mov_b32 s{sPFl}, s{sPF2}'); a(f's_mov_b32 s{sKm}, {OOB:#x}')
        a('s_waitcnt vmcnt(0)'); a(pub)
        a(f's_cmp_lt_u32 s{sN}, {c.NEND}'); a(f's_cbranch_scc1 {POLL}')
        g.endpgm()
        g.flush_tail()

def role_vm(g):
    a = g.a; c = g.c
    a('L_VM:')
    g.srd(12, P_WV, 0x800000)
    vIdx, vL16, vStg, vRes, vT0 = 5, 6, 7, 8, 0
    ACC, G, AF, WB, OUT, PZ = 16, 32, 48, 60, 76, 80
    cV, sW12, sCol = sC + 4, sC + 5, sC + 6
    sMem, sV, sVp, sB, sPf, cP = (sX + i for i in range(6))
    vPoff, vPoll, vL128 = 9, 10, 11
    chain_setup(g, vIdx, vL16, vRes)
    a(f's_lshl_b32 s{cV}, s{sIdx}, 2'); a(f's_add_u32 s{cV}, s{cV}, s{sW}')
    a(f's_lshl_b32 s{sCol}, s{sG}, 5'); a(f's_add_u32 s{sCol}, s{sCol}, s{cV}'); a(f's_lshl_b32 s{sCol}, s{sCol}, 7')
    a(f's_lshl_b32 s{cV}, s{cV}, 10')
    poison_init(g, vL16, cV, R_VML, 0x8000, 4)
    g.arrive(chain=True)
    a(f's_add_u32 s{cV}, s{cV}, {R_VML:#x}')
    fm = mem_weights(g, vRes, sCol)
    a(f's_lshl_b32 s{sW12}, s{sW}, 12'); a(f's_add_u32 s{sT0}, s{sW12}, {STG}'); a(f'v_add_u32 v{vStg}, s{sT0}, v{vL16}')
    for i in range(4): a(f'v_mov_b32 v{PZ+i}, -1')
    pick_mode(g, 'VM')
    a(f's_mov_b32 s{sN}, 0')
    a(f's_cmp_lg_u32 s{sRdy}, 1'); a('s_cbranch_scc1 LVM_top_s')
    for mode in ('f', 's'):
        LS = '' if mode == 'f' else ' sc1'
        TOP, POLL, CHK = f'LVM_top_{mode}', f'LVM_poll_{mode}', f'LVM_chk_{mode}'
        a('.p2align 6'); a(f'{TOP}:')
        for t in ring_calc(sN, sB, s14=sMem) + [f's_add_u32 s{sMem}, s{sMem}, s{sW12}'] + gm_loads(G, vL16, sMem, 0, c.NP): a(t)
        for t in w_pre(WB, vRes) + [f'v_mov_b32 v{ACC+i}, 0' for i in range(16)] + ring_calc(sN, sB, s15=sV, s15x=sVp): a(t)
        a(f's_add_u32 s{sV}, s{sV}, s{cV}'); a(f's_add_u32 s{sVp}, s{sVp}, s{cV}')
        for t in g.next_n(sN1, sN, c.L) + g.stamp(0): a(t)
        a(f's_branch {CHK}')
        a(f'{POLL}:')
        if 'slvm' in c.x: a('s_sleep 2')
        for t in gm_loads(G, vL16, sMem, 0, c.NP) + tick(g, 15): a(t)
        a(f'{CHK}:')
        for t in gm_check(G, vT0, 0, c.NP, 0): a(t)
        a(f's_cbranch_vccnz {POLL}')
        for t in g.stamp(1): a(t)
        def fold(p, packed):
            x, y = ACC + 4 * p, ACC + 8 + 4 * p
            return fold_add(x, y, packed) + \
                   [f'v_cvt_pk_bf16_f32 v{OUT+2*p}, v{x}, v{x+1}', f'v_cvt_pk_bf16_f32 v{OUT+2*p+1}, v{x+2}, v{x+3}']
        proj16(g, fm, ACC, G, AF, WB, vIdx, vStg, vRes, vT0, 1, vL16, sMem, 23, [], [], g.stamp(2), fold)
        a(f'buffer_store_dwordx4 {v(OUT,4)}, v{vL16}, {WS}, s{sV} offen{LS}')
        a(f'buffer_store_dwordx4 {v(PZ,4)}, v{vL16}, {WS}, s{sVp} offen{LS}')
        for t in g.stamp(3): a(t)
        g.stamp_store(AF, 4)
        a(f'v_xor_b32 v{vStg}, 0x4000, v{vStg}')
        a(f's_mov_b32 s{sN}, s{sN1}')
        a(f's_cmp_lt_u32 s{sN}, {c.NEND}'); a(f's_cbranch_scc1 {TOP}')
        g.endpgm()
        g.flush_tail()

def role_wm(g):
    a = g.a; c = g.c
    a('L_WM:')
    g.srd(12, P_WO, 0x800000); g.srd(16, P_MEM0, 0x4000)
    vIdx, vL16, vRes, vRw, vRr, vL8, vT0 = 5, 6, 8, 9, 10, 11, 0
    PZ = 12
    ACC, GA, WB = 16, 48, 80
    RED, REDSZ = STG, 17408
    cT, cM, cO, sTog, sTwin = (sC + 4 + i for i in range(5))
    sOm, sOm2, sTw, sTp, sTr, sMs, sMp, sB = (sX + i for i in range(8))
    chain_setup(g, vIdx, vL16, vRes)
    a(f'v_lshlrev_b32 v{vL8}, 3, v0')
    a(f's_lshl_b32 s{cM}, s{sIdx}, 2'); a(f's_add_u32 s{cM}, s{cM}, s{sW}')
    a(f's_lshr_b32 s{cT}, s{cM}, 3'); a(f's_lshl_b32 s{cT}, s{cT}, 14'); a(f's_and_b32 s{sT0}, s{cM}, 7'); a(f's_lshl_b32 s{sT0}, s{sT0}, 10')
    a(f's_add_u32 s{cT}, s{cT}, s{sT0}'); a(f's_mul_i32 s{sT0}, s{sG}, {TW_SZ:#x}'); a(f's_add_u32 s{cT}, s{cT}, s{sT0}')
    a(f's_add_u32 s{cT}, s{cT}, {TWB:#x}')
    a('v_bfe_u32 v1, v0, 1, 3'); a('v_lshlrev_b32 v1, 11, v1'); a('v_and_b32 v2, 48, v0'); a('v_add_u32 v1, v1, v2')
    a('v_and_b32 v2, 1, v0'); a('v_lshlrev_b32 v2, 3, v2'); a('v_add_u32 v1, v1, v2')
    a(f's_lshl_b32 s{sT0}, s{cM}, 6')
    a(f'buffer_load_dwordx2 v[20:21], v1, {W2}, s{sT0} offen')
    a(f's_lshl_b32 s{cM}, s{cM}, 9')
    poison_init(g, vL8, cM, R_MEM, 0x4000, 2, first=1)
    for l in range(2):
        for sl in range(4):
            for hf in range(2):
                a(f's_add_u32 s{sT0}, s{cT}, {l*2*TW_SZ + sl*0x10000 + hf*0x2000:#x}')
                a(f'buffer_store_dwordx4 v[16:19], v{vL16}, {WS}, s{sT0} offen sc1')
    a('s_waitcnt vmcnt(0)')
    for l in range(2):
        a(f's_add_u32 s{sT0}, s{sR0}, {l*2*RING_SZ + R_MEM:#x}'); a(f's_add_u32 s{sT0}, s{sT0}, s{cM}')
        a(f'buffer_store_dwordx2 v[20:21], v{vL8}, {WS}, s{sT0} offen sc1')
    g.arrive(chain=True)
    fm = frag_map(lambda st, n: st < 6 and n in (3, 7), 8, 8)
    a(f's_lshl_b32 s{sWb}, s{sG}, 2'); a(f's_add_u32 s{sWb}, s{sWb}, s{sW}'); a(f's_lshl_b32 s{sWb}, s{sWb}, 20')
    a(f's_lshl_b32 s{sT0}, s{sIdx}, 8'); a(f's_add_u32 s{sWb}, s{sWb}, s{sT0}')
    chain_load(g, fm, lambda st, p: ([], sWb, st * 64 * 2048 + p * 128), 8, 2, vRes,
               (4, 8, 16), lambda hq, i: 16 * i + 8 * hq, 2048)
    g.loaded()
    a('v_lshrrev_b32 v1, 5, v0'); a('v_mul_u32_u24 v1, 2176, v1')
    a('v_bfe_u32 v2, v0, 2, 2'); a('v_mul_u32_u24 v2, 544, v2'); a('v_add_u32 v2, v1, v2')
    a('v_and_b32 v3, 3, v0'); a('v_lshlrev_b32 v3, 5, v3'); a('v_add_u32 v2, v2, v3')
    a('v_and_b32 v3, 16, v0'); a('v_add_u32 v2, v2, v3')
    a(f's_lshl_b32 s{sT0}, s{sW}, 7'); a(f's_add_u32 s{sT0}, s{sT0}, {RED}'); a(f'v_add_u32 v{vRw}, s{sT0}, v2')
    a('v_bfe_u32 v2, v0, 4, 1'); a('v_lshlrev_b32 v2, 1, v2'); a('v_and_b32 v3, 1, v0'); a('v_add_u32 v2, v2, v3')
    a('v_mul_u32_u24 v2, 544, v2'); a('v_add_u32 v2, v1, v2')
    a('v_bfe_u32 v3, v0, 1, 3'); a('v_lshlrev_b32 v3, 2, v3'); a('v_add_u32 v2, v2, v3')
    a(f's_mul_i32 s{sT0}, s{sW}, 4352'); a(f's_add_u32 s{sT0}, s{sT0}, {RED}'); a(f'v_add_u32 v{vRr}, s{sT0}, v2')
    a(f's_lshl_b32 s{cO}, s{sW}, 13'); a(f's_add_u32 s{cO}, s{cO}, {R_OM:#x}')
    for i in range(4): a(f'v_mov_b32 v{PZ+i}, -1')
    a(f's_mov_b32 s{sTog}, {REDSZ}')
    a(f's_cmp_eq_u32 s{sG}, 0'); a(f's_mov_b32 s{sTwin}, {TW_SZ:#x}'); a(f's_cselect_b32 s{sTwin}, s{sTwin}, {(-TW_SZ)&0xffffffff:#x}')
    pick_mode(g, 'WM')
    ln, ln2 = a.lab('near'), a.lab('near2')
    a(f's_cmp_lg_u32 s{sRound}, 0'); a(f's_cbranch_scc1 {ln2}')
    a('v_mov_b32 v16, 4'); a(f'{ln}:')
    a(f'buffer_load_dword v17, v16, {DBG}, 0 offen sc1'); a('s_waitcnt vmcnt(0)')
    a(f'v_readfirstlane_b32 s{sT0}, v17'); a(f's_cmp_eq_u32 s{sT0}, 0'); a(f's_cbranch_scc1 {g.timeout(24, ln)}')
    a(f's_and_b32 s{sT0}, s{sT0}, 2'); a(f's_lshl_b32 s{sT0}, s{sT0}, 12'); a(f's_add_u32 s{cT}, s{cT}, s{sT0}')
    a(f'{ln2}:')
    om_off = lambda n: ring_calc(n, sB, s15=sOm) + [f's_add_u32 s{sOm}, s{sOm}, s{cO}', f's_add_u32 s{sOm2}, s{sOm}, 4096']
    tw_off = lambda n: [f's_and_b32 s{sB}, s{n}, 64', f's_lshl_b32 s{sB}, s{sB}, 13', f's_add_u32 s{sB}, s{sB}, s{cT}',
                        f's_and_b32 s{sTw}, s{n}, 3', f's_lshl_b32 s{sTw}, s{sTw}, 16', f's_xor_b32 s{sTp}, s{sTw}, 0x20000',
                        f's_add_u32 s{sTw}, s{sTw}, s{sB}', f's_add_u32 s{sTp}, s{sTp}, s{sB}']
    assert 2 * TW_SZ == 64 << 13
    a(f's_mov_b32 s{sN}, 0')
    for t in om_off(sN) + tw_off(sN) + w_pre(WB, vRes) + [f'v_mov_b32 v{ACC+i}, 0' for i in range(32)]: a(t)
    g.mini_init(2)
    a(f's_cmp_lg_u32 s{sRdy}, 1'); a('s_cbranch_scc1 LWM_poll_s')
    RD, SM = GA + 12, GA + 28
    NP0 = c.WMP
    for mode in ('f', 's'):
        LS = '' if mode == 'f' else ' sc1'
        POLL = f'LWM_poll_{mode}'
        lg = Lg(a); lg.q = [('W', 0), ('W', 0), ('W', 1), ('W', 1)]
        ld = lambda i: f'buffer_load_dwordx4 {v(GA+4*i,4)}, v{vL16}, {WS}, s{sOm if i < 4 else sOm2} offen offset:{(i&3)*1024} sc1'
        rdW = lambda u: [lg.rd(('W', u), f'ds_read_b128 {v(WB+8*(u%2)+4*hh,4)}, v{vRes} offset:{u*2048+hh*1024}') for hh in range(2)]
        a('.p2align 6'); a(f'{POLL}:')
        for i in range(NP0): a(ld(i))
        for t in tick(g, 16): a(t)
        a(f's_waitcnt vmcnt({NP0-1})')
        for t in check4(vT0, GA): a(t)
        a(f's_cbranch_vccnz {POLL}')
        for t in g.stamp(1) + g.mini_take(): a(t)
        def mm(st, n):
            kind, idx = fm[st, n]
            if kind == 'l':
                w = lg.wait(('W', idx))
                if w: a(w)
            B = wreg(idx, 8, VB) if kind == 'r' else v(WB + 8 * (idx % 2), 8)
            a(f'v_smfmac_f32_16x16x64_bf16 {v(ACC+4*n,4)}, {v(GA+4*st,4)}, {B}, v{vIdx}')
        pend = []; issued = NP0
        for st in range(6):
            i = st + 1
            if st < 5: ck = check4(vT0, GA + 4 * i); last = i
            else:
                d = GA + 24; last = 7
                ck = [f'v_max3_u32 v{vT0}, v{d}, v{d+1}, v{d+2}', f'v_max3_u32 v{vT0}, v{vT0}, v{d+3}, v{d+4}',
                      f'v_max3_u32 v{vT0}, v{vT0}, v{d+5}, v{d+6}', f'v_max_u32 v{vT0}, v{vT0}, v{d+7}', f'v_cmp_eq_u32 vcc, -1, v{vT0}']
            for n in range(8):
                mm(st, n)
                for t in pend: a(t)
                pend = []
                kind, idx = fm[st, n]
                if kind == 'l' and idx + 2 < 12: pend = rdW(idx + 2)
                if issued < 8 and (n == 3 or n == (0 if st == 0 else 1)): a(ld(issued)); issued += 1
                if st < 5:
                    if n == 5: a(f's_waitcnt vmcnt({issued-1-last})'); a(ck[0])
                    if n == 6: a(ck[1]); a(ck[2])
                else:
                    if n == 4: a('s_waitcnt vmcnt(0)'); a(ck[0])
                    if n == 5: a(ck[1]); a(ck[2])
                    if n == 6: a(ck[3]); a(ck[4])
                if n == 7:
                    lb, lc = a.lab('wb'), a.lab('wc')
                    a(f's_cbranch_vccnz {lb}'); a(f'{lc}:')
                    g.tail.append([f'{lb}:'] + [ld(k) for k in range(i, issued)] + tick(g, 17) + [f's_waitcnt vmcnt({issued-1-last})'] + ck +
                                  [f's_cbranch_vccz {lc}', f's_branch {lb}'])
        def fold(p, packed=False):
            x, y = ACC + 8 * p, ACC + 8 * p + 4
            return fold_add(x, y, packed) + [f'ds_write_b128 v{vRw}, {v(x,4)} offset:{p*4352}']
        q = [f'buffer_store_dwordx4 {v(PZ,4)}, v{vL16}, {WS}, s{sTp} offen sc1'] + g.next_n(sN1, sN, c.L) + [f's_add_u32 s{sTr}, s{sTw}, s{sTwin}']
        q += ['s_nop 0'] * (12 - len(q))
        for k, (st, n) in enumerate([(s_, n_) for p in range(4) for n_ in (2 * p, 2 * p + 1) for s_ in (6, 7)]):
            mm(st, n)
            if k >= 6 and k % 4 == 2: q += fold(k // 4 - 1)
            for _ in range(2):
                if q: a(q.pop(0))
        for t in q + g.stamp(2) + fold(3, True): a(t)
        a('s_waitcnt lgkmcnt(0)'); a('s_barrier')
        for t in (g.stamp(5) if c.fine else []): a(t)
        for sr in range(4):
            for y2 in range(2):
                a(f'ds_read2_b32 {v(RD+4*sr+2*y2,2)}, v{vRr} offset0:{sr*32+y2*16} offset1:{sr*32+y2*16+8}')
        a('s_waitcnt lgkmcnt(4)')
        for y in (0, 2): a(f'v_pk_add_f32 {v(SM+y,2)}, {v(RD+y,2)}, {v(RD+4+y,2)}')
        a('s_waitcnt lgkmcnt(2)')
        for y in (0, 2): a(f'v_pk_add_f32 {v(SM+y,2)}, {v(SM+y,2)}, {v(RD+8+y,2)}')
        a('s_waitcnt lgkmcnt(0)')
        for y in (0, 2): a(f'v_pk_add_f32 {v(SM+y,2)}, {v(SM+y,2)}, {v(RD+12+y,2)}')
        a(f'buffer_store_dwordx4 {v(SM,4)}, v{vL16}, {WS}, s{sTw} offen sc1')
        for t in g.stamp(3) + g.mini_put(2): a(t)
        a(f'v_add_u32 v{vRw}, s{sTog}, v{vRw}'); a(f'v_add_u32 v{vRr}, s{sTog}, v{vRr}'); a(f's_sub_u32 s{sTog}, 0, s{sTog}')
        for t in w_pre(WB, vRes) + [f'v_mov_b32 v{ACC+i}, 0' for i in range(32)]: a(t)
        for t in ring_calc(sN, sB, s14=sMs, add14=1, s14x=sMp) + [f's_add_u32 s{sMs}, s{sMs}, s{cM}', f's_add_u32 s{sMp}, s{sMp}, s{cM}'] + \
                 om_off(sN1) + tw_off(sN1): a(t)
        NT_ = c.TWP; TW = [RD + 4 * k for k in range(NT_)]; RS_ = GA + 4
        tl = lambda k: f'buffer_load_dwordx4 {v(TW[k],4)}, v{vL16}, {WS}, s{sTr} offen sc1'
        lt, ldone = a.lab('tw'), a.lab('twd')
        if NT_ > 1: a('s_waitcnt vmcnt(0)')
        for k in range(NT_ - 1):
            a(tl(k)); a(f's_nop {c.TWD}')
        a(f'{lt}:')
        for k in range(NT_):
            if 'notw' not in c.x: a(tl((k + NT_ - 1) % NT_))
            if k == 0:
                for t in tick(g, 18): a(t)
            if 'notw' not in c.x: a(f's_waitcnt vmcnt({NT_-1})')
            else: a(f'v_mov_b32 v{TW[k]}, 0\nv_mov_b32 v{TW[k]+1}, 0\nv_mov_b32 v{TW[k]+2}, 0\nv_mov_b32 v{TW[k]+3}, 0')
            for t in check4(vT0, TW[k]): a(t)
            for y in (0, 2): a(f'v_pk_add_f32 {v(RS_+y,2)}, {v(SM+y,2)}, {v(TW[k]+y,2)}')
            if 'notw' not in c.x: a(f's_cbranch_vccz {ldone}' if k < NT_ - 1 else f's_cbranch_vccnz {lt}')
        a(f'{ldone}:')
        for y in range(2): a(f'v_cvt_pk_bf16_f32 v{RS_+4+y}, v{RS_+2*y}, v{RS_+1+2*y}')
        a(f'buffer_store_dwordx2 {v(RS_+4,2)}, v{vL8}, {WS}, s{sMs} offen{LS}')
        for t in g.stamp(4): a(t)
        a(f'buffer_store_dwordx2 {v(PZ,2)}, v{vL8}, {WS}, s{sMp} offen{LS}')
        g.stamp_store(GA, 5)
        for t in g.stamp(0): a(t)
        a(f's_mov_b32 s{sN}, s{sN1}')
        a(f's_cmp_lt_u32 s{sN}, {c.NEND}'); a(f's_cbranch_scc1 {POLL}')
        g.endpgm()
        g.flush_tail()

def emit(g):
    r = g.c.roles
    if 'QK' in r: role_qk(g)
    if 'VM' in r: role_vm(g)
    if 'WM' in r: role_wm(g)
```

```python
import sys, struct
from asmlib import Asm
from layout import *

KNAME = 'interleave_layers__memory_aug_recurrent_mem_tr__glu_gated_geglu__prompt_kernel'

class Cfg:
    L = 11
    LM = 52
    LK = 21
    NEND = 128
    roles = {'AT', 'P', 'QK', 'VM', 'WM', 'WO', 'GU', 'DN'}
    stamps = False
    light = False
    fine = ()
    TIMEOUT = 1 << 20
    force_safe = False
    place = 11
    x = ()
    touch = 0
    HK = 0
    H0 = 8
    pnear = None
    FS = 256
    snake = True
    CALT = 24000
    local = False
    QT = 2
    DNNP = 40
    DLAG = (0, 1, 2, 3, 4, 5)
    DL = dict(GU=32, WO=8, DN=48)
    mini = False
    ring = 0
    ATE = 8
    probe = None
    PF = 3
    XS = 2
    NP = 4
    CK = 17
    B2 = 28
    WMP = 2
    TWP = 1
    TWD = 15
    T_KV = dict(ahead=True, block=True, KP=1, KT=9, KA=10, KM=23, KS=20, KD=(0.5, 20), KP2=19.5, dv=72, nv=lambda k: 2 if k == 4 else 1)
    T_GU = dict(ahead=True, pipe=True, block=True, KP=1, KT=6, KA=13, KM=10, KS=20, KD=(0.5, 16), KP2=16.5, dv=60, quota=lambda ks: 3 if ks < 15 else 2)
    T_WOP = dict(ahead=True, block=True, KP=1, KA=1, KM=14, KD=(1.5, 21), KP2=22, dv=60)
    T_WOF = dict(ahead=True, LW=True, KP=0, K0=9, KA=12, KM=11.5, KL=16, KD=(0.5, 9), KP2=9.5, dv=52, quota=lambda ks: 4)
    T_DNP = dict(ahead=True, block=True, KP=1, KA=1, KM=14, KD=(1.5, 23), KP2=26, dv=60)
    T_DNF = dict(ahead=True, LW=True, KP=0, mo=True, K0=6, KA=11, KM=10.5, KL=20, KD=(0.2, 12), KP2=12.5, dv=40)
    QM = 8
    QS = 9
    delay = {'DN', 'GU'}

def fbits(x):
    return '0x%08x' % struct.unpack('<I', struct.pack('<f', x))[0]

def v(i, n=1): return f'v{i}' if n == 1 else f'v[{i}:{i+n-1}]'
def s(i, n=1): return f's{i}' if n == 1 else f's[{i}:{i+n-1}]'
def wreg(i, n, vbase):
    if i < 256: return f'a{i}' if n == 1 else f'a[{i}:{i+n-1}]'
    return v(vbase + i - 256, n)

WS = 's[4:7]'; WSC = 's[8:11]'; W1 = 's[12:15]'; W2 = 's[16:19]'; DBG = 's[20:23]'
P_X, P_MEM0, P_WQ, P_WK, P_WV, P_WO, P_WG, P_WU, P_WD, P_OUT, P_DBG, P_WS = 24, 26, 28, 30, 32, 34, 36, 38, 40, 42, 44, 46
sW, sIdx, sG = 48, 49, 50
sN, sNx, sBuf, sSrc, sM0, sNeed, sFl, sPFl = 52, 53, 54, 55, 56, 57, 58, 59
sT0, sT1, sT2, sT3 = 60, 61, 62, 63
sRdy, sWoff = 64, 65
sC = 66
sST = 80
sTO, sCode, sOth, sCnt, sRound, sXcc = 96, 97, 98, 99, 100, 101
sHelp = 3

SOFTC = 128 ** -0.5 * 1.4426950408889634

def p_order(n0, m1, h0=0, hk=0):
    l0 = [u for u in range(64) if not h0 <= u < h0 + hk]
    n0 = min(n0, len(l0)); rest = len(l0) - n0; m1 = max(m1, rest)
    o = l0[:n0]; k = 0
    for u in range(64):
        o.append(64 + u)
        while k < rest and (k + 1) * m1 <= (u + 1) * rest: o.append(l0[n0 + k]); k += 1
    assert sorted(o) == l0 + list(range(64, 128))
    return o

class Gen:
    def __init__(g, cfg):
        g.c = cfg; g.a = Asm(); g.left = {}; g.started = False; g.tail = []

    def srd(g, base, ptr, size):
        a = g.a
        a(f's_mov_b32 s{base}, s{ptr}'); a(f's_and_b32 s{base+1}, s{ptr+1}, 0xffff')
        a(f's_mov_b32 s{base+2}, {size:#x}'); a(f's_mov_b32 s{base+3}, 0x20000')

    def seq_init(g, L):
        return [f's_mov_b32 s{sOth}, 64', f's_mov_b32 s{sCnt}, {(-L-1) & 0xffffffff:#x}']

    def next_n(g, dst, src, L):
        return [f's_add_u32 s{sT0}, s{src}, 1', f's_add_u32 s{sCnt}, s{sCnt}, 1',
                f's_cmp_lt_u32 s{sCnt}, {max(127-2*L, 0)}',
                f's_cselect_b32 s{dst}, s{sOth}, s{sT0}', f's_cselect_b32 s{sOth}, s{sT0}, s{sOth}']

    def fl_of(g, n, fl):
        assert FL_L == 64 << 11
        if g.c.NEND == 64: return [f's_mov_b32 s{fl}, 0']
        return [f's_and_b32 s{fl}, s{n}, 64', f's_lshl_b32 s{fl}, s{fl}, 11']

    def timeout(g, code, back, back_off=False):
        lab = g.a.lab('rt')
        g.tail.append([f'{lab}:'] + (['s_sleep 8'] if back_off else []) + [f's_add_u32 s{sTO}, s{sTO}, 1', f's_cmp_lt_u32 s{sTO}, {g.c.TIMEOUT}',
                       f's_cbranch_scc1 {back}', f's_mov_b32 s{sCode}, {code}', 's_branch L_fail'])
        return lab

    def flush_tail(g):
        for b in g.tail:
            for t in b: g.a(t)
        g.tail = []

    def spin_flags(g, vPoll, vOff, need, fl, code):
        a = g.a; l = a.lab('spin')
        a(f'{l}:')
        a(f'buffer_load_dword v{vPoll}, v{vOff}, {WS}, s{fl} offen sc1')
        a('s_waitcnt vmcnt(0)')
        a(f'v_cmp_lt_u32 vcc, s{need}, v{vPoll}')
        a('s_cmp_eq_u64 vcc, -1')
        a(f's_cbranch_scc0 {g.timeout(code, l)}')

    def lane0_off(g, dst, soff, nl=1, stride=0):
        a = g.a
        if stride: a(f'v_mul_u32_u24 v{dst}, {stride}, v0'); a(f'v_add_u32 v{dst}, s{soff}, v{dst}')
        else: a(f'v_mov_b32 v{dst}, s{soff}')
        a(f'v_mov_b32 v1, {OOB:#x}')
        a(f'v_cmp_gt_u32 vcc, {nl}, v0')
        a(f'v_cndmask_b32 v{dst}, v1, v{dst}, vcc')

    def zero_flags(g, vMy, layers=(0, 1)):
        a = g.a
        a('v_mov_b32 v1, 0')
        for l in layers:
            a(f's_mov_b32 s{sT0}, {l*FL_L:#x}')
            a(f'buffer_store_dword v1, v{vMy}, {WS}, s{sT0} offen sc1')

    def arrive(g, chain=False):
        a = g.a; l = a.lab('arr')
        a('s_waitcnt vmcnt(0)'); a('s_barrier')
        a(f's_cmp_lg_u32 s{sW}, 0'); a(f's_cbranch_scc1 {l}')
        a(f's_mov_b32 s{sT0}, 0')
        g.lane0_off(2, sT0)
        a(f's_sub_u32 s{sT1}, s{sXcc}, s2'); a(f's_and_b32 s{sT1}, s{sT1}, 7')
        a(f's_lshl_b32 s{sT1}, s{sT1}, 2'); a(f's_add_u32 s{sT1}, s{sT1}, 128')
        a(f's_cmp_eq_u32 s{sRound}, 0'); a(f's_cselect_b32 s{sT1}, s{sT1}, 0')
        a('v_mov_b32 v3, 1')
        a(f'buffer_atomic_add v3, v2, {DBG}, s{sT1} offen sc1')
        a(f'{l}:')

    def start_look(g, vt):
        return [f'v_mov_b32 v{vt+8}, 0', f'buffer_load_dwordx4 {v(vt,4)}, v{vt+8}, {DBG}, 0 offen offset:128 sc1',
                f'buffer_load_dwordx4 {v(vt+4,4)}, v{vt+8}, {DBG}, 0 offen offset:144 sc1']

    def wait_start(g, vt, code, solo=True):
        a = g.a; l, l1, l2, lw, lw1 = a.lab('ws'), a.lab('ws1'), a.lab('ws2'), a.lab('wsw'), a.lab('wsw1')
        a(f'v_mov_b32 v{vt+8}, 0')
        a(f's_cmp_lg_u32 s{sRound}, 0'); a(f's_cbranch_scc1 {l1}')
        if solo: a(f's_cmp_eq_u32 s{sW}, 0'); a(f's_cbranch_scc1 {l}'); a('s_barrier')
        else: a(f's_branch {lw1}')
        a(f'{l}:')
        for t in g.start_look(vt): a(t)
        a(f'{lw1}:')
        a('s_waitcnt vmcnt(0)')
        a(f'v_add3_u32 v{vt+9}, v{vt}, v{vt+1}, v{vt+2}'); a(f'v_add3_u32 v{vt+9}, v{vt+9}, v{vt+3}, v{vt+4}')
        a(f'v_add3_u32 v{vt+9}, v{vt+9}, v{vt+5}, v{vt+6}'); a(f'v_add_u32 v{vt+9}, v{vt+9}, v{vt+7}')
        a(f'v_cmp_le_u32 vcc, 0x100, v{vt+9}')
        a('s_cmp_eq_u64 vcc, -1')
        a(f's_cbranch_scc0 {g.timeout(code, l, True)}')
        if solo: a(f's_cmp_lg_u32 s{sW}, 0'); a(f's_cbranch_scc1 {lw}'); a('s_barrier'); a(f'{lw}:')
        a(f'v_or3_b32 v{vt+9}, v{vt}, v{vt+1}, v{vt+2}'); a(f'v_or3_b32 v{vt+9}, v{vt+9}, v{vt+3}, v{vt+4}')
        a(f'v_or3_b32 v{vt+9}, v{vt+9}, v{vt+5}, v{vt+6}'); a(f'v_or_b32 v{vt+9}, v{vt+9}, v{vt+7}')
        a(f'v_cmp_eq_u32 vcc, {0x7fffffff if g.c.force_safe else 0x100}, v{vt+9}')
        a('s_cmp_eq_u64 vcc, -1')
        a(f's_cbranch_scc1 {l2}'); a('s_branch L_restart')
        a(f'{l1}:')
        a(f'buffer_load_dword v{vt}, v{vt+8}, {DBG}, 0 offen sc1')
        a('s_waitcnt vmcnt(0)')
        a(f'v_cmp_le_u32 vcc, 0x100, v{vt}')
        a('s_cmp_eq_u64 vcc, -1')
        a(f's_cbranch_scc0 {g.timeout(code, l1, True)}')
        a(f'{l2}:')

    def loaded(g):
        a = g.a; l = a.lab('ldd')
        a(f's_cmp_lg_u32 s{sW}, 0'); a(f's_cbranch_scc1 {l}')
        a(f's_mov_b32 s{sT0}, 12')
        g.lane0_off(2, sT0)
        a('v_mov_b32 v3, 1')
        a(f'buffer_atomic_add v3, v2, {DBG}, 0 offen sc1')
        a(f'{l}:')

    def wait_loaded(g, role, count):
        count = g.c.DL[role]
        if role not in g.c.delay or not {'QK', 'VM', 'WM'} <= g.c.roles: return
        a = g.a; l, l2 = a.lab('wl'), a.lab('wl2')
        g.wait_start(8, 1); g.started = True
        a(f's_cmp_lg_u32 s{sW}, 0'); a(f's_cbranch_scc1 {l2}')
        a('v_mov_b32 v1, 12')
        a(f'{l}:')
        a(f'buffer_load_dword v2, v1, {DBG}, 0 offen sc1')
        a('s_waitcnt vmcnt(0)')
        a(f'v_cmp_le_u32 vcc, {count}, v2')
        a('s_cmp_eq_u64 vcc, -1')
        a(f's_cbranch_scc0 {g.timeout(19, l, True)}')
        a(f'{l2}:'); a('s_barrier')

    def get_par(g, dst, side):
        a = g.a; ln, ln2 = a.lab('near'), a.lab('near2')
        a(f's_mov_b32 s{dst}, 0')
        a(f's_cmp_lg_u32 s{sRound}, 0'); a(f's_cbranch_scc1 {ln2}')
        a('v_mov_b32 v1, 4'); a(f'{ln}:')
        a(f'buffer_load_dword v2, v1, {DBG}, 0 offen sc1'); a('s_waitcnt vmcnt(0)')
        a(f'v_readfirstlane_b32 s{dst}, v2'); a(f's_cmp_eq_u32 s{dst}, 0'); a(f's_cbranch_scc1 {g.timeout(24, ln, True)}')
        a(f's_and_b32 s{dst}, s{dst}, 2'); a(f's_lshl_b32 s{dst}, s{dst}, 12')
        a(f'{ln2}:')
        if side: a(f's_xor_b32 s{dst}, s{dst}, 0x2000')

    def half(g, r, par, t):
        return [f's_lshr_b32 s{t}, s{r}, 8', f's_xor_b32 s{t}, s{t}, s{par}', f's_and_b32 s{t}, s{t}, 0x2000', f's_add_u32 s{r}, s{r}, s{t}']

    def load_args(g):
        a = g.a
        a('s_load_dwordx8 s[24:31], s[0:1], 0'); a('s_load_dwordx4 s[32:35], s[0:1], 32')
        a('s_load_dwordx8 s[36:43], s[0:1], 64'); a('s_load_dwordx4 s[44:47], s[0:1], 96')
        a('v_mbcnt_lo_u32_b32 v0, -1, 0'); a('v_mbcnt_hi_u32_b32 v0, -1, v0')

    def help_first(g, role):
        if not g.c.HK: g.arrive(); return False
        a = g.a
        a(f's_mov_b32 s{sG}, s{sIdx}')
        for i0, n, p0 in helper_table(g.c.place)[role]:
            a(f's_add_i32 s{sT1}, s{sG}, {p0 - i0}'); a(f's_cmp_ge_u32 s{sG}, {i0}'); a(f's_cselect_b32 s{sIdx}, s{sT1}, s{sIdx}')
        g.my_flag(117, sIdx, 'PH', wave0=True); g.zero_flags(117, (0,)); g.arrive()
        a(f's_mov_b32 s{sHelp}, {1 if role == "GU" else 2}'); a('s_branch L_P2')
        a(f'L_{role}2:')
        g.started = True
        return True

    def start_once(g):
        if not g.started: g.wait_start(48, 1, False)
        g.started = False
        g.a('s_barrier')

    def load_weights(g, chunks, nslots, slot_bytes, sStage):
        a = g.a; n = len(chunks)
        def issue(c):
            ch = chunks[c]
            for t in ch.get('pre', []): a(t)
            for i, (srd, va, sb, imm) in enumerate(ch['dma']):
                a(f's_add_u32 m0, s{sStage}, {(c % nslots)*slot_bytes + i*1024}')
                a(f's_add_u32 s{sT3}, s{sb}, {imm:#x}')
                a(f'buffer_load_dwordx4 v{va}, {srd}, s{sT3} offen lds')
        for c in range(min(nslots, n)): issue(c)
        for c in range(n):
            after = sum(len(chunks[k]['dma']) for k in range(c + 1, min(n, c + nslots)))
            assert after <= 63
            a(f's_waitcnt vmcnt({after})')
            for dest, vtr, imm in chunks[c]['reads']:
                a(f'ds_read_b64_tr_b16 {dest}, v{vtr} offset:{(c % nslots)*slot_bytes + imm}')
            a('s_waitcnt lgkmcnt(0)')
            for t in chunks[c].get('post', []): a(t)
            if c + nslots < n: issue(c + nslots)
            if c + nslots == n - 1:
                for t in g.start_look(48): a(t)
        for t in g.stamp(5): a(t)
        a('s_waitcnt lgkmcnt(0)')

    def endpgm(g):
        a = g.a
        if g.c.light:
            a(f's_memrealtime {s(sST,2)}'); a(f's_mov_b32 s{sN}, 0')
            g.stamp_store(8, 3, True)
        a('s_waitcnt vmcnt(0)'); a('s_endpgm')

    def mini_init(g, vA):
        if not g.c.mini: return
        a = g.a
        a(f's_lshl_b32 s{sT0}, s2, 12'); a(f's_add_u32 s{sT0}, s{sT0}, {STAMP:#x}')
        a(f's_cmp_eq_u32 s{sW}, 2'); a(f's_cselect_b32 s{sST+6}, s{sT0}, {OOB:#x}'); a(f'v_mov_b32 v{vA}, 0')
        a(f'v_mov_b32 v{vA+1}, s{sST+14}'); a(f'buffer_store_dword v{vA+1}, v{vA}, {WS}, s{sST+6} offen offset:28'); a('s_waitcnt vmcnt(0)')
    def mini_take(g): return [f's_memrealtime {s(sST,2)}'] if g.c.mini else []
    def mini_put(g, vA):
        if not g.c.mini: return []
        return [f's_lshl_b32 s{sST+7}, s{sN}, 5', f's_add_u32 s{sST+7}, s{sST+7}, s{sST+6}', f'v_mov_b32 v{vA+1}, s{sST}',
                f'buffer_store_dword v{vA+1}, v{vA}, {WS}, s{sST+7} offen']

    def light_start(g):
        if g.c.light: g.a(f's_memtime {s(sST+2,2)}'); g.a(f's_memrealtime {s(sST+4,2)}'); g.a('s_waitcnt lgkmcnt(0)')

    def stamp(g, i, real=True):
        if g.c.mini and i == 7: return [f's_memrealtime {s(sST+14,2)}']
        if g.c.light and i in (5, 7): return [f's_memrealtime {s(sST+2*i,2)}']
        if not g.c.stamps: return []
        if g.c.fine: return [f's_memtime {s(sST+2*i,2)}'] if i in g.c.fine else []
        return [f's_memrealtime {s(sST+2*i,2)}' if real else f's_memtime {s(sST+2*i,2)}']

    def stamp_store(g, vt, nst, force=False):
        if not g.c.stamps and not force: return
        a = g.a
        a('s_waitcnt lgkmcnt(0)')
        if g.c.fine:
            a(f's_memtime {s(sST+14,2)}'); a(f's_memrealtime {s(sST,2)}'); a('s_waitcnt lgkmcnt(0)')
            for i in range(8): a(f'v_mov_b32 v{vt+i}, s{sST+2*i}')
            a(f's_lshl_b32 s{sT0}, s2, 2'); a(f's_add_u32 s{sT0}, s{sT0}, s{sW}'); a(f's_lshl_b32 s{sT0}, s{sT0}, 12')
            a(f's_lshl_b32 s{sT1}, s{sN}, 5'); a(f's_add_u32 s{sT0}, s{sT0}, s{sT1}'); a(f's_add_u32 s{sT0}, s{sT0}, {0xF000000:#x}')
        else:
            a(f's_memtime {s(sST+12,2)}'); a('s_waitcnt lgkmcnt(0)')
            for i in range(8): a(f'v_mov_b32 v{vt+i}, s{sST+2*(i if i >= 5 else min(i,nst-1))}')
            a(f's_lshl_b32 s{sT0}, s2, 12'); a(f's_lshl_b32 s{sT1}, s{sN}, 5'); a(f's_add_u32 s{sT0}, s{sT0}, s{sT1}')
            a(f's_add_u32 s{sT0}, s{sT0}, {STAMP + (0x100000 if force else 0):#x}')
            a(f's_cmp_eq_u32 s{sW}, 0'); a(f's_cselect_b32 s{sT0}, s{sT0}, {OOB:#x}')
        a(f'v_mov_b32 v{vt+8}, 0')
        a(f'buffer_store_dwordx4 {v(vt,4)}, v{vt+8}, {WS}, s{sT0} offen')
        a(f'buffer_store_dwordx4 {v(vt+4,4)}, v{vt+8}, {WS}, s{sT0} offen offset:16')
        a('s_nop 1')

    def v_j(g, d): g.a(f'v_and_b32 v{d}, 15, v0')
    def v_g(g, d): g.a(f'v_lshrrev_b32 v{d}, 4, v0')

    def tr_addr(g, d, rowpitch, gmul, colmul, sStage, chain=None):
        a = g.a
        a('v_lshrrev_b32 v1, 4, v0'); a('v_bfe_u32 v2, v0, 2, 2'); a('v_and_b32 v3, 3, v0')
        if chain is None:
            a(f'v_mul_u32_u24 v1, {gmul}, v1'); a('v_add_u32 v1, v1, v2')
        else:
            m_g1, m_g0, m_r1 = chain
            a('v_lshrrev_b32 v4, 1, v1'); a(f'v_mul_u32_u24 v4, {m_g1}, v4')
            a('v_and_b32 v1, 1, v1'); a(f'v_mul_u32_u24 v1, {m_g0}, v1'); a('v_add_u32 v1, v1, v4')
            a('v_lshrrev_b32 v4, 1, v2'); a(f'v_mul_u32_u24 v4, {m_r1}, v4'); a('v_add_u32 v1, v1, v4')
            a('v_and_b32 v2, 1, v2'); a('v_add_u32 v1, v1, v2')
        a(f'v_mul_u32_u24 v1, {rowpitch}, v1'); a(f'v_mul_u32_u24 v3, {colmul}, v3')
        a(f'v_add3_u32 v{d}, v1, v3, s{sStage}')

    def dma_addr64(g, d, pitch):
        a = g.a
        a('v_lshrrev_b32 v1, 2, v0'); a(f'v_mul_u32_u24 v1, {pitch}, v1')
        a('v_and_b32 v2, 3, v0'); a('v_lshlrev_b32 v2, 4, v2'); a(f'v_add_u32 v{d}, v1, v2')

    def colsum(g, NK, NT, vbase, vCS, wA, vOnes):
        a = g.a
        for i in range(4): a(f'v_mov_b32 v{vOnes+i}, 0x3f803f80')
        for ks in range(NK):
            for n in range(NT):
                w = wreg((ks*NT+n)*4, 4, vbase); d = v(vCS+4*n, 4); c = '0' if ks == 0 else d
                if wA: a(f'v_mfma_f32_16x16x32_bf16 {d}, {w}, {v(vOnes,4)}, {c}')
                else:  a(f'v_mfma_f32_16x16x32_bf16 {d}, {v(vOnes,4)}, {w}, {c}')

    def stat_addr(g, d, vori):
        a = g.a
        if not vori:
            a('v_and_b32 v1, 31, v0'); a('v_lshrrev_b32 v2, 5, v0')
        else:
            a('v_bfe_u32 v1, v0, 2, 1'); a('v_lshlrev_b32 v1, 4, v1')
            a('v_lshrrev_b32 v2, 4, v0'); a('v_lshlrev_b32 v2, 2, v2'); a('v_add_u32 v1, v1, v2')
            a('v_and_b32 v2, 3, v0'); a('v_add_u32 v1, v1, v2'); a('v_bfe_u32 v2, v0, 3, 1')
        a('v_lshlrev_b32 v1, 4, v1'); a('v_lshlrev_b32 v2, 10, v2'); a(f'v_add_u32 v{d}, v1, v2')

    def stat_loads(g, S, vAddr, base):
        return [[f's_lshl_b32 s{sT2}, s{sN}, 11', f's_add_u32 s{sT2}, s{sT2}, {base:#x}'] +
                [f'buffer_load_dwordx4 {v(S+4*i,4)}, v{vAddr}, {WS}, s{sT2} offen offset:{512*i} sc1 ; @s' for i in range(2)]]

    def stat_math(g, S, R, vori):
        o = [f'v_add_f32 v{S}, v{S}, v{S+2}', f'v_add_f32 v{S+1}, v{S+1}, v{S+3}',
             f'v_add_f32 v{S+4}, v{S+4}, v{S+6}', f'v_add_f32 v{S+5}, v{S+5}, v{S+7}',
             f'v_add_f32 v{S}, v{S}, v{S+4}', f'v_add_f32 v{S+1}, v{S+1}, v{S+5}']
        if not vori:
            o += [f'v_permlane32_swap_b32 v{S}, v{S+1}', f'v_add_f32 v{S}, v{S}, v{S+1}', f'v_mov_b32 v{S+1}, v{S}',
                  f'v_permlane32_swap_b32 v{S}, v{S+1}']
        else:
            o += [f'v_add_f32_dpp v{S+2}, v{S}, v{S} row_ror:8 row_mask:0xf bank_mask:0xf',
                  f'v_add_f32_dpp v{S+3}, v{S+1}, v{S+1} row_ror:8 row_mask:0xf bank_mask:0xf',
                  f'v_mov_b32 v{S}, v{S+2}', f'v_mov_b32 v{S+1}, v{S+3}']
        k = fbits(1.0/1024)
        o += [f'v_mul_f32 v{S}, {k}, v{S}', f'v_mul_f32 v{S+1}, {k}, v{S+1}',
              f'v_fma_f32 v{S+1}, -v{S}, v{S}, v{S+1}', f'v_max_f32 v{S+1}, 0, v{S+1}',
              f'v_cvt_pk_bf16_f32 v{S+2}, v{S}, v{S+1}',
              f'v_lshlrev_b32 v{S}, 16, v{S+2}', f'v_and_b32 v{S+1}, 0xffff0000, v{S+2}',
              f'v_add_f32 v{S+1}, {fbits(1e-5)}, v{S+1}',
              f'v_cvt_pk_bf16_f32 v{S+1}, v{S+1}, v{S+1}', f'v_lshlrev_b32 v{S+1}, 16, v{S+1}',
              f'v_sqrt_f32 v{S+1}, v{S+1}',
              f'v_cvt_pk_bf16_f32 v{S+1}, v{S+1}, v{S+1}', f'v_lshlrev_b32 v{S+1}, 16, v{S+1}',
              f'v_rcp_f32 v{R}, v{S+1}',
              f'v_sub_f32 v{R+2}, 0, v{S}',
              f'v_mov_b32 v{R+1}, v{R}', f'v_mov_b32 v{R+3}, v{R+2}']
        if not vori:
            o += [f'v_permlane16_swap_b32 v{R}, v{R+1}', f'v_permlane16_swap_b32 v{R+2}, v{R+3}']
        else:
            o += [f'v_mov_b32 v{S}, v{R}', f'v_mov_b32 v{S+1}, v{R+2}',
                  f'v_mov_b32_dpp v{R}, v{S} row_ror:4 row_mask:0xf bank_mask:0xa',
                  f'v_mov_b32_dpp v{R+1}, v{S} row_ror:4 row_mask:0xf bank_mask:0x5',
                  f'v_mov_b32_dpp v{R+2}, v{S+1} row_ror:4 row_mask:0xf bank_mask:0xa',
                  f'v_mov_b32_dpp v{R+3}, v{S+1} row_ror:4 row_mask:0xf bank_mask:0x5']
        return o

    def row_stats(g, X, D, one):
        o = []
        for i in range(len(X[0])):
            for t in range(2):
                c0 = '0' if i == 0 else f'v{D+t}'; c1 = '0' if i == 0 else f'v{D+2+t}'
                o.append(f'v_dot2_f32_bf16 v{D+t}, v{X[t][i]}, {one}, {c0}')
                o.append(f'v_dot2_f32_bf16 v{D+2+t}, v{X[t][i]}, v{X[t][i]}, {c1}')
        return ['\n'.join(o), '@brk', f'v_permlane32_swap_b32 v{D}, v{D+1}', f'v_permlane32_swap_b32 v{D+2}, v{D+3}',
                    f'v_add_f32 v{D}, v{D}, v{D+1}', f'v_add_f32 v{D+2}, v{D+2}, v{D+3}', '@brk',
                    f'v_permlane16_swap_b32 v{D}, v{D+2}', f'v_add_f32 v{D}, v{D}, v{D+2}']

    def stat_store_addr(g, d, sSlice):
        a = g.a
        a('v_lshrrev_b32 v1, 5, v0'); a('v_lshlrev_b32 v1, 8, v1')
        a('v_and_b32 v2, 15, v0'); a('v_lshlrev_b32 v2, 4, v2'); a('v_add_u32 v1, v1, v2')
        a('v_bfe_u32 v2, v0, 4, 1'); a('v_lshlrev_b32 v2, 2, v2')
        a(f's_lshr_b32 s{sT0}, s{sSlice}, 1'); a(f's_lshl_b32 s{sT0}, s{sT0}, 9')
        a(f's_and_b32 s{sT1}, s{sSlice}, 1'); a(f's_lshl_b32 s{sT1}, s{sT1}, 3'); a(f's_add_u32 s{sT0}, s{sT0}, s{sT1}')
        a(f'v_add3_u32 v{d}, v1, v2, s{sT0}')

    def half_tile_addr(g, d, sTile):
        a = g.a
        a(f's_lshr_b32 s{sT0}, s{sTile}, 1'); a(f's_lshl_b32 s{sT0}, s{sT0}, 11')
        a(f's_and_b32 s{sT1}, s{sTile}, 1'); a(f's_lshl_b32 s{sT1}, s{sT1}, 9'); a(f's_add_u32 s{sT0}, s{sT0}, s{sT1}')
        a('v_bfe_u32 v1, v0, 4, 1'); a('v_lshlrev_b32 v1, 10, v1')
        a('v_lshrrev_b32 v2, 5, v0'); a('v_lshlrev_b32 v2, 8, v2'); a('v_add_u32 v1, v1, v2')
        a('v_and_b32 v2, 15, v0'); a('v_lshlrev_b32 v2, 4, v2'); a(f'v_add3_u32 v{d}, v1, v2, s{sT0}')

    def coop_load(g, NK, groups, pitch, vtr, reads):
        a = g.a; ng = len(groups); sz = ng * 4096; per = 65536 // sz; ns = min(163840 // sz, 3 * per, 62 // ng + 1); vA = vtr + 3
        a('v_lshrrev_b32 v1, 3, v0'); a(f's_lshl_b32 s{sT0}, s{sW}, 3'); a(f'v_add_u32 v1, s{sT0}, v1'); a(f'v_mul_u32_u24 v1, {pitch}, v1')
        a('v_and_b32 v2, 7, v0'); a('v_lshlrev_b32 v2, 4, v2'); a(f'v_add_u32 v{vA}, v1, v2')
        for i in (1, 2): a(f'v_add_u32 v{vtr+i}, {i*per*sz}, v{vtr}')
        a(f's_lshl_b32 s{sT2}, s{sW}, 10')
        def issue(ks):
            for i, (srd, sb) in enumerate(groups):
                a(f's_add_u32 m0, s{sT2}, {(ks % ns)*sz + i*4096}')
                a(f's_add_u32 s{sT3}, s{sb}, {ks*32*pitch:#x}')
                a(f'buffer_load_dwordx4 v{vA}, {srd}, s{sT3} offen lds')
        for ks in range(min(ns, NK)): issue(ks)
        issued = min(ns, NK)
        for ks in range(NK):
            a(f's_waitcnt vmcnt({(issued - 1 - ks) * ng}) lgkmcnt(0)'); a('s_barrier')
            if ks and issued < NK: issue(issued); issued += 1
            if ks == NK - 8 and not g.started:
                for t in g.start_look(48): a(t)
            sl = ks % ns
            for dest, imm in reads(ks): a(f'ds_read_b64_tr_b16 {dest}, v{vtr + sl // per} offset:{(sl % per)*sz + imm}')
        for t in g.stamp(5): a(t)
        a('s_waitcnt lgkmcnt(0)')

    def poll_addr(g, d, sFirst, count, group):
        a = g.a
        if group == 'XA':
            a('v_lshrrev_b32 v1, 3, v0'); a(f'v_mul_u32_u24 v1, {max(g.c.FS,32)}, v1'); a('v_and_b32 v2, 7, v0'); a('v_lshlrev_b32 v2, 2, v2')
            a('v_add_u32 v1, v1, v2'); a(f'v_add_u32 v{d}, {FOFF[group]}, v1'); return
        a(f'v_min_u32 v1, {count-1}, v0'); a(f'v_add_u32 v1, s{sFirst}, v1')
        a(f'v_mul_u32_u24 v1, {g.c.FS}, v1'); a(f'v_add_u32 v{d}, {FOFF[group]}, v1')

    def my_flag(g, d, sIndex, group, nl=1, wave0=False):
        a = g.a
        fs = 4 if group == 'XA' else g.c.FS
        if group == 'XA':
            a(f's_lshr_b32 s{sT0}, s{sIndex}, 3'); a(f's_mul_i32 s{sT0}, s{sT0}, {max(g.c.FS,32)}'); a(f's_and_b32 s{sT1}, s{sIndex}, 7')
            a(f's_lshl_b32 s{sT1}, s{sT1}, 2'); a(f's_add_u32 s{sT0}, s{sT0}, s{sT1}')
        else: a(f's_mul_i32 s{sT0}, s{sIndex}, {fs}')
        a(f's_add_u32 s{sT0}, s{sT0}, {FOFF[group]}')
        g.lane0_off(d, sT0, nl, fs if nl > 1 else 0)
        if wave0: g.wave0_off(d, 1)

    def resolve_vm(g, lo, hi):
        L = g.a.L
        isvm = lambda t: t.startswith('buffer_') and '@alt' not in t
        for k in range(lo, hi):
            if not L[k].startswith('@vm '): continue
            p = L[k].split(); tag = '@' + p[1]; n = 0; j = k
            while True:
                j = j - 1 if j > lo else hi - 1
                assert j != k, 'tag not found ' + tag
                if isvm(L[j]):
                    if tag in L[j].split(';')[-1].split(): break
                    n += 1
            assert n <= 63
            L[k] = f's_waitcnt vmcnt({n})' + (' ' + ' '.join(p[2:]) if len(p) > 2 else '')

    def resolve_lg(g, lo, hi, q):
        L = g.a.L; q = list(q)
        for k in range(lo, hi):
            t = L[k]
            if t.startswith('ds_'):
                q.append(t.split('#')[1].strip() if '#' in t else '')
                L[k] = t.split('#')[0].rstrip(' ;')
            elif t.startswith('@lg '):
                tag = t.split()[1]
                if tag not in q: L[k] = ''; continue
                p = len(q) - 1 - q[::-1].index(tag)
                q = q[p + 1:]
                L[k] = f's_waitcnt lgkmcnt({min(len(q), 15)})'
            elif 'lgkmcnt(0)' in t: q = []

    def wave0_off(g, d, w=0):
        a = g.a
        a(f's_cmp_eq_u32 s{sW}, {w}'); a(f's_cselect_b32 s{sT0}, 0, {OOB:#x}'); a(f'v_or_b32 v{d}, s{sT0}, v{d}')

    def spin0(g, vPoll, vOff, n, fl, code, also=()):
        l, l2 = g.a.lab('sp'), g.a.lab('spd')
        return [f's_cmp_lg_u32 s{sW}, 0', f's_cbranch_scc1 {l2}', f'{l}:'] + list(also) + [
                f'buffer_load_dword v{vPoll}, v{vOff}, {WS}, s{fl} offen sc1', 's_waitcnt vmcnt(0)',
                f'v_cmp_lt_u32 vcc, s{n}, v{vPoll}', 's_cmp_eq_u64 vcc, -1', f's_cbranch_scc0 {g.timeout(code, l)}',
                f'{l2}:', 's_barrier']

    def ws_loop(g, name, NK, NT, wA, vbase, R, seq, src_base, src_stride, sSrcC, code, T, PL,
                D, so, off, top=(), post=(), pub_shift=0, late=None, pipe=False, mneed=None, local=False, gate=None, leave=None, touch=()):
        a = g.a; c = g.c; PF = T.get('PF', c.PF)
        ahead, KP, KM, KD = T['ahead'], T.get('KP', 0), T['KM'], T['KD']; lock = not ahead
        BUF = NK * 2048; nd = NK // 2
        TOP, SLOW, EXIT = (f'L{name}_{x}' for x in ('top', 'slow', 'exit'))
        sNxx, sW0, sFl2, sPL = 24, 25, 26, 27
        P0, P1 = R['poll'], R['poll'] + 1
        n4 = NK % (PF + 1)
        sets = list(range(PF + 2)) * n4 + list(range(PF + 1)) * ((NK - (PF + 2) * n4) // (PF + 1))
        assert len(sets) == NK and R['fr'] + 8 * (max(sets) + 1) <= R['res']
        fr = lambda ks, t: v(R['fr'] + (sets[ks % NK] * 2 + t) * 4, 4)
        def rd(ks, t):
            off_ = (ks % NK) * 2048 + t * 1024
            return f'ds_read_b128 {fr(ks,t)}, v{R["rd"] + (off_ >> 16)} offset:{off_ & 0xffff} # f{ks}'
        def prep(slow=False):
            o = [f's_mul_i32 s{sSrc}, s{sNx}, {src_stride:#x}']
            o.append(f's_add_u32 s{sSrc}, s{sSrc}, s{sSrcC}' if sSrcC is not None else f's_add_u32 s{sSrc}, s{sSrc}, {src_base:#x}')
            o += [f's_add_u32 s{sM0}, s{sW0}, s{sBuf}' if slow else f's_sub_u32 s{sM0}, s{sWoff}, s{sBuf}']
            return o
        gs = 4 if nd >= 16 else 2; ng = 4; rem = nd - gs * ng; sQ, sSo = 28, 32
        inbuf = PL is None
        if inbuf:
            assert ahead and not late and rem > 0 and T['KP2'] > KM >= nd // 2 + 1
            PL = (nd - 1) * 1024; vPL0 = R['pl'] + 1; sPL0 = 41
        def dma(srd):
            o = []
            for q, cnt in ([(0, gs), (1, gs), (2, gs), (3, gs), (-1, rem)] if inbuf else [(0, gs), (-1, rem), (1, gs), (2, gs), (3, gs)]):
                for i in range(cnt):
                    grp = []
                    if i == 0:
                        x = f's{sQ+q}' if q >= 0 else f'{gs*ng*1024}'
                        grp = [f's_add_u32 m0, s{sM0}, {x}', f's_add_u32 s{sSo}, s{sSrc}, {x}']
                    grp.append(f'buffer_load_dwordx4 v{R["dma"]}, {srd}, s{sSo} offen offset:{i*1024} sc1 lds ; @e')
                    o.append(grp)
            return o
        rdp = f'ds_read_b32 v{P0}, v{R["pl"]} # p0'
        def poll_main(n, tag):
            f = g.fl_of(n, sFl)
            return f[:-1] + [f's_mov_b32 m0, s{sPL}', f[-1], f'buffer_load_dword v{R["poff"]}, {WS}, s{sFl} offen sc1 lds ; {tag}']
        ev_main = [f'v_cmp_lt_u32 vcc, s{sNx}, v{P0}', 's_cmp_eq_u64 vcc, -1', f's_cselect_b32 s10, {WS_BYTES:#x}, 0']
        pub = f'buffer_store_dword v{R["fval"]}, v{R["my"]}, {WS}, s{sPFl} offen sc1'
        def pubs():
            if not local: return [pub] + list(touch)
            l1, l2 = a.lab('wb'), a.lab('wbc')
            g.tail.append([f'{l1}:', 'buffer_wbl2 sc1', 's_waitcnt vmcnt(0)', pub, f's_branch {l2}'])
            return [f's_cmp_lg_u32 s{sRound}, 0', f's_cbranch_scc1 {l1}\n' + pub.replace(' sc1', '') + f'\n{l2}:']
        if pub_shift == 0: fv = [f's_add_u32 s{sT0}, s{sN}, 1', f's_mov_b32 s{sPFl}, s{sFl2}', f'v_mov_b32 v{R["fval"]}, s{sT0}']
        else: fv = [f's_add_u32 s{sT0}, s{sN}, 65', f'v_mov_b32 v{R["fval"]}, s{sT0}', f's_cmp_lt_u32 s{sN}, 64',
                    f's_mov_b32 s{sPFl}, {OOB:#x}', f's_cselect_b32 s{sPFl}, {FL_L:#x}, s{sPFl}']
        xpub = '@pub' in D
        if xpub:
            sFvN, sPFlN = 41, 42
            shift = [f'v_mov_b32 v{R["fval"]}, s{sFvN}', f's_mov_b32 s{sPFl}, s{sPFlN}']
            fv = shift + [f's_add_u32 s{sFvN}, s{sN}, 1', f's_mov_b32 s{sPFlN}, s{sFl2}']
            D = [pub if t == '@pub' else t for t in D]
            a(f's_mov_b32 s{sFvN}, 0'); a(f's_mov_b32 s{sPFlN}, {OOB:#x}')
        seq_init, next_n = seq
        if sSrcC is not None: a(f's_add_u32 s{sSrcC}, s{sSrcC}, {src_base:#x}')
        a(f's_mul_i32 s{sW0}, s{sW}, {nd*1024}')
        a(f'v_add_u32 v{R["dma"]}, s{sW0}, v{R["l16"]}')
        a(f's_add_u32 s{sWoff}, s{sW0}, {BUF}')
        for q in range(4):
            if 'norot' in c.x: a(f's_mov_b32 s{sQ+q}, {q*gs*1024}'); continue
            a(f's_add_u32 s{sQ+q}, s{sIdx}, {q}'); a(f's_and_b32 s{sQ+q}, s{sQ+q}, 3'); a(f's_mul_i32 s{sQ+q}, s{sQ+q}, {gs*1024}')
        a(f's_lshl_b32 s{sPL}, s{sW}, 9'); a(f's_add_u32 s{sPL}, s{sPL}, {PL}')
        a(f'v_lshrrev_b32 v{R["pl"]}, 2, v{R["l16"]}'); a(f'v_add_u32 v{R["pl"]}, {PL}, v{R["pl"]}')
        if inbuf:
            a(f's_cmp_eq_u32 s{sW}, 0'); a(f's_mov_b32 s{sPL0}, {PL-1024}'); a(f's_cselect_b32 s{sPL0}, {PL}, s{sPL0}'); a(f'v_mov_b32 v{vPL0}, v{R["pl"]}')
            a(f's_add_u32 s{sPL}, s{sPL0}, {BUF}'); a(f'v_add_u32 v{R["pl"]}, {BUF}, v{vPL0}')
        g.wave0_off(R['poff'])
        if lock:
            a(f'v_mov_b32 v{P0}, 0'); a(f'ds_write_b32 v{R["pl"]}, v{P0}'); a(f'ds_write_b32 v{R["pl"]}, v{P0} offset:2048'); a('s_waitcnt lgkmcnt(0)')
        if late: g.wave0_off(late['poff'])
        a(f's_mov_b32 s{sNx}, 0'); a(f's_mov_b32 s{sBuf}, 0'); a(f's_mov_b32 s{sN}, 0')
        a(f'v_mov_b32 v{R["rd"]}, v{R["l16"]}')
        a(f's_mov_b32 s{sPFl}, {OOB:#x}'); a(f'v_mov_b32 v{R["fval"]}, 0')
        for t in seq_init + off: a(t)
        if late: g.srd(12, P_WS, WS_BYTES)
        if ahead:
            for t in next_n(sNxx, sNx): a(t)
        if c.probe:
            for i_ in range(8): a(f's_mov_b32 s{33+i_}, 0')
        g.mini_init(2)
        g.light_start()
        a(f's_branch {SLOW}')
        a('.p2align 6')
        lo = len(a.L)
        a(f'{TOP}:')
        free = []
        chain = []
        head = [f's_mov_b32 s{sN}, s{sNx}'] + g.stamp(0) + g.mini_take()
        sRn = 51
        ev2 = [f'v_cmp_lt_u32 vcc, s{sNxx}, v{P0}', 's_cmp_eq_u64 vcc, -1', f's_cselect_b32 s{sRn}, {WS_BYTES:#x}, 0']
        blk = T.get('block')
        if ahead: head += [f's_mov_b32 s{sNx}, s{sNxx}', f's_mov_b32 s10, s{sRn}'] + prep()
        if BUF > 65536: head.append(f'v_add_u32 v{R["rd"]+1}, 0x10000, v{R["rd"]}')
        if gate: head += gate
        free.append((-2, head, None, 'head'))
        assert inbuf or PL % 4096 == 0
        if lock:
            seqf = next_n(sNx, sN) + [f's_cmp_lg_u32 s{sT0}, s{sNx}', f's_cselect_b32 s10, {WS_BYTES:#x}, 0'] + g.fl_of(sNx, sFl) + \
                   [f's_lshr_b32 s{sT1}, s{sFl}, 6', f's_add_u32 m0, s{sPL}, s{sT1}', f'v_add_u32 v{P1}, s{sT1}, v{R["pl"]}']
            lpoll = f'buffer_load_dword v{R["poff"]}, {WS}, s{sFl} offen sc1 lds'
            free.append((-1, seqf, None, 'fl'))
            chain.append((-1, [lpoll], 'fl', None))
            free.append((T['KB'] - 2, g.fl_of(sN, sFl2) + prep(), None, 'prep'))
            lb, lc, ll, l0 = a.lab('blk'), a.lab('blkc'), a.lab('blkl'), a.lab('blk0')
            chain.append((T['KB'] - 1.5, [f'ds_read_b32 v{P0}, v{P1} # p'], 'fl', None))
            chain.append((T['KB'], ['@lg p'] + ev_main[:2] + [f's_cbranch_scc0 {lb}\n{lc}:'] + g.stamp(1), 'prep', None))
            g.tail.append([f'{lb}:', 's_cmp_eq_u32 s10, 0', f's_cbranch_scc1 {lc}', f'{ll}:', f's_cmp_lg_u32 s{sW}, 0', f's_cbranch_scc1 {l0}',
                           lpoll, f'{l0}:', f'ds_read_b32 v{P0}, v{P1}', 's_waitcnt lgkmcnt(0)'] + ev_main[:2] +
                          [f's_cbranch_scc1 {lc}', f's_branch {g.timeout(code, ll)}'])
            if 'KP2' in T:
                chain.append((T['KP2'], [f's_lshr_b32 s{sT1}, s{sFl2}, 6', f's_add_u32 m0, s{sPL}, s{sT1}', 's_nop 0',
                                         lpoll.replace(f's{sFl} ', f's{sFl2} ')], None, None))
            assert KD[0] > T['KB'] and not late and not pipe
        else:
            tog = [f's_xor_b32 s{sPL}, s{sPL}, 2048', f'v_xor_b32 v{R["pl"]}, 2048, v{R["pl"]}']
            seqf = g.fl_of(sN, sFl2) + tog
            if inbuf:
                tog = [f's_add_u32 s{sPL}, s{sPL}, 256', f'v_add_u32 v{R["pl"]}, 256, v{R["pl"]}']
                seqf = g.fl_of(sN, sFl2) + [f's_add_u32 s{sPL}, s{sPL0}, s{sBuf}', f'v_add_u32 v{R["pl"]}, s{sBuf}, v{vPL0}']
            free.append((KP - 1.5, seqf, None, 'fl'))
        afterM = False; prev = None; lastst = None
        for i, t in enumerate(D):
            kk = T.get('K0', 0) + (i * (T['KA'] - T.get('K0', 0))) / len(D)
            if t == '@M': afterM = True; continue
            if afterM: kk = KM + 0.005
            if t.startswith('buffer_'): chain.append((kk, [t], prev, f'd{i}')); lastst = f'd{i}'
            else: free.append((kk, [t], 'M' if afterM else None, f'd{i}'))
            prev = f'd{i}'
        for grp in top: chain.append((T.get('KT', 0), grp, 'head', 'top'))
        if late: chain.append((KP, [f's_add_u32 m0, s{sPL}, 256', 's_nop 0', f'buffer_load_dword v{late["poff"]}, {WS}, s{sFl2} offen sc1 lds ; @m'], 'fl', None))
        m = (['@lg a'] if mneed is not None else []) + (['s_nop 0'] if pipe and ahead and not late else ['@vm m', '@mbar'])
        if late: m.append(f'ds_read_b32 v{P1}, v{R["pl"]} offset:256 # p')
        chain.append((KM, m + ([] if lock else g.stamp(1)), None if mneed is None else f'd{mneed}', 'M'))
        if not pipe: chain.append((KM, pubs(), None, 'pub'))
        KE = KM + 0.01
        if late:
            chain.append((KE, ['@gap', '@lg p', f'v_cmp_lt_u32 vcc, s{sN}, v{P1}', 's_cmp_eq_u64 vcc, -1', f's_cselect_b32 s14, {WS_BYTES:#x}, 0'], None, None))
            for grp in late['loads'](W1, '@late @e' if late.get('lds') else '@late'): chain.append((T.get('KL', KE), grp, None, None))
        pf = dma(WSC)
        n1 = T.get('N1', gs + rem) if len(KD) == 3 else 0
        for i, grp in enumerate(pf):
            kk = KD[0] + i * T.get('D1', 0.8) if i < n1 else KD[-2] + ((i - n1) * (KD[-1] - KD[-2])) / (nd - n1)
            chain.append((kk, grp, 'M' if inbuf and i == nd - 1 else 'head', None))
            assert not (inbuf and i == nd - 1) or kk > KM
        if ahead:
            chain.append((T['KP2'], next_n(sNxx, sNx) + poll_main(sNxx, '@e'), 'fl', None))
        free.append((NK - PF - 2, so, 'pub' if touch else lastst, None))
        if not pipe: free.append((NK - PF - 1.5, fv, 'pub', None))
        k2 = T.get('KS', KM); np_ = len(post); span = NK - PF - 2.5 - k2
        assert not post or k2 >= T['KA']
        if post: free.append((k2, ['@vm s'], 'top', None))
        for i, t in enumerate(post): free.append((k2 + (i * span) / max(np_, 1), [t], None, None))
        if 'novmw' in c.x: chain = [(k, [t for t in grp if t != '@vm m'], n_, g_) for k, grp, n_, g_ in chain]
        if 'nodma' in c.x: chain = [(k, [t for t in grp if not (t.startswith('buffer_load_dwordx4') and ' lds' in t and '@late' not in t)] or ['s_nop 0'], n_, g_) for k, grp, n_, g_ in chain]
        if 'nod' in c.x: free = [(k, ['s_nop 0'] if (g_ or '').startswith('d') and grp[0].startswith('v_') else grp, n_, g_) for k, grp, n_, g_ in free]
        free.sort(key=lambda x: x[0]); chain.sort(key=lambda x: x[0])
        ch2 = []
        for k, grp, nd_, gv in chain:
            subs = [[]]
            for t in grp:
                subs[-1].append(t)
                if t.startswith('buffer_'): subs.append([])
            subs = [x for x in subs if x]
            for i, x in enumerate(subs): ch2.append((k, x, nd_, gv if i == len(subs) - 1 else None))
        chain = []; own = None
        for k, x, nd_, gv in ch2:
            isd = x[-1].startswith(f'buffer_load_dwordx4 v{R["dma"]},')
            m0w = [t for t in x if ' m0,' in t]
            if isd and m0w: own = m0w[0]; clean = True
            elif isd and not clean: x = [own] + x; clean = True
            elif m0w: clean = False
            chain.append((k, x, nd_, gv))
        marks = {None}; st = dict(t=0, tm=-16, tv=-999, tM=0, cur=[], gv=None)
        DV = T.get('dv', 72)
        scalar = lambda t: t.startswith(('s_', '@'))
        def after(t):
            if t.startswith('v_mfma'):
                tm = max(st['t'], st['tm'] + 16); return tm + 4, tm
            if scalar(t): return st['t'] + 4, st['tm']
            if t.startswith(('v_dot', 'v_pk')): return max(st['t'], st['tm'] + 28) + 4, st['tm']
            return max(st['t'], st['tm'] + 8) + (8 if t.startswith(('v_exp', 'v_rcp', 'v_sqrt', 'v_perml')) else 4), st['tm']
        def emit(t):
            for u in t.split('\n'):
                if u == '@mbar': u = 's_barrier'; st['tM'] = st['t']; st['kM'] = (st['k'], st['t'])
                a(u)
                if u.endswith(':'): continue
                st['t'], st['tm'] = after(u)
                if u.startswith('buffer_'):
                    st['tv'] = st['t'] + (20 if u.startswith('buffer_store_dwordx4') else 0)
                    if u != pub: st['kv'] = (st['k'], st['t'])
                    if u.startswith('buffer_store') and u != pub: st['ks'] = (st['k'], st['t'])
        def cands(pos, force):
            o = []
            if chain and chain[0][2] in marks and (force or chain[0][0] <= pos):
                grp = chain[0][1]; ok = True
                if not force:
                    if grp[-1].startswith('buffer_') and st['t'] + 4 * len(grp) < st['tv'] + DV: ok = False
                    if grp[0] == '@gap' and st['t'] < st['tM'] + 100: ok = False
                if ok: o.append(chain)
            if free and free[0][2] in marks and (force or free[0][0] <= pos): o.append(free)
            return o
        first = lambda q: [t for t in q[0][1] if t != '@gap'][0]
        def peek(pos, force=False, want=None):
            if st['cur']: return None, st['cur'][0]
            for q in cands(pos, force):
                if want is None or want(first(q)): return q, first(q)
            return None, None
        def take(q):
            if q is not None:
                it = q.pop(0); st['cur'] = [t for t in it[1] if t != '@gap']; st['gv'] = it[3]
            t = st['cur'].pop(0)
            if not st['cur']: marks.add(st['gv'])
            return t
        def flush():
            n = 0
            while st['cur'] or chain or free:
                q, t = peek(99, True)
                assert t is not None, (name, chain[:1], free[:1])
                t = take(q)
                if t != '@brk': emit(t); n += 1
            return n
        quota = T.get('quota', lambda ks: 2)
        left = 0; carry = []
        st['k'] = 0; emit('@lg f0')
        for ks in range(NK):
            st['k'] = ks
            if c.probe and ks in c.probe:
                emit(f's_memtime {s(sST+2*c.probe.index(ks),2)}'); g.left.setdefault(name + '_t', []).append(st['t'])
            mand = carry + [rd(ks + PF, 0), rd(ks + PF, 1)]; carry = []
            if ks == NK - PF:
                carry = ([rdp] if ahead else []) + mand
                mand = []
                free.append((0, [f's_sub_u32 s{sBuf}, {BUF}, s{sBuf}', f'v_add_u32 v{R["rd"]}, s{sBuf}, v{R["l16"]}'], None, None))
            k = 0
            for t in range(2):
                for n in (range(NT) if t == 0 or not c.snake else range(NT - 1, -1, -1)):
                    d = v(R['acc'] + (t * NT + n) * 4, 4)
                    cc = d if ks else '0'
                    if ks == NK - 1: d = v(R['res'] + (t * NT + n) * 4, 4)
                    w = wreg((ks * NT + n) * 4, 4, vbase)
                    if wA: emit(f'v_mfma_f32_16x16x32_bf16 {d}, {w}, {fr(ks,t)}, {cc}')
                    else:  emit(f'v_mfma_f32_16x16x32_bf16 {d}, {fr(ks,t)}, {w}, {cc}')
                    k += 1
                    pos = ks + k / (2 * NT); B = 8 + 4 * quota(ks)
                    if ks == NK - PF and k == 2 * NT:
                        left += flush()
                        if c.probe and 'pe' in c.x:
                            for t_ in [f'@lg f{NK-1}', f's_memtime {s(sST+10,2)}', 's_waitcnt lgkmcnt(0)', '@vm e', f's_memtime {s(sST+12,2)}', 's_waitcnt lgkmcnt(0)',
                                       's_barrier', f's_memtime {s(sST+14,2)}', 's_waitcnt lgkmcnt(0)']: emit(t_)
                            g.left[name + '_t'] += [st['t']] * 3
                        else:
                            for t_ in [f'@lg f{NK-1}', 's_nop 0' if 'novme' in c.x else '@vm e', 's_barrier']: emit(t_)
                        if c.probe:
                            acc_ = []
                            for i_ in range(7 if 'pe' in c.x else len(c.probe) - 1):
                                acc_ += [f's_sub_u32 s{sT1}, s{sST+2*i_+2}, s{sST+2*i_}', f's_add_u32 s{33+i_}, s{33+i_}, s{sT1}']
                            acc_ += [f's_sub_u32 s{sT1}, s{sST}, s43', f's_min_u32 s{sT1}, s{sT1}, 1500', f's_add_u32 s40, s40, s{sT1}', f's_mov_b32 s43, s{sST+14 if "pe" in c.x else sST+2*len([k_ for k_ in c.probe if k_ <= NK-PF])-2}'] if name != 'DNF_' else []
                            free.append((0, acc_, None, None))
                        if PF == 2:
                            for t_ in carry[:2]: emit(t_)
                            carry = carry[2:]
                        free.append((0, g.stamp(2) + (fv if xpub else [pub] + fv if pipe else []) + g.mini_put(2) + ['s_nop 0'], None, None))
                        fin = []
                        if ahead: fin = ['@lg p0'] + ev2
                        if ahead and blk:
                            if name == 'P': fin += [f's_xor_b32 s{sT1}, s{sNx}, s{sNxx}', f's_and_b32 s{sT1}, s{sT1}, 0xc0', f's_cmp_lg_u32 s{sT1}, 64']
                            else: fin += [f's_add_u32 s{sT1}, s{sNx}, 1', f's_cmp_eq_u32 s{sT1}, s{sNxx}'] if blk is True else [f's_cmp_ge_u32 s{sNxx}, {blk}']
                            fin += [f's_cselect_b32 s{sNeed}, -1, s{sRn}', f's_and_b32 s{sNeed}, s{sNeed}, s10']
                            if late: fin.append(f's_and_b32 s{sRdy}, s{sNeed}, s14')
                        else: fin += [f's_and_b32 s{sRdy}, s10, s14'] if late else ['s_cmp_lg_u32 s10, 0']
                        free.append((NK - 1 + (0.2 if PF > 2 else 0.7), fin, None, None))
                        continue
                    if k == 2 * NT and ks + 1 < NK: emit(f'@lg f{ks+1}')
                    else:
                        q, t_ = peek(pos, want=lambda x: scalar(x) and x != '@brk')
                        if t_ is not None and scalar(t_) and t_ != '@brk': emit(take(q))
                    for _ in range(2 if len(mand) > 2 else 1):
                        if mand: emit(mand.pop(0))
                    nv = 0
                    while True:
                        q, t_ = peek(pos)
                        if t_ is None: break
                        if t_.startswith('v_') and not t_.startswith('v_mfma'):
                            nv += 1
                            if nv > T.get('nv', lambda k_: 9)(k): break
                        if t_ == '@brk': take(q); break
                        if '\n' not in t_ and not t_.startswith('v_mfma') and after(t_)[0] > st['tm'] + B: break
                        emit(take(q))
                        if '\n' in t_: break
        left += flush()
        g.left[name] = dict(left=left, M=st.get('kM'), st=st.get('ks'), lastvm=st.get('kv'), t=st['t'])
        q0 = [f'f{k}' for k in range(PF) for t in range(2)]
        g.resolve_lg(lo, len(a.L), q0)
        if c.stamps:
            a(f's_cselect_b32 s{sRdy}, 1, 0')
            for t in g.stamp(3): a(t)
            g.stamp_store(R['acc'], 4)
            a(f's_cmp_lg_u32 s{sRdy}, 0')
        a(f's_cbranch_scc1 {TOP}')
        hi_ = len(a.L); g.resolve_vm(lo, hi_)
        if late:
            l1 = a.lab('lw')
            a('s_cmp_lg_u32 s14, 0'); a(f's_cbranch_scc1 {l1}')
            assert not xpub
            for t in tog + g.spin0(P1, late['poff'], sN, sFl2, late['code'], poll_main(sNxx, '')) + [rdp.split('#')[0]] + \
                     [t for grp in late['loads'](WS, '') for t in grp] + ['s_waitcnt lgkmcnt(0)'] + ev2: a(t)
            assert not blk
            if T.get('LW'):
                k_ = max(k for k in range(lo, hi_) if '@late' in a.L[k])
                a(f's_mov_b32 s{sT1}, {OOB:#x}')
                for k in range(k_ + 1, hi_):
                    if a.L[k].startswith('buffer_'): a(pub.replace(f's{sPFl} ', f's{sT1} '))
            else: a('s_waitcnt vmcnt(0)')
            a(f's_cmp_lg_u32 s{sNeed if blk else 10}, 0'); a(f's_cbranch_scc1 {TOP}')
            a(f'{l1}:')
        k0 = len(a.L)
        for t in D:
            if t == '@M': a('s_waitcnt lgkmcnt(0)'); a('s_barrier')
            elif t.startswith('@vm'): a('s_waitcnt vmcnt(0)')
            elif t != '@brk': a(t)
        g.resolve_lg(k0, len(a.L), [])
        for t in ([] if touch else off) + (shift if xpub else []): a(t)
        lgo = a.lab('go')
        if lock:
            a('s_waitcnt vmcnt(0)'); a('s_barrier'); a(pub)
            a(f's_cmp_ge_u32 s{sNx}, {c.NEND}'); a(f's_cbranch_scc1 {EXIT}')
        else:
            if blk:
                l2 = a.lab('sc')
                a('s_cmp_lg_u32 s10, 0'); a(f's_cbranch_scc1 {l2}')
                g.tail.append([f'{l2}:'] + tog + poll_main(sNxx, '') + ['s_waitcnt vmcnt(0) lgkmcnt(0)', 's_barrier', rdp.split('#')[0]] + pubs() + (off if touch else []) +
                              [f's_mov_b32 s{sRn}, {WS_BYTES:#x}', 's_waitcnt lgkmcnt(0)'] + ev2[:2] + [f's_cbranch_scc1 {TOP}'] +
                              g.spin0(P0, R['poff'], sNxx, sFl, code) + [f's_branch {TOP}'])
            for t in tog: a(t)
            for t in poll_main(sNx, '') + prep(True): a(t)
            a('s_waitcnt vmcnt(0) lgkmcnt(0)'); a('s_barrier'); a(rdp.split('#')[0])
            for t in pubs() + (off if touch else []): a(t)
            a(f's_cmp_ge_u32 s{sNx}, {c.NEND}'); a(f's_cbranch_scc1 {EXIT}')
            for t in tog: a(t)
            a('s_waitcnt lgkmcnt(0)'); a(ev_main[0]); a(ev_main[1]); a(f's_cbranch_scc1 {lgo}')
        a(f'{SLOW}:')
        for t in g.fl_of(sNx, sFl) + prep(True) + g.spin0(P0, R['poff'], sNx, sFl, code): a(t)
        a(f'{lgo}:')
        for grp in dma(WS):
            for t in grp: a(t)
        if ahead:
            for t in poll_main(sNxx, ''): a(t)
        a('s_waitcnt vmcnt(0)'); a('s_barrier')
        for t in ([rdp] if ahead else []) + [rd(k, t) for k in range(PF) for t in range(2)]: a(t.split('#')[0])
        if ahead:
            a(f's_waitcnt lgkmcnt({2*PF})')
            for t in ev2: a(t)
        a(f's_branch {TOP}')
        a(f'{EXIT}:')
        if leave: leave()
        if c.probe:
            for i_ in range(8): a(f'v_mov_b32 v{8+i_}, s{33+i_}')
            a(f's_lshl_b32 s{sT0}, s2, 12'); a(f's_add_u32 s{sT0}, s{sT0}, {STAMP+32:#x}'); a(f's_lshl_b32 s{sT1}, s{sW}, 5'); a(f's_add_u32 s{sT0}, s{sT0}, s{sT1}')
            a('v_mov_b32 v16, 0'); a(f'buffer_store_dwordx4 v[8:11], v16, {WS}, s{sT0} offen'); a(f'buffer_store_dwordx4 v[12:15], v16, {WS}, s{sT0} offen offset:16')
            a('s_waitcnt vmcnt(0)')
        g.endpgm()
        g.flush_tail()

    def mask_seq(g, order):
        bits = sum(1 << i for i in range(len(order) - 1) if order[i] // 64 != order[i + 1] // 64 and not (order[i] == 63 and order[i + 1] == 64))
        init = [f's_mov_b32 s{44+i}, {(bits >> (32*i)) & 0xffffffff:#x}' for i in range(4)] + [f's_mov_b32 s{sOth}, 64', f's_mov_b32 s{sCnt}, 0']
        jump = []
        if g.c.HK:
            h0, h1 = g.c.H0, g.c.H0 + g.c.HK; sFrom, sTo = sC + 8, sC + 9
            init += [f's_cmp_eq_u32 s{sHelp}, 0', f's_cselect_b32 s{sFrom}, {h0}, {h1}', f's_cselect_b32 s{sTo}, {h1}, 0x80',
                     f's_cselect_b32 s{sNx}, 0, {h0}', 's_cselect_b64 s[44:45], s[44:45], 0']
            jump = [f's_cmp_eq_u32 s{sT0}, s{sFrom}', f's_cselect_b32 s{sT0}, s{sTo}, s{sT0}']
        def nxt(dst, src):
            return [f's_add_u32 s{sT0}, s{src}, 1'] + jump + [f's_bitcmp1_b64 s[44:45], s{sCnt}',
                    f's_cselect_b32 s{dst}, s{sOth}, s{sT0}', f's_cselect_b32 s{sOth}, s{sT0}, s{sOth}',
                    f's_add_u32 s{sCnt}, s{sCnt}, 1', f's_cmp_eq_u32 s{sCnt}, 64', 's_cselect_b64 s[44:45], s[46:47], s[44:45]',
                    f's_min_u32 s{sCnt}, s{sCnt}, 127']
        return init, nxt

    def lag(g, role):
        return min(g.c.L + g.c.DLAG[('AT', 'WOP', 'WOF', 'GU', 'DNP', 'DNF').index(role)], 64)

    def lag_seq(g, L):
        return g.seq_init(L), (lambda dst, src: g.next_n(dst, src, L))

    def near_side(g, part):
        a = g.a; l = a.lab('ns'); lp = a.lab('nsl')
        a(f's_cmp_lg_u32 s{sW}, 3'); a(f's_cbranch_scc1 {l}'); a(f's_cmp_lg_u32 s{sIdx}, 0'); a(f's_cbranch_scc1 {l}')
        a(f's_mov_b32 s{sT0}, {CAL:#x}'); g.lane0_off(2, sT0)
        m0, m1, cnt = sNeed, sFl, sPFl
        if part == 0: a(f's_mov_b32 s{m0}, -1'); a(f's_mov_b32 s{m1}, -1')
        a(f's_mov_b32 s{cnt}, 0'); a(f's_mov_b32 s{sT2}, 0x2000')
        a(f'{lp}:')
        for m, so in ((m0, '0'), (m1, f's{sT2}')):
            a(f's_memtime {s(sC+10,2)}'); a('s_waitcnt lgkmcnt(0)')
            a(f'buffer_store_dword v0, v2, {WS}, {so} offen sc1'); a('s_waitcnt vmcnt(0)')
            a(f's_memtime {s(sC+12,2)}'); a('s_waitcnt lgkmcnt(0)')
            a(f's_sub_u32 s{sT1}, s{sC+12}, s{sC+10}'); a(f's_min_u32 s{m}, s{m}, s{sT1}'); a(f's_add_u32 s{cnt}, s{cnt}, s{sT1}')
        a(f's_cmp_lt_u32 s{cnt}, {(5000, g.c.CALT)[part]}'); a(f's_cbranch_scc1 {lp}')
        if part == 1:
            a(f's_cmp_lt_u32 s{m1}, s{m0}'); a(f's_cselect_b32 s{sT1}, 1, 0')
            a(f's_lshr_b32 s{sT2}, s{sXcc}, 2'); a(f's_xor_b32 s{sT1}, s{sT1}, s{sT2}'); a(f's_add_u32 s{sT1}, s{sT1}, 1')
            if 'flip' in g.c.x: a(f's_xor_b32 s{sT1}, s{sT1}, 3')
            a(f'v_mov_b32 v3, s{sT1}'); a(f's_mov_b32 s{sT0}, 4'); g.lane0_off(2, sT0)
            a(f'buffer_store_dword v3, v2, {DBG}, 0 offen sc1')
            if g.c.light or g.c.stamps:
                a(f's_lshl_b32 s{m1}, s{m1}, 16'); a(f's_or_b32 s{m0}, s{m0}, s{m1}'); a(f'v_mov_b32 v3, s{m0}')
                a(f'buffer_store_dword v3, v2, {DBG}, 0 offen offset:4 sc1')
        a(f'{l}:')

    def role_p(g):
        a = g.a; c = g.c
        a('L_P:')
        VB = 128
        R = dict(acc=8, fr=32, res=64, rd=112, l16=113, dma=114, poff=115, poll=4, pl=116, my=117, fval=118)
        CS, RES, RS, S, vStat, vOut = 88, 64, 100, 104, 119, 120
        sOut, sGam = sC + 4, sC + 5
        g.my_flag(R['my'], sIdx, 'P', wave0=True); g.zero_flags(R['my']); g.arrive()
        a('L_P2:')
        srds = (8, 12, 16)
        for n in range(3):
            gm = sGam + n; d = srds[n]
            a(f's_mul_i32 s{gm}, s{sIdx}, 3'); a(f's_add_u32 s{gm}, s{gm}, {n}')
            a(f's_cmp_lt_u32 s{gm}, 64'); a(f's_cselect_b32 s{d}, s{P_WQ}, s{P_WK}'); a(f's_cselect_b32 s{d+1}, s{P_WQ+1}, s{P_WK+1}')
            a(f's_cmp_lt_u32 s{gm}, 128'); a(f's_cselect_b32 s{d}, s{d}, s{P_WV}'); a(f's_cselect_b32 s{d+1}, s{d+1}, s{P_WV+1}')
            a(f's_and_b32 s{d+1}, s{d+1}, 0xffff'); a(f's_mov_b32 s{d+2}, 0x800000'); a(f's_mov_b32 s{d+3}, 0x20000')
            a(f's_and_b32 s{sC+n}, s{gm}, 63'); a(f's_lshl_b32 s{sC+n}, s{sC+n}, 7')
        a(f's_lshl_b32 s{sT1}, s{sW}, 5'); g.tr_addr(8, 128, 8, 8, sT1)
        g.coop_load(32, [(s(srds[n], 4), sC + n) for n in range(3)], 8192, 8,
                    lambda ks: [(wreg((ks * 3 + n) * 4 + 2 * hh, 2, VB), n * 4096 + hh * 512) for n in range(3) for hh in range(2)])
        g.srd(8, P_WS, WS_BYTES)
        g.colsum(32, 3, VB, CS, True, 8)
        a(f'v_lshlrev_b32 v{R["l16"]}, 4, v0')
        g.stat_addr(vStat, False)
        a(f's_mov_b32 s{sT2}, 0'); g.poll_addr(R['poff'], sT2, 64, 'XA')
        for n in range(3):
            a(f's_and_b32 s{sT2}, s{sGam+n}, 63'); a(f's_lshl_b32 s{sT2}, s{sT2}, 2'); a(f's_add_u32 s{sT2}, s{sT2}, s{sW}')
            g.half_tile_addr(vOut + n, sT2)
            a(f's_lshr_b32 s{sT0}, s{sGam+n}, 6'); a(f's_mul_i32 s{sT0}, s{sT0}, {KX-QX:#x}'); a(f'v_add_u32 v{vOut+n}, s{sT0}, v{vOut+n}')
        g.start_once()
        post = g.stat_math(S, RS, False)
        def ln(n):
            o = []
            for t in range(2):
                d = RES + (t * 3 + n) * 4
                o += [f'v_fmac_f32 v{d+r}, v{RS+2+t}, v{CS+4*n+r}' for r in range(4)]
                o += [f'v_mul_f32 v{d+r}, v{RS+t}, v{d+r}' for r in range(4)]
            return o
        cv = lambda n: [f'v_cvt_pk_bf16_f32 v{RES+4*n+2*t+h}, v{RES+(t*3+n)*4+2*h}, v{RES+(t*3+n)*4+2*h+1}' for t in range(2) for h in range(2)]
        sw = lambda n: [f'v_permlane16_swap_b32 v{RES+4*n}, v{RES+4*n+2}', f'v_permlane16_swap_b32 v{RES+4*n+1}, v{RES+4*n+3}']
        sto = lambda n: [f'buffer_store_dwordx4 {v(RES+4*n,4)}, v{vOut+n}, {WS}, s{sOut} offen sc1 ; ' + ('@e' if c.T_KV.get('pipe') else '@m')]
        D = ln(0) + cv(0) + ln(1)[:2] + sw(0) + sto(0) + ln(1)[2:] + cv(1) + ln(2)[:2] + sw(1) + sto(1) + ln(2)[2:] + cv(2) + ['@brk'] + sw(2) + sto(2)
        so = [f's_lshl_b32 s{sOut}, s{sN}, 18', f's_add_u32 s{sOut}, s{sOut}, {QX:#x}']
        gate = leave = None
        if c.HK:
            l1, l2, l3 = a.lab('gate'), a.lab('gatec'), a.lab('gatel')
            gate = [f's_cmp_eq_u32 s{sN}, {c.H0 + c.HK}', f's_cbranch_scc1 {l1}\n{l2}:']
            g.tail.append([f'{l1}:', f's_cmp_lg_u32 s{sW}, 1', f's_cbranch_scc1 {l2}', f's_mul_i32 s{sT1}, s{sIdx}, {c.FS}',
                           f's_add_u32 s{sT1}, s{sT1}, {FOFF["PH"]}', 'v_mov_b32 v6, 0', f'{l3}:',
                           f'buffer_load_dword v7, v6, {WS}, s{sT1} offen sc1', 's_waitcnt vmcnt(0)',
                           f'v_cmp_le_u32 vcc, {c.H0 + c.HK}, v7', 's_cmp_eq_u64 vcc, -1', f's_cbranch_scc1 {l2}', f's_branch {g.timeout(25, l3)}'])
            def leave():
                l = a.lab('lv')
                a(f's_cmp_eq_u32 s{sHelp}, 0'); a(f's_cbranch_scc1 {l}')
                a('s_waitcnt vmcnt(0) lgkmcnt(0)'); a('s_barrier')
                g.load_args(); a(f's_mov_b32 s{sIdx}, s{sG}'); a('s_waitcnt lgkmcnt(0)'); g.srd(8, P_WS, WS_BYTES)
                a(f's_cmp_eq_u32 s{sHelp}, 1'); a('s_cbranch_scc1 L_GU2'); a('s_branch L_DNF2')
                a(f'{l}:')
        g.ws_loop('P', 32, 3, True, VB, R, g.mask_seq(p_order(c.LK, c.LM, c.H0, c.HK)), XA, 65536, None, 2, c.T_KV, 131072,
                  D, so, [f's_mov_b32 s{sOut}, {OOB:#x}'], top=g.stat_loads(S, vStat, SA), post=post, pipe=c.T_KV.get('pipe'), gate=gate, leave=leave)

    def build(g):
        a = g.a; c = g.c
        a('.amdgcn_target "amdgcn-amd-amdhsa--gfx950"')
        a('.text'); a(f'.globl {KNAME}'); a('.p2align 8'); a(f'.type {KNAME},@function'); a(f'{KNAME}:')
        a('s_cmp_ge_u32 s2, 0x100'); a('s_cbranch_scc1 L_done')
        for t in g.stamp(7): a(t)
        a('v_lshrrev_b32 v1, 6, v0'); a(f'v_readfirstlane_b32 s{sW}, v1')
        a(f's_getreg_b32 s{sXcc}, hwreg(HW_REG_XCC_ID)'); a(f's_and_b32 s{sXcc}, s{sXcc}, 7')
        a(f's_mov_b32 s{sG}, s{sXcc}'); a(f's_mov_b32 s{sRound}, 0'); a(f's_mov_b32 s{sTO}, 0')
        a('s_branch L_begin')
        a('L_restart:')
        a(f's_and_b32 s{sG}, s2, 7'); a(f's_mov_b32 s{sRound}, 1')
        a('s_barrier')
        a('L_begin:')
        g.load_args(); a(f's_mov_b32 s{sHelp}, 0')
        a(f's_lshr_b32 s{sIdx}, s2, 3'); a(f's_mov_b32 s{sN}, 0')
        a('s_waitcnt lgkmcnt(0)')
        g.srd(4, P_WS, WS_BYTES); g.srd(8, P_WS, WS_BYTES); g.srd(20, P_DBG, 256)
        table = role_table(c.place)
        a(f's_lshl_b32 s{sT0}, s{sG}, 5'); a(f's_add_u32 s{sT0}, s{sT0}, s{sIdx}')
        for x, f, n, role, off in table:
            if role[:2] not in c.roles and role not in c.roles: continue
            l = a.lab('disp')
            a(f's_sub_u32 s{sIdx}, s{sT0}, {x*32+f}'); a(f's_cmp_ge_u32 s{sIdx}, {n}'); a(f's_cbranch_scc1 {l}')
            if off: a(f's_add_u32 s{sIdx}, s{sIdx}, {off}')
            a(f's_branch L_{role}'); a(f'{l}:')
        g.arrive()
        g.wait_start(8, 1)
        a('L_done:'); a('s_endpgm')
        g.flush_tail()
        a('L_fail:')
        a(f's_lshl_b32 s{sT0}, s2, 16'); a(f's_lshl_b32 s{sT1}, s{sW}, 8'); a(f's_or_b32 s{sT0}, s{sT0}, s{sT1}')
        a(f's_or_b32 s{sT0}, s{sT0}, s{sN}'); a(f's_bitset1_b32 s{sT0}, 31')
        a(f'v_mov_b32 v1, s{sT0}'); a(f's_lshl_b32 s{sT1}, s{sCode}, 2'); a(f's_add_u32 s{sT1}, s{sT1}, 16'); a('v_mov_b32 v2, 0')
        a(f'buffer_store_dword v1, v2, {DBG}, s{sT1} offen sc1'); a('s_waitcnt vmcnt(0)'); a('s_endpgm')
        if 'P' in c.roles: g.role_p()
        import roles2
        roles2.emit(g)
        a('.section .rodata,"a"'); a('.p2align 6'); a(f'.amdhsa_kernel {KNAME}')
        for t in ('next_free_vgpr 512', 'next_free_sgpr 102', 'accum_offset 256', 'group_segment_fixed_size 0',
                  'kernarg_size 112', 'user_sgpr_count 2', 'user_sgpr_kernarg_segment_ptr 1', 'system_sgpr_workgroup_id_x 1'):
            a('.amdhsa_' + t)
        a('.end_amdhsa_kernel')
        a.L = [t for t in a.L if t]
        import re
        if c.ring:
            out = []; nrep = 0
            keep = {f'{x:#x}' for x in (XA, SA, SA + 64 * 2048)}
            for k, t in enumerate(a.L):
                m_ = re.match(r'^s_(lshl_b32|mul_i32) (s\d+), (s5[23]), (1[1-9]|0x\w+)$', t)
                if m_:
                    nx = next(u for u in a.L[k+1:] if u.startswith(f's_add_u32 {m_.group(2)}, {m_.group(2)},'))
                    cst = nx.split(',')[-1].strip()
                    try: small = int(cst, 0) < XB and int(cst, 0) != SB
                    except ValueError: small = False
                    if not small:
                        big = m_.group(4) == '18' and 'OXMARK' not in nx
                        out.append(f's_and_b32 {m_.group(2)}, {m_.group(3)}, {c.ring:#x}')
                        t = t.replace(m_.group(3), m_.group(2)); nrep += 1
                out.append(t)
            a.L = out; g.left['ring'] = nrep
        for key, rep in (('ldplain', ''), ('ldnt', ' nt'), ('ldsys', ' sc0 sc1')):
            if key in c.x:
                k0 = a.L.index('L_QK:')
                a.L = [t.replace(' sc1', rep) if k < k0 and t.startswith('buffer_load_dwordx4') and 's[20:23]' not in t else t for k, t in enumerate(a.L)]
        for key, rep in (('stnt', ' sc1 nt'), ('stsys', ' sc0 sc1')):
            if key in c.x:
                k0 = a.L.index('L_QK:')
                a.L = [t.replace(' sc1', rep) if k < k0 and t.startswith('buffer_store_dwordx4') else t for k, t in enumerate(a.L)]
        if 'free' in c.x:
            a.L = [re.sub(r'^v_cmp_lt_u32 vcc, (s\d+), v\d+$', r'v_mov_b32 v1, 128\nv_cmp_lt_u32 vcc, \1, v1', t) for t in a.L]
            a.L = [u for t in a.L for u in t.split('\n')]
            if 'hot' in c.x: a.L = [re.sub(r'^s_(lshl_b32|mul_i32) (s\d+), s5[23], (1[1-9]|0x\w+)$', r's_mov_b32 \2, 0', t) for t in a.L]
            if 'nost' in c.x: a.L = [t.replace('s[4:7]', 's[20:23]') if t.startswith('buffer_store_dwordx4') and '@' in t else t for t in a.L]
        lines, added = a.fix()
        head = ['; Persistent weight-stationary dataflow kernel (generated by my own script, gen/gen.py).',
                '; @launch grid=(256,1,1) block=(256,1,1) lds=163840']
        return '\n'.join(head + lines) + '\n'

def make(**kw):
    c = Cfg()
    for k, val in kw.items(): setattr(c, k, val)
    global LAST
    set_fs(c.FS)
    LAST = Gen(c)
    return LAST.build()

if __name__ == '__main__':
    out = sys.argv[1] if len(sys.argv) > 1 else 'interleave_layers__memory_aug_recurrent_mem_tr__glu_gated_geglu__prompt.s'
    open(out, 'w').write(make())
    print('wrote', out)
```

```python
class _F:
    FS=16
FCNT=dict(XA=8,XB=8,P=64,M=128,O=64,H=56,PW=32,PD=32,PH=64)
FOFF={}
def set_fs(fs):
    _F.FS=fs; o=0
    for k,v in FCNT.items():
        FOFF[k]=o; o+=v*(max(fs,32) if k=='XA' else fs)
    assert o<=0x20000
set_fs(16)
FL_L=0x20000
CAL=0x40000
TWB=0x80000; TW_SZ=0x40000
SA=0x180000; SB=0x1C0000
RING=0x200000; RING_SZ=0x50000
R_MEM=0; R_OM=0x10000; R_VML=0x30000
STAMP=0xF400000
XA=0x400000; XB=0xC00000; QX=0x1400000; KX=0x3400000; VX=0x5400000; KVM=0x7400000
OX=0x8400000; HH=0xA400000; PW=0xC000000; PD=0xD800000
WS_BYTES=0x10000000
HH_U=112*2048
OOB=0x40000000
WO_NP=36; DN_NP=38

def role_table(place):
    if True:
        mix = {0: dict(P=(24,24,16,0,0,0), AT=(8,8,0,0,0,0), GU=(0,0,0,24,24,8),
                       WOP=(0,0,8,0,0,16), WOF=(0,0,0,0,0,8), DNP=(0,0,0,8,8,0), DNF=(0,0,8,0,0,0)),
               1: dict(P=(12,12,10,10,10,10), AT=(4,4,2,2,2,2), GU=(8,8,12,12,12,4),
                       WOP=(8,8,0,0,0,8), WOF=(0,0,0,0,0,8), DNP=(0,0,8,8,0,0), DNF=(0,0,0,0,8,0)),
               2: dict(P=(16,16,8,8,8,8), AT=(8,8,0,0,0,0), GU=(0,0,16,16,16,8),
                       WOP=(8,8,0,0,0,8), WOF=(0,0,0,0,0,8), DNP=(0,0,8,8,0,0), DNF=(0,0,0,0,8,0)),
               3: dict(P=(16,16,16,16,0,0), AT=(4,4,4,4,0,0), GU=(12,12,12,12,8,0),
                       WOP=(0,0,0,0,0,24), WOF=(0,0,0,0,0,8), DNP=(0,0,0,0,16,0), DNF=(0,0,0,0,8,0)),
               4: dict(P=(14,14,14,14,8,0), AT=(4,4,4,4,0,0), GU=(14,14,14,14,0,0),
                       WOP=(0,0,0,0,0,24), WOF=(0,0,0,0,0,8), DNP=(0,0,0,0,16,0), DNF=(0,0,0,0,8,0)),
               5: dict(P=(22,0,21,0,21,0), AT=(5,0,6,0,5,0), GU=(5,32,5,8,6,0),
                       WOP=(0,0,0,0,0,24), WOF=(0,0,0,0,0,8), DNP=(0,0,0,16,0,0), DNF=(0,0,0,8,0,0)),
               6: dict(P=(22,0,21,0,21,0), AT=(2,6,2,4,2,0), GU=(8,26,9,4,9,0),
                       WOP=(0,0,0,0,0,24), WOF=(0,0,0,0,0,8), DNP=(0,0,0,16,0,0), DNF=(0,0,0,8,0,0)),
               7: dict(P=(18,10,18,0,18,0), AT=(3,7,3,0,3,0), GU=(11,15,11,8,11,0),
                       WOP=(0,0,0,0,0,24), WOF=(0,0,0,0,0,8), DNP=(0,0,0,16,0,0), DNF=(0,0,0,8,0,0)),
               8: dict(P=(24,0,20,0,20,0), AT=(8,0,4,0,4,0), GU=(0,32,0,16,0,8),
                       WOP=(0,0,0,0,0,24), WOF=(0,0,8,0,0,0), DNP=(0,0,0,16,0,0), DNF=(0,0,0,0,8,0)),
               9: dict(P=(22,0,22,0,20,0), AT=(2,6,2,4,2,0), GU=(8,26,8,12,2,0),
                       WOP=(0,0,0,0,0,24), WOF=(0,0,0,0,0,8), DNP=(0,0,0,16,0,0), DNF=(0,0,0,0,8,0)),
               10: dict(P=(22,0,22,0,20,0), AT=(3,3,2,3,2,3), GU=(7,29,0,13,2,5),
                       WOP=(0,0,0,0,0,24), WOF=(0,0,8,0,0,0), DNP=(0,0,0,16,0,0), DNF=(0,0,0,0,8,0)),
               11: dict(P=(20,12,16,0,16,0), AT=(2,6,2,4,2,0), GU=(10,14,14,4,14,0),
                       WOP=(0,0,0,0,0,24), WOF=(0,0,0,0,0,8), DNP=(0,0,0,16,0,0), DNF=(0,0,0,8,0,0)),
               12: dict(P=(20,14,16,8,6,0), AT=(2,5,3,6,0,0), GU=(10,13,13,18,2,0),
                       WOP=(0,0,0,0,0,24), WOF=(0,0,0,0,0,8), DNP=(0,0,0,0,16,0), DNF=(0,0,0,0,8,0)),
               13: dict(P=(16,12,12,8,10,6), AT=(0,4,2,4,2,4), GU=(8,8,10,12,12,6),
                       WOP=(0,8,0,8,0,8), WOF=(0,0,0,0,0,8), DNP=(8,0,8,0,0,0), DNF=(0,0,0,0,8,0)),
               14: dict(P=(24,24,8,0,8,0), AT=(8,8,0,0,0,0), GU=(0,0,24,8,24,0),
                       WOP=(0,0,0,0,0,24), WOF=(0,0,0,0,0,8), DNP=(0,0,0,16,0,0), DNF=(0,0,0,8,0,0)),
               15: dict(P=(26,22,8,0,8,0), AT=(6,10,0,0,0,0), GU=(0,0,24,24,0,8),
                       WOP=(0,0,0,0,0,24), WOF=(0,0,0,8,0,0), DNP=(0,0,0,0,16,0), DNF=(0,0,0,0,8,0))}[place]
        table = []; nxt = [0]*6
        for role, cnt in mix.items():
            off = 0
            for x, n in enumerate(cnt):
                if n: table.append((2+x, nxt[x], n, role, off)); nxt[x] += n; off += n
        assert max(nxt) <= 32, nxt
    for G in (0, 1): table += [(G, 0, 16, 'QK', 0), (G, 16, 8, 'VM', 0), (G, 24, 8, 'WM', 0)]
    return table

def helper_table(place):
    t = role_table(place)
    ps = [(x, o + i) for x, f, n, r, o in t if r == 'P' for i in range(n)]
    hs = [(x, r, o + i) for x, f, n, r, o in t if r in ('GU', 'DNF') for i in range(n)]
    m = {}
    for x in range(8):
        a = [p for p in ps if p[0] == x]; b = [h for h in hs if h[0] == x]
        for p, h in zip(a, b): m[h[1:]] = p[1]; ps.remove(p); hs.remove(h)
    for p, h in zip(ps, hs): m[h[1:]] = p[1]
    assert sorted(m.values()) == list(range(64))
    out = {}
    for (r, i), p in sorted(m.items()):
        l = out.setdefault(r, [])
        if l and l[-1][0] + l[-1][1] == i and l[-1][2] + l[-1][1] == p: l[-1][1] += 1
        else: l.append([i, 1, p])
    return out
```

```python
from gen import *

def ln_apply(RES, RS, CS, ts=(0, 1)):
    o = []
    for t in ts:
        o += [f'v_fmac_f32 v{RES+t*8+i}, v{RS+2+t}, v{CS+i}' for i in range(8)]
        o += [f'v_mul_f32 v{RES+t*8+i}, v{RS+t}, v{RES+t*8+i}' for i in range(8)]
    return o

def role_gu(g):
    a = g.a
    a('L_GU:')
    R = dict(acc=8, fr=32, res=64, rd=104, l16=105, dma=106, poff=107, poll=4, pl=108, my=109, fval=110)
    CS, RES, RS, S, vStat, vOut, E = 80, 64, 92, 96, 111, 112, 116
    gw, stage = sC, sC + 2
    g.my_flag(R['my'], sIdx, 'H', wave0=True); g.zero_flags(R['my'])
    if g.help_first('GU'): g.my_flag(R['my'], sIdx, 'H', wave0=True)
    else: g.wait_loaded('GU', 32)
    g.srd(12, P_WG, 0x700000); g.srd(16, P_WU, 0x700000)
    a(f's_lshl_b32 s{gw}, s{sIdx}, 2'); a(f's_add_u32 s{gw}, s{gw}, s{sW}')
    a(f's_lshl_b32 s{sC+3}, s{sIdx}, 7')
    a(f's_lshl_b32 s{sT1}, s{sW}, 5'); g.tr_addr(8, 128, 8, 8, sT1)
    g.coop_load(32, [(W1, sC + 3), (W2, sC + 3)], 7168, 8,
                lambda ks: [(wreg((ks * 2 + n) * 4 + 2 * hh, 2, 0), n * 4096 + hh * 512) for n in range(2) for hh in range(2)])
    g.colsum(32, 2, 0, CS, True, 8)
    a(f'v_lshlrev_b32 v{R["l16"]}, 4, v0')
    g.stat_addr(vStat, False)
    a(f's_mov_b32 s{sT2}, 0'); g.poll_addr(R['poff'], sT2, 8, 'XB')
    g.half_tile_addr(vOut, gw)
    ca = -2.0 * 0.7978845608028654 * 1.4426950408889634
    a(f's_mov_b32 s{sC+4}, {fbits(ca*0.044715)}'); a(f'v_mov_b32 v{vOut+1}, {fbits(ca)}')
    g.start_once()
    post = g.stat_math(S, RS, False)
    sOut = sC + 5
    idx = [(t, r) for t in range(2) for r in range(4)]
    G = lambda t, r: RES + t * 8 + r
    U = lambda t, r: RES + t * 8 + 4 + r
    D = ln_apply(RES, RS, CS)
    D += [f'v_mul_f32 v{E+i}, v{G(t,r)}, v{G(t,r)}' for i, (t, r) in enumerate(idx)]
    D += [f'v_fma_f32 v{E+i}, v{E+i}, s{sC+4}, v{vOut+1}' for i, (t, r) in enumerate(idx)]
    D += [f'v_mul_f32 v{E+i}, v{E+i}, v{G(t,r)}' for i, (t, r) in enumerate(idx)]
    for i, (t, r) in enumerate(idx): D += [f'v_exp_f32 v{E+i}, v{E+i}', f'v_mul_f32 v{U(t,r)}, v{U(t,r)}, v{G(t,r)}']
    D += [f'v_add_f32 v{E}, 1.0, v{E}']
    for i in range(8): D += ([f'v_add_f32 v{E+i+1}, 1.0, v{E+i+1}'] if i < 7 else []) + [f'v_rcp_f32 v{E+i}, v{E+i}']
    D += [f'v_mul_f32 v{E+i}, v{E+i}, v{U(t,r)}' for i, (t, r) in enumerate(idx)]
    o = 124
    D += [f'v_cvt_pk_bf16_f32 v{o+i}, v{E+2*i}, v{E+2*i+1}' for i in (0, 2, 1, 3)]
    D += ['@brk', f'v_permlane16_swap_b32 v{o}, v{o+2}', f'v_permlane16_swap_b32 v{o+1}, v{o+3}',
          f'buffer_store_dwordx4 {v(o,4)}, v{vOut}, {WS}, s{sOut} offen sc1 ; ' + ('@e' if g.c.T_GU.get('pipe') else '@m')]
    so = [f's_mul_i32 s{sOut}, s{sN}, {HH_U:#x}', f's_add_u32 s{sOut}, s{sOut}, {HH:#x}']
    g.ws_loop('GU', 32, 2, True, 0, R, g.lag_seq(g.lag('GU')), XB, 65536, None, 4, g.c.T_GU, 131072,
              D, so, [f's_mov_b32 s{sOut}, {OOB:#x}'], top=g.stat_loads(S, vStat, SB), post=post, pipe=g.c.T_GU.get('pipe'))

def role_proj(g, kind, fin):
    a = g.a; name = kind + ('F' if fin else 'P')
    isWO = kind == 'WO'
    nparts = 3 if isWO else 2
    NP = WO_NP if isWO else g.c.DNNP
    NK = ((128 if isWO else 112) - nparts * NP) if fin else NP
    a(f'L_{name}:')
    if name == 'DNP': g.near_side(0)
    helped = name == 'DNF' and g.c.HK
    if helped:
        a(f's_lshl_b32 s{sT2}, s{sIdx}, 3'); g.my_flag(110, sT2, 'XA', 8, wave0=True); g.zero_flags(110, (1,))
        g.help_first('DNF')
    g.srd(12, P_WO if isWO else P_WD, 0x800000 if isWO else 0x700000)
    VB = 192
    R = dict(acc=8, fr=32, res=72, rd=104, l16=106, dma=107, poff=113, poll=108, pl=120, my=110, fval=111)
    vP, vSt, vX, vRow, vL4, vP2 = 112, 114, 115, 116, 117, 119
    RES, PR, OUT = 72, 124, 156
    part, col, cw, stage, k0, src = sC, sC + 1, sC + 2, sC + 3, sC + 4, sC + 5
    if fin:
        a(f's_mov_b32 s{part}, {nparts}'); a(f's_mov_b32 s{col}, s{sIdx}')
    else:
        a(f's_lshr_b32 s{part}, s{sIdx}, 3'); a(f's_and_b32 s{col}, s{sIdx}, 7')
    a(f's_lshl_b32 s{cw}, s{col}, 2'); a(f's_add_u32 s{cw}, s{cw}, s{sW}')
    a(f's_mul_i32 s{k0}, s{part}, {NP}')
    a(f's_lshl_b32 s{src}, s{k0}, 11')
    pg = 'PW' if isWO else 'PD'
    if fin:
        if isWO: g.my_flag(R['my'], col, 'XB', wave0=True)
        else: a(f's_lshl_b32 s{sT2}, s{col}, 3'); g.my_flag(R['my'], sT2, 'XA', 8, wave0=True)
        if not helped: g.zero_flags(R['my'], (0, 1) if isWO else (1,))
    else:
        a(f's_lshl_b32 s{sT2}, s{col}, 2'); a(f's_add_u32 s{sT2}, s{sT2}, s{part}')
        g.my_flag(R['my'], sT2, pg, wave0=True); g.zero_flags(R['my'])
    if not helped:
        g.arrive()
        if name == 'DNP': g.near_side(1)
        g.wait_loaded(kind, 8 if isWO else 48)
    a(f's_lshr_b32 s{sT1}, s{sW}, 1'); a(f's_lshl_b32 s{sT1}, s{sT1}, 12'); a(f's_and_b32 s{sT0}, s{sW}, 1'); a(f's_lshl_b32 s{sT0}, s{sT0}, 6')
    a(f's_add_u32 s{sT1}, s{sT1}, s{sT0}'); g.tr_addr(8, 128, 4 if isWO else 8, 16, sT1)
    a(f's_lshl_b32 s{sC+6}, s{k0}, 16'); a(f's_lshl_b32 s{sT0}, s{col}, 8'); a(f's_add_u32 s{sC+6}, s{sC+6}, s{sT0}'); a(f's_add_u32 s{stage}, s{sC+6}, 128')
    hhs = 2048 if isWO else 512
    g.coop_load(NK, [(W1, sC + 6), (W1, stage)], 2048, 8,
                lambda ks: [(wreg((ks * 2 + n) * 4 + 2 * hh, 2, VB), hh * hhs + n * 8) for n in range(2) for hh in range(2)])
    a(f'v_lshlrev_b32 v{R["l16"]}, 4, v0')
    sh = 1
    assert NP % (4 if isWO else 2) == 0 and NK % (4 if isWO else 2) == 0
    a(f's_lshr_b32 s{sT2}, s{k0}, {sh}'); g.poll_addr(R['poff'], sT2, NK >> sh, 'O' if isWO else 'H')
    a(f's_lshl_b32 s{sT0}, s{cw}, 11'); a(f'v_add_u32 v{vP}, s{sT0}, v{R["l16"]}')
    pbase = PW if isWO else PD; pstride = nparts * 0x10000
    pn = g.c.pnear is not None; vPP = vP; sPar = 42
    def paddr(dst, add):
        if not pn: return [f's_mul_i32 s{dst}, s{sN}, {pstride:#x}', f's_add_u32 s{dst}, s{dst}, {add}']
        return [f's_and_b32 s{dst}, s{sN}, 64', f's_lshr_b32 s{dst}, s{dst}, 1', f's_and_b32 s{sT3}, s{sN}, 31', f's_or_b32 s{dst}, s{dst}, s{sT3}',
                f's_lshl_b32 s{dst}, s{dst}, 17', f's_add_u32 s{dst}, s{dst}, {add}'] + g.half(dst, sPar, sT3)
    pstep = 0x800000 if pn else 0x10000
    if pn:
        vPP = 122
        a(f's_lshr_b32 s{sT0}, s{cw}, 2'); a(f's_lshl_b32 s{sT0}, s{sT0}, 13'); a(f'v_add_u32 v{vPP}, s{sT0}, v{vP}')
    src_base, src_stride = (OX, 0x40000) if isWO else (HH, HH_U)
    T = getattr(g.c, 'T_' + name); PL = 2 * NK * 2048 if NK < 40 else None
    if not fin:
        a(f's_mul_i32 s{sC+7}, s{part}, {pstep:#x}'); a(f's_add_u32 s{sC+7}, s{sC+7}, {pbase:#x}')
        g.start_once()
        if pn: g.get_par(sPar, g.c.pnear)
        sOut = sC + 8
        local = g.c.local and len({x for x, f, n, r, o in role_table(g.c.place) if r[:2] == kind}) == 1
        D = []
        for t in range(2):
            D += [f'v_cvt_pk_bf16_f32 v{OUT+4*t+i}, v{RES+8*t+2*i}, v{RES+8*t+2*i+1}' for i in range(4)]
            D.append(f'buffer_store_dwordx4 {v(OUT+4*t,4)}, v{vPP}, {WS}, s{sOut} offen offset:{t*1024}{"" if local else " sc1"} ; @m')
        so = paddr(sOut, f's{sC+7}')
        off = [f's_mov_b32 s{sOut}, {OOB:#x}']; touch = []
        if g.c.touch:
            a('v_and_b32 v1, 15, v0'); a('v_lshlrev_b32 v1, 7, v1'); a(f's_lshl_b32 s{sT0}, s{cw}, 11'); a(f'v_add_u32 v123, s{sT0}, v1')
            touch = [f'buffer_load_dword v{PR}, v123, {WS}, s{sOut} offen sc1']
            if g.c.touch > 1:
                sR = sC + 9
                a(f's_cmp_eq_u32 s{part}, 0'); a(f's_mov_b32 s{sC+10}, {OOB:#x}'); a(f's_cselect_b32 s{sC+10}, {XA if isWO else XB:#x}, s{sC+10}')
                so += [f's_lshl_b32 s{sR}, s{sN}, 16', f's_add_u32 s{sR}, s{sR}, s{sC+10}']; off.append(f's_mov_b32 s{sR}, {OOB:#x}')
                touch.append(f'buffer_load_dword v{PR}, v123, {WS}, s{sR} offen sc1')
        g.ws_loop(name, NK, 2, True, VB, R, g.lag_seq(g.lag(name)), src_base, src_stride, src, 5 if isWO else 7, T, PL,
                  D, so, off, local=local, touch=touch)
        return
    a(f's_lshl_b32 s{sT2}, s{col}, 2'); g.poll_addr(vP2, sT2, nparts, pg)
    g.stat_store_addr(vSt, col); g.wave0_off(vSt)
    LST = PL + 4096
    a(f'v_lshlrev_b32 v{vL4}, 2, v0'); a(f'v_add_u32 v{vL4}, {LST}, v{vL4}')
    a(f's_lshl_b32 s{sT0}, s{sW}, 8'); a(f'v_add_u32 v{vL4+1}, s{sT0}, v{vL4}')
    sL, sOne, sO0, sO1, sSt = sC + 7, sC + 10, sC + 11, sC + 12, sC + 13
    a(f's_mov_b32 s{sOne}, 0x3f803f80')
    SEL = 24
    a('v_bfe_u32 v1, v0, 2, 2'); g.v_g(2); a('v_cmp_eq_u32 vcc, v1, v2')
    a('v_and_b32 v1, 1, v0'); a('v_lshlrev_b32 v1, 4, v1'); a('v_mov_b32 v2, 0x3f80'); a('v_lshlrev_b32 v1, v1, v2')
    a('v_cndmask_b32 v1, 0, v1, vcc'); a('v_and_b32 v2, 2, v0'); a('v_cmp_eq_u32 vcc, 0, v2')
    a(f'v_cndmask_b32 v{SEL}, 0, v1, vcc'); a(f'v_sub_u32 v{SEL+1}, v1, v{SEL}')
    for i in (2, 3, 4, 5): a(f'v_mov_b32 v{SEL+i}, 0')
    a(f'v_mov_b32 v{SEL+6}, v{SEL}'); a(f'v_mov_b32 v{SEL+7}, v{SEL+1}')
    if not isWO:
        mo = T.get('mo')
        if mo: g.srd(16, P_WS, WS_BYTES); a(f's_and_b32 s{sC+9}, s{P_OUT+1}, 0xffff'); a(f's_mov_b32 s{sC+8}, s{P_OUT}')
        else: g.srd(16, P_OUT, 0x400000)
        g.v_j(1); a('v_lshlrev_b32 v1, 11, v1'); g.v_g(2); a('v_lshlrev_b32 v2, 4, v2')
        a(f's_lshl_b32 s{sT0}, s{cw}, 6'); a(f'v_add3_u32 v{vRow}, v1, v2, s{sT0}'); a(f'v_add_u32 v{vX}, 0x8000, v{vRow}')
    g.start_once()
    if pn: g.get_par(sPar, g.c.pnear)
    rbase = XA if isWO else XB
    def loads(srd, tag):
        o = [[f's_lshl_b32 s{sL}, s{sN}, 16', f's_add_u32 s{sL}, s{sL}, {rbase:#x}'] +
             [f'buffer_load_dwordx4 {v(PR+nparts*8+t*4,4)}, v{vP}, {srd}, s{sL} offen offset:{t*1024} sc1 ; {tag}' for t in range(2)]]
        for p in range(nparts):
            grp = paddr(sL, f'{pbase:#x}') if p == 0 else [f's_add_u32 s{sL}, s{sL}, {pstep:#x}']
            o.append(grp + [f'buffer_load_dwordx4 {v(PR+p*8+t*4,4)}, v{vPP}, {srd}, s{sL} offen offset:{t*1024} sc1 ; {tag}' for t in range(2)])
        return o
    o = OUT; SD = o + 8
    D = ['@vm late']
    valu = T.get('valu', 0)
    for p in range(valu):
        for i in range(8):
            x = PR + p * 8 + i
            D += [f'v_lshlrev_b32 v{OUT+12+(i&1)}, 16, v{x}', f'v_and_b32 v{x}, 0xffff0000, v{x}',
                  f'v_add_f32 v{RES+2*i}, v{RES+2*i}, v{OUT+12+(i&1)}', f'v_add_f32 v{RES+2*i+1}, v{RES+2*i+1}, v{x}']
    for p in range(valu, nparts + 1):
        for t in range(2):
            for n in range(2):
                d = v(RES + (t * 2 + n) * 4, 4)
                D.append(f'v_mfma_f32_16x16x32_bf16 {d}, {v(SEL+4*n,4)}, {v(PR+p*8+t*4,4)}, {d}')
    D += ['@brk', '@brk']
    for t in range(2):
        D += [f'v_cvt_pk_bf16_f32 v{o+i}, v{RES+2*i}, v{RES+2*i+1}' for i in range(4 * t, 4 * t + 4)]
        if isWO or not mo: D.append(f'buffer_store_dwordx4 {v(o+4*t,4)}, v{vP}, {WS}, s{sO0} offen offset:{t*1024} sc1 ; @e')
        else: D.append(f'buffer_store_dwordx4 {v(o+4*t,4)}, v{vX}, {W2}, s{(sO0, sO1)[t]} offen sc1 ; @e')
    if not isWO and not mo: D += [f'buffer_store_dwordx4 {v(o+4*t,4)}, v{(vRow, vX)[t]}, {W2}, s{sO1} offen' for t in range(2)]
    D += g.row_stats([[o + 4 * t + i for i in range(4)] for t in range(2)], SD, f's{sOne}')
    D.append(f'ds_write_b32 v{vL4+1}, v{SD} # a')
    mneed = len(D) - 1
    D += ['@M', f'ds_read2st64_b32 {v(SD,2)}, v{vL4} offset0:0 offset1:1 # b', f'ds_read2st64_b32 {v(SD+2,2)}, v{vL4} offset0:2 offset1:3 # b',
          '@brk', '@brk', '@brk', '@brk', '@lg b',
          f'v_add_f32 v{SD}, v{SD}, v{SD+1}', f'v_add_f32 v{SD+2}, v{SD+2}, v{SD+3}', f'v_add_f32 v{SD}, v{SD}, v{SD+2}',
          f'buffer_store_dword v{SD}, v{vSt}, {WS}, s{sSt} offen sc1 ; @e']
    if isWO:
        so = [f's_lshl_b32 s{sO0}, s{sN}, 16', f's_add_u32 s{sO0}, s{sO0}, {XB:#x}', f's_lshl_b32 s{sSt}, s{sN}, 11', f's_add_u32 s{sSt}, s{sSt}, {SB:#x}']
        off = [f's_mov_b32 s{sO0}, {OOB:#x}', f's_mov_b32 s{sSt}, {OOB:#x}']
    else:
        so = [f's_and_b32 s{sO1}, s{sN}, 63', f's_lshl_b32 s{sO1}, s{sO1}, 16', f's_add_u32 s{sO0}, s{sO1}, {XA + 64*65536:#x}',
              f's_lshl_b32 s{sSt}, s{sN}, 11', f's_add_u32 s{sSt}, s{sSt}, {SA + 64*2048:#x}', f's_cmp_lt_u32 s{sN}, 64',
              f's_cselect_b32 s{sSt}, s{sSt}, {OOB:#x}', f's_cselect_b32 s{sO0}, s{sO0}, {OOB:#x}', f's_cselect_b32 s{sO1}, {OOB:#x}, s{sO1}']
        if mo: so = [f's_and_b32 s{sO0}, s{sN}, 63', f's_lshl_b32 s{sO0}, s{sO0}, 16', f's_lshl_b32 s{sSt}, s{sN}, 11',
              f's_add_u32 s{sSt}, s{sSt}, {SA + 64*2048:#x}', f's_mov_b32 s{sO1}, 0x8000', f's_cmp_lt_u32 s{sN}, 64',
              f's_cselect_b32 s16, s4, s{sC+8}', f's_cselect_b32 s17, s5, s{sC+9}', 's_cselect_b32 s18, s6, 0x400000',
              f's_cselect_b32 s{sSt}, s{sSt}, {OOB:#x}', f's_cselect_b32 s{sO1}, 0x400, s{sO1}', f's_cselect_b32 s{sT1}, {XA + 64*65536:#x}, 0',
              's_cselect_b64 vcc, -1, 0', f's_add_u32 s{sO0}, s{sO0}, s{sT1}', f's_add_u32 s{sO1}, s{sO1}, s{sO0}',
              f'v_cndmask_b32 v{vX}, v{vRow}, v{vP}, vcc']
        off = [f's_mov_b32 s{sO0}, {OOB:#x}', f's_mov_b32 s{sO1}, {OOB:#x}', f's_mov_b32 s{sSt}, {OOB:#x}']
    g.ws_loop(name, NK, 2, True, VB, R, g.lag_seq(g.lag(name)), src_base, src_stride, src, 6 if isWO else 8, T, PL, D, so, off,
              pub_shift=0 if isWO else 1, late=dict(poff=vP2, loads=loads, code=20 if isWO else 21), pipe=True, mneed=mneed)

def softmax_l(S, T, P, sScale):
    o = [f'v_max3_f32 v{T+i}, v{S+3*i}, v{S+3*i+1}, v{S+3*i+2}' for i in range(4)]
    o += [f'v_max3_f32 v{T}, v{T}, v{T+1}, v{T+2}', f'v_max_f32 v{T}, v{T}, v{T+3}',
          f'v_mov_b32 v{T+1}, v{T}', '@brk', f'v_permlane16_swap_b32 v{T}, v{T+1}', f'v_max_f32 v{T}, v{T}, v{T+1}',
          f'v_mov_b32 v{T+1}, v{T}', '@brk', f'v_permlane32_swap_b32 v{T}, v{T+1}', f'v_max_f32 v{T}, v{T}, v{T+1}',
          f'v_mul_f32 v{T}, s{sScale}, v{T}']
    o += [f'v_fma_f32 v{S+i}, v{S+i}, s{sScale}, -v{T}' for i in range(12)]
    for i in range(12):
        o.append(f'v_exp_f32 v{S+i}, v{S+i}')
        if i >= 2 and i % 2 == 0: o.append(f'v_cvt_pk_bf16_f32 v{P+i//2-1}, v{S+i-2}, v{S+i-1}')
    o += ['@brk', f'v_cvt_pk_bf16_f32 v{P+5}, v{S+10}, v{S+11}']
    return o

def softmax(g, S, T, P, sScale):
    for t in softmax_l(S, T, P, sScale):
        if t != '@brk': g.a(t)

def softmax_sum(S, T):
    o = []
    for i in range(4): o += [f'v_add_f32 v{S+3*i}, v{S+3*i}, v{S+3*i+1}']
    for i in range(4): o += [f'v_add_f32 v{S+3*i}, v{S+3*i}, v{S+3*i+2}']
    o += [f'v_add_f32 v{S}, v{S}, v{S+3}', f'v_add_f32 v{S+6}, v{S+6}, v{S+9}', f'v_add_f32 v{T}, v{S}, v{S+6}',
          f'v_mov_b32 v{T+1}, v{T}', f'v_permlane16_swap_b32 v{T}, v{T+1}', f'v_add_f32 v{T}, v{T}, v{T+1}',
          f'v_mov_b32 v{T+1}, v{T}', f'v_permlane32_swap_b32 v{T}, v{T+1}', f'v_add_f32 v{T}, v{T}, v{T+1}',
          f'v_rcp_f32 v{T}, v{T}']
    return o

NEG = fbits(-1e30)

def role_at(g):
    a = g.a; c = g.c
    a('L_AT:')
    if 'DN' not in c.roles: g.near_side(0); g.near_side(1)
    aw, tq, hd = sC, sC + 1, sC + 2
    a(f's_lshl_b32 s{aw}, s{sIdx}, 2'); a(f's_add_u32 s{aw}, s{aw}, s{sW}'); a(f's_and_b32 s{tq}, s{sW}, 1'); a(f's_lshr_b32 s{hd}, s{aw}, 1')
    vMy, vMx = 4, 5
    g.my_flag(vMy, aw, 'O'); g.zero_flags(vMy)
    xs, cl = sC + 3, sC + 4
    a(f's_and_b32 s{xs}, s{aw}, 7'); a(f's_lshr_b32 s{cl}, s{aw}, 3')
    a(f's_lshl_b32 s{sT2}, s{xs}, 3'); a(f's_add_u32 s{sT2}, s{sT2}, s{cl}'); g.my_flag(vMx, sT2, 'XA')
    a(f'v_mov_b32 v1, s{cl}'); a(f'buffer_store_dword v1, v{vMx}, {WS}, 0 offen sc1')
    g.srd(12, P_X, 0x400000)
    vIn, vOut, vSt, D, T, X = 6, 7, 20, 24, 28, 32
    g.v_j(1); a('v_lshlrev_b32 v1, 11, v1'); g.v_g(2); a('v_lshlrev_b32 v2, 4, v2')
    a(f's_lshl_b32 s{sT0}, s{xs}, 8'); a(f'v_add3_u32 v{vIn}, v1, v2, s{sT0}')
    a(f's_mov_b32 s{sN}, s{cl}')
    reg = lambda b, ks, t: X + b * 32 + (ks * 2 + t) * 4
    def loads(b, ahead):
        for t in range(2):
            a(f's_lshl_b32 s{sT0}, s{sN}, 16'); a(f's_add_u32 s{sT0}, s{sT0}, {ahead*8*65536 + t*32768}')
            for ks in range(4):
                a(f'buffer_load_dwordx4 {v(reg(b,ks,t),4)}, v{vIn}, {W1}, s{sT0} offen offset:{ks*64}')
    def stores(b, k):
        for h in range(2):
            a(f's_lshl_b32 s{sT0}, s{sN}, 16'); a(f's_add_u32 s{sT0}, s{sT0}, {XA + k*8*65536 + h*4096:#x}')
            for i in range(4):
                a(f'buffer_store_dwordx4 {v(reg(b,2*h+i//2,i%2),4)}, v{vOut}, {WS}, s{sT0} offen offset:{i*1024} sc1')
        for t_ in g.row_stats([[reg(b, ks, t) + i for ks in range(4) for i in range(4)] for t in range(2)], D, f'v{T}'):
            if t_ != '@brk': a(t_)
        a(f's_lshl_b32 s{sT0}, s{sN}, 11'); a(f's_add_u32 s{sT0}, s{sT0}, {SA + k*8*2048:#x}')
        a(f'buffer_store_dword v{D}, v{vSt}, {WS}, s{sT0} offen sc1')
    def done(k):
        a(f's_add_u32 s{sT0}, s{sN}, {8*k+8}'); a(f's_min_u32 s{sT0}, s{sT0}, 64'); a(f'v_mov_b32 v{T+1}, s{sT0}')
        a(f'buffer_store_dword v{T+1}, v{vMx}, {WS}, 0 offen sc1')
    loads(0, 0)
    a(f's_lshl_b32 s{sT0}, s{xs}, 13'); a(f'v_lshlrev_b32 v1, 4, v0'); a(f'v_add_u32 v{vOut}, s{sT0}, v1')
    g.stat_store_addr(vSt, xs)
    a(f'v_mov_b32 v{T}, 0x3f803f80')
    g.arrive()
    stores(0, 0)
    for k in range(1, 5): loads(k, k)
    a('s_waitcnt vmcnt(32)'); done(0)
    a('s_waitcnt vmcnt(25)'); stores(1, 1); a('s_waitcnt vmcnt(26)'); stores(2, 2)
    loads(5, 5); loads(6, 6); loads(0, 7)
    a('s_waitcnt vmcnt(24)'); done(2)
    stores(3, 3); stores(4, 4)
    a('s_waitcnt vmcnt(19)'); stores(5, 5)
    a('s_waitcnt vmcnt(9)'); done(4)
    stores(6, 6); stores(0, 7)
    for t in g.start_look(8): a(t)
    a('s_waitcnt vmcnt(0)'); done(7)
    g.wait_start(8, 1, False)
    for t in g.stamp(5): a(t)
    if not {'QK', 'P'} <= c.roles: g.endpgm(); g.flush_tail(); return
    vL16, vT1, vKm, vVm, vTr, vPo, vPa, vPoll, vF = 6, 7, 8, 9, 10, 11, 12, 13, 14
    MK, Q, Q2, KXr, KMr, VXr, VMr, S, P, T, ONE, SUM, O, OUT = 16, 28, 44, 60, 92, 108, 140, 156, 168, 176, 180, 184, 188, 220
    sSc, sH13, sH12, sE, sE2, sLds, sFlN, sO = (sC + 5 + i for i in range(8))
    a('s_waitcnt vmcnt(0)')
    a(f'v_lshlrev_b32 v{vL16}, 4, v0')
    a(f's_cmp_eq_u32 s{tq}, 0'); a(f's_cselect_b32 s{sT0}, {OOB:#x}, 0'); a(f'v_add_u32 v{vT1}, s{sT0}, v{vL16}')
    g.v_g(1); a('v_lshlrev_b32 v1, 7, v1'); a('v_and_b32 v2, 7, v0'); a('v_lshlrev_b32 v2, 4, v2'); a(f'v_add_u32 v{vKm}, v1, v2')
    a('v_and_b32 v1, 31, v0'); a(f'v_lshlrev_b32 v{vVm}, 4, v1')
    a(f's_lshl_b32 s{sLds}, s{sW}, 13'); v_tr_addr(g, vTr); a(f'v_add_u32 v{vTr}, s{sLds}, v{vTr}')
    a(f's_lshl_b32 s{sT2}, s{hd}, 2'); g.poll_addr(vPo, sT2, 4, 'M')
    a('v_bfe_u32 v1, v0, 1, 2'); a('v_min_u32 v1, 2, v1'); a('v_lshlrev_b32 v1, 6, v1'); a('v_and_b32 v2, 1, v0'); a('v_add_u32 v1, v1, v2')
    a(f's_lshl_b32 s{sT0}, s{hd}, 1'); a(f'v_add_u32 v1, s{sT0}, v1'); a('v_mul_u32_u24 v1, 683, v1'); a('v_lshrrev_b32 v1, 11, v1')
    a(f'v_mul_u32_u24 v1, {g.c.FS}, v1'); a(f'v_add_u32 v1, {FOFF["P"]}, v1')
    a('v_cmp_gt_u32 vcc, 32, v0'); a(f'v_cndmask_b32 v{vPo}, v1, v{vPo}, vcc')
    a(f's_lshl_b32 s{sH13}, s{hd}, 13'); a(f's_lshl_b32 s{sH12}, s{hd}, 12'); a(f's_add_u32 s{sH12}, s{sH12}, {KVM:#x}')
    g.v_j(1); a(f's_lshl_b32 s{sT0}, s{tq}, 4'); a(f'v_add_u32 v1, s{sT0}, v1')
    g.v_g(2); a('v_lshlrev_b32 v2, 2, v2'); a(f'v_mov_b32 v{vF}, {NEG}')
    for kt in range(2):
        for r in range(4):
            a(f'v_add_u32 v3, {16*kt+r}, v2'); a('v_cmp_gt_u32 vcc, v3, v1'); a(f'v_cndmask_b32 v{MK+4*kt+r}, 0, v{vF}, vcc')
    a('v_cmp_lt_u32 vcc, 31, v0')
    for r in range(4): a(f'v_cndmask_b32 v{MK+8+r}, 0, v{vF}, vcc')
    for i in range(4): a(f'v_mov_b32 v{ONE+i}, 0x3f803f80')
    a(f's_mov_b32 s{sSc}, {fbits(SOFTC)}'); a(f's_lshl_b32 s{tq}, s{tq}, 10')
    def early(srd):
        o = []
        for i in range(8):
            pre = [f's_lshl_b32 s{sE}, s{sNx}, 18', f's_add_u32 s{sE}, s{sE}, s{sH13}', f's_add_u32 s{sE}, s{sE}, {KX:#x}', f's_add_u32 s{sE2}, s{sE}, 4096'] if i == 0 else []
            o.append(pre + [f'buffer_load_dwordx4 {v(KXr+4*i,4)}, v{vT1 if i & 1 else vL16}, {srd}, s{sE if i < 4 else sE2} offen offset:{(i&3)*1024} sc1'])
        for es in range(4):
            pre = {0: [f's_sub_u32 s{sE2}, s{sE}, {KX-QX:#x}', f's_add_u32 s{sE2}, s{sE2}, s{tq}'], 2: [f's_add_u32 s{sE2}, s{sE2}, 4096']}.get(es, [])
            o.append(pre + [f'buffer_load_dwordx4 {v(Q+4*es,4)}, v{vL16}, {srd}, s{sE2} offen offset:{(es&1)*2048} sc1'])
        for hf in range(2):
            for i in range(4):
                pre = [f's_add_u32 m0, s{sLds}, {hf*4096}', f's_add_u32 s{sE2}, s{sE}, {VX-KX+hf*4096:#x}'] if i == 0 else []
                o.append(pre + [f'buffer_load_dwordx4 v{vT1 if i & 1 else vL16}, {srd}, s{sE2} offen offset:{i*1024} sc1 lds'])
        return o
    sN2 = 24
    def poll_prep(n, nx):
        for t in g.fl_of(n, sFl) + g.fl_of(nx, sFlN): a(t)
        a('s_mov_b32 vcc_lo, -1'); a('s_mov_b32 vcc_hi, 0')
        a(f'v_mov_b32 v1, s{sFlN}'); a(f'v_mov_b32 v2, s{sFl}'); a('v_cndmask_b32 v1, v1, v2, vcc'); a(f'v_add_u32 v{vPa}, v1, v{vPo}')
        a(f'v_mov_b32 v1, s{nx}'); a(f'v_mov_b32 v2, s{n}'); a(f'v_cndmask_b32 v{vF}, v1, v2, vcc')
    poll = f'buffer_load_dword v{vPoll}, v{vPa}, {WS}, 0 offen sc1'
    pub = f'buffer_store_dword v15, v{vMy}, {WS}, s{sPFl} offen sc1'
    for t in g.seq_init(g.lag('AT')): a(t)
    a(f's_mov_b32 s{sN}, 0'); a(f's_mov_b32 s{sNx}, 0'); a(f's_mov_b32 s{sPFl}, {OOB:#x}'); a('v_mov_b32 v15, 0')
    for t in g.next_n(sN2, sNx, g.lag('AT')): a(t)
    g.mini_init(236); g.light_start()
    a('LAT_slow:')
    poll_prep(sNx, sNx)
    a('LAT_slow2:')
    a(poll); a('s_waitcnt vmcnt(0)'); a(f'v_cmp_lt_u32 vcc, v{vF}, v{vPoll}'); a('s_cmp_eq_u32 vcc_hi, -1')
    a(f's_cbranch_scc0 {g.timeout(9, "LAT_slow2")}')
    for grp in early(WS):
        for t in grp: a(t)
    poll_prep(sNx, sN2); a(poll)
    a('s_waitcnt vmcnt(0)')
    a('.p2align 6'); a('LAT_top:')
    a(f's_mov_b32 s{sN}, s{sNx}'); a(f's_mov_b32 s{sNx}, s{sN2}')
    for t in g.stamp(0): a(t)
    a(f's_lshl_b32 s{sT2}, s{sN}, 17'); a(f's_add_u32 s{sT2}, s{sT2}, s{sH12}')
    def kvm():
        for es in range(4): a(f'buffer_load_dwordx4 {v(KMr+4*es,4)}, v{vKm}, {WS}, s{sT2} offen offset:{es*512} sc1')
        for i in range(4): a(f'buffer_load_dwordx4 {v(VMr+4*i,4)}, v{vVm}, {WS}, s{sT2} offen offset:{2048+i*512} sc1')
    def xpart(younger):
        a(f's_waitcnt vmcnt({younger + 4 + (2 if c.stamps else 0) + (1 if c.mini else 0)})')
        for et in range(8):
            for t in range(2): a(f'ds_read_b64_tr_b16 {v(VXr+4*et+2*t,2)}, v{vTr} offset:{(et>>1)*2048 + t*1024 + (et&1)*512}')
            es, kt = et >> 1, et & 1
            a(f'v_mfma_f32_16x16x32_bf16 {v(S+4*kt,4)}, {v(KXr+4*et,4)}, {v(Q+4*es,4)}, {v(MK+4*kt,4) if es == 0 else v(S+4*kt,4)}')
        for i in range(16): a(f'v_mov_b32 v{Q2+i}, v{Q+i}')
    a(f'v_cmp_lt_u32 vcc, v{vF}, v{vPoll}'); a('s_cmp_eq_u64 vcc, -1'); a('s_cbranch_scc0 LAT_look')
    for t in g.stamp(1) + g.mini_take(): a(t)
    kvm(); xpart(8); a('s_waitcnt lgkmcnt(0)'); a('s_branch LAT_go')
    a('LAT_look:')
    a(poll); xpart(1)
    a('s_waitcnt vmcnt(0) lgkmcnt(0)')
    a(pub)
    a(f'v_cmp_lt_u32 vcc, v{vF}, v{vPoll}'); a('s_cmp_eq_u32 vcc_lo, -1'); a('s_cbranch_scc1 LAT_seen')
    a('LAT_spin:')
    a(poll); a('s_waitcnt vmcnt(0)'); a(f'v_cmp_lt_u32 vcc, v{vF}, v{vPoll}'); a('s_cmp_eq_u32 vcc_lo, -1')
    a(f's_cbranch_scc0 {g.timeout(10, "LAT_spin")}')
    a('LAT_seen:')
    for t in g.stamp(1) + g.mini_take(): a(t)
    kvm()
    a('LAT_go:')
    a('s_cmp_eq_u32 vcc_hi, -1'); a(f's_cselect_b32 s10, {WS_BYTES:#x}, 0')
    a(f's_mov_b32 s{sT3}, s{sFl}')
    for t in g.next_n(sN2, sNx, g.lag('AT')): a(t)
    poll_prep(sNx, sN2)
    a(f's_lshl_b32 s{sO}, s{sN}, 18'); a(f's_add_u32 s{sO}, s{sO}, s{sH13}'); a(f's_add_u32 s{sO}, s{sO}, s{tq}'); a(f's_add_u32 s{sO}, s{sO}, {OX:#x}')
    E = early(WSC); NE0 = c.ATE
    for grp in E[:NE0]:
        for t in grp: a(t)
    E = E[NE0:]
    a(f's_waitcnt vmcnt({4 + NE0})')
    a(pub); a(poll)
    a(f's_add_u32 s{sT0}, s{sN}, 1'); a(f'v_mov_b32 v15, s{sT0}'); a(f's_mov_b32 s{sPFl}, s{sT3}'); a(f's_add_u32 s{sT1}, s{sO}, 4096')
    for t in g.stamp(2): a(t)
    body = [f'v_mfma_f32_16x16x32_bf16 {v(S+8,4)}, {v(KMr+4*es,4)}, {v(Q2+4*es,4)}, {v(MK+8,4) if es == 0 else v(S+8,4)}' for es in range(4)]
    body += [t for t in softmax_l(S, T, P, sSc) if t != '@brk']
    body.append(f'v_mfma_f32_16x16x32_bf16 {v(SUM,4)}, {v(ONE,4)}, {v(P,4)}, 0')
    body += [f'v_mfma_f32_16x16x32_bf16 {v(O+4*i,4)}, {v(VXr+4*i,4)}, {v(P,4)}, 0' for i in range(8)]
    body.append('@vm')
    body.append(f'v_mfma_f32_16x16x16_bf16 {v(SUM,4)}, {v(ONE,2)}, {v(P+4,2)}, {v(SUM,4)}')
    body += [f'v_mfma_f32_16x16x16_bf16 {v(O+4*i,4)}, {v(VMr+2*i,2)}, {v(P+4,2)}, {v(O+4*i,4)}' for i in range(8)]
    tt = 0; nxt = 0; n_e = NE0; step = 640 / max(len(E), 1)
    for t in body:
        if t == '@vm': t = f's_waitcnt vmcnt({2 + n_e})'
        a(t); tt += 16 if t.startswith('v_mfma') else 8 if t.startswith(('v_exp', 'v_perm')) else 4
        if E and tt >= nxt:
            for u in E.pop(0): a(u)
            n_e += 1; nxt += step
    for grp in E:
        for u in grp: a(u)
    a(f'v_rcp_f32 v{T}, v{SUM}')
    for h in range(4):
        for i in range(8 * h, 8 * h + 8, 2): a(f'v_pk_mul_f32 {v(O+i,2)}, {v(O+i,2)}, {v(T,2)} op_sel_hi:[1,0]')
        for i in range(4 * h, 4 * h + 4): a(f'v_cvt_pk_bf16_f32 v{OUT+i}, v{O+2*i}, v{O+2*i+1}')
        a(f'buffer_store_dwordx4 {v(OUT+4*h,4)}, v{vL16}, {WS}, s{sO if h < 2 else sT1} offen offset:{(h&1)*2048} sc1')
    for t in g.stamp(3): a(t)
    if c.mini: a('s_waitcnt lgkmcnt(0)')
    for t in g.mini_put(236): a(t)
    g.stamp_store(O, 4)
    a(f's_waitcnt vmcnt({20 - NE0 + 4 + (2 if c.stamps else 0) + (1 if c.mini else 0)})')
    a('s_cmp_lg_u32 s10, 0'); a('s_cbranch_scc1 LAT_top')
    a('s_waitcnt vmcnt(0)'); a(pub)
    a(f's_cmp_lt_u32 s{sNx}, {c.NEND}'); a('s_cbranch_scc1 LAT_slow')
    g.endpgm(); g.flush_tail()

def v_tr_addr(g, d):
    a = g.a
    a('v_bfe_u32 v1, v0, 1, 1'); a('v_lshlrev_b32 v1, 8, v1'); a('v_lshrrev_b32 v2, 2, v0'); a('v_lshlrev_b32 v2, 4, v2'); a('v_add_u32 v1, v1, v2')
    a('v_and_b32 v2, 1, v0'); a('v_lshlrev_b32 v2, 3, v2'); a(f'v_add_u32 v{d}, v1, v2')

def emit(g):
    r = g.c.roles
    if 'GU' in r: role_gu(g)
    if 'WO' in r: role_proj(g, 'WO', False); role_proj(g, 'WO', True)
    if 'DN' in r: role_proj(g, 'DN', False); role_proj(g, 'DN', True)
    if 'AT' in r: role_at(g)
    import roles3
    roles3.emit(g)
```

```python
import sys, struct
from asmlib import Asm
from layout import *

KNAME = 'interleave_layers__memory_aug_recurrent_mem_tr__glu_gated_geglu__prompt_kernel'

class Cfg:
    L = 11
    LM = 52
    LK = 20
    NEND = 128
    roles = {'AT', 'P', 'QK', 'VM', 'WM', 'WO', 'GU', 'DN'}
    stamps = False
    light = False
    fine = ()
    TIMEOUT = 1 << 20
    force_safe = False
    place = 22
    x = ()
    perm = (0, 2, 1, 3, 4, 5, 6, 7)
    WPK = False
    PPW = 0
    PPQ = 0
    WCP = False
    KLB = False
    knear = 1
    QP = 50
    med = True
    pull = 0
    fnear = 1
    touch = 0
    HK = 4
    H0 = 8
    pnear = None
    FS = 256
    snake = True
    CALT = 8000
    local = False
    QT = 2
    DNNP = 40
    WONP = 36
    warm = True
    DLAG = (1, 2, 3, 4, 5, 6)
    DL = dict(GU=32, WO=8, DN=48)
    mini = False
    ring = 0
    ATE = 8
    probe = None
    PF = 3
    XS = 2
    NP = 4
    CK = 17
    B2 = 28
    WMP = 2
    TWP = 1
    TWD = 15
    T_KV = dict(ahead=True, block=True, KP=1, KT=9, KA=10, KM=23, KS=20, KD=(0.5, 20), KP2=19.5, dv=72, nv=lambda k: 2 if k == 4 else 1)
    T_GU = dict(ahead=True, pipe=True, block=True, KP=1, KT=6, KA=13, KM=10, KS=20, KD=(0.5, 16), KP2=16.5, dv=60, quota=lambda ks: 3 if ks < 15 else 2)
    T_WOP = dict(ahead=True, block=True, KP=1, KA=1, KM=14, KD=(1.5, 21), KP2=22, dv=60)
    T_WOF = dict(ahead=True, LW=True, KX=4, KP=0, K0=9, KA=12, KM=11.5, KL=13, KD=(0.5, 9), KP2=9.5, dv=52, quota=lambda ks: 4)
    T_DNP = dict(ahead=True, block=True, KP=1, KA=1, KM=14, KD=(1.5, 23), KP2=26, dv=60)
    T_DNF = dict(ahead=True, LW=True, KX=2, KP=5, mo=True, K0=13, KA=18, KM=17.5, KL=20, KD=(0.2, 13), KP2=13.5, dv=52)
    QM = 8
    QS = 9
    delay = {'DN', 'GU'}

def fbits(x):
    return '0x%08x' % struct.unpack('<I', struct.pack('<f', x))[0]

def v(i, n=1): return f'v{i}' if n == 1 else f'v[{i}:{i+n-1}]'
def s(i, n=1): return f's{i}' if n == 1 else f's[{i}:{i+n-1}]'
def wreg(i, n, vbase):
    if i < 256: return f'a{i}' if n == 1 else f'a[{i}:{i+n-1}]'
    return v(vbase + i - 256, n)

WS = 's[4:7]'; WSC = 's[8:11]'; W1 = 's[12:15]'; W2 = 's[16:19]'; DBG = 's[20:23]'
P_X, P_MEM0, P_WQ, P_WK, P_WV, P_WO, P_WG, P_WU, P_WD, P_OUT, P_DBG, P_WS = 24, 26, 28, 30, 32, 34, 36, 38, 40, 42, 44, 46
sW, sIdx, sG = 48, 49, 50
sN, sNx, sBuf, sSrc, sM0, sNeed, sFl, sPFl = 52, 53, 54, 55, 56, 57, 58, 59
sT0, sT1, sT2, sT3 = 60, 61, 62, 63
sRdy, sWoff = 64, 65
sC = 66
sST = 80
sTO, sCode, sOth, sCnt, sRound, sXcc = 96, 97, 98, 99, 100, 101
sHelp = 3

SOFTC = 128 ** -0.5 * 1.4426950408889634

def p_order(n0, m1, h0=0, hk=0):
    l0 = [u for u in range(64) if not h0 <= u < h0 + hk]
    n0 = min(n0, len(l0)); rest = len(l0) - n0; m1 = max(m1, rest)
    o = l0[:n0]; k = 0
    for u in range(64):
        o.append(64 + u)
        while k < rest and (k + 1) * m1 <= (u + 1) * rest: o.append(l0[n0 + k]); k += 1
    assert sorted(o) == l0 + list(range(64, 128))
    return o

class Gen:
    def __init__(g, cfg):
        g.c = cfg; g.a = Asm(); g.left = {}; g.started = False; g.tail = []

    def srd(g, base, ptr, size):
        a = g.a
        a(f's_mov_b32 s{base}, s{ptr}'); a(f's_and_b32 s{base+1}, s{ptr+1}, 0xffff')
        a(f's_mov_b32 s{base+2}, {size:#x}'); a(f's_mov_b32 s{base+3}, 0x20000')

    def seq_init(g, L):
        return [f's_mov_b32 s{sOth}, 64', f's_mov_b32 s{sCnt}, {(-L-1) & 0xffffffff:#x}']

    def next_n(g, dst, src, L):
        return [f's_add_u32 s{sT0}, s{src}, 1', f's_add_u32 s{sCnt}, s{sCnt}, 1',
                f's_cmp_lt_u32 s{sCnt}, {max(127-2*L, 0)}',
                f's_cselect_b32 s{dst}, s{sOth}, s{sT0}', f's_cselect_b32 s{sOth}, s{sT0}, s{sOth}']

    def fl_of(g, n, fl):
        assert FL_L == 64 << 12
        if g.c.NEND == 64: return [f's_mov_b32 s{fl}, 0']
        return [f's_and_b32 s{fl}, s{n}, 64', f's_lshl_b32 s{fl}, s{fl}, 12']

    def timeout(g, code, back, back_off=False):
        lab = g.a.lab('rt')
        g.tail.append([f'{lab}:'] + (['s_sleep 8'] if back_off else []) + [f's_add_u32 s{sTO}, s{sTO}, 1', f's_cmp_lt_u32 s{sTO}, {g.c.TIMEOUT}',
                       f's_cbranch_scc1 {back}', f's_mov_b32 s{sCode}, {code}', 's_branch L_fail'])
        return lab

    def flush_tail(g):
        for b in g.tail:
            for t in b: g.a(t)
        g.tail = []

    def spin_flags(g, vPoll, vOff, need, fl, code):
        a = g.a; l = a.lab('spin')
        a(f'{l}:')
        a(f'buffer_load_dword v{vPoll}, v{vOff}, {WS}, s{fl} offen sc1')
        a('s_waitcnt vmcnt(0)')
        a(f'v_cmp_lt_u32 vcc, s{need}, v{vPoll}')
        a('s_cmp_eq_u64 vcc, -1')
        a(f's_cbranch_scc0 {g.timeout(code, l)}')

    def lane0_off(g, dst, soff, nl=1, stride=0):
        a = g.a
        if stride: a(f'v_mul_u32_u24 v{dst}, {stride}, v0'); a(f'v_add_u32 v{dst}, s{soff}, v{dst}')
        else: a(f'v_mov_b32 v{dst}, s{soff}')
        a(f'v_mov_b32 v1, {OOB:#x}')
        a(f'v_cmp_gt_u32 vcc, {nl}, v0')
        a(f'v_cndmask_b32 v{dst}, v1, v{dst}, vcc')

    def zero_flags(g, vMy, layers=(0, 1)):
        a = g.a
        a('v_mov_b32 v1, 0')
        for l in layers:
            for h in range(2):
                a(f's_mov_b32 s{sT0}, {l*FL_L + h*0x2000:#x}')
                a(f'buffer_store_dword v1, v{vMy}, {WS}, s{sT0} offen sc1')

    def expand(g, d):
        g.a(f'v_and_b32 v1, 0xffffe000, v{d}'); g.a(f'v_add_u32 v{d}, v1, v{d}')

    def to_side(g, regs):
        regs = [(d, FSIDE[grp]) for d, grp in regs if grp in FSIDE]
        if not g.c.fnear or not regs: return
        g.get_par(sT2, 0 if g.c.fnear == 1 else 1); g.a(f's_xor_b32 s{sT3}, s{sT2}, 0x2000')
        for d, side in regs: g.a(f'v_add_u32 v{d}, s{sT3 if side else sT2}, v{d}')

    def arrive(g, chain=False):
        a = g.a; l = a.lab('arr')
        a('s_waitcnt vmcnt(0)'); a('s_barrier')
        a(f's_cmp_lg_u32 s{sW}, 0'); a(f's_cbranch_scc1 {l}')
        a(f's_mov_b32 s{sT0}, 0')
        g.lane0_off(2, sT0)
        a(f's_sub_u32 s{sT1}, s{sXcc}, s2'); a(f's_and_b32 s{sT1}, s{sT1}, 7')
        a(f's_lshl_b32 s{sT1}, s{sT1}, 2'); a(f's_add_u32 s{sT1}, s{sT1}, 128')
        a(f's_cmp_eq_u32 s{sRound}, 0'); a(f's_cselect_b32 s{sT1}, s{sT1}, 0')
        a('v_mov_b32 v3, 1')
        a(f'buffer_atomic_add v3, v2, {DBG}, s{sT1} offen sc1')
        a(f'{l}:')

    def start_look(g, vt):
        return [f'v_mov_b32 v{vt+8}, 0', f'buffer_load_dwordx4 {v(vt,4)}, v{vt+8}, {DBG}, 0 offen offset:128 sc1',
                f'buffer_load_dwordx4 {v(vt+4,4)}, v{vt+8}, {DBG}, 0 offen offset:144 sc1',
                f'buffer_load_dword v{vt+10}, v{vt+8}, {DBG}, 0 offen offset:160 sc1']

    def wait_start(g, vt, code, solo=True):
        a = g.a; l, l1, l2, lw, lw1 = a.lab('ws'), a.lab('ws1'), a.lab('ws2'), a.lab('wsw'), a.lab('wsw1')
        a(f'v_mov_b32 v{vt+8}, 0')
        a(f's_cmp_lg_u32 s{sRound}, 0'); a(f's_cbranch_scc1 {l1}')
        if solo: a(f's_cmp_eq_u32 s{sW}, 0'); a(f's_cbranch_scc1 {l}'); a('s_barrier')
        else: a(f's_branch {lw1}')
        a(f'{l}:')
        for t in g.start_look(vt): a(t)
        a(f'{lw1}:')
        a('s_waitcnt vmcnt(0)')
        a(f'v_readfirstlane_b32 s{sCode}, v{vt+10}')
        a(f'v_add3_u32 v{vt+9}, v{vt}, v{vt+1}, v{vt+2}'); a(f'v_add3_u32 v{vt+9}, v{vt+9}, v{vt+3}, v{vt+4}')
        a(f'v_add3_u32 v{vt+9}, v{vt+9}, v{vt+5}, v{vt+6}'); a(f'v_add_u32 v{vt+9}, v{vt+9}, v{vt+7}')
        a(f'v_cmp_le_u32 vcc, 0x100, v{vt+9}')
        a('s_cmp_eq_u64 vcc, -1')
        a(f's_cbranch_scc0 {g.timeout(code, l, True)}')
        if solo: a(f's_cmp_lg_u32 s{sW}, 0'); a(f's_cbranch_scc1 {lw}'); a('s_barrier'); a(f'{lw}:')
        a(f'v_or3_b32 v{vt+9}, v{vt}, v{vt+1}, v{vt+2}'); a(f'v_or3_b32 v{vt+9}, v{vt+9}, v{vt+3}, v{vt+4}')
        a(f'v_or3_b32 v{vt+9}, v{vt+9}, v{vt+5}, v{vt+6}'); a(f'v_or_b32 v{vt+9}, v{vt+9}, v{vt+7}')
        a(f'v_cmp_eq_u32 vcc, {0x7fffffff if g.c.force_safe else 0x100}, v{vt+9}')
        a('s_cmp_eq_u64 vcc, -1')
        a(f's_cbranch_scc1 {l2}'); a('s_branch L_restart')
        a(f'{l1}:')
        a(f'buffer_load_dword v{vt}, v{vt+8}, {DBG}, 0 offen sc1')
        a('s_waitcnt vmcnt(0)')
        a(f'v_cmp_le_u32 vcc, 0x100, v{vt}')
        a('s_cmp_eq_u64 vcc, -1')
        a(f's_cbranch_scc0 {g.timeout(code, l1, True)}')
        a(f'{l2}:')

    def loaded(g):
        a = g.a; l = a.lab('ldd')
        a(f's_cmp_lg_u32 s{sW}, 0'); a(f's_cbranch_scc1 {l}')
        a(f's_mov_b32 s{sT0}, 12')
        g.lane0_off(2, sT0)
        a('v_mov_b32 v3, 1')
        a(f'buffer_atomic_add v3, v2, {DBG}, 0 offen sc1')
        a(f'{l}:')

    def wait_loaded(g, role, count):
        count = g.c.DL[role]
        if role not in g.c.delay or not {'QK', 'VM', 'WM'} <= g.c.roles: return
        a = g.a; l, l2 = a.lab('wl'), a.lab('wl2')
        if role == 'GU' and g.c.pull: g.pull()
        g.wait_start(8, 1); g.started = True
        a(f's_cmp_lg_u32 s{sW}, 0'); a(f's_cbranch_scc1 {l2}')
        a('v_mov_b32 v1, 12')
        a(f'{l}:')
        a(f'buffer_load_dword v2, v1, {DBG}, 0 offen sc1')
        a('s_waitcnt vmcnt(0)')
        a(f'v_cmp_le_u32 vcc, {count}, v2')
        a('s_cmp_eq_u64 vcc, -1')
        a(f's_cbranch_scc0 {g.timeout(19, l, True)}')
        a(f'{l2}:'); a('s_barrier')

    def get_par(g, dst, side):
        a = g.a; ln, ln2, ln3 = a.lab('near'), a.lab('near2'), a.lab('near3')
        a(f's_mov_b32 s{dst}, 0')
        a(f's_cmp_lg_u32 s{sRound}, 0'); a(f's_cbranch_scc1 {ln2}')
        a(f's_cmp_lg_u32 s{sCode}, 0'); a(f's_cbranch_scc1 {ln3}')
        a('v_mov_b32 v1, 160'); a(f'{ln}:')
        a(f'buffer_load_dword v1, v1, {DBG}, 0 offen sc1'); a('s_waitcnt vmcnt(0)')
        a(f'v_readfirstlane_b32 s{sCode}, v1'); a('v_mov_b32 v1, 160'); a(f's_cmp_eq_u32 s{sCode}, 0'); a(f's_cbranch_scc1 {g.timeout(24, ln, True)}')
        a(f'{ln3}:')
        a(f's_and_b32 s{dst}, s{sCode}, 2'); a(f's_lshl_b32 s{dst}, s{dst}, 12')
        a(f'{ln2}:')
        if side: a(f's_xor_b32 s{dst}, s{dst}, 0x2000')

    def half(g, r, par, t):
        return [f's_lshr_b32 s{t}, s{r}, 8', f's_xor_b32 s{t}, s{t}, s{par}', f's_and_b32 s{t}, s{t}, 0x2000', f's_add_u32 s{r}, s{r}, s{t}']

    def load_args(g):
        a = g.a
        a('s_load_dwordx8 s[24:31], s[0:1], 0'); a('s_load_dwordx4 s[32:35], s[0:1], 32')
        a('s_load_dwordx8 s[36:43], s[0:1], 64'); a('s_load_dwordx4 s[44:47], s[0:1], 96')
        a('v_mbcnt_lo_u32_b32 v0, -1, 0'); a('v_mbcnt_hi_u32_b32 v0, -1, v0')

    def help_first(g, role):
        if not g.c.HK: g.arrive(); return False
        a = g.a
        a(f's_mov_b32 s{sG}, s{sIdx}')
        for i0, n, p0 in helper_table(g.c.place)[role]:
            a(f's_add_i32 s{sT1}, s{sG}, {p0 - i0}'); a(f's_cmp_ge_u32 s{sG}, {i0}'); a(f's_cselect_b32 s{sIdx}, s{sT1}, s{sIdx}')
        g.my_flag(117, sIdx, 'PH', wave0=True); g.zero_flags(117, (0,)); g.arrive()
        a(f's_mov_b32 s{sHelp}, {1 if role == "GU" else 2}'); a('s_branch L_P2')
        a(f'L_{role}2:')
        g.started = True
        return True

    def pull(g):
        a = g.a; n = g.c.pull
        a(f's_lshl_b32 s{sT2}, s{sIdx}, 13'); a('v_lshlrev_b32 v1, 7, v0')
        a(f's_cmp_eq_u32 s{sW}, 0'); a(f's_cselect_b32 s12, s{P_WQ}, s{P_WK}'); a(f's_cselect_b32 s13, s{P_WQ+1}, s{P_WK+1}')
        a(f's_cmp_eq_u32 s{sW}, 2'); a(f's_cselect_b32 s12, s{P_WV}, s12'); a(f's_cselect_b32 s13, s{P_WV+1}, s13')
        a(f's_cmp_eq_u32 s{sW}, 3'); a(f's_cselect_b32 s12, s{P_WO}, s12'); a(f's_cselect_b32 s13, s{P_WO+1}, s13')
        a('s_and_b32 s13, s13, 0xffff'); a('s_mov_b32 s14, 0x800000'); a('s_mov_b32 s15, 0x20000')
        for i in range(n):
            a(f's_add_u32 s{sT0}, s{sT2}, {0x800000 - (i+1)*56*8192:#x}')
            a(f'buffer_load_dword v2, v1, {W1}, s{sT0} offen')
        a('s_waitcnt vmcnt(0)')

    def kvm_head(g, dst, sHead):
        a = g.a
        a(f's_lshr_b32 s{sT0}, s{sHead}, 1'); a(f's_lshl_b32 s{sT0}, s{sT0}, 14'); a(f's_and_b32 s{dst}, s{sHead}, 1'); a(f's_lshl_b32 s{dst}, s{dst}, 12')
        a(f's_add_u32 s{dst}, s{dst}, s{sT0}'); a(f's_add_u32 s{dst}, s{dst}, {KVM:#x}')

    def kvm_side(g, dst):
        if g.c.knear: g.get_par(sT2, g.c.knear - 1); g.a(f's_add_u32 s{dst}, s{dst}, s{sT2}')

    def kvm_addr(g, dst, base):
        assert KVM % 0x400000 == 0
        return [f's_and_b32 s{dst}, s{sN}, 8', f's_lshl_b32 s{dst}, s{dst}, 10', f's_xor_b32 s{dst}, s{dst}, s{base}',
                f's_lshl_b32 s{sT1}, s{sN}, 18', f's_add_u32 s{dst}, s{dst}, s{sT1}']

    def start_once(g):
        if not g.started: g.wait_start(48, 1, False)
        g.started = False
        g.a('s_barrier')

    def load_weights(g, chunks, nslots, slot_bytes, sStage):
        a = g.a; n = len(chunks)
        def issue(c):
            ch = chunks[c]
            for t in ch.get('pre', []): a(t)
            for i, (srd, va, sb, imm) in enumerate(ch['dma']):
                a(f's_add_u32 m0, s{sStage}, {(c % nslots)*slot_bytes + i*1024}')
                a(f's_add_u32 s{sT3}, s{sb}, {imm:#x}')
                a(f'buffer_load_dwordx4 v{va}, {srd}, s{sT3} offen lds')
        for c in range(min(nslots, n)): issue(c)
        for c in range(n):
            after = sum(len(chunks[k]['dma']) for k in range(c + 1, min(n, c + nslots)))
            assert after <= 63
            a(f's_waitcnt vmcnt({after})')
            for dest, vtr, imm in chunks[c]['reads']:
                a(f'ds_read_b64_tr_b16 {dest}, v{vtr} offset:{(c % nslots)*slot_bytes + imm}')
            a('s_waitcnt lgkmcnt(0)')
            for t in chunks[c].get('post', []): a(t)
            if c + nslots < n: issue(c + nslots)
            if c + nslots == n - 1:
                for t in g.start_look(48): a(t)
        for t in g.stamp(5): a(t)
        a('s_waitcnt lgkmcnt(0)')

    def endpgm(g):
        a = g.a
        if g.c.light:
            a(f's_memrealtime {s(sST,2)}'); a(f's_mov_b32 s{sN}, 0')
            g.stamp_store(8, 3, True)
        a('s_waitcnt vmcnt(0)'); a('s_endpgm')

    def mini_init(g, vA):
        if not g.c.mini: return
        a = g.a
        a(f's_lshl_b32 s{sT0}, s2, 12'); a(f's_add_u32 s{sT0}, s{sT0}, {STAMP:#x}')
        a(f's_cmp_eq_u32 s{sW}, 2'); a(f's_cselect_b32 s{sST+6}, s{sT0}, {OOB:#x}'); a(f'v_mov_b32 v{vA}, 0')
        a(f'v_mov_b32 v{vA+1}, s{sST+14}'); a(f'buffer_store_dword v{vA+1}, v{vA}, {WS}, s{sST+6} offen offset:28'); a('s_waitcnt vmcnt(0)')
    def mini_take(g): return [f's_memrealtime {s(sST,2)}'] if g.c.mini else []
    def mini_put(g, vA):
        if not g.c.mini: return []
        return [f's_lshl_b32 s{sST+7}, s{sN}, 5', f's_add_u32 s{sST+7}, s{sST+7}, s{sST+6}', f'v_mov_b32 v{vA+1}, s{sST}',
                f'buffer_store_dword v{vA+1}, v{vA}, {WS}, s{sST+7} offen']

    def mstamp(g, slot):
        if not (g.c.mini and 'ms' in g.c.x): return []
        return [f's_memrealtime {s(sST+8,2)}', f's_lshl_b32 s{sST+7}, s{sN}, 5', f's_add_u32 s{sST+7}, s{sST+7}, s{sST+6}', 's_waitcnt lgkmcnt(0)',
                f'v_mov_b32 v3, s{sST+8}', f'buffer_store_dword v3, v2, {WS}, s{sST+7} offen offset:{4*slot}']

    def light_start(g):
        if g.c.light: g.a(f's_memtime {s(sST+2,2)}'); g.a(f's_memrealtime {s(sST+4,2)}'); g.a('s_waitcnt lgkmcnt(0)')

    def stamp(g, i, real=True):
        if g.c.mini and i == 7: return [f's_memrealtime {s(sST+14,2)}']
        if g.c.light and i in (5, 7): return [f's_memrealtime {s(sST+2*i,2)}']
        if not g.c.stamps: return []
        if g.c.fine: return [f's_memtime {s(sST+2*i,2)}'] if i in g.c.fine else []
        return [f's_memrealtime {s(sST+2*i,2)}' if real else f's_memtime {s(sST+2*i,2)}']

    def stamp_store(g, vt, nst, force=False):
        if not g.c.stamps and not force: return
        a = g.a
        a('s_waitcnt lgkmcnt(0)')
        if g.c.fine:
            a(f's_memtime {s(sST+14,2)}'); a(f's_memrealtime {s(sST,2)}'); a('s_waitcnt lgkmcnt(0)')
            for i in range(8): a(f'v_mov_b32 v{vt+i}, s{sST+2*i}')
            a(f's_lshl_b32 s{sT0}, s2, 2'); a(f's_add_u32 s{sT0}, s{sT0}, s{sW}'); a(f's_lshl_b32 s{sT0}, s{sT0}, 12')
            a(f's_lshl_b32 s{sT1}, s{sN}, 5'); a(f's_add_u32 s{sT0}, s{sT0}, s{sT1}'); a(f's_add_u32 s{sT0}, s{sT0}, {0xFC00000:#x}')
        else:
            a(f's_memtime {s(sST+12,2)}'); a('s_waitcnt lgkmcnt(0)')
            for i in range(8): a(f'v_mov_b32 v{vt+i}, s{sST+2*(i if i >= 5 else min(i,nst-1))}')
            a(f's_lshl_b32 s{sT0}, s2, 12'); a(f's_lshl_b32 s{sT1}, s{sN}, 5'); a(f's_add_u32 s{sT0}, s{sT0}, s{sT1}')
            a(f's_add_u32 s{sT0}, s{sT0}, {STAMP + (0x100000 if force else 0):#x}')
            a(f's_cmp_eq_u32 s{sW}, 0'); a(f's_cselect_b32 s{sT0}, s{sT0}, {OOB:#x}')
        a(f'v_mov_b32 v{vt+8}, 0')
        a(f'buffer_store_dwordx4 {v(vt,4)}, v{vt+8}, {WS}, s{sT0} offen')
        a(f'buffer_store_dwordx4 {v(vt+4,4)}, v{vt+8}, {WS}, s{sT0} offen offset:16')
        a('s_nop 1')

    def v_j(g, d): g.a(f'v_and_b32 v{d}, 15, v0')
    def v_g(g, d): g.a(f'v_lshrrev_b32 v{d}, 4, v0')

    def tr_addr(g, d, rowpitch, gmul, colmul, sStage, chain=None):
        a = g.a
        a('v_lshrrev_b32 v1, 4, v0'); a('v_bfe_u32 v2, v0, 2, 2'); a('v_and_b32 v3, 3, v0')
        if chain is None:
            a(f'v_mul_u32_u24 v1, {gmul}, v1'); a('v_add_u32 v1, v1, v2')
        else:
            m_g1, m_g0, m_r1 = chain
            a('v_lshrrev_b32 v4, 1, v1'); a(f'v_mul_u32_u24 v4, {m_g1}, v4')
            a('v_and_b32 v1, 1, v1'); a(f'v_mul_u32_u24 v1, {m_g0}, v1'); a('v_add_u32 v1, v1, v4')
            a('v_lshrrev_b32 v4, 1, v2'); a(f'v_mul_u32_u24 v4, {m_r1}, v4'); a('v_add_u32 v1, v1, v4')
            a('v_and_b32 v2, 1, v2'); a('v_add_u32 v1, v1, v2')
        a(f'v_mul_u32_u24 v1, {rowpitch}, v1'); a(f'v_mul_u32_u24 v3, {colmul}, v3')
        a(f'v_add3_u32 v{d}, v1, v3, s{sStage}')

    def dma_addr64(g, d, pitch):
        a = g.a
        a('v_lshrrev_b32 v1, 2, v0'); a(f'v_mul_u32_u24 v1, {pitch}, v1')
        a('v_and_b32 v2, 3, v0'); a('v_lshlrev_b32 v2, 4, v2'); a(f'v_add_u32 v{d}, v1, v2')

    def colsum(g, ks, NT, vbase, vCS, vOnes):
        a = g.a
        if ks == 0:
            for i in range(4): a(f'v_mov_b32 v{vOnes+i}, 0x3f803f80')
        for n in range(NT):
            w = wreg((ks*NT+n)*4, 4, vbase); d = v(vCS+4*n, 4); c = '0' if ks == 0 else d
            a(f'v_mfma_f32_16x16x32_bf16 {d}, {w}, {v(vOnes,4)}, {c}')

    def stat_addr(g, d, vori):
        a = g.a
        if not vori:
            a('v_and_b32 v1, 31, v0'); a('v_lshrrev_b32 v2, 5, v0')
        else:
            a('v_bfe_u32 v1, v0, 2, 1'); a('v_lshlrev_b32 v1, 4, v1')
            a('v_lshrrev_b32 v2, 4, v0'); a('v_lshlrev_b32 v2, 2, v2'); a('v_add_u32 v1, v1, v2')
            a('v_and_b32 v2, 3, v0'); a('v_add_u32 v1, v1, v2'); a('v_bfe_u32 v2, v0, 3, 1')
        a('v_lshlrev_b32 v1, 4, v1'); a('v_lshlrev_b32 v2, 10, v2'); a(f'v_add_u32 v{d}, v1, v2')

    def stat_loads(g, S, vAddr, base):
        return [[f's_lshl_b32 s{sT2}, s{sN}, 11', f's_add_u32 s{sT2}, s{sT2}, {base:#x}'] +
                [f'buffer_load_dwordx4 {v(S+4*i,4)}, v{vAddr}, {WS}, s{sT2} offen offset:{512*i} sc1 ; @s' for i in range(2)]]

    def stat_math(g, S, R, vori):
        o = [f'v_add_f32 v{S}, v{S}, v{S+2}', f'v_add_f32 v{S+1}, v{S+1}, v{S+3}',
             f'v_add_f32 v{S+4}, v{S+4}, v{S+6}', f'v_add_f32 v{S+5}, v{S+5}, v{S+7}',
             f'v_add_f32 v{S}, v{S}, v{S+4}', f'v_add_f32 v{S+1}, v{S+1}, v{S+5}']
        if not vori:
            o += [f'v_permlane32_swap_b32 v{S}, v{S+1}', f'v_add_f32 v{S}, v{S}, v{S+1}', f'v_mov_b32 v{S+1}, v{S}',
                  f'v_permlane32_swap_b32 v{S}, v{S+1}']
        else:
            o += [f'v_add_f32_dpp v{S+2}, v{S}, v{S} row_ror:8 row_mask:0xf bank_mask:0xf',
                  f'v_add_f32_dpp v{S+3}, v{S+1}, v{S+1} row_ror:8 row_mask:0xf bank_mask:0xf',
                  f'v_mov_b32 v{S}, v{S+2}', f'v_mov_b32 v{S+1}, v{S+3}']
        k = fbits(1.0/1024)
        o += [f'v_mul_f32 v{S}, {k}, v{S}', f'v_mul_f32 v{S+1}, {k}, v{S+1}',
              f'v_fma_f32 v{S+1}, -v{S}, v{S}, v{S+1}', f'v_max_f32 v{S+1}, 0, v{S+1}',
              f'v_cvt_pk_bf16_f32 v{S+2}, v{S}, v{S+1}',
              f'v_lshlrev_b32 v{S}, 16, v{S+2}', f'v_and_b32 v{S+1}, 0xffff0000, v{S+2}',
              f'v_add_f32 v{S+1}, {fbits(1e-5)}, v{S+1}',
              f'v_cvt_pk_bf16_f32 v{S+1}, v{S+1}, v{S+1}', f'v_lshlrev_b32 v{S+1}, 16, v{S+1}',
              f'v_sqrt_f32 v{S+1}, v{S+1}',
              f'v_cvt_pk_bf16_f32 v{S+1}, v{S+1}, v{S+1}', f'v_lshlrev_b32 v{S+1}, 16, v{S+1}',
              f'v_rcp_f32 v{R}, v{S+1}',
              f'v_sub_f32 v{R+2}, 0, v{S}',
              f'v_mov_b32 v{R+1}, v{R}', f'v_mov_b32 v{R+3}, v{R+2}']
        if not vori:
            o += [f'v_permlane16_swap_b32 v{R}, v{R+1}', f'v_permlane16_swap_b32 v{R+2}, v{R+3}']
        else:
            o += [f'v_mov_b32 v{S}, v{R}', f'v_mov_b32 v{S+1}, v{R+2}',
                  f'v_mov_b32_dpp v{R}, v{S} row_ror:4 row_mask:0xf bank_mask:0xa',
                  f'v_mov_b32_dpp v{R+1}, v{S} row_ror:4 row_mask:0xf bank_mask:0x5',
                  f'v_mov_b32_dpp v{R+2}, v{S+1} row_ror:4 row_mask:0xf bank_mask:0xa',
                  f'v_mov_b32_dpp v{R+3}, v{S+1} row_ror:4 row_mask:0xf bank_mask:0x5']
        return o

    def row_stats(g, X, D, one):
        o = []
        for i in range(len(X[0])):
            for t in range(2):
                c0 = '0' if i == 0 else f'v{D+t}'; c1 = '0' if i == 0 else f'v{D+2+t}'
                o.append(f'v_dot2_f32_bf16 v{D+t}, v{X[t][i]}, {one}, {c0}')
                o.append(f'v_dot2_f32_bf16 v{D+2+t}, v{X[t][i]}, v{X[t][i]}, {c1}')
        return ['\n'.join(o), '@brk', f'v_permlane32_swap_b32 v{D}, v{D+1}', f'v_permlane32_swap_b32 v{D+2}, v{D+3}',
                    f'v_add_f32 v{D}, v{D}, v{D+1}', f'v_add_f32 v{D+2}, v{D+2}, v{D+3}', '@brk',
                    f'v_permlane16_swap_b32 v{D}, v{D+2}', f'v_add_f32 v{D}, v{D}, v{D+2}']

    def stat_store_addr(g, d, sSlice):
        a = g.a
        a('v_lshrrev_b32 v1, 5, v0'); a('v_lshlrev_b32 v1, 8, v1')
        a('v_and_b32 v2, 15, v0'); a('v_lshlrev_b32 v2, 4, v2'); a('v_add_u32 v1, v1, v2')
        a('v_bfe_u32 v2, v0, 4, 1'); a('v_lshlrev_b32 v2, 2, v2')
        a(f's_lshr_b32 s{sT0}, s{sSlice}, 1'); a(f's_lshl_b32 s{sT0}, s{sT0}, 9')
        a(f's_and_b32 s{sT1}, s{sSlice}, 1'); a(f's_lshl_b32 s{sT1}, s{sT1}, 3'); a(f's_add_u32 s{sT0}, s{sT0}, s{sT1}')
        a(f'v_add3_u32 v{d}, v1, v2, s{sT0}')

    def half_tile_addr(g, d, sTile):
        a = g.a
        a(f's_lshr_b32 s{sT0}, s{sTile}, 1'); a(f's_lshl_b32 s{sT0}, s{sT0}, 11')
        a(f's_and_b32 s{sT1}, s{sTile}, 1'); a(f's_lshl_b32 s{sT1}, s{sT1}, 9'); a(f's_add_u32 s{sT0}, s{sT0}, s{sT1}')
        a('v_bfe_u32 v1, v0, 4, 1'); a('v_lshlrev_b32 v1, 10, v1')
        a('v_lshrrev_b32 v2, 5, v0'); a('v_lshlrev_b32 v2, 8, v2'); a('v_add_u32 v1, v1, v2')
        a('v_and_b32 v2, 15, v0'); a('v_lshlrev_b32 v2, 4, v2'); a(f'v_add3_u32 v{d}, v1, v2, s{sT0}')

    def coop_load(g, NK, groups, pitch, vtr, reads, cs=None):
        a = g.a; ng = len(groups); sz = ng * 4096; per = 65536 // sz; ns = min(163840 // sz, 3 * per, 62 // ng + 1); vA = vtr + 3
        a('v_lshrrev_b32 v1, 3, v0'); a(f's_lshl_b32 s{sT0}, s{sW}, 3'); a(f'v_add_u32 v1, s{sT0}, v1'); a(f'v_mul_u32_u24 v1, {pitch}, v1')
        a('v_and_b32 v2, 7, v0'); a('v_lshlrev_b32 v2, 4, v2'); a(f'v_add_u32 v{vA}, v1, v2')
        for i in (1, 2): a(f'v_add_u32 v{vtr+i}, {i*per*sz}, v{vtr}')
        a(f's_lshl_b32 s{sT2}, s{sW}, 10')
        def issue(ks):
            for i, (srd, sb) in enumerate(groups):
                a(f's_add_u32 m0, s{sT2}, {(ks % ns)*sz + i*4096}')
                a(f's_add_u32 s{sT3}, s{sb}, {ks*32*pitch:#x}')
                a(f'buffer_load_dwordx4 v{vA}, {srd}, s{sT3} offen lds')
        for ks in range(min(ns, NK)): issue(ks)
        issued = min(ns, NK)
        for ks in range(NK):
            a(f's_waitcnt vmcnt({(issued - 1 - ks) * ng}) lgkmcnt(0)'); a('s_barrier')
            if ks and issued < NK: issue(issued); issued += 1
            if ks == NK - 8 and not g.started:
                for t in g.start_look(48): a(t)
            sl = ks % ns
            for dest, imm in reads(ks): a(f'ds_read_b64_tr_b16 {dest}, v{vtr + sl // per} offset:{(sl % per)*sz + imm}')
            if cs and ks: g.colsum(ks - 1, *cs)
        for t in g.stamp(5): a(t)
        a('s_waitcnt lgkmcnt(0)')
        if cs: g.colsum(NK - 1, *cs)

    def poll_addr(g, d, sFirst, count, group):
        a = g.a
        if group == 'XA':
            a('v_lshrrev_b32 v1, 3, v0'); a(f'v_mul_u32_u24 v1, {max(g.c.FS,32)}, v1'); a('v_and_b32 v2, 7, v0'); a('v_lshlrev_b32 v2, 2, v2')
            a('v_add_u32 v1, v1, v2'); a(f'v_add_u32 v{d}, {FOFF[group]}, v1'); return
        a(f'v_min_u32 v1, {count-1}, v0'); a(f'v_add_u32 v1, s{sFirst}, v1')
        a(f'v_mul_u32_u24 v1, {g.c.FS}, v1'); a(f'v_add_u32 v{d}, {FOFF[group]}, v1'); g.expand(d)

    def my_flag(g, d, sIndex, group, nl=1, wave0=False):
        a = g.a
        fs = 4 if group == 'XA' else g.c.FS
        if group == 'XA':
            a(f's_lshr_b32 s{sT0}, s{sIndex}, 3'); a(f's_mul_i32 s{sT0}, s{sT0}, {max(g.c.FS,32)}'); a(f's_and_b32 s{sT1}, s{sIndex}, 7')
            a(f's_lshl_b32 s{sT1}, s{sT1}, 2'); a(f's_add_u32 s{sT0}, s{sT0}, s{sT1}')
        else: a(f's_mul_i32 s{sT0}, s{sIndex}, {fs}')
        a(f's_add_u32 s{sT0}, s{sT0}, {FOFF[group]}'); a(f's_and_b32 s{sT1}, s{sT0}, 0xffffe000'); a(f's_add_u32 s{sT0}, s{sT0}, s{sT1}')
        g.lane0_off(d, sT0, nl, fs if nl > 1 else 0)
        if wave0: g.wave0_off(d, 1)

    def resolve_vm(g, lo, hi):
        L = g.a.L
        isvm = lambda t: t.startswith('buffer_') and '@alt' not in t
        for k in range(lo, hi):
            if not L[k].startswith('@vm '): continue
            p = L[k].split(); tag = '@' + p[1]; n = 0; j = k
            while True:
                j = j - 1 if j > lo else hi - 1
                assert j != k, 'tag not found ' + tag
                if isvm(L[j]):
                    if tag in L[j].split(';')[-1].split(): break
                    n += 1
            assert n <= 63
            L[k] = f's_waitcnt vmcnt({n})' + (' ' + ' '.join(p[2:]) if len(p) > 2 else '')

    def resolve_lg(g, lo, hi, q):
        L = g.a.L; q = list(q)
        for k in range(lo, hi):
            t = L[k]
            if t.startswith('ds_'):
                q.append(t.split('#')[1].strip() if '#' in t else '')
                L[k] = t.split('#')[0].rstrip(' ;')
            elif t.startswith('@lg '):
                tag = t.split()[1]
                if tag not in q: L[k] = ''; continue
                p = len(q) - 1 - q[::-1].index(tag)
                q = q[p + 1:]
                L[k] = f's_waitcnt lgkmcnt({min(len(q), 15)})'
            elif 'lgkmcnt(0)' in t: q = []

    def wave0_off(g, d, w=0):
        a = g.a
        a(f's_cmp_eq_u32 s{sW}, {w}'); a(f's_cselect_b32 s{sT0}, 0, {OOB:#x}'); a(f'v_or_b32 v{d}, s{sT0}, v{d}')

    def spin0(g, vPoll, vOff, n, fl, code, also=()):
        l, l2 = g.a.lab('sp'), g.a.lab('spd')
        return [f's_cmp_lg_u32 s{sW}, 0', f's_cbranch_scc1 {l2}', f'{l}:'] + list(also) + [
                f'buffer_load_dword v{vPoll}, v{vOff}, {WS}, s{fl} offen sc1', 's_waitcnt vmcnt(0)',
                f'v_cmp_lt_u32 vcc, s{n}, v{vPoll}', 's_cmp_eq_u64 vcc, -1', f's_cbranch_scc0 {g.timeout(code, l)}',
                f'{l2}:', 's_barrier']

    def ws_loop(g, name, NK, NT, wA, vbase, R, seq, src_base, src_stride, sSrcC, code, T, PL,
                D, so, off, top=(), post=(), pub_shift=0, late=None, pipe=False, mneed=None, local=False, gate=None, leave=None, touch=()):
        a = g.a; c = g.c; PF = T.get('PF', c.PF)
        ahead, KP, KM, KD = T['ahead'], T.get('KP', 0), T['KM'], T['KD']; lock = not ahead
        BUF = NK * 2048; nd = NK // 2
        TOP, SLOW, EXIT = (f'L{name}_{x}' for x in ('top', 'slow', 'exit'))
        sNxx, sW0, sFl2, sPL = 24, 25, 26, 27
        P0, P1 = R['poll'], R['poll'] + 1
        n4 = NK % (PF + 1)
        sets = list(range(PF + 2)) * n4 + list(range(PF + 1)) * ((NK - (PF + 2) * n4) // (PF + 1))
        assert len(sets) == NK and R['fr'] + 8 * (max(sets) + 1) <= R['res']
        fr = lambda ks, t: v(R['fr'] + (sets[ks % NK] * 2 + t) * 4, 4)
        def rd(ks, t):
            off_ = (ks % NK) * 2048 + t * 1024
            return f'ds_read_b128 {fr(ks,t)}, v{R["rd"] + (off_ >> 16)} offset:{off_ & 0xffff} # f{ks}'
        def prep(slow=False):
            o = [f's_mul_i32 s{sSrc}, s{sNx}, {src_stride:#x}']
            o.append(f's_add_u32 s{sSrc}, s{sSrc}, s{sSrcC}' if sSrcC is not None else f's_add_u32 s{sSrc}, s{sSrc}, {src_base:#x}')
            o += [f's_add_u32 s{sM0}, s{sW0}, s{sBuf}' if slow else f's_sub_u32 s{sM0}, s{sWoff}, s{sBuf}']
            return o
        gs = min(nd // 4, 4); ng = 4; rem = nd - gs * ng; sQ, sSo = 28, 32
        inbuf = PL is None
        if inbuf:
            assert ahead and not late and rem > 0 and T['KP2'] > KM >= nd // 2 + 1
            PL = (nd - 1) * 1024; vPL0 = R['pl'] + 1; sPL0 = 41
        def dma(srd):
            o = []
            for q, cnt in ([(0, gs), (1, gs), (2, gs), (3, gs), (-1, rem)] if inbuf else [(0, gs), (-1, rem), (1, gs), (2, gs), (3, gs)]):
                for i in range(cnt):
                    grp = []
                    if i == 0:
                        x = f's{sQ+q}' if q >= 0 else f'{gs*ng*1024}'
                        grp = [f's_add_u32 m0, s{sM0}, {x}', f's_add_u32 s{sSo}, s{sSrc}, {x}']
                    grp.append(f'buffer_load_dwordx4 v{R["dma"]}, {srd}, s{sSo} offen offset:{i*1024} sc1 lds ; @e')
                    o.append(grp)
            return o
        rdp = f'ds_read_b32 v{P0}, v{R["pl"]} # p0'
        def poll_main(n, tag):
            f = [f's_cmp_lt_u32 s{n}, 64', f's_cselect_b32 s{sFl}, 0, {FL_L:#x}'] if c.NEND > 64 else g.fl_of(n, sFl)
            return [f's_mov_b32 m0, s{sPL}'] + f + [f'buffer_load_dword v{R["poff"]}, {WS}, s{sFl} offen sc1 lds ; {tag}']
        ev_main = [f'v_cmp_lt_u32 vcc, s{sNx}, v{P0}', 's_cmp_eq_u64 vcc, -1', f's_cselect_b32 s10, {WS_BYTES:#x}, 0']
        pub = f'buffer_store_dword v{R["fval"]}, v{R["my"]}, {WS}, s{sPFl} offen sc1'
        def pubs():
            if not local: return [pub] + list(touch)
            l1, l2 = a.lab('wb'), a.lab('wbc')
            g.tail.append([f'{l1}:', 'buffer_wbl2 sc1', 's_waitcnt vmcnt(0)', pub, f's_branch {l2}'])
            return [f's_cmp_lg_u32 s{sRound}, 0', f's_cbranch_scc1 {l1}\n' + pub.replace(' sc1', '') + f'\n{l2}:']
        if pub_shift == 0: fv = [f's_add_u32 s{sT0}, s{sN}, 1', f's_mov_b32 s{sPFl}, s{sFl2}', f'v_mov_b32 v{R["fval"]}, s{sT0}']
        else: fv = [f's_add_u32 s{sT0}, s{sN}, 65', f'v_mov_b32 v{R["fval"]}, s{sT0}', f's_cmp_lt_u32 s{sN}, 64',
                    f's_mov_b32 s{sPFl}, {OOB:#x}', f's_cselect_b32 s{sPFl}, {FL_L:#x}, s{sPFl}']
        if 'KX' in T:
            D = ['@vm st', 's_barrier', '@pub'] + [t.replace('@e', '@st') for t in D]; mneed += 3
        xpub = '@pub' in D
        if xpub:
            sFvN, sPFlN = 44, 45
            shift = [f'v_mov_b32 v{R["fval"]}, s{sFvN}', f's_mov_b32 s{sPFl}, s{sPFlN}']
            if pub_shift == 0: fv = shift + [f's_add_u32 s{sFvN}, s{sN}, 1', f's_mov_b32 s{sPFlN}, s{sFl2}']
            else: fv = shift + [f's_add_u32 s{sFvN}, s{sN}, 65', f's_cmp_lt_u32 s{sN}, 64', f's_mov_b32 s{sPFlN}, {OOB:#x}',
                                f's_cselect_b32 s{sPFlN}, {FL_L:#x}, s{sPFlN}']
            D = [pub if t == '@pub' else t for t in D]
            a(f's_mov_b32 s{sFvN}, 0'); a(f's_mov_b32 s{sPFlN}, {OOB:#x}')
        if late and T.get('LC'): off = off + ['s_mov_b32 s41, 0x2000']
        seq_init, next_n = seq
        if sSrcC is not None: a(f's_add_u32 s{sSrcC}, s{sSrcC}, {src_base:#x}')
        a(f's_mul_i32 s{sW0}, s{sW}, {nd*1024}')
        a(f'v_add_u32 v{R["dma"]}, s{sW0}, v{R["l16"]}')
        a(f's_add_u32 s{sWoff}, s{sW0}, {BUF}')
        for q in range(4):
            if 'norot' in c.x: a(f's_mov_b32 s{sQ+q}, {q*gs*1024}'); continue
            a(f's_add_u32 s{sQ+q}, s{sIdx}, {q}'); a(f's_and_b32 s{sQ+q}, s{sQ+q}, 3'); a(f's_mul_i32 s{sQ+q}, s{sQ+q}, {gs*1024}')
        a(f's_lshl_b32 s{sPL}, s{sW}, 9'); a(f's_add_u32 s{sPL}, s{sPL}, {PL}')
        a(f'v_lshrrev_b32 v{R["pl"]}, 2, v{R["l16"]}'); a(f'v_add_u32 v{R["pl"]}, {PL}, v{R["pl"]}')
        if inbuf:
            a(f's_cmp_eq_u32 s{sW}, 0'); a(f's_mov_b32 s{sPL0}, {PL-1024}'); a(f's_cselect_b32 s{sPL0}, {PL}, s{sPL0}'); a(f'v_mov_b32 v{vPL0}, v{R["pl"]}')
            a(f's_add_u32 s{sPL}, s{sPL0}, {BUF}'); a(f'v_add_u32 v{R["pl"]}, {BUF}, v{vPL0}')
        g.wave0_off(R['poff'])
        if lock:
            a(f'v_mov_b32 v{P0}, 0'); a(f'ds_write_b32 v{R["pl"]}, v{P0}'); a(f'ds_write_b32 v{R["pl"]}, v{P0} offset:2048'); a('s_waitcnt lgkmcnt(0)')
        if late: g.wave0_off(late['poff'])
        a(f's_mov_b32 s{sNx}, 0'); a(f's_mov_b32 s{sBuf}, 0'); a(f's_mov_b32 s{sN}, 0')
        a(f'v_mov_b32 v{R["rd"]}, v{R["l16"]}')
        a(f's_mov_b32 s{sPFl}, {OOB:#x}'); a(f'v_mov_b32 v{R["fval"]}, 0')
        for t in seq_init + off: a(t)
        if late and not T.get('LC'): g.srd(12, P_WS, WS_BYTES); a('s_mov_b32 s41, 0')
        if ahead:
            for t in next_n(sNxx, sNx): a(t)
        if c.probe:
            for i_ in range(8): a(f's_mov_b32 s{33+i_}, 0')
        g.mini_init(2)
        g.light_start()
        a(f's_branch {SLOW}')
        a('.p2align 6')
        lo = len(a.L)
        a(f'{TOP}:')
        free = []
        chain = []
        head = [f's_mov_b32 s{sN}, s{sNx}'] + g.stamp(0) + g.mini_take()
        sRn = 51
        ev2 = [f'v_cmp_lt_u32 vcc, s{sNxx}, v{P0}', 's_cmp_eq_u64 vcc, -1', f's_cselect_b32 s{sRn}, {WS_BYTES:#x}, 0']
        blk = T.get('block')
        if ahead: head += [f's_mov_b32 s{sNx}, s{sNxx}', f's_mov_b32 s10, s{sRn}'] + prep()
        if BUF > 65536: head.append(f'v_add_u32 v{R["rd"]+1}, 0x10000, v{R["rd"]}')
        if gate: head += gate
        free.append((-2, head, None, 'head'))
        assert inbuf or PL % 4096 == 0
        if lock:
            seqf = next_n(sNx, sN) + [f's_cmp_lg_u32 s{sT0}, s{sNx}', f's_cselect_b32 s10, {WS_BYTES:#x}, 0'] + g.fl_of(sNx, sFl) + \
                   [f's_lshr_b32 s{sT1}, s{sFl}, 7', f's_add_u32 m0, s{sPL}, s{sT1}', f'v_add_u32 v{P1}, s{sT1}, v{R["pl"]}']
            lpoll = f'buffer_load_dword v{R["poff"]}, {WS}, s{sFl} offen sc1 lds'
            free.append((-1, seqf, None, 'fl'))
            chain.append((-1, [lpoll], 'fl', None))
            free.append((T['KB'] - 2, g.fl_of(sN, sFl2) + prep(), None, 'prep'))
            lb, lc, ll, l0 = a.lab('blk'), a.lab('blkc'), a.lab('blkl'), a.lab('blk0')
            chain.append((T['KB'] - 1.5, [f'ds_read_b32 v{P0}, v{P1} # p'], 'fl', None))
            chain.append((T['KB'], ['@lg p'] + ev_main[:2] + [f's_cbranch_scc0 {lb}\n{lc}:'] + g.stamp(1), 'prep', None))
            g.tail.append([f'{lb}:', 's_cmp_eq_u32 s10, 0', f's_cbranch_scc1 {lc}', f'{ll}:', f's_cmp_lg_u32 s{sW}, 0', f's_cbranch_scc1 {l0}',
                           lpoll, f'{l0}:', f'ds_read_b32 v{P0}, v{P1}', 's_waitcnt lgkmcnt(0)'] + ev_main[:2] +
                          [f's_cbranch_scc1 {lc}', f's_branch {g.timeout(code, ll)}'])
            if 'KP2' in T:
                chain.append((T['KP2'], [f's_lshr_b32 s{sT1}, s{sFl2}, 7', f's_add_u32 m0, s{sPL}, s{sT1}', 's_nop 0',
                                         lpoll.replace(f's{sFl} ', f's{sFl2} ')], None, None))
            assert KD[0] > T['KB'] and not late and not pipe
        else:
            tog = [f's_xor_b32 s{sPL}, s{sPL}, 2048', f'v_xor_b32 v{R["pl"]}, 2048, v{R["pl"]}']
            seqf = g.fl_of(sN, sFl2) + tog
            if inbuf:
                tog = [f's_add_u32 s{sPL}, s{sPL}, 256', f'v_add_u32 v{R["pl"]}, 256, v{R["pl"]}']
                seqf = g.fl_of(sN, sFl2) + [f's_add_u32 s{sPL}, s{sPL0}, s{sBuf}', f'v_add_u32 v{R["pl"]}, s{sBuf}, v{vPL0}']
            free.append((KP - 1.5, seqf, None, 'fl'))
        afterM = False; prev = None; lastst = None
        for i, t in enumerate(D):
            kk = T.get('K0', 0) + (i * (T['KA'] - T.get('K0', 0))) / len(D)
            if 'KX' in T and i < 3: kk = T['KX']
            if t == '@M': afterM = True; continue
            if afterM: kk = KM + 0.005
            if t.startswith('buffer_') and t != pub: chain.append((kk, [t], prev, f'd{i}')); lastst = f'd{i}'
            else: free.append((kk, [t], 'M' if afterM else None, f'd{i}'))
            prev = f'd{i}'
        for grp in top: chain.append((T.get('KT', 0), grp, 'head', 'top'))
        le = late and T.get('LE')
        sLn = 41
        lc_ = late and T.get('LC')
        if lc_:
            le = True
            chain.append((T['KP2'] + 0.001, [f's_add_u32 m0, s{sPL}, 256', 's_nop 0', f'buffer_load_dword v{late["poff"]}, {WS}, s{sFl2} offen sc1 lds ; @e'], 'fl', None))
            ll = late['loads'](WS, '@late', sLn)
            for i, grp in enumerate(ll): chain.append((-1, grp, None, 'll' if i == len(ll) - 1 else None))
            free = [(k, grp, 'll' if grp == ['@vm late'] else n_, g_) for k, grp, n_, g_ in free]
            so = so + [f's_mov_b32 s{sLn}, s{sN}']
        elif le:
            f_ = g.fl_of(sNx, sT3)
            chain.append((T['KP2'] + 0.001, f_[:-1] + [f's_add_u32 m0, s{sPL}, 256', f_[-1], f'buffer_load_dword v{late["poff"]}, {WS}, s{sT3} offen sc1 lds ; @e'], 'fl', None))
            head.append(f's_mov_b32 s14, s{sLn}')
        elif late: chain.append((KP, [f's_add_u32 m0, s{sPL}, 256', 's_nop 0', f'buffer_load_dword v{late["poff"]}, {WS}, s{sFl2} offen sc1 lds ; @m'], 'fl', None))
        m = (['@lg a'] if mneed is not None else []) + (['s_nop 0'] if pipe and ahead and not late else ['@mbar'] if le else ['@vm m', '@mbar'])
        if late and not le: m.append(f'ds_read_b32 v{P1}, v{R["pl"]} offset:256 # p')
        chain.append((KM, m + ([] if lock else g.stamp(1)), None if mneed is None else f'd{mneed}', 'M'))
        if not pipe: chain.append((KM, pubs(), None, 'pub'))
        KE = KM + 0.01
        if late:
            if not le: chain.append((KE, ['@gap', '@lg p', f'v_cmp_lt_u32 vcc, s{sN}, v{P1}', 's_cmp_eq_u64 vcc, -1', f's_cselect_b32 s14, {WS_BYTES:#x}, 0'], None, None))
            for grp in ([] if lc_ else late['loads'](W1, '@late')): chain.append((T.get('KL', KE), grp, None, None))
        pf = dma(WSC)
        n1 = T.get('N1', gs + rem) if len(KD) == 3 else 0
        for i, grp in enumerate(pf):
            kk = KD[0] + i * T.get('D1', 0.8) if i < n1 else KD[-2] + ((i - n1) * (KD[-1] - KD[-2])) / (nd - n1)
            chain.append((kk, grp, 'M' if inbuf and i == nd - 1 else 'head', None))
            assert not (inbuf and i == nd - 1) or kk > KM
        if ahead:
            chain.append((T['KP2'], next_n(sNxx, sNx) + poll_main(sNxx, '@e'), 'fl', None))
        free.append((NK - PF - 2, so, 'pub' if touch else lastst, None))
        if not pipe: free.append((NK - PF - 1.5, fv, 'pub', None))
        k2 = T.get('KS', KM); np_ = len(post); span = NK - PF - 2.5 - k2
        assert not post or k2 >= T['KA']
        if post: free.append((k2, ['@vm s'], 'top', None))
        for i, t in enumerate(post): free.append((k2 + (i * span) / max(np_, 1), [t], None, None))
        if 'novmw' in c.x: chain = [(k, [t for t in grp if t != '@vm m'], n_, g_) for k, grp, n_, g_ in chain]
        if 'nodma' in c.x: chain = [(k, [t for t in grp if not (t.startswith('buffer_load_dwordx4') and ' lds' in t and '@late' not in t)] or ['s_nop 0'], n_, g_) for k, grp, n_, g_ in chain]
        if 'nod' in c.x: free = [(k, ['s_nop 0'] if (g_ or '').startswith('d') and grp[0].startswith('v_') else grp, n_, g_) for k, grp, n_, g_ in free]
        free.sort(key=lambda x: x[0]); chain.sort(key=lambda x: x[0])
        ch2 = []
        for k, grp, nd_, gv in chain:
            subs = [[]]
            for t in grp:
                subs[-1].append(t)
                if t.startswith('buffer_'): subs.append([])
            subs = [x for x in subs if x]
            for i, x in enumerate(subs): ch2.append((k, x, nd_, gv if i == len(subs) - 1 else None))
        chain = []; own = None
        for k, x, nd_, gv in ch2:
            isd = x[-1].startswith(f'buffer_load_dwordx4 v{R["dma"]},')
            m0w = [t for t in x if ' m0,' in t]
            if isd and m0w: own = m0w[0]; clean = True
            elif isd and not clean: x = [own] + x; clean = True
            elif m0w: clean = False
            chain.append((k, x, nd_, gv))
        marks = {None}; st = dict(t=0, tm=-16, tv=-999, tM=0, cur=[], gv=None)
        DV = T.get('dv', 72)
        scalar = lambda t: t.startswith(('s_', '@'))
        def after(t):
            if t.startswith('v_mfma'):
                tm = max(st['t'], st['tm'] + 16); return tm + 4, tm
            if scalar(t): return st['t'] + 4, st['tm']
            if t.startswith(('v_dot', 'v_pk')): return max(st['t'], st['tm'] + 28) + 4, st['tm']
            return max(st['t'], st['tm'] + 8) + (8 if t.startswith(('v_exp', 'v_rcp', 'v_sqrt', 'v_perml')) else 4), st['tm']
        def emit(t):
            for u in t.split('\n'):
                if u == '@mbar': u = 's_barrier'; st['tM'] = st['t']; st['kM'] = (st['k'], st['t'])
                a(u)
                if u.endswith(':'): continue
                st['t'], st['tm'] = after(u)
                if u.startswith('buffer_'):
                    st['tv'] = st['t'] + (20 if u.startswith('buffer_store_dwordx4') else 0)
                    if u != pub: st['kv'] = (st['k'], st['t'])
                    if u.startswith('buffer_store') and u != pub: st['ks'] = (st['k'], st['t'])
        def cands(pos, force):
            o = []
            if chain and chain[0][2] in marks and (force or chain[0][0] <= pos):
                grp = chain[0][1]; ok = True
                if not force:
                    if grp[-1].startswith('buffer_') and st['t'] + 4 * len(grp) < st['tv'] + DV: ok = False
                    if grp[0] == '@gap' and st['t'] < st['tM'] + 100: ok = False
                if ok: o.append(chain)
            if free and free[0][2] in marks and (force or free[0][0] <= pos): o.append(free)
            return o
        first = lambda q: [t for t in q[0][1] if t != '@gap'][0]
        def peek(pos, force=False, want=None):
            if st['cur']: return None, st['cur'][0]
            for q in cands(pos, force):
                if want is None or want(first(q)): return q, first(q)
            return None, None
        def take(q):
            if q is not None:
                it = q.pop(0); st['cur'] = [t for t in it[1] if t != '@gap']; st['gv'] = it[3]
            t = st['cur'].pop(0)
            if not st['cur']: marks.add(st['gv'])
            return t
        def flush():
            n = 0
            while st['cur'] or chain or free:
                q, t = peek(99, True)
                assert t is not None, (name, chain[:1], free[:1])
                t = take(q)
                if t != '@brk': emit(t); n += 1
            return n
        quota = T.get('quota', lambda ks: 2)
        left = 0; carry = []
        st['k'] = 0; emit('@lg f0')
        for ks in range(NK):
            st['k'] = ks
            if c.probe and ks in c.probe:
                emit(f's_memtime {s(sST+2*c.probe.index(ks),2)}'); g.left.setdefault(name + '_t', []).append(st['t'])
            mand = carry + [rd(ks + PF, 0), rd(ks + PF, 1)]; carry = []
            if ks == NK - PF:
                carry = ([f'ds_read2st64_b32 {v(P0,2)}, v{R["pl"]} offset0:0 offset1:1 # p0'] if le else [rdp] if ahead else []) + mand
                mand = []
                free.append((0, [f's_sub_u32 s{sBuf}, {BUF}, s{sBuf}', f'v_add_u32 v{R["rd"]}, s{sBuf}, v{R["l16"]}'], None, None))
            k = 0
            for t in range(2):
                for n in (range(NT) if t == 0 or not c.snake else range(NT - 1, -1, -1)):
                    d = v(R['acc'] + (t * NT + n) * 4, 4)
                    cc = d if ks else '0'
                    if ks == NK - 1: d = v(R['res'] + (t * NT + n) * 4, 4)
                    w = wreg((ks * NT + n) * 4, 4, vbase)
                    if wA: emit(f'v_mfma_f32_16x16x32_bf16 {d}, {w}, {fr(ks,t)}, {cc}')
                    else:  emit(f'v_mfma_f32_16x16x32_bf16 {d}, {fr(ks,t)}, {w}, {cc}')
                    k += 1
                    pos = ks + k / (2 * NT); B = 8 + 4 * quota(ks)
                    if ks == NK - PF and k == 2 * NT:
                        left += flush()
                        if c.probe and 'pe' in c.x:
                            for t_ in [f'@lg f{NK-1}', f's_memtime {s(sST+10,2)}', 's_waitcnt lgkmcnt(0)', '@vm e', f's_memtime {s(sST+12,2)}', 's_waitcnt lgkmcnt(0)',
                                       's_barrier', f's_memtime {s(sST+14,2)}', 's_waitcnt lgkmcnt(0)']: emit(t_)
                            g.left[name + '_t'] += [st['t']] * 3
                        else:
                            for t_ in [f'@lg f{NK-1}', 's_nop 0' if 'novme' in c.x else '@vm e', 's_barrier']: emit(t_)
                        if c.probe:
                            acc_ = []
                            for i_ in range(7 if 'pe' in c.x else len(c.probe) - 1):
                                acc_ += [f's_sub_u32 s{sT1}, s{sST+2*i_+2}, s{sST+2*i_}', f's_add_u32 s{33+i_}, s{33+i_}, s{sT1}']
                            acc_ += [f's_sub_u32 s{sT1}, s{sST}, s43', f's_min_u32 s{sT1}, s{sT1}, 1500', f's_add_u32 s40, s40, s{sT1}', f's_mov_b32 s43, s{sST+14 if "pe" in c.x else sST+2*len([k_ for k_ in c.probe if k_ <= NK-PF])-2}'] if name != 'DNF_' else []
                            free.append((0, acc_, None, None))
                        if PF == 2:
                            for t_ in carry[:2]: emit(t_)
                            carry = carry[2:]
                        free.append((0, g.stamp(2) + (fv if xpub else [pub] + fv if pipe else []) + g.mini_put(2) + ['s_nop 0'], None, None))
                        fin = []
                        if ahead: fin = ['@lg p0'] + ev2
                        if lc_: fin += [f'v_cmp_lt_u32 vcc, s{sN}, v{P1}', 's_cmp_eq_u64 vcc, -1', 's_cselect_b32 s14, -1, 0']
                        elif le: fin += [f'v_cmp_lt_u32 vcc, s{sNx}, v{P1}', 's_cmp_eq_u64 vcc, -1', f's_cselect_b32 s{sLn}, {WS_BYTES:#x}, 0']
                        if ahead and blk:
                            if name == 'P': fin += [f's_xor_b32 s{sT1}, s{sNx}, s{sNxx}', f's_and_b32 s{sT1}, s{sT1}, 0xc0', f's_cmp_lg_u32 s{sT1}, 64']
                            else: fin += [f's_add_u32 s{sT1}, s{sNx}, 1', f's_cmp_eq_u32 s{sT1}, s{sNxx}'] if blk is True else [f's_cmp_ge_u32 s{sNxx}, {blk}']
                            fin += [f's_cselect_b32 s{sNeed}, -1, s{sRn}', f's_and_b32 s{sNeed}, s{sNeed}, s10']
                            if late: fin.append(f's_and_b32 s{sRdy}, s{sNeed}, s14')
                        else: fin += [f's_and_b32 s{sRdy}, s10, s14'] if late else ['s_cmp_lg_u32 s10, 0']
                        free.append((NK - 1 + (0.2 if PF > 2 else 0.7), fin, None, None))
                        continue
                    if k == 2 * NT and ks + 1 < NK: emit(f'@lg f{ks+1}')
                    else:
                        q, t_ = peek(pos, want=lambda x: scalar(x) and x != '@brk')
                        if t_ is not None and scalar(t_) and t_ != '@brk': emit(take(q))
                    for _ in range(2 if len(mand) > 2 else 1):
                        if mand: emit(mand.pop(0))
                    nv = 0
                    while True:
                        q, t_ = peek(pos)
                        if t_ is None: break
                        if t_.startswith('v_') and not t_.startswith('v_mfma'):
                            nv += 1
                            if nv > T.get('nv', lambda k_: 9)(k): break
                        if t_ == '@brk': take(q); break
                        if '\n' not in t_ and not t_.startswith('v_mfma') and after(t_)[0] > st['tm'] + B: break
                        emit(take(q))
                        if '\n' in t_: break
        left += flush()
        g.left[name] = dict(left=left, M=st.get('kM'), st=st.get('ks'), lastvm=st.get('kv'), t=st['t'])
        q0 = [f'f{k}' for k in range(PF) for t in range(2)]
        g.resolve_lg(lo, len(a.L), q0)
        if c.stamps:
            a(f's_cselect_b32 s{sRdy}, 1, 0')
            for t in g.stamp(3): a(t)
            g.stamp_store(R['acc'], 4)
            a(f's_cmp_lg_u32 s{sRdy}, 0')
        a(f's_cbranch_scc1 {TOP}')
        hi_ = len(a.L); g.resolve_vm(lo, hi_)
        for t in g.mstamp(1): a(t)
        if late:
            l1 = a.lab('lw')
            a('s_cmp_lg_u32 s14, 0'); a(f's_cbranch_scc1 {l1}')
            l3 = a.lab('lg')
            if xpub:
                for t in tog + poll_main(sNxx, '') + [f's_add_u32 m0, s{sPL}, 256', 's_nop 0',
                        f'buffer_load_dword v{late["poff"]}, {WS}, s{sFl2} offen sc1 lds', 's_waitcnt vmcnt(0) lgkmcnt(0)', 's_barrier',
                        f'ds_read2st64_b32 {v(P0,2)}, v{R["pl"]} offset0:0 offset1:1', pub, 's_waitcnt lgkmcnt(0)',
                        f'v_cmp_lt_u32 vcc, s{sN}, v{P1}', 's_cmp_eq_u64 vcc, -1', f's_cbranch_scc1 {l3}']: a(t)
            for t in tog + g.spin0(P1, late['poff'], sN, sFl2, late['code'], poll_main(sNxx, '')) + [rdp.split('#')[0], f'{l3}:'] + g.mstamp(2) + \
                     [t for grp in ([] if lc_ else late['loads'](WS, '')) for t in grp] + ['s_waitcnt lgkmcnt(0)'] + ev2: a(t)
            assert not blk
            if lc_: pass
            elif T.get('LW'):
                k_ = max(k for k in range(lo, hi_) if '@late' in a.L[k])
                a(f's_mov_b32 s{sT1}, {OOB:#x}')
                for k in range(k_ + 1, hi_):
                    if a.L[k].startswith('buffer_'): a(pub.replace(f's{sPFl} ', f's{sT1} '))
            else: a('s_waitcnt vmcnt(0)')
            a(f's_cmp_lg_u32 s{sNeed if blk else 10}, 0'); a(f's_cbranch_scc1 {TOP}')
            a(f'{l1}:')
            if lc_:
                for grp in late['loads'](WS, ''):
                    for t in grp: a(t)
        k0 = len(a.L)
        for t in D:
            if t == '@M': a('s_waitcnt lgkmcnt(0)'); a('s_barrier')
            elif t == '@vm late' and 'KX' in T: pass
            elif t.startswith('@vm'): a('s_waitcnt vmcnt(0)')
            elif t != '@brk': a(t)
        g.resolve_lg(k0, len(a.L), [])
        for t in ([] if touch else off) + (shift if xpub else []): a(t)
        lgo = a.lab('go')
        if lock:
            a('s_waitcnt vmcnt(0)'); a('s_barrier'); a(pub)
            a(f's_cmp_ge_u32 s{sNx}, {c.NEND}'); a(f's_cbranch_scc1 {EXIT}')
        else:
            if blk:
                l2 = a.lab('sc')
                a('s_cmp_lg_u32 s10, 0'); a(f's_cbranch_scc1 {l2}')
                g.tail.append([f'{l2}:'] + tog + poll_main(sNxx, '') + ['s_waitcnt vmcnt(0) lgkmcnt(0)', 's_barrier', rdp.split('#')[0]] + pubs() + g.mstamp(3) + (off if touch else []) +
                              [f's_mov_b32 s{sRn}, {WS_BYTES:#x}', 's_waitcnt lgkmcnt(0)'] + ev2[:2] + [f's_cbranch_scc1 {TOP}'] +
                              g.spin0(P0, R['poff'], sNxx, sFl, code) + [f's_branch {TOP}'])
            for t in tog: a(t)
            lrd = a.lab('rd')
            if c.med:
                lm, ln = a.lab('med'), a.lab('nomed')
                a(f's_min_u32 s{sT1}, s{sNxx}, 127'); a(f's_xor_b32 s{sT1}, s{sT1}, s{sNx}'); a(f's_cmp_ge_u32 s{sT1}, 64'); a(f's_cbranch_scc1 {ln}')
                a(ev_main[0]); a(ev_main[1]); a(f's_cbranch_scc1 {lm}'); a(f'{ln}:')
                pb = pubs(); npb = 1 + len(touch)
                g.tail.append([f'{lm}:'] + prep(True) + [t for grp in dma(WS) for t in grp] + poll_main(sNxx, '') +
                              [f's_waitcnt vmcnt({nd+1}) lgkmcnt(0)', 's_barrier'] + pb + (off if touch else []) + [f's_waitcnt vmcnt({npb})', f's_branch {lrd}'])
            for t in poll_main(sNx, '') + prep(True): a(t)
            a('s_waitcnt vmcnt(0) lgkmcnt(0)'); a('s_barrier'); a(rdp.split('#')[0])
            for t in pubs() + g.mstamp(3) + (off if touch else []): a(t)
            a(f's_cmp_ge_u32 s{sNx}, {c.NEND}'); a(f's_cbranch_scc1 {EXIT}')
            for t in tog: a(t)
            a('s_waitcnt lgkmcnt(0)'); a(ev_main[0]); a(ev_main[1]); a(f's_cbranch_scc1 {lgo}')
        a(f'{SLOW}:')
        for t in g.fl_of(sNx, sFl) + prep(True) + g.spin0(P0, R['poff'], sNx, sFl, code): a(t)
        a(f'{lgo}:')
        for t in g.mstamp(4): a(t)
        for grp in dma(WS):
            for t in grp: a(t)
        if ahead:
            for t in poll_main(sNxx, ''): a(t)
        a('s_waitcnt vmcnt(0)')
        if not lock: a(f'{lrd}:')
        a('s_barrier')
        for t in ([rdp] if ahead else []) + [rd(k, t) for k in range(PF) for t in range(2)]: a(t.split('#')[0])
        if ahead:
            a(f's_waitcnt lgkmcnt({2*PF})')
            for t in ev2: a(t)
        a(f's_branch {TOP}')
        a(f'{EXIT}:')
        if leave: leave()
        if c.probe:
            for i_ in range(8): a(f'v_mov_b32 v{8+i_}, s{33+i_}')
            a(f's_lshl_b32 s{sT0}, s2, 12'); a(f's_add_u32 s{sT0}, s{sT0}, {STAMP+32:#x}'); a(f's_lshl_b32 s{sT1}, s{sW}, 5'); a(f's_add_u32 s{sT0}, s{sT0}, s{sT1}')
            a('v_mov_b32 v16, 0'); a(f'buffer_store_dwordx4 v[8:11], v16, {WS}, s{sT0} offen'); a(f'buffer_store_dwordx4 v[12:15], v16, {WS}, s{sT0} offen offset:16')
            a('s_waitcnt vmcnt(0)')
        g.endpgm()
        g.flush_tail()

    def mask_seq(g, order):
        bits = sum(1 << i for i in range(len(order) - 1) if order[i] // 64 != order[i + 1] // 64 and not (order[i] == 63 and order[i + 1] == 64))
        init = [f's_mov_b32 s{44+i}, {(bits >> (32*i)) & 0xffffffff:#x}' for i in range(4)] + [f's_mov_b32 s{sOth}, 64', f's_mov_b32 s{sCnt}, 0']
        jump = []
        if g.c.HK:
            h0, h1 = g.c.H0, g.c.H0 + g.c.HK; sFrom, sTo = sC + 8, sC + 9
            init += [f's_cmp_eq_u32 s{sHelp}, 0', f's_cselect_b32 s{sFrom}, {h0}, {h1}', f's_cselect_b32 s{sTo}, {h1}, 0x80',
                     f's_cselect_b32 s{sNx}, 0, {h0}', 's_cselect_b64 s[44:45], s[44:45], 0']
            jump = [f's_cmp_eq_u32 s{sT0}, s{sFrom}', f's_cselect_b32 s{sT0}, s{sTo}, s{sT0}']
        def nxt(dst, src):
            return [f's_add_u32 s{sT0}, s{src}, 1'] + jump + [f's_bitcmp1_b64 s[44:45], s{sCnt}',
                    f's_cselect_b32 s{dst}, s{sOth}, s{sT0}', f's_cselect_b32 s{sOth}, s{sT0}, s{sOth}',
                    f's_add_u32 s{sCnt}, s{sCnt}, 1', f's_cmp_eq_u32 s{sCnt}, 64', 's_cselect_b64 s[44:45], s[46:47], s[44:45]',
                    f's_min_u32 s{sCnt}, s{sCnt}, 127']
        return init, nxt

    def lag(g, role):
        return min(g.c.L + g.c.DLAG[('AT', 'WOP', 'WOF', 'GU', 'DNP', 'DNF').index(role)], 64)

    def lag_seq(g, L):
        return g.seq_init(L), (lambda dst, src: g.next_n(dst, src, L))

    def near_side(g, part):
        a = g.a; l = a.lab('ns'); lp = a.lab('nsl')
        a(f's_cmp_lg_u32 s{sW}, 3'); a(f's_cbranch_scc1 {l}'); a(f's_cmp_lg_u32 s{sIdx}, 0'); a(f's_cbranch_scc1 {l}')
        a(f's_mov_b32 s{sT0}, {CAL:#x}'); g.lane0_off(2, sT0)
        m0, m1, cnt = sNeed, sFl, sPFl
        if part == 0: a(f's_mov_b32 s{m0}, -1'); a(f's_mov_b32 s{m1}, -1')
        a(f's_mov_b32 s{cnt}, 0'); a(f's_mov_b32 s{sT2}, 0x2000')
        a(f'{lp}:')
        for m, so in ((m0, '0'), (m1, f's{sT2}')):
            a(f's_memtime {s(sC+10,2)}'); a('s_waitcnt lgkmcnt(0)')
            a(f'buffer_store_dword v0, v2, {WS}, {so} offen sc1'); a('s_waitcnt vmcnt(0)')
            a(f's_memtime {s(sC+12,2)}'); a('s_waitcnt lgkmcnt(0)')
            a(f's_sub_u32 s{sT1}, s{sC+12}, s{sC+10}'); a(f's_min_u32 s{m}, s{m}, s{sT1}'); a(f's_add_u32 s{cnt}, s{cnt}, s{sT1}')
        a(f's_cmp_lt_u32 s{cnt}, {(5000, g.c.CALT)[part]}'); a(f's_cbranch_scc1 {lp}')
        if part == 1:
            a(f's_cmp_lt_u32 s{m1}, s{m0}'); a(f's_cselect_b32 s{sT1}, 1, 0')
            a(f's_lshr_b32 s{sT2}, s{sXcc}, 2'); a(f's_xor_b32 s{sT1}, s{sT1}, s{sT2}'); a(f's_add_u32 s{sT1}, s{sT1}, 1')
            if 'flip' in g.c.x: a(f's_xor_b32 s{sT1}, s{sT1}, 3')
            a(f'v_mov_b32 v3, s{sT1}'); a(f's_mov_b32 s{sT0}, 160'); g.lane0_off(2, sT0)
            a(f'buffer_store_dword v3, v2, {DBG}, 0 offen sc1')
            if g.c.light or g.c.stamps:
                a(f's_lshl_b32 s{m1}, s{m1}, 16'); a(f's_or_b32 s{m0}, s{m0}, s{m1}'); a(f'v_mov_b32 v3, s{m0}')
                a(f'buffer_store_dword v3, v2, {DBG}, 0 offen offset:4 sc1')
        a(f'{l}:')

    def role_p(g):
        a = g.a; c = g.c
        a('L_P:')
        VB = 128
        R = dict(acc=8, fr=32, res=64, rd=112, l16=113, dma=114, poff=115, poll=4, pl=116, my=117, fval=118)
        CS, RES, RS, S, vStat, vOut = 88, 64, 100, 104, 119, 120
        sOut, sGam = sC + 4, sC + 5
        g.my_flag(R['my'], sIdx, 'P', wave0=True); g.zero_flags(R['my']); g.arrive()
        a('L_P2:')
        srds = (8, 12, 16)
        for n in range(3):
            gm = sGam + n; d = srds[n]
            a(f's_mul_i32 s{gm}, s{sIdx}, 3'); a(f's_add_u32 s{gm}, s{gm}, {n}')
            a(f's_cmp_lt_u32 s{gm}, 64'); a(f's_cselect_b32 s{d}, s{P_WQ}, s{P_WK}'); a(f's_cselect_b32 s{d+1}, s{P_WQ+1}, s{P_WK+1}')
            a(f's_cmp_lt_u32 s{gm}, 128'); a(f's_cselect_b32 s{d}, s{d}, s{P_WV}'); a(f's_cselect_b32 s{d+1}, s{d+1}, s{P_WV+1}')
            a(f's_and_b32 s{d+1}, s{d+1}, 0xffff'); a(f's_mov_b32 s{d+2}, 0x800000'); a(f's_mov_b32 s{d+3}, 0x20000')
            a(f's_and_b32 s{sC+n}, s{gm}, 63'); a(f's_lshl_b32 s{sC+n}, s{sC+n}, 7')
        a(f's_lshl_b32 s{sT1}, s{sW}, 5'); g.tr_addr(8, 128, 8, 8, sT1)
        g.coop_load(32, [(s(srds[n], 4), sC + n) for n in range(3)], 8192, 8,
                    lambda ks: [(wreg((ks * 3 + n) * 4 + 2 * hh, 2, VB), n * 4096 + hh * 512) for n in range(3) for hh in range(2)], (3, VB, CS, 12))
        g.srd(8, P_WS, WS_BYTES)
        a(f'v_lshlrev_b32 v{R["l16"]}, 4, v0')
        g.stat_addr(vStat, False)
        a(f's_mov_b32 s{sT2}, 0'); g.poll_addr(R['poff'], sT2, 64, 'XA')
        for n in range(3):
            a(f's_and_b32 s{sT2}, s{sGam+n}, 63'); a(f's_lshl_b32 s{sT2}, s{sT2}, 2'); a(f's_add_u32 s{sT2}, s{sT2}, s{sW}')
            g.half_tile_addr(vOut + n, sT2)
            a(f's_lshr_b32 s{sT0}, s{sGam+n}, 6'); a(f's_mul_i32 s{sT0}, s{sT0}, {KX-QX:#x}'); a(f'v_add_u32 v{vOut+n}, s{sT0}, v{vOut+n}')
        g.start_once()
        if c.HK: lh = a.lab('nh'); a(f's_cmp_lg_u32 s{sHelp}, 0'); a(f's_cbranch_scc1 {lh}')
        g.to_side([(R['my'], 'P')])
        if c.HK: a(f'{lh}:')
        post = g.stat_math(S, RS, False)
        def ln(n):
            o = []
            for t in range(2):
                d = RES + (t * 3 + n) * 4
                o += [f'v_fmac_f32 v{d+r}, v{RS+2+t}, v{CS+4*n+r}' for r in range(4)]
                o += [f'v_mul_f32 v{d+r}, v{RS+t}, v{d+r}' for r in range(4)]
            return o
        cv = lambda n: [f'v_cvt_pk_bf16_f32 v{RES+4*n+2*t+h}, v{RES+(t*3+n)*4+2*h}, v{RES+(t*3+n)*4+2*h+1}' for t in range(2) for h in range(2)]
        sw = lambda n: [f'v_permlane16_swap_b32 v{RES+4*n}, v{RES+4*n+2}', f'v_permlane16_swap_b32 v{RES+4*n+1}, v{RES+4*n+3}']
        sto = lambda n: [f'buffer_store_dwordx4 {v(RES+4*n,4)}, v{vOut+n}, {WS}, s{sOut} offen sc1 ; ' + ('@e' if c.T_KV.get('pipe') else '@m')]
        D = ln(0) + cv(0) + ln(1)[:2] + sw(0) + sto(0) + ln(1)[2:] + cv(1) + ln(2)[:2] + sw(1) + sto(1) + ln(2)[2:] + cv(2) + ['@brk'] + sw(2) + sto(2)
        so = [f's_lshl_b32 s{sOut}, s{sN}, 18', f's_add_u32 s{sOut}, s{sOut}, {QX:#x}']
        gate = leave = None
        if c.HK:
            l1, l2, l3 = a.lab('gate'), a.lab('gatec'), a.lab('gatel')
            gate = [f's_cmp_eq_u32 s{sN}, {c.H0 + c.HK}', f's_cbranch_scc1 {l1}\n{l2}:']
            g.tail.append([f'{l1}:', f's_cmp_lg_u32 s{sW}, 1', f's_cbranch_scc1 {l2}', f's_mul_i32 s{sT1}, s{sIdx}, {c.FS}',
                           f's_add_u32 s{sT1}, s{sT1}, {FOFF["PH"]}', f's_and_b32 s{sT3}, s{sT1}, 0xffffe000', f's_add_u32 s{sT1}, s{sT1}, s{sT3}', 'v_mov_b32 v6, 0', f'{l3}:',
                           f'buffer_load_dword v7, v6, {WS}, s{sT1} offen sc1', 's_waitcnt vmcnt(0)',
                           f'v_cmp_le_u32 vcc, {c.H0 + c.HK}, v7', 's_cmp_eq_u64 vcc, -1', f's_cbranch_scc1 {l2}', f's_branch {g.timeout(25, l3)}'])
            def leave():
                l = a.lab('lv')
                a(f's_cmp_eq_u32 s{sHelp}, 0'); a(f's_cbranch_scc1 {l}')
                a('s_waitcnt vmcnt(0) lgkmcnt(0)'); a('s_barrier')
                g.load_args(); a(f's_mov_b32 s{sIdx}, s{sG}'); a('s_waitcnt lgkmcnt(0)'); g.srd(8, P_WS, WS_BYTES)
                a(f's_cmp_eq_u32 s{sHelp}, 1'); a('s_cbranch_scc1 L_GU2'); a('s_branch L_DNF2')
                a(f'{l}:')
        g.ws_loop('P', 32, 3, True, VB, R, g.mask_seq(p_order(c.LK, c.LM, c.H0, c.HK)), XA, 65536, None, 2, c.T_KV, 131072,
                  D, so, [f's_mov_b32 s{sOut}, {OOB:#x}'], top=g.stat_loads(S, vStat, SA), post=post, pipe=c.T_KV.get('pipe'), gate=gate, leave=leave)

    def build(g):
        a = g.a; c = g.c
        a('.amdgcn_target "amdgcn-amd-amdhsa--gfx950"')
        a('.text'); a(f'.globl {KNAME}'); a('.p2align 8'); a(f'.type {KNAME},@function'); a(f'{KNAME}:')
        a('s_cmp_ge_u32 s2, 0x100'); a('s_cbranch_scc1 L_done')
        for t in g.stamp(7): a(t)
        a('v_lshrrev_b32 v1, 6, v0'); a(f'v_readfirstlane_b32 s{sW}, v1')
        a(f's_getreg_b32 s{sXcc}, hwreg(HW_REG_XCC_ID)'); a(f's_and_b32 s{sXcc}, s{sXcc}, 7')
        pm = sum(x << (4 * i) for i, x in enumerate(c.perm))
        a(f's_lshl_b32 s{sT0}, s{sXcc}, 2'); a(f's_lshr_b32 s{sG}, {pm:#x}, s{sT0}'); a(f's_and_b32 s{sG}, s{sG}, 7')
        a(f's_mov_b32 s{sRound}, 0'); a(f's_mov_b32 s{sTO}, 0')
        a('s_branch L_begin')
        a('L_restart:')
        a(f's_and_b32 s{sG}, s2, 7'); a(f's_mov_b32 s{sRound}, 1')
        a('s_barrier')
        a('L_begin:')
        g.load_args(); a(f's_mov_b32 s{sHelp}, 0')
        a(f's_lshr_b32 s{sIdx}, s2, 3'); a(f's_mov_b32 s{sN}, 0')
        a('s_waitcnt lgkmcnt(0)')
        g.srd(4, P_WS, WS_BYTES); g.srd(8, P_WS, WS_BYTES); g.srd(20, P_DBG, 256)
        table = role_table(c.place)
        a(f's_lshl_b32 s{sT0}, s{sG}, 5'); a(f's_add_u32 s{sT0}, s{sT0}, s{sIdx}')
        for x, f, n, role, off in table:
            if role[:2] not in c.roles and role not in c.roles: continue
            l = a.lab('disp')
            a(f's_sub_u32 s{sIdx}, s{sT0}, {x*32+f}'); a(f's_cmp_ge_u32 s{sIdx}, {n}'); a(f's_cbranch_scc1 {l}')
            if off: a(f's_add_u32 s{sIdx}, s{sIdx}, {off}')
            a(f's_branch L_{role}'); a(f'{l}:')
        g.arrive()
        g.wait_start(8, 1)
        a('L_done:'); a('s_endpgm')
        g.flush_tail()
        a('L_fail:')
        a(f's_lshl_b32 s{sT0}, s2, 16'); a(f's_lshl_b32 s{sT1}, s{sW}, 8'); a(f's_or_b32 s{sT0}, s{sT0}, s{sT1}')
        a(f's_or_b32 s{sT0}, s{sT0}, s{sN}'); a(f's_bitset1_b32 s{sT0}, 31')
        a(f'v_mov_b32 v1, s{sT0}'); a(f's_lshl_b32 s{sT1}, s{sCode}, 2'); a(f's_add_u32 s{sT1}, s{sT1}, 16'); a('v_mov_b32 v2, 0')
        a(f'buffer_store_dword v1, v2, {DBG}, s{sT1} offen sc1'); a('s_waitcnt vmcnt(0)'); a('s_endpgm')
        if 'P' in c.roles: g.role_p()
        import roles2
        roles2.emit(g)
        a('.section .rodata,"a"'); a('.p2align 6'); a(f'.amdhsa_kernel {KNAME}')
        for t in ('next_free_vgpr 512', 'next_free_sgpr 102', 'accum_offset 256', 'group_segment_fixed_size 0',
                  'kernarg_size 112', 'user_sgpr_count 2', 'user_sgpr_kernarg_segment_ptr 1', 'system_sgpr_workgroup_id_x 1'):
            a('.amdhsa_' + t)
        a('.end_amdhsa_kernel')
        a.L = [t for t in a.L if t]
        import re
        if c.ring:
            out = []; nrep = 0
            keep = {f'{x:#x}' for x in (XA, SA, SA + 64 * 2048)}
            for k, t in enumerate(a.L):
                m_ = re.match(r'^s_(lshl_b32|mul_i32) (s\d+), (s5[23]), (1[1-9]|0x\w+)$', t)
                if m_:
                    nx = next(u for u in a.L[k+1:] if u.startswith(f's_add_u32 {m_.group(2)}, {m_.group(2)},'))
                    cst = nx.split(',')[-1].strip()
                    try: small = int(cst, 0) < XB and int(cst, 0) != SB
                    except ValueError: small = False
                    if not small:
                        big = m_.group(4) == '18' and 'OXMARK' not in nx
                        out.append(f's_and_b32 {m_.group(2)}, {m_.group(3)}, {c.ring:#x}')
                        t = t.replace(m_.group(3), m_.group(2)); nrep += 1
                out.append(t)
            a.L = out; g.left['ring'] = nrep
        for key, rep in (('ldplain', ''), ('ldnt', ' nt'), ('ldsys', ' sc0 sc1')):
            if key in c.x:
                k0 = a.L.index('L_QK:')
                a.L = [t.replace(' sc1', rep) if k < k0 and t.startswith('buffer_load_dwordx4') and 's[20:23]' not in t else t for k, t in enumerate(a.L)]
        for key, rep in (('stnt', ' sc1 nt'), ('stsys', ' sc0 sc1')):
            if key in c.x:
                k0 = a.L.index('L_QK:')
                a.L = [t.replace(' sc1', rep) if k < k0 and t.startswith('buffer_store_dwordx4') else t for k, t in enumerate(a.L)]
        if 'free' in c.x:
            a.L = [re.sub(r'^v_cmp_lt_u32 vcc, (s\d+), v\d+$', (r'v_cmp_eq_u32 vcc, v0, v0' if 'QK' in c.roles else r'v_mov_b32 v1, 128\nv_cmp_lt_u32 vcc, \1, v1'), t) for t in a.L]
            a.L = [u for t in a.L for u in t.split('\n')]
            if 'hot' in c.x: a.L = [re.sub(r'^s_(lshl_b32|mul_i32) (s\d+), s5[23], (1[1-9]|0x\w+)$', r's_mov_b32 \2, 0', t) for t in a.L]
            if 'nost' in c.x: a.L = [t.replace('s[4:7]', 's[20:23]') if t.startswith('buffer_store_dwordx4') and '@' in t else t for t in a.L]
        lines, added = a.fix()
        head = ['; Persistent weight-stationary dataflow kernel (generated by my own script, gen/gen.py).',
                '; @launch grid=(256,1,1) block=(256,1,1) lds=163840']
        return '\n'.join(head + lines) + '\n'

def make(**kw):
    c = Cfg()
    for k, val in kw.items(): setattr(c, k, val)
    global LAST
    set_fs(c.FS)
    LAST = Gen(c)
    return LAST.build()

if __name__ == '__main__':
    out = sys.argv[1] if len(sys.argv) > 1 else 'interleave_layers__memory_aug_recurrent_mem_tr__glu_gated_geglu__prompt.s'
    open(out, 'w').write(make())
    print('wrote', out)
```

```python
class _F:
    FS=16
FCNT=dict(XA=8,XB=8,P=64,M=128,O=64,H=56,PW=32,PD=16,PH=64,N=64)
FOFF={}
FSIDE=dict(XB=1,P=0,M=0,N=0,O=1,H=1,PW=1,PD=1)
def set_fs(fs):
    _F.FS=fs; o=0
    for k,v in FCNT.items():
        FOFF[k]=o; o+=v*(max(fs,32) if k=='XA' else fs)
    assert o<=0x1FF00
set_fs(16)
FL_L=0x40000
CAL=0x3DF00
TWB=0x80000; TW_SZ=0x40000
SA=0x180000; SB=0x1C0000
RING=0x200000; RING_SZ=0x50000
R_MEM=0; R_OM=0x10000; R_VML=0x30000
STAMP=0xF800000
XA=0x400000; XB=0xC00000; QX=0x1400000; KX=0x3400000; VX=0x5400000; KVM=0x7400000
OX=0x9400000; HH=0xB400000; PW=0xD000000; PD=0xE800000
WS_BYTES=0x10000000
HH_U=112*2048
OOB=0x40000000
WO_NP=36; DN_NP=38

def role_table(place):
    if True:
        mix = {0: dict(P=(24,24,16,0,0,0), AT=(8,8,0,0,0,0), GU=(0,0,0,24,24,8),
                       WOP=(0,0,8,0,0,16), WOF=(0,0,0,0,0,8), DNP=(0,0,0,8,8,0), DNF=(0,0,8,0,0,0)),
               1: dict(P=(12,12,10,10,10,10), AT=(4,4,2,2,2,2), GU=(8,8,12,12,12,4),
                       WOP=(8,8,0,0,0,8), WOF=(0,0,0,0,0,8), DNP=(0,0,8,8,0,0), DNF=(0,0,0,0,8,0)),
               2: dict(P=(16,16,8,8,8,8), AT=(8,8,0,0,0,0), GU=(0,0,16,16,16,8),
                       WOP=(8,8,0,0,0,8), WOF=(0,0,0,0,0,8), DNP=(0,0,8,8,0,0), DNF=(0,0,0,0,8,0)),
               3: dict(P=(16,16,16,16,0,0), AT=(4,4,4,4,0,0), GU=(12,12,12,12,8,0),
                       WOP=(0,0,0,0,0,24), WOF=(0,0,0,0,0,8), DNP=(0,0,0,0,16,0), DNF=(0,0,0,0,8,0)),
               4: dict(P=(14,14,14,14,8,0), AT=(4,4,4,4,0,0), GU=(14,14,14,14,0,0),
                       WOP=(0,0,0,0,0,24), WOF=(0,0,0,0,0,8), DNP=(0,0,0,0,16,0), DNF=(0,0,0,0,8,0)),
               5: dict(P=(22,0,21,0,21,0), AT=(5,0,6,0,5,0), GU=(5,32,5,8,6,0),
                       WOP=(0,0,0,0,0,24), WOF=(0,0,0,0,0,8), DNP=(0,0,0,16,0,0), DNF=(0,0,0,8,0,0)),
               6: dict(P=(22,0,21,0,21,0), AT=(2,6,2,4,2,0), GU=(8,26,9,4,9,0),
                       WOP=(0,0,0,0,0,24), WOF=(0,0,0,0,0,8), DNP=(0,0,0,16,0,0), DNF=(0,0,0,8,0,0)),
               7: dict(P=(18,10,18,0,18,0), AT=(3,7,3,0,3,0), GU=(11,15,11,8,11,0),
                       WOP=(0,0,0,0,0,24), WOF=(0,0,0,0,0,8), DNP=(0,0,0,16,0,0), DNF=(0,0,0,8,0,0)),
               8: dict(P=(24,0,20,0,20,0), AT=(8,0,4,0,4,0), GU=(0,32,0,16,0,8),
                       WOP=(0,0,0,0,0,24), WOF=(0,0,8,0,0,0), DNP=(0,0,0,16,0,0), DNF=(0,0,0,0,8,0)),
               9: dict(P=(22,0,22,0,20,0), AT=(2,6,2,4,2,0), GU=(8,26,8,12,2,0),
                       WOP=(0,0,0,0,0,24), WOF=(0,0,0,0,0,8), DNP=(0,0,0,16,0,0), DNF=(0,0,0,0,8,0)),
               10: dict(P=(22,0,22,0,20,0), AT=(3,3,2,3,2,3), GU=(7,29,0,13,2,5),
                       WOP=(0,0,0,0,0,24), WOF=(0,0,8,0,0,0), DNP=(0,0,0,16,0,0), DNF=(0,0,0,0,8,0)),
               11: dict(P=(20,12,16,0,16,0), AT=(2,6,2,4,2,0), GU=(10,14,14,4,14,0),
                       WOP=(0,0,0,0,0,24), WOF=(0,0,0,0,0,8), DNP=(0,0,0,16,0,0), DNF=(0,0,0,8,0,0)),
               12: dict(P=(20,14,16,8,6,0), AT=(2,5,3,6,0,0), GU=(10,13,13,18,2,0),
                       WOP=(0,0,0,0,0,24), WOF=(0,0,0,0,0,8), DNP=(0,0,0,0,16,0), DNF=(0,0,0,0,8,0)),
               13: dict(P=(16,12,12,8,10,6), AT=(0,4,2,4,2,4), GU=(8,8,10,12,12,6),
                       WOP=(0,8,0,8,0,8), WOF=(0,0,0,0,0,8), DNP=(8,0,8,0,0,0), DNF=(0,0,0,0,8,0)),
               14: dict(P=(24,24,8,0,8,0), AT=(8,8,0,0,0,0), GU=(0,0,24,8,24,0),
                       WOP=(0,0,0,0,0,24), WOF=(0,0,0,0,0,8), DNP=(0,0,0,16,0,0), DNF=(0,0,0,8,0,0)),
               15: dict(P=(26,22,8,0,8,0), AT=(6,10,0,0,0,0), GU=(0,0,24,24,0,8),
                       WOP=(0,0,0,0,0,24), WOF=(0,0,0,8,0,0), DNP=(0,0,0,0,16,0), DNF=(0,0,0,0,8,0)),
               16: dict(P=(16,16,16,0,16,0), AT=(4,4,2,4,2,0), GU=(12,12,14,4,14,0),
                       WOP=(0,0,0,0,0,24), WOF=(0,0,0,0,0,8), DNP=(0,0,0,16,0,0), DNF=(0,0,0,8,0,0)),
               17: dict(P=(14,14,18,0,18,0), AT=(5,5,1,4,1,0), GU=(13,13,13,4,13,0),
                       WOP=(0,0,0,0,0,24), WOF=(0,0,0,0,0,8), DNP=(0,0,0,16,0,0), DNF=(0,0,0,8,0,0)),
               18: dict(P=(20,10,17,0,17,0), AT=(1,5,1,8,1,0), GU=(11,17,14,0,14,0),
                       WOP=(0,0,0,0,0,24), WOF=(0,0,0,0,0,8), DNP=(0,0,0,16,0,0), DNF=(0,0,0,8,0,0)),
               19: dict(P=(24,24,8,0,8,0), AT=(2,2,4,4,4,0), GU=(6,6,20,4,20,0),
                       WOP=(0,0,0,0,0,24), WOF=(0,0,0,0,0,8), DNP=(0,0,0,16,0,0), DNF=(0,0,0,8,0,0)),
               20: dict(P=(28,28,4,0,4,0), AT=(2,2,4,4,4,0), GU=(2,2,24,4,24,0),
                       WOP=(0,0,0,0,0,24), WOF=(0,0,0,0,0,8), DNP=(0,0,0,16,0,0), DNF=(0,0,0,8,0,0)),
               21: dict(P=(32,32,0,0,0,0), AT=(0,0,6,4,6,0), GU=(0,0,26,4,26,0),
                       WOP=(0,0,0,0,0,24), WOF=(0,0,0,0,0,8), DNP=(0,0,0,16,0,0), DNF=(0,0,0,8,0,0)),
               22: dict(P=(20,20,12,0,12,0), AT=(2,2,4,4,4,0), GU=(10,10,16,4,16,0),
                       WOP=(0,0,0,0,0,24), WOF=(0,0,0,0,0,8), DNP=(0,0,0,16,0,0), DNF=(0,0,0,8,0,0)),
               23: dict(P=(12,32,10,0,10,0), AT=(6,0,3,4,3,0), GU=(14,0,19,4,19,0),
                       WOP=(0,0,0,0,0,24), WOF=(0,0,0,0,0,8), DNP=(0,0,0,16,0,0), DNF=(0,0,0,8,0,0)),
               24: dict(P=(0,32,16,0,16,0), AT=(6,0,3,4,3,0), GU=(26,0,13,4,13,0),
                       WOP=(0,0,0,0,0,24), WOF=(0,0,0,0,0,8), DNP=(0,0,0,16,0,0), DNF=(0,0,0,8,0,0))}[place]
        table = []; nxt = [0]*6
        for role, cnt in mix.items():
            off = 0
            for x, n in enumerate(cnt):
                if n: table.append((2+x, nxt[x], n, role, off)); nxt[x] += n; off += n
        assert max(nxt) <= 32, nxt
    for G in (0, 1): table += [(G, 0, 16, 'QK', 0), (G, 16, 8, 'VM', 0), (G, 24, 8, 'WM', 0)]
    return table

def helper_table(place):
    t = role_table(place)
    ps = [(x, o + i) for x, f, n, r, o in t if r == 'P' for i in range(n)]
    hs = [(x, r, o + i) for x, f, n, r, o in t if r in ('GU', 'DNF') for i in range(n)]
    m = {}
    for x in range(8):
        a = [p for p in ps if p[0] == x]; b = [h for h in hs if h[0] == x]
        for p, h in zip(a, b): m[h[1:]] = p[1]; ps.remove(p); hs.remove(h)
    for p, h in zip(ps, hs): m[h[1:]] = p[1]
    assert sorted(m.values()) == list(range(64))
    out = {}
    for (r, i), p in sorted(m.items()):
        l = out.setdefault(r, [])
        if l and l[-1][0] + l[-1][1] == i and l[-1][2] + l[-1][1] == p: l[-1][1] += 1
        else: l.append([i, 1, p])
    return out
```

```python
from gen import *

def ln_apply(RES, RS, CS, ts=(0, 1)):
    o = []
    for t in ts:
        o += [f'v_fmac_f32 v{RES+t*8+i}, v{RS+2+t}, v{CS+i}' for i in range(8)]
        o += [f'v_mul_f32 v{RES+t*8+i}, v{RS+t}, v{RES+t*8+i}' for i in range(8)]
    return o

def role_gu(g):
    a = g.a
    a('L_GU:')
    R = dict(acc=8, fr=32, res=64, rd=104, l16=105, dma=106, poff=107, poll=4, pl=108, my=109, fval=110)
    CS, RES, RS, S, vStat, vOut, E = 80, 64, 92, 96, 111, 112, 116
    gw, stage = sC, sC + 2
    g.my_flag(R['my'], sIdx, 'H', wave0=True); g.zero_flags(R['my'])
    if g.help_first('GU'): g.my_flag(R['my'], sIdx, 'H', wave0=True)
    else: g.wait_loaded('GU', 32)
    g.srd(12, P_WG, 0x700000); g.srd(16, P_WU, 0x700000)
    a(f's_lshl_b32 s{gw}, s{sIdx}, 2'); a(f's_add_u32 s{gw}, s{gw}, s{sW}')
    a(f's_lshl_b32 s{sC+3}, s{sIdx}, 7')
    a(f's_lshl_b32 s{sT1}, s{sW}, 5'); g.tr_addr(8, 128, 8, 8, sT1)
    g.coop_load(32, [(W1, sC + 3), (W2, sC + 3)], 7168, 8,
                lambda ks: [(wreg((ks * 2 + n) * 4 + 2 * hh, 2, 0), n * 4096 + hh * 512) for n in range(2) for hh in range(2)], (2, 0, CS, 12))
    a(f'v_lshlrev_b32 v{R["l16"]}, 4, v0')
    g.stat_addr(vStat, False)
    a(f's_mov_b32 s{sT2}, 0'); g.poll_addr(R['poff'], sT2, 8, 'XB')
    g.half_tile_addr(vOut, gw)
    ca = -2.0 * 0.7978845608028654 * 1.4426950408889634
    a(f's_mov_b32 s{sC+4}, {fbits(ca*0.044715)}'); a(f'v_mov_b32 v{vOut+1}, {fbits(ca)}')
    g.start_once()
    g.to_side([(R['my'], 'H'), (R['poff'], 'XB')])
    post = g.stat_math(S, RS, False)
    sOut = sC + 5
    idx = [(t, r) for t in range(2) for r in range(4)]
    G = lambda t, r: RES + t * 8 + r
    U = lambda t, r: RES + t * 8 + 4 + r
    D = ln_apply(RES, RS, CS)
    D += [f'v_mul_f32 v{E+i}, v{G(t,r)}, v{G(t,r)}' for i, (t, r) in enumerate(idx)]
    D += [f'v_fma_f32 v{E+i}, v{E+i}, s{sC+4}, v{vOut+1}' for i, (t, r) in enumerate(idx)]
    D += [f'v_mul_f32 v{E+i}, v{E+i}, v{G(t,r)}' for i, (t, r) in enumerate(idx)]
    for i, (t, r) in enumerate(idx): D += [f'v_exp_f32 v{E+i}, v{E+i}', f'v_mul_f32 v{U(t,r)}, v{U(t,r)}, v{G(t,r)}']
    D += [f'v_add_f32 v{E}, 1.0, v{E}']
    for i in range(8): D += ([f'v_add_f32 v{E+i+1}, 1.0, v{E+i+1}'] if i < 7 else []) + [f'v_rcp_f32 v{E+i}, v{E+i}']
    D += [f'v_mul_f32 v{E+i}, v{E+i}, v{U(t,r)}' for i, (t, r) in enumerate(idx)]
    o = 124
    D += [f'v_cvt_pk_bf16_f32 v{o+i}, v{E+2*i}, v{E+2*i+1}' for i in (0, 2, 1, 3)]
    D += ['@brk', f'v_permlane16_swap_b32 v{o}, v{o+2}', f'v_permlane16_swap_b32 v{o+1}, v{o+3}',
          f'buffer_store_dwordx4 {v(o,4)}, v{vOut}, {WS}, s{sOut} offen sc1 ; ' + ('@e' if g.c.T_GU.get('pipe') else '@m')]
    so = [f's_mul_i32 s{sOut}, s{sN}, {HH_U:#x}', f's_add_u32 s{sOut}, s{sOut}, {HH:#x}']
    g.ws_loop('GU', 32, 2, True, 0, R, g.lag_seq(g.lag('GU')), XB, 65536, None, 4, g.c.T_GU, 131072,
              D, so, [f's_mov_b32 s{sOut}, {OOB:#x}'], top=g.stat_loads(S, vStat, SB), post=post, pipe=g.c.T_GU.get('pipe'))

def role_proj(g, kind, fin):
    a = g.a; name = kind + ('F' if fin else 'P')
    isWO = kind == 'WO'
    nparts = 3 if isWO else 2
    NP = g.c.WONP if isWO else g.c.DNNP
    NK = ((128 if isWO else 112) - nparts * NP) if fin else NP
    a(f'L_{name}:')
    if name == 'DNP': g.near_side(0)
    helped = name == 'DNF' and g.c.HK
    if helped:
        a(f's_lshl_b32 s{sT2}, s{sIdx}, 3'); g.my_flag(110, sT2, 'XA', 8, wave0=True); g.zero_flags(110, (1,))
        g.help_first('DNF')
    g.srd(12, P_WO if isWO else P_WD, 0x800000 if isWO else 0x700000)
    VB = 192
    R = dict(acc=8, fr=32, res=72, rd=104, l16=106, dma=107, poff=113, poll=108, pl=120, my=110, fval=111)
    vP, vSt, vX, vRow, vL4, vP2 = 112, 114, 115, 116, 117, 119
    RES, PR, OUT = 72, 124, 156
    part, col, cw, stage, k0, src = sC, sC + 1, sC + 2, sC + 3, sC + 4, sC + 5
    if fin:
        a(f's_mov_b32 s{part}, {nparts}'); a(f's_mov_b32 s{col}, s{sIdx}')
    else:
        a(f's_lshr_b32 s{part}, s{sIdx}, 3'); a(f's_and_b32 s{col}, s{sIdx}, 7')
    a(f's_lshl_b32 s{cw}, s{col}, 2'); a(f's_add_u32 s{cw}, s{cw}, s{sW}')
    a(f's_mul_i32 s{k0}, s{part}, {NP}')
    a(f's_lshl_b32 s{src}, s{k0}, 11')
    pg = 'PW' if isWO else 'PD'
    if fin:
        if isWO: g.my_flag(R['my'], col, 'XB', wave0=True)
        else: a(f's_lshl_b32 s{sT2}, s{col}, 3'); g.my_flag(R['my'], sT2, 'XA', 8, wave0=True)
        if not helped: g.zero_flags(R['my'], (0, 1) if isWO else (1,))
    else:
        a(f's_lshl_b32 s{sT2}, s{col}, {2 if isWO else 1}'); a(f's_add_u32 s{sT2}, s{sT2}, s{part}')
        g.my_flag(R['my'], sT2, pg, wave0=True); g.zero_flags(R['my'])
    if not helped:
        g.arrive()
        if name == 'DNP': g.near_side(1)
        g.wait_loaded(kind, 8 if isWO else 48)
    a(f's_lshr_b32 s{sT1}, s{sW}, 1'); a(f's_lshl_b32 s{sT1}, s{sT1}, 12'); a(f's_and_b32 s{sT0}, s{sW}, 1'); a(f's_lshl_b32 s{sT0}, s{sT0}, 6')
    a(f's_add_u32 s{sT1}, s{sT1}, s{sT0}'); g.tr_addr(8, 128, 4 if isWO else 8, 16, sT1)
    a(f's_lshl_b32 s{sC+6}, s{k0}, 16'); a(f's_lshl_b32 s{sT0}, s{col}, 8'); a(f's_add_u32 s{sC+6}, s{sC+6}, s{sT0}'); a(f's_add_u32 s{stage}, s{sC+6}, 128')
    hhs = 2048 if isWO else 512
    g.coop_load(NK, [(W1, sC + 6), (W1, stage)], 2048, 8,
                lambda ks: [(wreg((ks * 2 + n) * 4 + 2 * hh, 2, VB), hh * hhs + n * 8) for n in range(2) for hh in range(2)])
    a(f'v_lshlrev_b32 v{R["l16"]}, 4, v0')
    sh = 1
    assert NP % (4 if isWO else 2) == 0 and NK % (4 if isWO else 2) == 0
    a(f's_lshr_b32 s{sT2}, s{k0}, {sh}'); g.poll_addr(R['poff'], sT2, NK >> sh, 'O' if isWO else 'H')
    a(f's_lshl_b32 s{sT0}, s{cw}, 11'); a(f'v_add_u32 v{vP}, s{sT0}, v{R["l16"]}')
    pbase = PW if isWO else PD; pstride = nparts * 0x10000
    pn = g.c.pnear is not None; vPP = vP; sPar = 42
    def paddr(dst, add, sN=sN):
        if not pn: return [f's_mul_i32 s{dst}, s{sN}, {pstride:#x}', f's_add_u32 s{dst}, s{dst}, {add}']
        return [f's_and_b32 s{dst}, s{sN}, 64', f's_lshr_b32 s{dst}, s{dst}, 1', f's_and_b32 s{sT3}, s{sN}, 31', f's_or_b32 s{dst}, s{dst}, s{sT3}',
                f's_lshl_b32 s{dst}, s{dst}, 17', f's_add_u32 s{dst}, s{dst}, {add}'] + g.half(dst, sPar, sT3)
    pstep = 0x800000 if pn else 0x10000
    if pn:
        vPP = 122
        a(f's_lshr_b32 s{sT0}, s{cw}, 2'); a(f's_lshl_b32 s{sT0}, s{sT0}, 13'); a(f'v_add_u32 v{vPP}, s{sT0}, v{vP}')
    src_base, src_stride = (OX, 0x40000) if isWO else (HH, HH_U)
    T = getattr(g.c, 'T_' + name); PL = 2 * NK * 2048 if NK < 40 else None
    if not fin:
        a(f's_mul_i32 s{sC+7}, s{part}, {pstep:#x}'); a(f's_add_u32 s{sC+7}, s{sC+7}, {pbase:#x}')
        g.start_once()
        g.to_side([(R['my'], pg), (R['poff'], 'O' if isWO else 'H')])
        if pn: g.get_par(sPar, g.c.pnear)
        sOut = sC + 8
        local = g.c.local and len({x for x, f, n, r, o in role_table(g.c.place) if r[:2] == kind}) == 1
        D = []
        for t in range(2):
            D += [f'v_cvt_pk_bf16_f32 v{OUT+4*t+i}, v{RES+8*t+2*i}, v{RES+8*t+2*i+1}' for i in range(4)]
            D.append(f'buffer_store_dwordx4 {v(OUT+4*t,4)}, v{vPP}, {WS}, s{sOut} offen offset:{t*1024}{"" if local else " sc1"} ; @m')
        so = paddr(sOut, f's{sC+7}')
        off = [f's_mov_b32 s{sOut}, {OOB:#x}']; touch = []
        if g.c.touch:
            a('v_and_b32 v1, 15, v0'); a('v_lshlrev_b32 v1, 7, v1'); a(f's_lshl_b32 s{sT0}, s{cw}, 11'); a(f'v_add_u32 v123, s{sT0}, v1')
            touch = [f'buffer_load_dword v{PR}, v123, {WS}, s{sOut} offen sc1']
            if g.c.touch > 1:
                sR = sC + 9
                a(f's_cmp_eq_u32 s{part}, 0'); a(f's_mov_b32 s{sC+10}, {OOB:#x}'); a(f's_cselect_b32 s{sC+10}, {XA if isWO else XB:#x}, s{sC+10}')
                so += [f's_lshl_b32 s{sR}, s{sN}, 16', f's_add_u32 s{sR}, s{sR}, s{sC+10}']; off.append(f's_mov_b32 s{sR}, {OOB:#x}')
                touch.append(f'buffer_load_dword v{PR}, v123, {WS}, s{sR} offen sc1')
        g.ws_loop(name, NK, 2, True, VB, R, g.lag_seq(g.lag(name)), src_base, src_stride, src, 5 if isWO else 7, T, PL,
                  D, so, off, local=local, touch=touch)
        return
    a(f's_lshl_b32 s{sT2}, s{col}, {2 if isWO else 1}'); g.poll_addr(vP2, sT2, nparts, pg)
    g.stat_store_addr(vSt, col); g.wave0_off(vSt)
    LST = PL + 4096
    a(f'v_lshlrev_b32 v{vL4}, 2, v0'); a(f'v_add_u32 v{vL4}, {LST}, v{vL4}')
    a(f's_lshl_b32 s{sT0}, s{sW}, 8'); a(f'v_add_u32 v{vL4+1}, s{sT0}, v{vL4}')
    sL, sOne, sO0, sO1, sSt = sC + 7, sC + 10, sC + 11, sC + 12, sC + 13
    a(f's_mov_b32 s{sOne}, 0x3f803f80')
    SEL = 24
    a('v_bfe_u32 v1, v0, 2, 2'); g.v_g(2); a('v_cmp_eq_u32 vcc, v1, v2')
    a('v_and_b32 v1, 1, v0'); a('v_lshlrev_b32 v1, 4, v1'); a('v_mov_b32 v2, 0x3f80'); a('v_lshlrev_b32 v1, v1, v2')
    a('v_cndmask_b32 v1, 0, v1, vcc'); a('v_and_b32 v2, 2, v0'); a('v_cmp_eq_u32 vcc, 0, v2')
    a(f'v_cndmask_b32 v{SEL}, 0, v1, vcc'); a(f'v_sub_u32 v{SEL+1}, v1, v{SEL}')
    for i in (2, 3, 4, 5): a(f'v_mov_b32 v{SEL+i}, 0')
    a(f'v_mov_b32 v{SEL+6}, v{SEL}'); a(f'v_mov_b32 v{SEL+7}, v{SEL+1}')
    if not isWO:
        mo = T.get('mo')
        if mo: g.srd(16, P_WS, WS_BYTES); a(f's_and_b32 s{sC+9}, s{P_OUT+1}, 0xffff'); a(f's_mov_b32 s{sC+8}, s{P_OUT}')
        else: g.srd(16, P_OUT, 0x400000)
        g.v_j(1); a('v_lshlrev_b32 v1, 11, v1'); g.v_g(2); a('v_lshlrev_b32 v2, 4, v2')
        a(f's_lshl_b32 s{sT0}, s{cw}, 6'); a(f'v_add3_u32 v{vRow}, v1, v2, s{sT0}'); a(f'v_add_u32 v{vX}, 0x8000, v{vRow}')
    g.start_once()
    g.to_side([(R['my'], 'XB' if isWO else 'XA'), (R['poff'], 'O' if isWO else 'H'), (vP2, pg)])
    if pn: g.get_par(sPar, g.c.pnear)
    rbase = XA if isWO else XB
    def loads(srd, tag, n=sN):
        o = [[f's_lshl_b32 s{sL}, s{n}, 16', f's_add_u32 s{sL}, s{sL}, {rbase:#x}'] +
             [f'buffer_load_dwordx4 {v(PR+nparts*8+t*4,4)}, v{vP}, {srd}, s{sL} offen offset:{t*1024} sc1 ; {tag}' for t in range(2)]]
        for p in range(nparts):
            grp = paddr(sL, f'{pbase:#x}', n) if p == 0 else [f's_add_u32 s{sL}, s{sL}, {pstep:#x}']
            o.append(grp + [f'buffer_load_dwordx4 {v(PR+p*8+t*4,4)}, v{vPP}, {srd}, s{sL} offen offset:{t*1024} sc1 ; {tag}' for t in range(2)])
        return o
    o = OUT; SD = o + 8
    D = ['@vm late']
    valu = T.get('valu', 0)
    for p in range(valu):
        for i in range(8):
            x = PR + p * 8 + i
            D += [f'v_lshlrev_b32 v{OUT+12+(i&1)}, 16, v{x}', f'v_and_b32 v{x}, 0xffff0000, v{x}',
                  f'v_add_f32 v{RES+2*i}, v{RES+2*i}, v{OUT+12+(i&1)}', f'v_add_f32 v{RES+2*i+1}, v{RES+2*i+1}, v{x}']
    for p in range(valu, nparts + 1):
        for t in range(2):
            for n in range(2):
                d = v(RES + (t * 2 + n) * 4, 4)
                D.append(f'v_mfma_f32_16x16x32_bf16 {d}, {v(SEL+4*n,4)}, {v(PR+p*8+t*4,4)}, {d}')
    D += ['@brk', '@brk']
    for t in range(2):
        D += [f'v_cvt_pk_bf16_f32 v{o+i}, v{RES+2*i}, v{RES+2*i+1}' for i in range(4 * t, 4 * t + 4)]
        if isWO or not mo: D.append(f'buffer_store_dwordx4 {v(o+4*t,4)}, v{vP}, {WS}, s{sO0} offen offset:{t*1024} sc1 ; @e')
        else: D.append(f'buffer_store_dwordx4 {v(o+4*t,4)}, v{vX}, {W2}, s{(sO0, sO1)[t]} offen sc1 ; @e')
    if not isWO and not mo: D += [f'buffer_store_dwordx4 {v(o+4*t,4)}, v{(vRow, vX)[t]}, {W2}, s{sO1} offen' for t in range(2)]
    D += g.row_stats([[o + 4 * t + i for i in range(4)] for t in range(2)], SD, f's{sOne}')
    D.append(f'ds_write_b32 v{vL4+1}, v{SD} # a')
    mneed = len(D) - 1
    D += ['@M', f'ds_read2st64_b32 {v(SD,2)}, v{vL4} offset0:0 offset1:1 # b', f'ds_read2st64_b32 {v(SD+2,2)}, v{vL4} offset0:2 offset1:3 # b',
          '@brk', '@brk', '@brk', '@brk', '@lg b',
          f'v_add_f32 v{SD}, v{SD}, v{SD+1}', f'v_add_f32 v{SD+2}, v{SD+2}, v{SD+3}', f'v_add_f32 v{SD}, v{SD}, v{SD+2}',
          f'buffer_store_dword v{SD}, v{vSt}, {WS}, s{sSt} offen sc1 ; @e']
    if isWO:
        so = [f's_lshl_b32 s{sO0}, s{sN}, 16', f's_add_u32 s{sO0}, s{sO0}, {XB:#x}', f's_lshl_b32 s{sSt}, s{sN}, 11', f's_add_u32 s{sSt}, s{sSt}, {SB:#x}']
        off = [f's_mov_b32 s{sO0}, {OOB:#x}', f's_mov_b32 s{sSt}, {OOB:#x}']
    else:
        so = [f's_and_b32 s{sO1}, s{sN}, 63', f's_lshl_b32 s{sO1}, s{sO1}, 16', f's_add_u32 s{sO0}, s{sO1}, {XA + 64*65536:#x}',
              f's_lshl_b32 s{sSt}, s{sN}, 11', f's_add_u32 s{sSt}, s{sSt}, {SA + 64*2048:#x}', f's_cmp_lt_u32 s{sN}, 64',
              f's_cselect_b32 s{sSt}, s{sSt}, {OOB:#x}', f's_cselect_b32 s{sO0}, s{sO0}, {OOB:#x}', f's_cselect_b32 s{sO1}, {OOB:#x}, s{sO1}']
        if mo: so = [f's_and_b32 s{sO0}, s{sN}, 63', f's_lshl_b32 s{sO0}, s{sO0}, 16', f's_lshl_b32 s{sSt}, s{sN}, 11',
              f's_add_u32 s{sSt}, s{sSt}, {SA + 64*2048:#x}', f's_mov_b32 s{sO1}, 0x8000', f's_cmp_lt_u32 s{sN}, 64',
              f's_cselect_b32 s16, s4, s{sC+8}', f's_cselect_b32 s17, s5, s{sC+9}', 's_cselect_b32 s18, s6, 0x400000',
              f's_cselect_b32 s{sSt}, s{sSt}, {OOB:#x}', f's_cselect_b32 s{sO1}, 0x400, s{sO1}', f's_cselect_b32 s{sT1}, {XA + 64*65536:#x}, 0',
              's_cselect_b64 vcc, -1, 0', f's_add_u32 s{sO0}, s{sO0}, s{sT1}', f's_add_u32 s{sO1}, s{sO1}, s{sO0}',
              f'v_cndmask_b32 v{vX}, v{vRow}, v{vP}, vcc']
        off = [f's_mov_b32 s{sO0}, {OOB:#x}', f's_mov_b32 s{sO1}, {OOB:#x}', f's_mov_b32 s{sSt}, {OOB:#x}']
    g.ws_loop(name, NK, 2, True, VB, R, g.lag_seq(g.lag(name)), src_base, src_stride, src, 6 if isWO else 8, T, PL, D, so, off,
              pub_shift=0 if isWO else 1, late=dict(poff=vP2, loads=loads, code=20 if isWO else 21), pipe=True, mneed=mneed)

def softmax_l(S, T, P, sScale):
    o = [f'v_max3_f32 v{T+i}, v{S+3*i}, v{S+3*i+1}, v{S+3*i+2}' for i in range(4)]
    o += [f'v_max3_f32 v{T}, v{T}, v{T+1}, v{T+2}', f'v_max_f32 v{T}, v{T}, v{T+3}',
          f'v_mov_b32 v{T+1}, v{T}', '@brk', f'v_permlane16_swap_b32 v{T}, v{T+1}', f'v_max_f32 v{T}, v{T}, v{T+1}',
          f'v_mov_b32 v{T+1}, v{T}', '@brk', f'v_permlane32_swap_b32 v{T}, v{T+1}', f'v_max_f32 v{T}, v{T}, v{T+1}',
          f'v_mul_f32 v{T}, s{sScale}, v{T}']
    o += [f'v_fma_f32 v{S+i}, v{S+i}, s{sScale}, -v{T}' for i in range(12)]
    for i in range(12):
        o.append(f'v_exp_f32 v{S+i}, v{S+i}')
        if i >= 2 and i % 2 == 0: o.append(f'v_cvt_pk_bf16_f32 v{P+i//2-1}, v{S+i-2}, v{S+i-1}')
    o += ['@brk', f'v_cvt_pk_bf16_f32 v{P+5}, v{S+10}, v{S+11}']
    return o

def softmax(g, S, T, P, sScale):
    for t in softmax_l(S, T, P, sScale):
        if t != '@brk': g.a(t)

def softmax_sum(S, T):
    o = []
    for i in range(4): o += [f'v_add_f32 v{S+3*i}, v{S+3*i}, v{S+3*i+1}']
    for i in range(4): o += [f'v_add_f32 v{S+3*i}, v{S+3*i}, v{S+3*i+2}']
    o += [f'v_add_f32 v{S}, v{S}, v{S+3}', f'v_add_f32 v{S+6}, v{S+6}, v{S+9}', f'v_add_f32 v{T}, v{S}, v{S+6}',
          f'v_mov_b32 v{T+1}, v{T}', f'v_permlane16_swap_b32 v{T}, v{T+1}', f'v_add_f32 v{T}, v{T}, v{T+1}',
          f'v_mov_b32 v{T+1}, v{T}', f'v_permlane32_swap_b32 v{T}, v{T+1}', f'v_add_f32 v{T}, v{T}, v{T+1}',
          f'v_rcp_f32 v{T}, v{T}']
    return o

NEG = fbits(-1e30)

def role_at(g):
    a = g.a; c = g.c
    a('L_AT:')
    if 'DN' not in c.roles: g.near_side(0); g.near_side(1)
    aw, tq, hd = sC, sC + 1, sC + 2
    a(f's_lshl_b32 s{aw}, s{sIdx}, 2'); a(f's_add_u32 s{aw}, s{aw}, s{sW}'); a(f's_and_b32 s{tq}, s{sW}, 1'); a(f's_lshr_b32 s{hd}, s{aw}, 1')
    vMy, vMx = 4, 5
    g.my_flag(vMy, aw, 'O'); g.zero_flags(vMy)
    xs, cl = sC + 3, sC + 4
    a(f's_and_b32 s{xs}, s{aw}, 7'); a(f's_lshr_b32 s{cl}, s{aw}, 3')
    a(f's_lshl_b32 s{sT2}, s{xs}, 3'); a(f's_add_u32 s{sT2}, s{sT2}, s{cl}'); g.my_flag(vMx, sT2, 'XA')
    a(f'v_mov_b32 v1, s{cl}'); a(f'buffer_store_dword v1, v{vMx}, {WS}, 0 offen sc1')
    g.srd(12, P_X, 0x400000)
    vIn, vOut, vSt, D, T, X = 6, 7, 20, 24, 28, 32
    g.v_j(1); a('v_lshlrev_b32 v1, 11, v1'); g.v_g(2); a('v_lshlrev_b32 v2, 4, v2')
    a(f's_lshl_b32 s{sT0}, s{xs}, 8'); a(f'v_add3_u32 v{vIn}, v1, v2, s{sT0}')
    a(f's_mov_b32 s{sN}, s{cl}')
    reg = lambda b, ks, t: X + b * 32 + (ks * 2 + t) * 4
    def loads(b, ahead):
        for t in range(2):
            a(f's_lshl_b32 s{sT0}, s{sN}, 16'); a(f's_add_u32 s{sT0}, s{sT0}, {ahead*8*65536 + t*32768}')
            for ks in range(4):
                a(f'buffer_load_dwordx4 {v(reg(b,ks,t),4)}, v{vIn}, {W1}, s{sT0} offen offset:{ks*64}')
    def stores(b, k):
        for h in range(2):
            a(f's_lshl_b32 s{sT0}, s{sN}, 16'); a(f's_add_u32 s{sT0}, s{sT0}, {XA + k*8*65536 + h*4096:#x}')
            for i in range(4):
                a(f'buffer_store_dwordx4 {v(reg(b,2*h+i//2,i%2),4)}, v{vOut}, {WS}, s{sT0} offen offset:{i*1024} sc1')
        for t_ in g.row_stats([[reg(b, ks, t) + i for ks in range(4) for i in range(4)] for t in range(2)], D, f'v{T}'):
            if t_ != '@brk': a(t_)
        a(f's_lshl_b32 s{sT0}, s{sN}, 11'); a(f's_add_u32 s{sT0}, s{sT0}, {SA + k*8*2048:#x}')
        a(f'buffer_store_dword v{D}, v{vSt}, {WS}, s{sT0} offen sc1')
    def done(k):
        a(f's_add_u32 s{sT0}, s{sN}, {8*k+8}'); a(f's_min_u32 s{sT0}, s{sT0}, 64'); a(f'v_mov_b32 v{T+1}, s{sT0}')
        a(f'buffer_store_dword v{T+1}, v{vMx}, {WS}, 0 offen sc1')
    loads(0, 0)
    a(f's_lshl_b32 s{sT0}, s{xs}, 13'); a(f'v_lshlrev_b32 v1, 4, v0'); a(f'v_add_u32 v{vOut}, s{sT0}, v1')
    g.stat_store_addr(vSt, xs)
    a(f'v_mov_b32 v{T}, 0x3f803f80')
    g.arrive()
    stores(0, 0)
    for k in range(1, 5): loads(k, k)
    a('s_waitcnt vmcnt(32)'); done(0)
    a('s_waitcnt vmcnt(25)'); stores(1, 1); a('s_waitcnt vmcnt(26)'); stores(2, 2)
    loads(5, 5); loads(6, 6); loads(0, 7)
    a('s_waitcnt vmcnt(24)'); done(2)
    stores(3, 3); stores(4, 4)
    a('s_waitcnt vmcnt(19)'); stores(5, 5)
    a('s_waitcnt vmcnt(9)'); done(4)
    stores(6, 6); stores(0, 7)
    for t in g.start_look(8): a(t)
    a('s_waitcnt vmcnt(0)'); done(7)
    g.wait_start(8, 1, False)
    for t in g.stamp(5): a(t)
    if not {'QK', 'P'} <= c.roles: g.endpgm(); g.flush_tail(); return
    vL16, vT1, vKm, vVm, vTr, vPo, vPa, vPoll, vF = 6, 7, 8, 9, 10, 11, 12, 13, 14
    MK, Q, Q2, KXr, KMr, VXr, VMr, S, P, T, ONE, SUM, O, OUT = 16, 28, 44, 60, 92, 108, 140, 156, 168, 176, 180, 184, 188, 220
    sSc, sH13, sH12, sE, sE2, sLds, sFlN, sO = (sC + 5 + i for i in range(8))
    a('s_waitcnt vmcnt(0)')
    a(f'v_lshlrev_b32 v{vL16}, 4, v0')
    a(f's_cmp_eq_u32 s{tq}, 0'); a(f's_cselect_b32 s{sT0}, {OOB:#x}, 0'); a(f'v_add_u32 v{vT1}, s{sT0}, v{vL16}')
    g.v_g(1); a('v_lshlrev_b32 v1, 7, v1'); a('v_and_b32 v2, 7, v0'); a('v_lshlrev_b32 v2, 4, v2'); a(f'v_add_u32 v{vKm}, v1, v2')
    a('v_and_b32 v1, 31, v0'); a(f'v_lshlrev_b32 v{vVm}, 4, v1')
    a(f's_lshl_b32 s{sLds}, s{sW}, 13'); v_tr_addr(g, vTr); a(f'v_add_u32 v{vTr}, s{sLds}, v{vTr}')
    a(f's_lshl_b32 s{sT2}, s{hd}, 2'); g.poll_addr(vPo, sT2, 4, 'M')
    if c.QT == 4:
        a('v_and_b32 v1, 1, v0'); a(f's_lshl_b32 s{sT0}, s{hd}, 1'); a(f'v_add_u32 v1, s{sT0}, v1'); a(f'v_mul_u32_u24 v1, {c.FS}, v1')
        a(f'v_add_u32 v2, {FOFF["N"]}, v1'); g.expand(2); a('v_cmp_gt_u32 vcc, 4, v0'); a(f'v_cndmask_b32 v{vPo}, v2, v{vPo}, vcc')
    a('v_bfe_u32 v1, v0, 1, 2'); a('v_min_u32 v1, 2, v1'); a('v_lshlrev_b32 v1, 6, v1'); a('v_and_b32 v2, 1, v0'); a('v_add_u32 v1, v1, v2')
    a(f's_lshl_b32 s{sT0}, s{hd}, 1'); a(f'v_add_u32 v1, s{sT0}, v1'); a('v_mul_u32_u24 v1, 683, v1'); a('v_lshrrev_b32 v1, 11, v1')
    a(f'v_mul_u32_u24 v1, {g.c.FS}, v1'); a(f'v_add_u32 v2, {FOFF["P"]}, v1'); g.expand(2)
    a('v_cmp_gt_u32 vcc, 32, v0'); a(f'v_cndmask_b32 v{vPo}, v2, v{vPo}, vcc')
    assert FSIDE['P'] == FSIDE['M']
    g.to_side([(vMy, 'O'), (vPo, 'M')])
    a(f's_lshl_b32 s{sH13}, s{hd}, 13'); g.kvm_head(sH12, hd); g.kvm_side(sH12)
    g.v_j(1); a(f's_lshl_b32 s{sT0}, s{tq}, 4'); a(f'v_add_u32 v1, s{sT0}, v1')
    g.v_g(2); a('v_lshlrev_b32 v2, 2, v2'); a(f'v_mov_b32 v{vF}, {NEG}')
    for kt in range(2):
        for r in range(4):
            a(f'v_add_u32 v3, {16*kt+r}, v2'); a('v_cmp_gt_u32 vcc, v3, v1'); a(f'v_cndmask_b32 v{MK+4*kt+r}, 0, v{vF}, vcc')
    a('v_cmp_lt_u32 vcc, 31, v0')
    for r in range(4): a(f'v_cndmask_b32 v{MK+8+r}, 0, v{vF}, vcc')
    for i in range(4): a(f'v_mov_b32 v{ONE+i}, 0x3f803f80')
    a(f's_mov_b32 s{sSc}, {fbits(SOFTC)}'); a(f's_lshl_b32 s{tq}, s{tq}, 10')
    def early(srd):
        o = []
        for i in range(8):
            pre = [f's_lshl_b32 s{sE}, s{sNx}, 18', f's_add_u32 s{sE}, s{sE}, s{sH13}', f's_add_u32 s{sE}, s{sE}, {KX:#x}', f's_add_u32 s{sE2}, s{sE}, 4096'] if i == 0 else []
            o.append(pre + [f'buffer_load_dwordx4 {v(KXr+4*i,4)}, v{vT1 if i & 1 else vL16}, {srd}, s{sE if i < 4 else sE2} offen offset:{(i&3)*1024} sc1'])
        for es in range(4):
            pre = {0: [f's_sub_u32 s{sE2}, s{sE}, {KX-QX:#x}', f's_add_u32 s{sE2}, s{sE2}, s{tq}'], 2: [f's_add_u32 s{sE2}, s{sE2}, 4096']}.get(es, [])
            o.append(pre + [f'buffer_load_dwordx4 {v(Q+4*es,4)}, v{vL16}, {srd}, s{sE2} offen offset:{(es&1)*2048} sc1'])
        for hf in range(2):
            for i in range(4):
                pre = [f's_add_u32 m0, s{sLds}, {hf*4096}', f's_add_u32 s{sE2}, s{sE}, {VX-KX+hf*4096:#x}'] if i == 0 else []
                o.append(pre + [f'buffer_load_dwordx4 v{vT1 if i & 1 else vL16}, {srd}, s{sE2} offen offset:{i*1024} sc1 lds'])
        return o
    sN2 = 24
    def poll_prep(n, nx):
        for t in g.fl_of(n, sFl) + g.fl_of(nx, sFlN): a(t)
        a('s_mov_b32 vcc_lo, -1'); a('s_mov_b32 vcc_hi, 0')
        a(f'v_mov_b32 v1, s{sFlN}'); a(f'v_mov_b32 v2, s{sFl}'); a('v_cndmask_b32 v1, v1, v2, vcc'); a(f'v_add_u32 v{vPa}, v1, v{vPo}')
        a(f'v_mov_b32 v1, s{nx}'); a(f'v_mov_b32 v2, s{n}'); a(f'v_cndmask_b32 v{vF}, v1, v2, vcc')
    poll = f'buffer_load_dword v{vPoll}, v{vPa}, {WS}, 0 offen sc1'
    pub = f'buffer_store_dword v15, v{vMy}, {WS}, s{sPFl} offen sc1'
    for t in g.seq_init(g.lag('AT')): a(t)
    a(f's_mov_b32 s{sN}, 0'); a(f's_mov_b32 s{sNx}, 0'); a(f's_mov_b32 s{sPFl}, {OOB:#x}'); a('v_mov_b32 v15, 0')
    for t in g.next_n(sN2, sNx, g.lag('AT')): a(t)
    g.mini_init(236); g.light_start()
    a('LAT_slow:')
    poll_prep(sNx, sNx)
    a('LAT_slow2:')
    a(poll); a('s_waitcnt vmcnt(0)'); a(f'v_cmp_lt_u32 vcc, v{vF}, v{vPoll}'); a('s_cmp_eq_u32 vcc_hi, -1')
    a(f's_cbranch_scc0 {g.timeout(9, "LAT_slow2")}')
    for grp in early(WS):
        for t in grp: a(t)
    poll_prep(sNx, sN2); a(poll)
    a('s_waitcnt vmcnt(0)')
    a('.p2align 6'); a('LAT_top:')
    a(f's_mov_b32 s{sN}, s{sNx}'); a(f's_mov_b32 s{sNx}, s{sN2}')
    for t in g.stamp(0): a(t)
    for t in g.kvm_addr(sT2, sH12): a(t)
    def kvm():
        for es in range(4): a(f'buffer_load_dwordx4 {v(KMr+4*es,4)}, v{vKm}, {WS}, s{sT2} offen offset:{es*512} sc1')
        for i in range(4): a(f'buffer_load_dwordx4 {v(VMr+4*i,4)}, v{vVm}, {WS}, s{sT2} offen offset:{2048+i*512} sc1')
    def xpart(younger):
        a(f's_waitcnt vmcnt({younger + 4 + (2 if c.stamps else 0) + (1 if c.mini else 0)})')
        for et in range(8):
            for t in range(2): a(f'ds_read_b64_tr_b16 {v(VXr+4*et+2*t,2)}, v{vTr} offset:{(et>>1)*2048 + t*1024 + (et&1)*512}')
            es, kt = et >> 1, et & 1
            a(f'v_mfma_f32_16x16x32_bf16 {v(S+4*kt,4)}, {v(KXr+4*et,4)}, {v(Q+4*es,4)}, {v(MK+4*kt,4) if es == 0 else v(S+4*kt,4)}')
        for i in range(16): a(f'v_mov_b32 v{Q2+i}, v{Q+i}')
    a(f'v_cmp_lt_u32 vcc, v{vF}, v{vPoll}'); a('s_cmp_eq_u64 vcc, -1'); a('s_cbranch_scc0 LAT_look')
    for t in g.stamp(1) + g.mini_take(): a(t)
    kvm(); xpart(8); a('s_waitcnt lgkmcnt(0)'); a('s_branch LAT_go')
    a('LAT_look:')
    a(poll); xpart(1)
    a('s_waitcnt vmcnt(0) lgkmcnt(0)')
    a(pub)
    a(f'v_cmp_lt_u32 vcc, v{vF}, v{vPoll}'); a('s_cmp_eq_u32 vcc_lo, -1'); a('s_cbranch_scc1 LAT_seen')
    a('LAT_spin:')
    a(poll); a('s_waitcnt vmcnt(0)'); a(f'v_cmp_lt_u32 vcc, v{vF}, v{vPoll}'); a('s_cmp_eq_u32 vcc_lo, -1')
    a(f's_cbranch_scc0 {g.timeout(10, "LAT_spin")}')
    a('LAT_seen:')
    for t in g.stamp(1) + g.mini_take(): a(t)
    kvm()
    a('LAT_go:')
    a('s_cmp_eq_u32 vcc_hi, -1'); a(f's_cselect_b32 s10, {WS_BYTES:#x}, 0')
    a(f's_mov_b32 s{sT3}, s{sFl}')
    for t in g.next_n(sN2, sNx, g.lag('AT')): a(t)
    poll_prep(sNx, sN2)
    a(f's_lshl_b32 s{sO}, s{sN}, 18'); a(f's_add_u32 s{sO}, s{sO}, s{sH13}'); a(f's_add_u32 s{sO}, s{sO}, s{tq}'); a(f's_add_u32 s{sO}, s{sO}, {OX:#x}')
    E = early(WSC); NE0 = c.ATE
    for grp in E[:NE0]:
        for t in grp: a(t)
    E = E[NE0:]
    a(f's_waitcnt vmcnt({4 + NE0})')
    a(pub); a(poll)
    a(f's_add_u32 s{sT0}, s{sN}, 1'); a(f'v_mov_b32 v15, s{sT0}'); a(f's_mov_b32 s{sPFl}, s{sT3}'); a(f's_add_u32 s{sT1}, s{sO}, 4096')
    for t in g.stamp(2): a(t)
    body = [f'v_mfma_f32_16x16x32_bf16 {v(S+8,4)}, {v(KMr+4*es,4)}, {v(Q2+4*es,4)}, {v(MK+8,4) if es == 0 else v(S+8,4)}' for es in range(4)]
    body += [t for t in softmax_l(S, T, P, sSc) if t != '@brk']
    body.append(f'v_mfma_f32_16x16x32_bf16 {v(SUM,4)}, {v(ONE,4)}, {v(P,4)}, 0')
    body += [f'v_mfma_f32_16x16x32_bf16 {v(O+4*i,4)}, {v(VXr+4*i,4)}, {v(P,4)}, 0' for i in range(8)]
    body.append('@vm')
    body.append(f'v_mfma_f32_16x16x16_bf16 {v(SUM,4)}, {v(ONE,2)}, {v(P+4,2)}, {v(SUM,4)}')
    body += [f'v_mfma_f32_16x16x16_bf16 {v(O+4*i,4)}, {v(VMr+2*i,2)}, {v(P+4,2)}, {v(O+4*i,4)}' for i in range(8)]
    tt = 0; nxt = 0; n_e = NE0; step = 640 / max(len(E), 1)
    for t in body:
        if t == '@vm': t = f's_waitcnt vmcnt({2 + n_e})'
        a(t); tt += 16 if t.startswith('v_mfma') else 8 if t.startswith(('v_exp', 'v_perm')) else 4
        if E and tt >= nxt:
            for u in E.pop(0): a(u)
            n_e += 1; nxt += step
    for grp in E:
        for u in grp: a(u)
    a(f'v_rcp_f32 v{T}, v{SUM}')
    for h in range(4):
        for i in range(8 * h, 8 * h + 8, 2): a(f'v_pk_mul_f32 {v(O+i,2)}, {v(O+i,2)}, {v(T,2)} op_sel_hi:[1,0]')
        for i in range(4 * h, 4 * h + 4): a(f'v_cvt_pk_bf16_f32 v{OUT+i}, v{O+2*i}, v{O+2*i+1}')
        a(f'buffer_store_dwordx4 {v(OUT+4*h,4)}, v{vL16}, {WS}, s{sO if h < 2 else sT1} offen offset:{(h&1)*2048} sc1')
    for t in g.stamp(3): a(t)
    if c.mini: a('s_waitcnt lgkmcnt(0)')
    for t in g.mini_put(236): a(t)
    g.stamp_store(O, 4)
    a(f's_waitcnt vmcnt({20 - NE0 + 4 + (2 if c.stamps else 0) + (1 if c.mini else 0)})')
    a('s_cmp_lg_u32 s10, 0'); a('s_cbranch_scc1 LAT_top')
    a('s_waitcnt vmcnt(0)'); a(pub)
    a(f's_cmp_lt_u32 s{sNx}, {c.NEND}'); a('s_cbranch_scc1 LAT_slow')
    g.endpgm(); g.flush_tail()

def v_tr_addr(g, d):
    a = g.a
    a('v_bfe_u32 v1, v0, 1, 1'); a('v_lshlrev_b32 v1, 8, v1'); a('v_lshrrev_b32 v2, 2, v0'); a('v_lshlrev_b32 v2, 4, v2'); a('v_add_u32 v1, v1, v2')
    a('v_and_b32 v2, 1, v0'); a('v_lshlrev_b32 v2, 3, v2'); a(f'v_add_u32 v{d}, v1, v2')

def emit(g):
    r = g.c.roles
    if 'GU' in r: role_gu(g)
    if 'WO' in r: role_proj(g, 'WO', False); role_proj(g, 'WO', True)
    if 'DN' in r: role_proj(g, 'DN', False); role_proj(g, 'DN', True)
    if 'AT' in r: role_at(g)
    import roles3
    roles3.emit(g)
```

```python
from gen import *
from roles2 import NEG, v_tr_addr

VB = 96
RESW = 24576
STG = 98304
sR0, sStage, sWb = sC, sC + 1, sC + 2
sN1, sN2 = sNx, sC + 3

class Lg:
    def __init__(s, a): s.a = a; s.q = []
    def rd(s, tag, text): s.q.append(tag); return text
    def wait(s, tag):
        if tag not in s.q: return None
        i = len(s.q) - 1 - s.q[::-1].index(tag)
        n = len(s.q) - 1 - i; s.q = s.q[i + 1:]
        assert n <= 15
        return f's_waitcnt lgkmcnt({n})'

def glue(l):
    o = []
    for t in l:
        if t.startswith('s_cselect'): o[-1] += '\n' + t
        else: o.append(t)
    return o

def frag_map(resident, nsteps, ntiles):
    m = {}; r = 0; l = 0
    for st in range(nsteps):
        for n in range(ntiles):
            if resident(st, n): m[st, n] = ('l', l); l += 1
            else: m[st, n] = ('r', r); r += 8
    assert l == 12 and r == 416
    return m

def chain_setup(g, vIdx, vL16, vRes):
    a = g.a
    a(f's_mul_i32 s{sR0}, s{sG}, {RING_SZ:#x}'); a(f's_add_u32 s{sR0}, s{sR0}, {RING:#x}')
    a(f's_lshl_b32 s{sStage}, s{sW}, 14'); a(f's_add_u32 s{sStage}, s{sStage}, {STG}')
    a(f'v_lshlrev_b32 v{vL16}, 4, v0')
    a(f's_mul_i32 s{sT0}, s{sW}, {RESW}'); a(f'v_add_u32 v{vRes}, s{sT0}, v{vL16}')
    a('v_mov_b32 v1, 0x4444'); a('v_mov_b32 v2, 0xeeee'); a('v_and_b32 v3, 8, v0'); a('v_cmp_eq_u32 vcc, 0, v3')
    a(f'v_cndmask_b32 v{vIdx}, v2, v1, vcc')

def poison_init(g, vAddr, sOff, sub, slot_bytes, width, first=0):
    a = g.a
    for i in range(4): a(f'v_mov_b32 v{16+i}, -1')
    for l in range(2):
        for sl in range(first, 4):
            a(f's_add_u32 s{sT0}, s{sR0}, {l*2*RING_SZ + sub + sl*slot_bytes:#x}'); a(f's_add_u32 s{sT0}, s{sT0}, s{sOff}')
            a(f'buffer_store_dwordx{width} {v(16,width)}, v{vAddr}, {WS}, s{sT0} offen sc1')

def chain_load(g, fm, chunk_src, nsteps, nquads, vRes, rowmap, grow, pitch):
    a = g.a
    vA, vTr, TMPR = 20, 21, 24
    a('v_lshrrev_b32 v1, 3, v0'); a(f'v_mul_u32_u24 v1, {pitch}, v1')
    a('v_and_b32 v2, 7, v0'); a('v_lshlrev_b32 v2, 4, v2'); a(f'v_add_u32 v{vA}, v1, v2')
    g.tr_addr(vTr, 128, 0, 8, sStage, chain=rowmap)
    chunks = []
    for st in range(nsteps):
        for p in range(nquads):
            for hq in range(2):
                pre, sb, imm = chunk_src(st, p)
                ch = dict(pre=pre if hq == 0 else [], dma=[(W1, vA, sb, imm + grow(hq, i) * pitch) for i in range(4)], reads=[], post=[])
                for k in range(4):
                    kind, idx = fm[st, 4 * p + k]
                    for q in range(2):
                        dest = wreg(idx + 4 * hq + 2 * q, 2, VB) if kind == 'r' else v(TMPR + 4 * k + 2 * q, 2)
                        ch['reads'].append((dest, vTr, 2 * q * 128 + k * 32))
                    if kind == 'l':
                        ch['post'].append(f'ds_write_b128 v{vRes}, {v(TMPR+4*k,4)} offset:{idx*2048+hq*1024}')
                if ch['post']: ch['post'].append('s_waitcnt lgkmcnt(0)')
                chunks.append(ch)
    g.load_weights(chunks, 4, 4096, sStage)

def pick_mode(g, name):
    a = g.a
    g.wait_start(48, 1, False)
    a(f's_add_u32 s{sRdy}, s{sRound}, 1')
    for t in g.seq_init(g.c.L): a(t)
    g.light_start()
    a('s_barrier')

sX = 24

def ring_calc(n, base, s15=None, s15x=None, s14=None, add14=0, s14x=None):
    o = [f's_cmp_lt_u32 s{n}, 64', f's_cselect_b32 s{base}, 0, {2*RING_SZ:#x}', f's_add_u32 s{base}, s{base}, s{sR0}']
    if s15 is not None:
        o += [f's_and_b32 s{s15}, s{n}, 3', f's_lshl_b32 s{s15}, s{s15}, 15']
        if s15x is not None: o += [f's_xor_b32 s{s15x}, s{s15}, 0x10000', f's_add_u32 s{s15x}, s{s15x}, s{base}']
        o += [f's_add_u32 s{s15}, s{s15}, s{base}']
    if s14 is not None:
        o += [f's_add_u32 s{s14}, s{n}, {add14}', f's_and_b32 s{s14}, s{s14}, 3'] if add14 else [f's_and_b32 s{s14}, s{n}, 3']
        o += [f's_lshl_b32 s{s14}, s{s14}, 14']
        if s14x is not None: o += [f's_xor_b32 s{s14x}, s{s14}, 0x8000', f's_add_u32 s{s14x}, s{s14x}, s{base}']
        o += [f's_add_u32 s{s14}, s{s14}, s{base}']
    return o

def check4(t, d):
    return [f'v_max3_u32 v{t}, v{d}, v{d+1}, v{d+2}', f'v_max_u32 v{t}, v{t}, v{d+3}', f'v_cmp_eq_u32 vcc, -1, v{t}']

def tick(g, code):
    lab = g.a.lab('to')
    g.tail.append([f'{lab}:', f's_mov_b32 s{sCode}, {code}', 's_branch L_fail'])
    return [f's_add_u32 s{sTO}, s{sTO}, 1', f's_cmp_ge_u32 s{sTO}, {g.c.TIMEOUT}', f's_cbranch_scc1 {lab}']

def gm_loads(G, vL16, sMem, lo, hi):
    return [f'buffer_load_dwordx4 {v(G+4*i,4)}, v{vL16}, {WS}, s{sMem} offen offset:{i*1024} sc1' for i in range(lo, hi)]

def gm_check(G, T, lo, hi, younger):
    o = []
    for i in range(lo, hi):
        o.append(f's_waitcnt vmcnt({hi-1-i+younger})')
        d = G + 4 * i
        if i == lo: o += [f'v_max3_u32 v{T}, v{d}, v{d+1}, v{d+2}', f'v_max_u32 v{T}, v{T}, v{d+3}']
        else: o += [f'v_max3_u32 v{T}, v{T}, v{d}, v{d+1}', f'v_max3_u32 v{T}, v{T}, v{d+2}, v{d+3}']
    o.append(f'v_cmp_eq_u32 vcc, -1, v{T}')
    return o

def step_order(NP):
    return [(q, i) for q in range(4) for i in range(NP)] + [(q, i) for q in range(4) for i in range(NP, 4)]

def w_pre(WB, vRes):
    return [f'ds_read_b128 {v(WB+8*u+4*hh,4)}, v{vRes} offset:{u*2048+hh*1024}' for u in range(2) for hh in range(2)]

def proj16_old(g, fm, ACC, G, AF, WB, vIdx, vStg, vRes, vT, vC, vL16, sMem, code, reads, extra, endfill, fold):
    a = g.a; lg = Lg(a); NP = g.c.NP
    order = step_order(NP)
    oth = [st for st in range(16) if order[st][0]]
    af = lambda st: v(G + 4 * order[st][1], 4) if order[st][0] == 0 else v(AF + 4 * (oth.index(st) % 3), 4)
    def mm(st, n):
        kind, idx = fm[st, n]
        B = wreg(idx, 8, VB) if kind == 'r' else v(WB + 8 * (idx % 2), 8)
        return f'v_smfmac_f32_16x16x64_bf16 {v(ACC+4*n,4)}, {af(st)}, {B}, v{vIdx}'
    cur = [None]
    def xr(st):
        q = order[st][0]
        if cur[0] == q: return []
        cur[0] = q; return [f'v_xor_b32 v{vT}, {q<<12}, v{vStg}']
    rdA = lambda st: xr(st) + [('A', st, f'ds_read_b128 {af(st)}, v{vT} offset:{order[st][1]*1024}')]
    rdW = lambda st: [('W', st, f'ds_read_b128 {v(WB+8*((st-1)%2)+4*hh,4)}, v{vRes} offset:{(st-1)*2048+hh*1024}') for hh in range(2)]
    wr = lambda i: ('S', i, f'ds_write_b128 v{vStg}, {v(G+4*i,4)} offset:{i*1024}')
    seq = [(st, n) for st in range(13) for n in (0, 2, 1, 3)] + [(st, n) for p in range(2) for st in (13, 14, 15) for n in (p, p + 2)]
    lastuse = {}
    for pos, (st, n) in enumerate(seq): lastuse[st] = pos
    B1 = {1: 3, 2: 5, 4: 7}[NP]
    CK, B2 = g.c.CK, g.c.B2
    fixed = {}
    def put(pos, items): fixed.setdefault(pos, []).extend(items)
    for i in range(NP): put(i, [wr(i)])
    late = gm_loads(G, vL16, sMem, NP, 4)
    for k, t in enumerate(late): put(k if NP == 2 else 2 * k, [t])
    put(B1 - 1, xr(oth[0]))
    put(B1, [('wait', 'S', NP - 1), 's_barrier'] + (g.stamp(5) if g.c.fine else []))
    q = []
    if NP < 4:
        lb, lc = a.lab('lf'), a.lab('lfc')
        ck = gm_check(G, vC, NP, 4, 0)
        ck = [t for t in ck if not t.startswith('s_waitcnt')]
        g.tail.append([f'{lb}:'] + late + tick(g, code) + ['s_waitcnt vmcnt(0)'] + ck + [f's_cbranch_vccz {lc}', f's_branch {lb}'])
        q = [(CK, t) for t in ['@late'] + ck + [f's_cbranch_vccnz {lb}\n{lc}:'] + [wr(i) for i in range(NP, 4)]]
        q += [(B2, ('wait', 'S', 3)), (B2, 's_barrier')]
    q2 = list(extra); lastvm = max([p for p in fixed if any(t in late for t in fixed[p])] + [-9]); nvm = 0
    reads = list(reads); endfill = list(endfill)
    f0 = fold(0, False)
    nA = 0; bar2 = NP == 4; checked = NP == 4
    def emit(t):
        if isinstance(t, tuple):
            if t[0] == 'wait':
                w = lg.wait((t[1], t[2]))
                if w: a(w)
            else: a(lg.rd((t[0], t[1]), t[2]))
        else: a(t)
    def drain(cond):
        nonlocal bar2, checked
        while q and cond():
            t = q.pop(0)[1]
            if t == '@late':
                assert not any('vcc' in x[1] or 'scc' in x[1] for x in q2)
                t = f's_waitcnt vmcnt({nvm})'
            emit(t)
            if t == 's_barrier': bar2 = True
            if isinstance(t, str) and t.startswith('s_cbranch_vccnz'): checked = True
    lg.q = [('W', 1), ('W', 1), ('W', 2), ('W', 2)]
    for pos, (st, n) in enumerate(seq):
        k = pos % 4; stp = pos // 4
        if order[st][0] == 0 and order[st][1] >= NP: drain(lambda: not checked)
        if order[st][0] and oth.index(st) >= nA:
            if order[st][1] >= NP: drain(lambda: not bar2)
            for t in rdA(st): emit(t)
            nA += 1
        tags = [('A', st)]
        if fm[st, n][0] == 'l': tags += [('W', st), ('A', st + 1)]
        best = None
        for t in tags:
            if t in lg.q and (best is None or lg.q.index(t) > lg.q.index(best)): best = t
        if best == ('A', st + 1) and lg.q.index(best) >= len(lg.q) - 2: best = ('W', st) if ('W', st) in lg.q else None
        if best: a(lg.wait(best))
        a(mm(st, n))
        f = list(fixed.get(pos, []))
        if 2 <= stp <= 11 and k == 0: f += rdW(stp + 1)
        room = 2 - (1 if (k == 2 and 1 <= stp <= 12) else 0)
        for t in f: emit(t)
        room -= len(f)
        while pos >= B1 and nA < len(oth) and (room > 0 or pos == B1) and (nA < 3 or lastuse[oth[nA - 3]] <= pos) and \
                (order[oth[nA]][1] < NP or bar2):
            r = rdA(oth[nA])
            for t in r: emit(t)
            nA += 1; room -= len(r)
            if pos == B1: break
        while room > 0 and pos > B1 and reads and reads[0][0] <= pos:
            emit(('X', pos, reads.pop(0)[1])); room -= 1
        cnt = [room]
        def more():
            if cnt[0] <= 0 or q[0][0] > pos: return False
            cnt[0] -= 1; return True
        drain(more); room = cnt[0]
        while room > 0 and q2 and q2[0][0] <= pos:
            if q2[0][1].startswith('buffer_'):
                if pos < lastvm + g.c.XS: break
                lastvm = pos; nvm += 1
            a(q2.pop(0)[1]); room -= 1
        if 57 <= pos <= 59:
            while room > 0: a(endfill.pop(0) if endfill else 's_nop 0'); room -= 1
        if pos >= 60:
            while room > 0 and f0: a(f0.pop(0)); room -= 1
    assert not reads and not q and not q2, (reads, q, q2)
    for t in f0 + endfill + fold(1, True): a(t)

def proj16(g, fm, ACC, G, AF, WB, vIdx, vStg, vRes, vT, vC, vL16, sMem, code, reads, extra, endfill, fold):
    if g.c.NP != 4 or 'oldp' in g.c.x:
        return proj16_old(g, fm, ACC, G, AF, WB, vIdx, vStg, vRes, vT, vC, vL16, sMem, code, reads, extra, endfill, fold)
    a = g.a; lg = Lg(a)
    af = lambda st: v(G + 4 * st, 4) if st < 4 else v(AF + 4 * (st % 3), 4)
    def mm(st, n):
        kind, idx = fm[st, n]
        B = wreg(idx, 8, VB) if kind == 'r' else v(WB + 8 * (idx % 2), 8)
        return f'v_smfmac_f32_16x16x64_bf16 {v(ACC+4*n,4)}, {af(st)}, {B}, v{vIdx}'
    xr = lambda q: f'v_xor_b32 v{vT}, {q<<12}, v{vStg}'
    rdA = lambda st: ('A', st, f'ds_read_b128 {af(st)}, v{vT} offset:{(st&3)*1024}')
    rdW = lambda st, hh: ('W', st, f'ds_read_b128 {v(WB+8*((st-1)%2)+4*hh,4)}, v{vRes} offset:{(st-1)*2048+hh*1024}')
    seq = [(st, n) for st in range(13) for n in (0, 2, 1, 3)] + [(st, n) for p in range(2) for st in (13, 14, 15) for n in (p, p + 2)]
    fixed = {i: ('S', i, f'ds_write_b128 v{vStg}, {v(G+4*i,4)} offset:{i*1024}') for i in range(4)}
    fixed.update({5: xr(1), 7: rdA(4), 10: rdA(5), 11: rdA(6), 22: xr(2), 38: xr(3)})
    for st in range(2, 12): fixed[4 * st] = rdW(st + 1, 0); fixed[4 * st + 1] = rdW(st + 1, 1)
    for st in range(4, 13): fixed[4 * st + 3] = rdA(st + 3)
    reads = list(reads); q = list(extra); endfill = list(endfill); f0 = fold(0, False)
    scal = lambda t: t.startswith('s_')
    def emit(t):
        if isinstance(t, tuple): a(lg.rd((t[0], t[1]), t[2]))
        else: a(t)
    lg.q = [('W', 1), ('W', 1), ('W', 2), ('W', 2)]
    def waits(st, n):
        tags = [('A', st)] + ([('W', st)] if fm[st, n][0] == 'l' else [])
        best = None
        for t in tags:
            if t in lg.q and (best is None or lg.q.index(t) > lg.q.index(best)): best = t
        return [lg.wait(best)] if best else []
    for pos, (st, n) in enumerate(seq):
        a(mm(st, n))
        sc = []
        if pos == 6: sc = ['s_waitcnt lgkmcnt(0)']; lg.q = []
        if pos == 7: sc = ['s_barrier'] + (g.stamp(5) if g.c.fine else [])
        if pos + 1 < len(seq): sc += waits(*seq[pos + 1])
        for t in sc: a(t)
        ns = 2 - len(sc)
        while ns > 0 and q and q[0][0] <= pos and scal(q[0][1]): a(q.pop(0)[1]); ns -= 1
        if 57 <= pos <= 59: a('s_nop 0')
        if pos in fixed: emit(fixed[pos])
        elif q and q[0][0] <= pos and not scal(q[0][1]): a(q.pop(0)[1])
        elif reads and pos > 15 and (len(reads) > 4 or not q or g.c.QT == 3): emit(('X', pos, reads.pop(0)[1]))
        elif pos >= 60 and f0: a(f0.pop(0))
        elif pos > 51 and endfill: a(endfill.pop(0))
    assert not q, q
    for p_, t in reads: a(t)
    for t in f0 + endfill + fold(1, True): a(t)

def fold_add(x, y, packed):
    o = [f'v_permlane32_swap_b32 v{x+r}, v{y+r}' for r in range(4)]
    if packed: return o + [f'v_pk_add_f32 {v(x+r,2)}, {v(x+r,2)}, {v(y+r,2)}' for r in (0, 2)]
    return o + [f'v_add_f32 v{x+r}, v{x+r}, v{y+r}' for r in range(4)]

def mem_weights(g, vRes, sCol):
    fm = frag_map(lambda st, n: 1 <= st <= 12 and n == 3, 16, 4)
    def src(st, p):
        q, i = step_order(g.c.NP)[st]
        pre = [f's_xor_b32 s{sWb}, s{sW}, {q}', f's_lshl_b32 s{sWb}, s{sWb}, 21', f's_add_u32 s{sWb}, s{sWb}, s{sCol}']
        return pre, sWb, i * 64 * 8192
    chain_load(g, fm, src, 16, 1, vRes, (16, 4, 8), lambda hq, i: 32 * hq + 8 * i, 8192)
    g.loaded()
    return fm

def role_qk(g):
    a = g.a; c = g.c
    a('L_QK:')
    a(f's_cmp_lt_u32 s{sW}, 2'); a(f's_cselect_b32 s{P_WQ}, s{P_WQ}, s{P_WK}'); a(f's_cselect_b32 s{P_WQ+1}, s{P_WQ+1}, s{P_WK+1}')
    g.srd(12, P_WQ, 0x800000)
    vIdx, vL16, vStg, vRes, vXw, vXr, vOst, vKm, vVm, vPoff, vMy, vPoll, vMask = 5, 6, 7, 8, 9, 10, 11, 12, 13, 14, 15, 4, 3
    vT0, vT1, vVt, vT2 = 0, 1, 2, 81
    ACC, G, AF, WB, KX2, VMf = 16, 32, 48, 60, 76, 92
    F, S, VXf, P, T2, O, OUT, PZ = 48, 64, 16, 24, 30, 48, 56, 60
    KVB, EXC = 114688, 147456
    hw, cO, cV, sKV, sW8, sW12, sFv, cK, cM, sW11 = (sC + 4 + i for i in range(10))
    sMem, sVm, sO, sOp, sKm, sDk, sDv, sMk, sB = (sX + i for i in range(9))
    sSc, sMemN, sFl2, sPF2, sKok = sX + 10, sX + 12, sX + 13, sX + 14, sX + 15
    chain_setup(g, vIdx, vL16, vRes)
    a(f's_lshl_b32 s{hw}, s{sG}, 4'); a(f's_add_u32 s{hw}, s{hw}, s{sIdx}'); a(f's_lshl_b32 s{hw}, s{hw}, 2'); a(f's_add_u32 s{hw}, s{hw}, s{sW}')
    g.my_flag(vMy, hw, 'M'); g.zero_flags(vMy)
    g.v_g(1); a('v_lshlrev_b32 v1, 8, v1'); a('v_and_b32 v2, 7, v0'); a('v_lshlrev_b32 v2, 4, v2'); a('v_add_u32 v1, v1, v2')
    a(f'v_mov_b32 v3, {OOB:#x}'); a('v_and_b32 v4, 8, v0'); a('v_cmp_eq_u32 vcc, 0, v4')
    a(f'v_cndmask_b32 v{vOst}, v1, v3, vcc')
    g.v_g(1); a('v_lshlrev_b32 v1, 7, v1'); a('v_add_u32 v1, v1, v2'); a(f'v_cndmask_b32 v{vKm}, v3, v1, vcc')
    a(f's_lshl_b32 s{cO}, s{sIdx}, 11'); a(f's_lshr_b32 s{sT0}, s{sW}, 1'); a(f's_lshl_b32 s{sT0}, s{sT0}, 10'); a(f's_add_u32 s{cO}, s{cO}, s{sT0}')
    a(f's_and_b32 s{sT0}, s{sW}, 1'); a(f's_lshl_b32 s{sT0}, s{sT0}, 7'); a(f's_add_u32 s{cO}, s{cO}, s{sT0}')
    poison_init(g, vOst, cO, R_OM, 0x8000, 4)
    g.arrive(chain=True)
    a(f's_add_u32 s{cO}, s{cO}, {R_OM:#x}')
    a(f's_lshr_b32 s{cK}, s{hw}, 2'); a(f's_lshl_b32 s{cK}, s{cK}, 8'); a(f's_and_b32 s{sT0}, s{sW}, 1'); a(f's_lshl_b32 s{sT0}, s{sT0}, 7')
    a(f's_add_u32 s{cK}, s{cK}, s{sT0}')
    fm = mem_weights(g, vRes, cK)
    a(f's_lshl_b32 s{sW12}, s{sW}, 12'); a(f's_lshl_b32 s{sW11}, s{sW}, 11')
    a(f's_add_u32 s{sT0}, s{sW12}, {STG}'); a(f'v_add_u32 v{vStg}, s{sT0}, v{vL16}')
    def exbase(src_):
        a(f'v_lshlrev_b32 v1, 10, v{src_}'); a(f'v_and_b32 v3, 1, v{src_}'); a('v_lshlrev_b32 v3, 5, v3'); a('v_add_u32 v1, v1, v3')
        a(f'v_lshrrev_b32 v3, 1, v{src_}'); a('v_lshlrev_b32 v3, 7, v3'); a('v_add_u32 v1, v1, v3')
    a('v_bfe_u32 v2, v0, 4, 1'); a(f's_and_b32 s{sT0}, s{sW}, 2'); a(f's_xor_b32 s{sT0}, s{sT0}, 2'); a(f'v_add_u32 v2, s{sT0}, v2')
    exbase(2); a('v_and_b32 v2, 47, v0'); a('v_lshlrev_b32 v2, 3, v2')
    a(f's_and_b32 s{sT0}, s{sW}, 1'); a(f's_lshl_b32 s{sT0}, s{sT0}, 9'); a(f's_add_u32 s{sT0}, s{sT0}, {EXC}'); a(f'v_add3_u32 v{vXw}, v1, v2, s{sT0}')
    a('v_and_b32 v2, 3, v0'); exbase(2); g.v_g(2); a('v_lshlrev_b32 v2, 6, v2'); a('v_add_u32 v1, v1, v2')
    a('v_bfe_u32 v2, v0, 2, 2'); a('v_lshlrev_b32 v2, 3, v2'); a('v_add_u32 v1, v1, v2'); a(f'v_add_u32 v{vXr}, {EXC}, v1')
    a('v_and_b32 v1, 31, v0'); a(f'v_lshlrev_b32 v{vVm}, 4, v1')
    a(f's_lshl_b32 s{cV}, s{sIdx}, 2'); a(f's_add_u32 s{cV}, s{cV}, s{sW}'); a(f's_lshl_b32 s{cV}, s{cV}, 9'); a(f's_add_u32 s{cV}, s{cV}, {R_VML:#x}')
    a(f's_lshl_b32 s{cK}, s{hw}, 11'); a(f's_add_u32 s{cK}, s{cK}, {KX:#x}')
    a(f's_lshr_b32 s{cM}, s{hw}, 2'); g.kvm_head(cM, cM); a(f's_lshl_b32 s{sT0}, s{sW}, 9'); a(f's_add_u32 s{cM}, s{cM}, s{sT0}')
    a('v_and_b32 v1, 1, v0'); a('v_lshlrev_b32 v1, 6, v1'); a(f's_lshr_b32 s{sT0}, s{hw}, 1'); a(f's_add_u32 s{sT0}, s{sT0}, 64'); a(f'v_add_u32 v1, s{sT0}, v1')
    a('v_mul_u32_u24 v1, 683, v1'); a('v_lshrrev_b32 v1, 11, v1'); a(f'v_mul_u32_u24 v1, {g.c.FS}, v1')
    a(f'v_add_u32 v{vPoff}, {FOFF["P"]}, v1'); g.expand(vPoff)
    v_tr_addr(g, vVt); a(f'v_add_u32 v{vVt}, s{sW11}, v{vVt}')
    a(f'v_mov_b32 v1, {NEG}'); a('v_cmp_lt_u32 vcc, 31, v0'); a(f'v_cndmask_b32 v{vMask}, 0, v1, vcc')
    a(f's_mov_b32 s{sSc}, {fbits(SOFTC)}'); a(f's_mov_b32 s{sSc+1}, s{sSc}'); a(f's_lshl_b32 s{sW8}, s{sW}, 8')
    pick_mode(g, 'QK')
    g.to_side([(vMy, 'M'), (vPoff, 'P')]); g.kvm_side(cM)
    def kv_prep(n):
        return [f's_lshl_b32 s{sDk}, s{n}, 18', f's_add_u32 s{sDk}, s{sDk}, s{cK}', f's_cmp_lt_u32 s{n}, {c.NEND}',
                f's_cselect_b32 s{sDk}, s{sDk}, {OOB:#x}', f's_add_u32 s{sDv}, s{sDk}, {VX-KX:#x}',
                f's_sub_u32 s{sMk}, {2*KVB+16384}, s{sKV}', f's_add_u32 s{sMk}, s{sMk}, s{sW11}']
    kv_dma = [f's_mov_b32 m0, s{sMk}',
              f'buffer_load_dwordx4 v{vL16}, {WS}, s{sDk} offen sc1 lds',
              f'buffer_load_dwordx4 v{vL16}, {WS}, s{sDk} offen offset:1024 sc1 lds',
              f's_add_u32 m0, s{sMk}, 8192',
              f'buffer_load_dwordx4 v{vL16}, {WS}, s{sDv} offen sc1 lds',
              f'buffer_load_dwordx4 v{vL16}, {WS}, s{sDv} offen offset:1024 sc1 lds']
    def need0(n):
        return g.fl_of(n, sFl) + [f's_cmp_lt_u32 s{n}, {c.NEND}', f's_cselect_b32 s{sNeed}, s{n}, 0']
    def phase_scalars():
        return ring_calc(sN, sB, s15=sO, s15x=sOp) + [f's_add_u32 s{sVm}, s{sO}, s{cV}', f's_add_u32 s{sO}, s{sO}, s{cO}',
                f's_add_u32 s{sOp}, s{sOp}, s{cO}'] + (g.kvm_addr(sKm, cM) if c.QT == 4 else []) + kv_prep(sN1) + need0(sN1) + g.next_n(sN2, sN1, c.L) + g.fl_of(sN2, sFl2) + \
               ring_calc(sN1, sB, s14=sMemN) + [f's_add_u32 s{sMemN}, s{sMemN}, s{sW12}', f'v_add_u32 v{vT1}, s{sKV}, v{vL16}']
    a(f's_mov_b32 s{sN}, 0'); a(f's_mov_b32 s{sKV}, {KVB+16384}')
    for t in need0(sN): a(t)
    g.spin_flags(vPoll, vPoff, sNeed, sFl, 11)
    for t in kv_prep(sN) + kv_dma: a(t)
    a(f's_mov_b32 s{sKV}, {KVB}')
    for t in g.next_n(sN1, sN, c.L): a(t)
    a(f's_mov_b32 s{sPFl}, {OOB:#x}'); a(f's_mov_b32 s{sPF2}, {OOB:#x}'); a(f's_mov_b32 s{sKm}, {OOB:#x}'); a(f's_mov_b32 s{sFv}, 0')
    for t in w_pre(WB, vRes) + [f'v_mov_b32 v{ACC+i}, 0' for i in range(16)] + phase_scalars(): a(t)
    a(f'buffer_load_dword v{vPoll}, v{vPoff}, {WS}, s{sFl} offen sc1')
    a(f's_add_u32 s{sMem}, s{sR0}, s{sW12}'); a(f's_mov_b32 s{sKok}, 0'); a('s_mov_b32 s10, 0')
    a(f's_cmp_lg_u32 s{sRdy}, 1'); a('s_cbranch_scc1 LQK_poll_s')
    for mode in ('f', 's'):
        LS = '' if mode == 'f' else ' sc1'
        POLL, GO = f'LQK_poll_{mode}', f'LQK_go_{mode}'
        a('.p2align 6'); a(f'{POLL}:')
        if 'slqk' in c.x: a('s_sleep 2')
        if c.PPQ:
            for t in gm_loads(G, vL16, sMem, 0, c.NP): a(t)
            a(f's_nop {c.PPQ}'); a(f's_nop {c.PPQ}'); a(f'{POLL}2:')
        for t in gm_loads(G, vL16, sMem, 0, c.NP) + tick(g, 12) + gm_check(G, vT0, 0, c.NP, c.NP if c.PPQ else 0): a(t)
        a(f's_cbranch_vccnz {POLL}' + ('2' if c.PPQ else ''))
        a(f'{GO}:')
        for t in g.stamp(1): a(t)
        lk, lk2 = a.lab('kvs'), a.lab('kvc')
        pub = f'buffer_store_dword v{vT2}, v{vMy}, {WS}, s{sPFl} offen sc1'
        kvm_st = [f'buffer_store_dwordx4 {v(VMf,4)}, v{vVm}, {WS}, s{sKm} offen offset:2048 sc1',
                  f'buffer_store_dwordx4 {v(KX2,4)}, v{vKm}, {WS}, s{sKm} offen sc1']
        poll = f'buffer_load_dword v{vPoll}, v{vPoff}, {WS}, s{sFl2} offen sc1'
        extra = [(2, t) for t in [f'v_cmp_lt_u32 vcc, s{sNeed}, v{vPoll}', kv_dma[0], 's_cmp_eq_u64 vcc, -1', f's_cbranch_scc0 {lk}\n{lk2}:']]
        kvd = kv_dma
        if c.KLB: extra = [(2, kv_dma[0])]; kvd = [t.replace(WS, WSC) for t in kv_dma]
        extra += sorted([(c.QM, t) for t in kvd[1:] + [poll]] + [(c.QS, t) for t in (kvm_st + [pub], kvm_st, [], [], [])[c.QT]], key=lambda x: x[0])
        if c.QT == 4: extra.insert(0, (2, pub))
        if c.QT == 2: extra += [(30, 's_waitcnt vmcnt(5)'), (30, pub)]
        if c.QT == 3:
            extra = [(2, f's_cmp_lg_u32 s{sKok}, 0'), (2, f's_cbranch_scc0 {lk}\n{lk2}:'), (2, kv_dma[0])] + [(4, t) for t in kvm_st] + \
                    [(8, t) for t in kv_dma[1:] + [poll, f'v_mov_b32 v{VMf}, s{sFv}']] + \
                    [(c.QP, 's_waitcnt vmcnt(5)'), (c.QP, pub.replace(f'v{vT2},', f'v{VMf},').replace(f's{sPFl} ', f's{sPF2} '))]
        if c.KLB:
            lk3, lk4 = a.lab('kvs2'), a.lab('kvs3')
            look = [f'buffer_load_dword v{vT0}, v{vPoff}, {WS}, s{sFl} offen sc1', 's_waitcnt vmcnt(0)',
                    f'v_cmp_lt_u32 vcc, s{sNeed}, v{vT0}', 's_cmp_eq_u64 vcc, -1']
            g.tail.append([f'{lk}:'] + look + [f's_cbranch_scc1 {lk4}', pub, f'{lk3}:'] + look + [f's_cbranch_scc0 {g.timeout(13, lk3)}', f'{lk4}:'] +
                          kv_dma + [f's_branch {lk2}'])
        else:
            g.tail.append([f'{lk}:', f'buffer_load_dword v{vPoll}, v{vPoff}, {WS}, s{sFl} offen sc1', 's_waitcnt vmcnt(0)',
                           f'v_cmp_lt_u32 vcc, s{sNeed}, v{vPoll}', 's_cmp_eq_u64 vcc, -1', f's_cbranch_scc1 {lk2}',
                           f's_branch {g.timeout(13, lk)}'])
        kxr = lambda i: (G + 4 * i) if i < 4 else (KX2 + 4 * (i - 4))
        reads = [(p, f'ds_read_b128 {v(kxr(i),4)}, v{vT1} offset:{i*1024}') for p, i in
                 ((46, 0), (48, 1), (50, 2), (52, 3), (53, 4), (54, 5), (55, 6), (56, 7))]
        def fold(p, packed):
            x, y = ACC + 4 * p, ACC + 8 + 4 * p
            return fold_add(x, y, packed) + \
                   [f'v_cvt_pk_bf16_f32 v{y}, v{x}, v{x+1}', f'v_cvt_pk_bf16_f32 v{y+1}, v{x+2}, v{x+3}', f'ds_write_b64 v{vXw}, {v(y,2)} offset:{p*128}']
        endfill = [f'v_add_u32 v{vT1}, s{sKV}, v{vVt}'] + [f'v_mov_b32 v{S+8+r}, v{vMask}' for r in range(4)] + g.stamp(2)
        proj16(g, fm, ACC, G, AF, WB, vIdx, vStg, vRes, vT0, KX2 + 4, vL16, sMem, 22, reads, extra, endfill, fold)
        a('s_waitcnt lgkmcnt(0)'); a('s_barrier')
        for t in (g.stamp(6) if c.fine else []): a(t)
        for es in range(4):
            for hh in range(2): a(f'ds_read_b64_tr_b16 {v(F+4*es+2*hh,2)}, v{vXr} offset:{es*256+hh*32}')
        for i in range(4): a(f'ds_read_b64_tr_b16 {v(VXf+2*i,2)}, v{vT1} offset:{8192 + (i&1)*1024 + (i>>1)*512}')
        vml = f'buffer_load_dwordx4 {v(VMf,4)}, v{vVm}, {WS}, s{sVm} offen sc1'
        for es in range(4):
            a(f's_waitcnt lgkmcnt({10-2*es})')
            for kt in range(3):
                A = v(kxr(es * 2 + kt), 4) if kt < 2 else v(F + 4 * es, 4)
                cc = '0' if (es == 0 and kt < 2) else v(S + 4 * kt, 4)
                a(f'v_mfma_f32_16x16x32_bf16 {v(S+4*kt,4)}, {A}, {v(F+4*es,4)}, {cc}')
        ONE, SUM, T = G + 4, G + 8, G + 12
        a(vml)
        a(f'v_add_u32 v{vT1}, s{sW8}, v{vXr}')
        for hh in range(2): a(f'ds_read_b64_tr_b16 {v(KX2+2*hh,2)}, v{vT1} offset:{hh*32}')
        for t in g.stamp(3): a(t)
        for i in range(2): a(f'v_mov_b32 v{ONE+i}, 0x3f803f80')
        for i in range(4): a(f'v_max3_f32 v{T+i}, v{S+3*i}, v{S+3*i+1}, v{S+3*i+2}')
        a(f'v_max3_f32 v{T}, v{T}, v{T+1}, v{T+2}')
        a(f'v_max_f32 v{T+1}, v{T}, v{T+3}'); a(f'v_max_f32 v{T}, v{T}, v{T+3}')
        for i in range(2, 4): a(f'v_mov_b32 v{ONE+i}, 0x3f803f80')
        a(f'v_permlane16_swap_b32 v{T}, v{T+1}')
        a(f'v_max_f32 v{T+2}, v{T}, v{T+1}'); a(f'v_max_f32 v{T}, v{T}, v{T+1}')
        a('s_waitcnt lgkmcnt(0)')
        a(f'v_permlane32_swap_b32 v{T}, v{T+2}')
        if 'vm1' not in c.x: a(vml)
        if c.QT == 4: a(kvm_st[1])
        a(f'v_max_f32 v{T}, v{T}, v{T+2}'); a(f'v_mul_f32 v{T}, s{sSc}, v{T}')
        for i in range(0, 12, 2):
            a(f'v_pk_fma_f32 {v(S+i,2)}, {v(S+i,2)}, {s(sSc,2)}, {v(T,2)} op_sel_hi:[1,1,0] neg_lo:[0,0,1] neg_hi:[0,0,1]')
        ex = lambda i: a(f'v_exp_f32 v{S+i}, v{S+i}')
        cv = lambda i: a(f'v_cvt_pk_bf16_f32 v{P+i}, v{S+2*i}, v{S+2*i+1}')
        ex(0); ex(1); ex(2); cv(0); ex(3); ex(4); cv(1); ex(5); ex(6); cv(2); ex(7); ex(8); cv(3); ex(9); ex(10)
        a(f'v_mfma_f32_16x16x32_bf16 {v(SUM,4)}, {v(ONE,4)}, {v(P,4)}, 0')
        cv(4); ex(11)
        a(f'v_mfma_f32_16x16x32_bf16 {v(O,4)}, {v(VXf,4)}, {v(P,4)}, 0')
        cv(5)
        a(f'v_mfma_f32_16x16x32_bf16 {v(O+4,4)}, {v(VXf+4,4)}, {v(P,4)}, 0')
        lv, lv2 = a.lab('vm'), a.lab('vmr')
        a(f's_waitcnt vmcnt({(0 if "vm1" in c.x else 1) + (c.QT == 4)})')
        a(f'v_mfma_f32_16x16x16_bf16 {v(SUM,4)}, {v(ONE,2)}, {v(P+4,2)}, {v(SUM,4)}')
        a(f'{lv}:')
        for t in check4(vT0, VMf): a(t)
        if 'novm' not in c.x: a(f's_cbranch_vccnz {lv2}')
        if c.QT == 4:
            lv3 = a.lab('vmr2')
            g.tail.append([f'{lv2}:', 's_waitcnt vmcnt(1)'] + check4(vT0, VMf) + [f's_cbranch_vccz {lv}', f'{lv3}:', vml] + tick(g, 14) +
                          ['s_waitcnt vmcnt(0)'] + check4(vT0, VMf) + [f's_cbranch_vccz {lv}', f's_branch {lv3}'])
        else: g.tail.append([f'{lv2}:', vml] + tick(g, 14) + ['s_waitcnt vmcnt(0)' if 'vm1' in c.x else 's_waitcnt vmcnt(1)', f's_branch {lv}'])
        for i in range(2):
            a(f'v_mfma_f32_16x16x16_bf16 {v(O+4*i,4)}, {v(VMf+2*i,2)}, {v(P+4,2)}, {v(O+4*i,4)}')
        a(f'v_mov_b32 v{PZ}, -1')
        a(f'v_rcp_f32 v{T}, v{SUM}')
        for i in range(1, 4): a(f'v_mov_b32 v{PZ+i}, -1')
        for i in range(0, 8, 2): a(f'v_pk_mul_f32 {v(O+i,2)}, {v(O+i,2)}, {v(T,2)} op_sel_hi:[1,0]')
        for i in range(4): a(f'v_cvt_pk_bf16_f32 v{OUT+i}, v{O+2*i}, v{O+2*i+1}')
        a(f'buffer_store_dwordx4 {v(OUT,4)}, v{vOst}, {WS}, s{sO} offen{LS}')
        for t in g.stamp(4): a(t)
        a(f's_mov_b32 s{sMem}, s{sMemN}')
        for t in gm_loads(G, vL16, sMem, 0, c.NP): a(t)
        a(f'buffer_store_dwordx4 {v(PZ,4)}, v{vOst}, {WS}, s{sOp} offen{LS}')
        g.stamp_store(F, 5)
        for t in w_pre(WB, vRes): a(t)
        a(f'v_mov_b32 v{vT2}, s{sFv}'); a(f's_mov_b32 s{sPFl}, s{sPF2}')
        if c.QT == 1: a(pub)
        a(f's_add_u32 s{sFv}, s{sN}, 1')
        for t in g.fl_of(sN, sPF2): a(t)
        for t in g.kvm_addr(sKm, cM): a(t)
        if c.QT == 2:
            for t in kvm_st: a(t)
        if c.QT in (2, 4): a(f'v_mov_b32 v{vT2}, s{sFv}'); a(f's_mov_b32 s{sPFl}, s{sPF2}')
        if c.KLB:
            assert c.QT != 3
            a(f's_mov_b32 s{sKok}, s10'); a('s_cmp_eq_u32 s10, 0'); a(f's_cbranch_scc1 {lk}'); a(f'{lk2}:')
        a(f's_sub_u32 s{sKV}, {2*KVB+16384}, s{sKV}')
        a(f's_mov_b32 s{sN}, s{sN1}'); a(f's_mov_b32 s{sN1}, s{sN2}')
        for t in phase_scalars() + [f'v_mov_b32 v{ACC+i}, 0' for i in range(16)] + g.stamp(0): a(t)
        if c.QT == 3:
            a(f'v_cmp_lt_u32 vcc, s{sNeed}, v{vPoll}'); a('s_cmp_eq_u64 vcc, -1'); a(f's_cselect_b32 s{sKok}, 1, 0')
        if c.KLB:
            a(f'v_cmp_lt_u32 vcc, s{sNeed}, v{vPoll}'); a('s_cmp_eq_u64 vcc, -1'); a(f's_cselect_b32 s10, {WS_BYTES:#x}, 0')
        l1 = a.lab('qkn')
        a(f's_cmp_eq_u32 s{sFv}, s{sN}'); a(f's_cbranch_scc1 {l1}')
        if c.KLB: a(f's_cmp_eq_u32 s{sKok}, 0'); a(f's_cbranch_scc1 {POLL}')
        for t in gm_check(G, vT0, 0, c.NP, 1 + (0, 1, 2, 0, 0)[c.QT] + (2 if c.stamps else 0)): a(t)
        a(f's_cbranch_vccz {GO}'); a(f's_branch {POLL}')
        a(f'{l1}:')
        if c.QT == 0: a(pub)
        if c.QT not in (2, 4):
            for t in kvm_st: a(t)
            a(f'v_mov_b32 v{vT2}, s{sFv}'); a(f's_mov_b32 s{sPFl}, s{sPF2}'); a(f's_mov_b32 s{sKm}, {OOB:#x}')
        a('s_waitcnt vmcnt(0)'); a(pub)
        a(f's_cmp_lt_u32 s{sN}, {c.NEND}'); a(f's_cbranch_scc1 {POLL}')
        g.endpgm()
        g.flush_tail()

def role_vm(g):
    a = g.a; c = g.c
    a('L_VM:')
    g.srd(12, P_WV, 0x800000)
    vIdx, vL16, vStg, vRes, vT0 = 5, 6, 7, 8, 0
    ACC, G, AF, WB, OUT, PZ = 16, 32, 48, 60, 76, 80
    cV, sW12, sCol = sC + 4, sC + 5, sC + 6
    sMem, sV, sVp, sB, sPf, cP = (sX + i for i in range(6))
    vPoff, vPoll, vL128 = 9, 10, 11
    chain_setup(g, vIdx, vL16, vRes)
    a(f's_lshl_b32 s{cV}, s{sIdx}, 2'); a(f's_add_u32 s{cV}, s{cV}, s{sW}')
    a(f's_lshl_b32 s{sCol}, s{sG}, 5'); a(f's_add_u32 s{sCol}, s{sCol}, s{cV}'); a(f's_lshl_b32 s{sCol}, s{sCol}, 7')
    a(f's_lshl_b32 s{cV}, s{cV}, 10')
    if c.QT == 4:
        a(f's_lshr_b32 s{sT2}, s{sCol}, 7'); g.my_flag(vPoff, sT2, 'N'); g.zero_flags(vPoff)
        a(f's_lshr_b32 s{sC+7}, s{sCol}, 8'); g.kvm_head(sC + 7, sC + 7); a(f's_and_b32 s{sT0}, s{sW}, 1'); a(f's_lshl_b32 s{sT0}, s{sT0}, 10')
        a(f's_add_u32 s{sC+7}, s{sC+7}, s{sT0}'); a(f's_add_u32 s{sC+7}, s{sC+7}, 2048')
    poison_init(g, vL16, cV, R_VML, 0x8000, 4)
    g.arrive(chain=True)
    a(f's_add_u32 s{cV}, s{cV}, {R_VML:#x}')
    fm = mem_weights(g, vRes, sCol)
    a(f's_lshl_b32 s{sW12}, s{sW}, 12'); a(f's_add_u32 s{sT0}, s{sW12}, {STG}'); a(f'v_add_u32 v{vStg}, s{sT0}, v{vL16}')
    for i in range(4): a(f'v_mov_b32 v{PZ+i}, -1')
    a(f'v_lshlrev_b32 v{vL128}, 7, v0'); a(f's_lshl_b32 s{sT0}, s{sIdx}, 2'); a(f's_add_u32 s{sT0}, s{sT0}, s{sW}'); a(f's_mul_i32 s{sT0}, s{sT0}, {RING_SZ//32}')
    a(f'v_add_u32 v{vL128}, s{sT0}, v{vL128}')
    def warm(layer):
        return [f's_add_u32 s{sPf}, s{sR0}, {layer*2*RING_SZ:#x}', f'buffer_load_dword v{vPoll}, v{vL128}, {WS}, s{sPf} offen sc1',
                f'buffer_load_dword v{vPoll}, v{vL128}, {WS}, s{sPf} offen offset:2048 sc1'] if c.warm else []
    pick_mode(g, 'VM')
    if c.QT == 4: g.to_side([(vPoff, 'N')]); g.kvm_side(sC + 7)
    for t in warm(0): a(t)
    a(f's_mov_b32 s{sN}, 0')
    a(f's_cmp_lg_u32 s{sRdy}, 1'); a('s_cbranch_scc1 LVM_top_s')
    for mode in ('f', 's'):
        LS = '' if mode == 'f' else ' sc1'
        TOP, POLL, CHK = f'LVM_top_{mode}', f'LVM_poll_{mode}', f'LVM_chk_{mode}'
        a('.p2align 6'); a(f'{TOP}:')
        for t in ring_calc(sN, sB, s14=sMem) + [f's_add_u32 s{sMem}, s{sMem}, s{sW12}'] + gm_loads(G, vL16, sMem, 0, c.NP): a(t)
        for t in w_pre(WB, vRes) + [f'v_mov_b32 v{ACC+i}, 0' for i in range(16)] + ring_calc(sN, sB, s15=sV, s15x=sVp): a(t)
        a(f's_add_u32 s{sV}, s{sV}, s{cV}'); a(f's_add_u32 s{sVp}, s{sVp}, s{cV}')
        for t in g.next_n(sN1, sN, c.L) + g.stamp(0): a(t)
        a(f's_branch {CHK}')
        a(f'{POLL}:')
        if 'slvm' in c.x: a('s_sleep 2')
        for t in gm_loads(G, vL16, sMem, 0, c.NP) + tick(g, 15): a(t)
        a(f'{CHK}:')
        for t in gm_check(G, vT0, 0, c.NP, 0): a(t)
        a(f's_cbranch_vccnz {POLL}')
        for t in g.stamp(1): a(t)
        def fold(p, packed):
            x, y = ACC + 4 * p, ACC + 8 + 4 * p
            return fold_add(x, y, packed) + \
                   [f'v_cvt_pk_bf16_f32 v{OUT+2*p}, v{x}, v{x+1}', f'v_cvt_pk_bf16_f32 v{OUT+2*p+1}, v{x+2}, v{x+3}']
        proj16(g, fm, ACC, G, AF, WB, vIdx, vStg, vRes, vT0, 1, vL16, sMem, 23, [], [], g.stamp(2), fold)
        a(f'buffer_store_dwordx4 {v(OUT,4)}, v{vL16}, {WS}, s{sV} offen{LS}')
        a(f'buffer_store_dwordx4 {v(PZ,4)}, v{vL16}, {WS}, s{sVp} offen{LS}')
        for t in g.stamp(3): a(t)
        if c.QT == 4:
            for t in g.kvm_addr(cP, sC + 7): a(t)
            a(f'buffer_store_dwordx4 {v(OUT,4)}, v{vL16}, {WS}, s{cP} offen sc1')
            for t in g.fl_of(sN, sFl) + [f's_add_u32 s{sT0}, s{sN}, 1', f'v_mov_b32 v{vPoll}, s{sT0}', 's_waitcnt vmcnt(0)',
                                         f'buffer_store_dword v{vPoll}, v{vPoff}, {WS}, s{sFl} offen sc1']: a(t)
        g.stamp_store(AF, 4)
        if c.warm:
            lw = a.lab('warm')
            a(f's_cmp_lg_u32 s{sN}, {max(c.L-2, 0)}'); a(f's_cbranch_scc1 {lw}')
            for t in warm(1): a(t)
            a(f'{lw}:')
        a(f'v_xor_b32 v{vStg}, 0x4000, v{vStg}')
        a(f's_mov_b32 s{sN}, s{sN1}')
        a(f's_cmp_lt_u32 s{sN}, {c.NEND}'); a(f's_cbranch_scc1 {TOP}')
        g.endpgm()
        g.flush_tail()

def role_wm(g):
    a = g.a; c = g.c
    a('L_WM:')
    g.srd(12, P_WO, 0x800000); g.srd(16, P_MEM0, 0x4000)
    vIdx, vL16, vRes, vRw, vRr, vL8, vT0 = 5, 6, 8, 9, 10, 11, 0
    PZ = 12
    ACC, GA, WB = 16, 48, 80
    RED, REDSZ = STG, 17408
    cT, cM, cO, sTog, sTwin = (sC + 4 + i for i in range(5))
    sOm, sOm2, sTw, sTp, sTr, sMs, sMp, sB = (sX + i for i in range(8))
    chain_setup(g, vIdx, vL16, vRes)
    a(f'v_lshlrev_b32 v{vL8}, 3, v0')
    a(f's_lshl_b32 s{cM}, s{sIdx}, 2'); a(f's_add_u32 s{cM}, s{cM}, s{sW}')
    a(f's_lshr_b32 s{cT}, s{cM}, 3'); a(f's_lshl_b32 s{cT}, s{cT}, 14'); a(f's_and_b32 s{sT0}, s{cM}, 7'); a(f's_lshl_b32 s{sT0}, s{sT0}, 10')
    a(f's_add_u32 s{cT}, s{cT}, s{sT0}'); a(f's_mul_i32 s{sT0}, s{sG}, {TW_SZ:#x}'); a(f's_add_u32 s{cT}, s{cT}, s{sT0}')
    a(f's_add_u32 s{cT}, s{cT}, {TWB:#x}')
    a('v_bfe_u32 v1, v0, 1, 3'); a('v_lshlrev_b32 v1, 11, v1'); a('v_and_b32 v2, 48, v0'); a('v_add_u32 v1, v1, v2')
    a('v_and_b32 v2, 1, v0'); a('v_lshlrev_b32 v2, 3, v2'); a('v_add_u32 v1, v1, v2')
    a(f's_lshl_b32 s{sT0}, s{cM}, 6')
    a(f'buffer_load_dwordx2 v[20:21], v1, {W2}, s{sT0} offen')
    a(f's_lshl_b32 s{cM}, s{cM}, 9')
    poison_init(g, vL8, cM, R_MEM, 0x4000, 2, first=1)
    for l in range(2):
        for sl in range(4):
            for hf in range(2):
                a(f's_add_u32 s{sT0}, s{cT}, {l*2*TW_SZ + sl*0x10000 + hf*0x2000:#x}')
                a(f'buffer_store_dwordx4 v[16:19], v{vL16}, {WS}, s{sT0} offen sc1')
    a('s_waitcnt vmcnt(0)')
    for l in range(2):
        a(f's_add_u32 s{sT0}, s{sR0}, {l*2*RING_SZ + R_MEM:#x}'); a(f's_add_u32 s{sT0}, s{sT0}, s{cM}')
        a(f'buffer_store_dwordx2 v[20:21], v{vL8}, {WS}, s{sT0} offen sc1')
    g.arrive(chain=True)
    fm = frag_map(lambda st, n: st < 6 and n in (1, 7), 8, 8)
    a(f's_lshl_b32 s{sWb}, s{sG}, 2'); a(f's_add_u32 s{sWb}, s{sWb}, s{sW}'); a(f's_lshl_b32 s{sWb}, s{sWb}, 20')
    a(f's_lshl_b32 s{sT0}, s{sIdx}, 8'); a(f's_add_u32 s{sWb}, s{sWb}, s{sT0}')
    chain_load(g, fm, lambda st, p: ([], sWb, st * 64 * 2048 + p * 128), 8, 2, vRes,
               (4, 8, 16), lambda hq, i: 16 * i + 8 * hq, 2048)
    g.loaded()
    a('v_lshrrev_b32 v1, 5, v0'); a('v_mul_u32_u24 v1, 2176, v1')
    a('v_bfe_u32 v2, v0, 2, 2'); a('v_mul_u32_u24 v2, 544, v2'); a('v_add_u32 v2, v1, v2')
    a('v_and_b32 v3, 3, v0'); a('v_lshlrev_b32 v3, 5, v3'); a('v_add_u32 v2, v2, v3')
    a('v_and_b32 v3, 16, v0'); a('v_add_u32 v2, v2, v3')
    a(f's_lshl_b32 s{sT0}, s{sW}, 7'); a(f's_add_u32 s{sT0}, s{sT0}, {RED}'); a(f'v_add_u32 v{vRw}, s{sT0}, v2')
    a('v_bfe_u32 v2, v0, 4, 1'); a('v_lshlrev_b32 v2, 1, v2'); a('v_and_b32 v3, 1, v0'); a('v_add_u32 v2, v2, v3')
    a('v_mul_u32_u24 v2, 544, v2'); a('v_add_u32 v2, v1, v2')
    a('v_bfe_u32 v3, v0, 1, 3'); a('v_lshlrev_b32 v3, 2, v3'); a('v_add_u32 v2, v2, v3')
    a(f's_mul_i32 s{sT0}, s{sW}, 4352'); a(f's_add_u32 s{sT0}, s{sT0}, {RED}'); a(f'v_add_u32 v{vRr}, s{sT0}, v2')
    a(f's_lshl_b32 s{cO}, s{sW}, 13'); a(f's_add_u32 s{cO}, s{cO}, {R_OM:#x}')
    for i in range(4): a(f'v_mov_b32 v{PZ+i}, -1')
    a(f's_mov_b32 s{sTog}, {REDSZ}')
    a(f's_cmp_eq_u32 s{sG}, 0'); a(f's_mov_b32 s{sTwin}, {TW_SZ:#x}'); a(f's_cselect_b32 s{sTwin}, s{sTwin}, {(-TW_SZ)&0xffffffff:#x}')
    pick_mode(g, 'WM')
    g.get_par(sT2, 0); a(f's_add_u32 s{cT}, s{cT}, s{sT2}')
    om_off = lambda n: ring_calc(n, sB, s15=sOm) + [f's_add_u32 s{sOm}, s{sOm}, s{cO}', f's_add_u32 s{sOm2}, s{sOm}, 4096']
    tw_off = lambda n: [f's_and_b32 s{sB}, s{n}, 64', f's_lshl_b32 s{sB}, s{sB}, 13', f's_add_u32 s{sB}, s{sB}, s{cT}',
                        f's_and_b32 s{sTw}, s{n}, 3', f's_lshl_b32 s{sTw}, s{sTw}, 16', f's_xor_b32 s{sTp}, s{sTw}, 0x20000',
                        f's_add_u32 s{sTw}, s{sTw}, s{sB}', f's_add_u32 s{sTp}, s{sTp}, s{sB}']
    assert 2 * TW_SZ == 64 << 13
    a(f's_mov_b32 s{sN}, 0')
    a(f's_mov_b32 s{sMp}, {OOB:#x}')
    for t in om_off(sN) + tw_off(sN) + w_pre(WB, vRes) + [f'v_mov_b32 v{ACC+i}, 0' for i in range(32)]: a(t)
    g.mini_init(2)
    a(f's_cmp_lg_u32 s{sRdy}, 1'); a('s_cbranch_scc1 LWM_poll_s')
    RD, SM = GA + 12, GA + 28
    NP0 = c.WMP
    for mode in ('f', 's'):
        LS = '' if mode == 'f' else ' sc1'
        POLL = f'LWM_poll_{mode}'
        lg = Lg(a); lg.q = [('W', 0), ('W', 0), ('W', 1), ('W', 1)]
        ld = lambda i: f'buffer_load_dwordx4 {v(GA+4*i,4)}, v{vL16}, {WS}, s{sOm if i < 4 else sOm2} offen offset:{(i&3)*1024} sc1'
        rdW = lambda u: [lg.rd(('W', u), f'ds_read_b128 {v(WB+8*(u%2)+4*hh,4)}, v{vRes} offset:{u*2048+hh*1024}') for hh in range(2)]
        GO = f'LWM_go_{mode}'
        a('.p2align 6'); a(f'{POLL}:')
        if c.PPW:
            for i in range(NP0): a(ld(i))
            a(f's_nop {c.PPW}'); a(f's_nop {c.PPW}'); a(f'{POLL}2:')
        for i in range(NP0): a(ld(i))
        for t in tick(g, 16): a(t)
        a(f's_waitcnt vmcnt({NP0 if c.PPW else 0})')
        for t in check4(vT0, GA): a(t)
        a(f's_cbranch_vccnz {POLL}' + ('2' if c.PPW else ''))
        a(f'{GO}:')
        for t in g.stamp(1) + g.mini_take(): a(t)
        def mm(st, n):
            kind, idx = fm[st, n]
            B = wreg(idx, 8, VB) if kind == 'r' else v(WB + 8 * (idx % 2), 8)
            a(f'v_smfmac_f32_16x16x64_bf16 {v(ACC+4*n,4)}, {v(GA+4*st,4)}, {B}, v{vIdx}')
        rd1 = lambda u, hh: a(lg.rd(('W', u), f'ds_read_b128 {v(WB+8*(u%2)+4*hh,4)}, v{vRes} offset:{u*2048+hh*1024}'))
        issued = NP0
        for st in range(6):
            i = st + 1
            if c.WCP and st % 2 == 0 and st > 0: ck = None
            elif st == 0 or (st < 5 and not c.WCP): ck = check4(vT0, GA + 4 * i); last = i
            else:
                d = GA + 4 * i; last = i + 1
                ck = [f'v_max3_u32 v{vT0}, v{d}, v{d+1}, v{d+2}', f'v_max3_u32 v{vT0}, v{vT0}, v{d+3}, v{d+4}',
                      f'v_max3_u32 v{vT0}, v{vT0}, v{d+5}, v{d+6}', f'v_max_u32 v{vT0}, v{vT0}, v{d+7}', f'v_cmp_eq_u32 vcc, -1, v{vT0}']
            c0 = 7 - len(ck) if ck else 9
            for n in range(8):
                mm(st, n)
                if n in (0, 6):
                    w = lg.wait(('W', 2 * st + (n == 6)))
                    if w: a(w)
                if n == c0 and last >= NP0: a(f's_waitcnt vmcnt({issued-1-last})')
                if n == 7 and ck:
                    lb, lc = a.lab('wb'), a.lab('wc')
                    a(f's_cbranch_vccnz {lb}'); a(f'{lc}:')
                    g.tail.append([f'{lb}:'] + [ld(k) for k in range(i, issued)] + tick(g, 17) + ['s_waitcnt vmcnt(0)' if i < NP0 - 1 else f's_waitcnt vmcnt({issued-1-last})'] + ck +
                                  [f's_cbranch_vccz {lc}', f's_branch {lb}'])
                if n < 2 and st > 0: rd1(2 * st + 1, n)
                if n in (2, 3) and st < 5: rd1(2 * st + 2, n - 2)
                if issued < 8 and (n == 7 or (st == 0 and n < 2) or (st == 1 and n == 3)): a(ld(issued)); issued += 1
                if c0 <= n < 7: a(ck[n - c0])
        def fold(p, packed=False):
            x, y = ACC + 8 * p, ACC + 8 * p + 4
            return fold_add(x, y, packed) + [f'ds_write_b128 v{vRw}, {v(x,4)} offset:{p*4352}']
        nn = g.next_n(sN1, sN, c.L) + [f's_add_u32 s{sTr}, s{sTw}, s{sTwin}']
        q = [nn[0], f'buffer_store_dwordx4 {v(PZ,4)}, v{vL16}, {WS}, s{sTp} offen sc1'] + nn[1:] + \
            [f'buffer_store_dwordx2 {v(PZ,2)}, v{vL8}, {WS}, s{sMp} offen{LS}']
        q += ['s_nop 0'] * (12 - len(q))
        for k, (st, n) in enumerate([(s_, n_) for p in range(4) for n_ in (2 * p, 2 * p + 1) for s_ in (6, 7)]):
            mm(st, n)
            if k >= 6 and k % 4 == 2: q += fold(k // 4 - 1)
            for _ in range(2):
                if q: a(q.pop(0))
        for t in q + g.stamp(2) + fold(3, True): a(t)
        a('s_waitcnt lgkmcnt(0)'); a('s_barrier')
        for t in (g.stamp(5) if c.fine else []): a(t)
        for sr in range(4):
            for y2 in range(2):
                a(f'ds_read2_b32 {v(RD+4*sr+2*y2,2)}, v{vRr} offset0:{sr*32+y2*16} offset1:{sr*32+y2*16+8}')
        a('s_waitcnt lgkmcnt(4)')
        for y in (0, 2): a(f'v_pk_add_f32 {v(SM+y,2)}, {v(RD+y,2)}, {v(RD+4+y,2)}')
        a('s_waitcnt lgkmcnt(2)')
        for y in (0, 2): a(f'v_pk_add_f32 {v(SM+y,2)}, {v(SM+y,2)}, {v(RD+8+y,2)}')
        a('s_waitcnt lgkmcnt(0)')
        for y in (0, 2): a(f'v_pk_add_f32 {v(SM+y,2)}, {v(SM+y,2)}, {v(RD+12+y,2)}')
        a(f'buffer_store_dwordx4 {v(SM,4)}, v{vL16}, {WS}, s{sTw} offen sc1')
        for t in g.stamp(3) + g.mini_put(2): a(t)
        a(f'v_add_u32 v{vRw}, s{sTog}, v{vRw}'); a(f'v_add_u32 v{vRr}, s{sTog}, v{vRr}'); a(f's_sub_u32 s{sTog}, 0, s{sTog}')
        for t in w_pre(WB, vRes) + [f'v_mov_b32 v{ACC+i}, 0' for i in range(32)]: a(t)
        for t in ring_calc(sN, sB, s14=sMs, add14=1, s14x=sMp) + [f's_add_u32 s{sMs}, s{sMs}, s{cM}', f's_add_u32 s{sMp}, s{sMp}, s{cM}'] + \
                 om_off(sN1) + tw_off(sN1): a(t)
        TW, RS_ = RD + 4, RD + 8
        assert NP0 <= 4
        lt = a.lab('tw')
        a(f'{lt}:')
        a(f'buffer_load_dwordx4 {v(TW,4)}, v{vL16}, {WS}, s{sTr} offen sc1')
        pk = c.WPK
        if pk:
            for i in range(NP0): a(ld(i))
        for t in tick(g, 18): a(t)
        a(f's_waitcnt vmcnt({NP0 if pk else 0})')
        for t in check4(vT0, TW): a(t)
        for y in (0, 2): a(f'v_pk_add_f32 {v(RS_+y,2)}, {v(SM+y,2)}, {v(TW+y,2)}')
        a(f's_cbranch_vccnz {lt}')
        for y in range(2): a(f'v_cvt_pk_bf16_f32 v{RS_+4+y}, v{RS_+2*y}, v{RS_+1+2*y}')
        a(f'buffer_store_dwordx2 {v(RS_+4,2)}, v{vL8}, {WS}, s{sMs} offen{LS}')
        for t in g.stamp(4): a(t)
        g.stamp_store(RD + 4, 5)
        for t in g.stamp(0): a(t)
        a(f's_mov_b32 s{sN}, s{sN1}')
        lx = a.lab('wmx')
        a(f's_cmp_ge_u32 s{sN}, {c.NEND}'); a(f's_cbranch_scc1 {lx}')
        if pk:
            a(f's_waitcnt vmcnt({1 + (2 if c.stamps else 0)})')
            for t in check4(vT0, GA): a(t)
            a(f's_cbranch_vccz {GO}')
        a(f's_branch {POLL}')
        a(f'{lx}:')
        g.endpgm()
        g.flush_tail()

def emit(g):
    r = g.c.roles
    if 'QK' in r: role_qk(g)
    if 'VM' in r: role_vm(g)
    if 'WM' in r: role_wm(g)
```

```python
import sys, struct
from asmlib import Asm
from layout import *

KNAME = 'interleave_layers__memory_aug_recurrent_mem_tr__glu_gated_geglu__prompt_kernel'

class Cfg:
    L = 12
    LM = 51
    LK = 21
    NEND = 128
    roles = {'AT', 'P', 'QK', 'VM', 'WM', 'WO', 'GU', 'DN'}
    stamps = False
    light = False
    fine = ()
    TIMEOUT = 1 << 20
    force_safe = False
    place = 35
    x = ()
    perm = (0, 2, 1, 3, 4, 5, 6, 7)
    WPK = False
    PPW = 0
    PPQ = 0
    WCP = False
    KLB = 2
    QS2 = False
    QG = 0
    HU = 0
    WTP = 0
    VMB = 0
    QPP = 7.5
    fin_early = True
    halfstart = True
    knear = 1
    QP = 50
    med = True
    pull = 0
    fnear = 1
    touch = 0
    HK = 5
    H0 = 8
    pnear = None
    FS = 256
    snake = True
    CALT = 8000
    local = False
    QT = 4
    DNNP = 40
    WONP = 36
    warm = True
    DLAG = (1, 2, 3, 4, 5, 6)
    DL = dict(GU=32, WO=8, DN=48)
    mini = False
    ring = 0
    ATE = 8
    probe = None
    PF = 3
    XS = 2
    NP = 4
    CK = 17
    B2 = 28
    WMP = 2
    TWP = 1
    TWD = 15
    T_KV = dict(ahead=True, block=True, KP=1, KT=9, KA=10, KM=23, KS=20, KD=(0.5, 20), KP2=19.5, dv=72, nv=lambda k: 2 if k == 4 else 1)
    T_GU = dict(ahead=True, pipe=True, block=True, KP=1, KT=1, KA=13, KM=11, KS=20, KD=(0.5, 16), KP2=16.5, dv=60, quota=lambda ks: 3 if ks < 15 else 2)
    T_WOP = dict(ahead=True, block=True, KP=1, KA=1, KM=14, KD=(1.5, 21), KP2=22, dv=60)
    T_WOF = dict(ahead=True, LW=True, KX=4, KP=0, K0=9, KA=12, KM=11.5, KL=13, KD=(0.5, 9), KP2=9.5, dv=52, quota=lambda ks: 4)
    T_DNP = dict(ahead=True, block=True, KP=1, KA=1, KM=14, KD=(1.5, 23), KP2=26, dv=60)
    T_DNF = dict(ahead=True, LW=True, KX=2, KP=5, mo=True, K0=13, KA=18, KM=17.5, KL=20, KD=(0.2, 13), KP2=13.5, dv=52)
    QM = 8
    QS = 9
    delay = {'DN', 'GU'}

def fbits(x):
    return '0x%08x' % struct.unpack('<I', struct.pack('<f', x))[0]

def v(i, n=1): return f'v{i}' if n == 1 else f'v[{i}:{i+n-1}]'
def s(i, n=1): return f's{i}' if n == 1 else f's[{i}:{i+n-1}]'
def wreg(i, n, vbase):
    if i < 256: return f'a{i}' if n == 1 else f'a[{i}:{i+n-1}]'
    return v(vbase + i - 256, n)

WS = 's[4:7]'; WSC = 's[8:11]'; W1 = 's[12:15]'; W2 = 's[16:19]'; DBG = 's[20:23]'
P_X, P_MEM0, P_WQ, P_WK, P_WV, P_WO, P_WG, P_WU, P_WD, P_OUT, P_DBG, P_WS = 24, 26, 28, 30, 32, 34, 36, 38, 40, 42, 44, 46
sW, sIdx, sG = 48, 49, 50
sN, sNx, sBuf, sSrc, sM0, sNeed, sFl, sPFl = 52, 53, 54, 55, 56, 57, 58, 59
sT0, sT1, sT2, sT3 = 60, 61, 62, 63
sRdy, sWoff = 64, 65
sC = 66
sST = 80
sTO, sCode, sOth, sCnt, sRound, sXcc = 96, 97, 98, 99, 100, 101
sHelp = 3

SOFTC = 128 ** -0.5 * 1.4426950408889634

def p_order(n0, m1, h0=0, hk=0):
    l0 = [u for u in range(64) if not h0 <= u < h0 + hk]
    n0 = min(n0, len(l0)); rest = len(l0) - n0; m1 = max(m1, rest)
    o = l0[:n0]; k = 0
    for u in range(64):
        o.append(64 + u)
        while k < rest and (k + 1) * m1 <= (u + 1) * rest: o.append(l0[n0 + k]); k += 1
    assert sorted(o) == l0 + list(range(64, 128))
    return o

class Gen:
    def __init__(g, cfg):
        g.c = cfg; g.a = Asm(); g.left = {}; g.started = False; g.tail = []

    def srd(g, base, ptr, size):
        a = g.a
        a(f's_mov_b32 s{base}, s{ptr}'); a(f's_and_b32 s{base+1}, s{ptr+1}, 0xffff')
        a(f's_mov_b32 s{base+2}, {size:#x}'); a(f's_mov_b32 s{base+3}, 0x20000')

    def seq_init(g, L):
        return [f's_mov_b32 s{sOth}, 64', f's_mov_b32 s{sCnt}, {(-L-1) & 0xffffffff:#x}']

    def next_n(g, dst, src, L):
        return [f's_add_u32 s{sT0}, s{src}, 1', f's_add_u32 s{sCnt}, s{sCnt}, 1',
                f's_cmp_lt_u32 s{sCnt}, {max(127-2*L, 0)}',
                f's_cselect_b32 s{dst}, s{sOth}, s{sT0}', f's_cselect_b32 s{sOth}, s{sT0}, s{sOth}']

    def fl_of(g, n, fl):
        assert FL_L == 64 << 12
        if g.c.NEND == 64: return [f's_mov_b32 s{fl}, 0']
        return [f's_and_b32 s{fl}, s{n}, 64', f's_lshl_b32 s{fl}, s{fl}, 12']

    def timeout(g, code, back, back_off=False):
        lab = g.a.lab('rt')
        g.tail.append([f'{lab}:'] + [] + [f's_add_u32 s{sTO}, s{sTO}, 1', f's_cmp_lt_u32 s{sTO}, {g.c.TIMEOUT}',
                       f's_cbranch_scc1 {back}', f's_mov_b32 s{sCode}, {code}', 's_branch L_fail'])
        return lab

    def flush_tail(g):
        for b in g.tail:
            for t in b: g.a(t)
        g.tail = []

    def spin_flags(g, vPoll, vOff, need, fl, code):
        a = g.a; l = a.lab('spin')
        a(f'{l}:')
        a(f'buffer_load_dword v{vPoll}, v{vOff}, {WS}, s{fl} offen sc1')
        a('s_waitcnt vmcnt(0)')
        a(f'v_cmp_lt_u32 vcc, s{need}, v{vPoll}')
        a('s_cmp_eq_u64 vcc, -1')
        a(f's_cbranch_scc0 {g.timeout(code, l)}')

    def lane0_off(g, dst, soff, nl=1, stride=0):
        a = g.a
        if stride: a(f'v_mul_u32_u24 v{dst}, {stride}, v0'); a(f'v_add_u32 v{dst}, s{soff}, v{dst}')
        else: a(f'v_mov_b32 v{dst}, s{soff}')
        a(f'v_mov_b32 v1, {OOB:#x}')
        a(f'v_cmp_gt_u32 vcc, {nl}, v0')
        a(f'v_cndmask_b32 v{dst}, v1, v{dst}, vcc')

    def zero_flags(g, vMy, layers=(0, 1)):
        a = g.a
        a('v_mov_b32 v1, 0')
        for l in layers:
            for h in range(2):
                a(f's_mov_b32 s{sT0}, {l*FL_L + h*0x2000:#x}')
                a(f'buffer_store_dword v1, v{vMy}, {WS}, s{sT0} offen sc1')

    def expand(g, d):
        g.a(f'v_and_b32 v1, 0xffffe000, v{d}'); g.a(f'v_add_u32 v{d}, v1, v{d}')

    def to_side(g, regs):
        regs = [(d, FSIDE[grp]) for d, grp in regs if grp in FSIDE]
        if not g.c.fnear or not regs: return
        g.get_par(sT2, 0 if g.c.fnear == 1 else 1); g.a(f's_xor_b32 s{sT3}, s{sT2}, 0x2000')
        for d, side in regs: g.a(f'v_add_u32 v{d}, s{sT3 if side else sT2}, v{d}')

    def arrive(g, chain=False):
        a = g.a; l = a.lab('arr')
        a('s_waitcnt vmcnt(0)'); a('s_barrier')
        a(f's_cmp_lg_u32 s{sW}, 0'); a(f's_cbranch_scc1 {l}')
        a(f's_mov_b32 s{sT0}, 0')
        g.lane0_off(2, sT0)
        a(f's_sub_u32 s{sT1}, s{sXcc}, s2'); a(f's_and_b32 s{sT1}, s{sT1}, 7')
        a(f's_lshl_b32 s{sT1}, s{sT1}, 2'); a(f's_add_u32 s{sT1}, s{sT1}, 128')
        a(f's_cmp_eq_u32 s{sRound}, 0'); a(f's_cselect_b32 s{sT1}, s{sT1}, 0')
        a('v_mov_b32 v3, 1')
        a(f'buffer_atomic_add v3, v2, {DBG}, s{sT1} offen sc1')
        a(f'{l}:')

    def start_look(g, vt):
        return [f'v_mov_b32 v{vt+8}, 0', f'buffer_load_dwordx4 {v(vt,4)}, v{vt+8}, {DBG}, 0 offen offset:128 sc1',
                f'buffer_load_dwordx4 {v(vt+4,4)}, v{vt+8}, {DBG}, 0 offen offset:144 sc1',
                f'buffer_load_dword v{vt+10}, v{vt+8}, {DBG}, 0 offen offset:160 sc1']

    def wait_start(g, vt, code, solo=True):
        a = g.a; l, l1, l2, lw, lw1 = a.lab('ws'), a.lab('ws1'), a.lab('ws2'), a.lab('wsw'), a.lab('wsw1')
        a(f'v_mov_b32 v{vt+8}, 0')
        a(f's_cmp_lg_u32 s{sRound}, 0'); a(f's_cbranch_scc1 {l1}')
        if solo: a(f's_cmp_eq_u32 s{sW}, 0'); a(f's_cbranch_scc1 {l}'); a('s_barrier')
        else: a(f's_branch {lw1}')
        a(f'{l}:')
        for t in g.start_look(vt): a(t)
        a(f'{lw1}:')
        a('s_waitcnt vmcnt(0)')
        a(f'v_readfirstlane_b32 s{sCode}, v{vt+10}')
        a(f'v_add3_u32 v{vt+9}, v{vt}, v{vt+1}, v{vt+2}'); a(f'v_add3_u32 v{vt+9}, v{vt+9}, v{vt+3}, v{vt+4}')
        a(f'v_add3_u32 v{vt+9}, v{vt+9}, v{vt+5}, v{vt+6}'); a(f'v_add_u32 v{vt+9}, v{vt+9}, v{vt+7}')
        a(f'v_cmp_le_u32 vcc, 0x100, v{vt+9}')
        a('s_cmp_eq_u64 vcc, -1')
        a(f's_cbranch_scc0 {g.timeout(code, l, True)}')
        if solo: a(f's_cmp_lg_u32 s{sW}, 0'); a(f's_cbranch_scc1 {lw}'); a('s_barrier'); a(f'{lw}:')
        a(f'v_or3_b32 v{vt+9}, v{vt}, v{vt+1}, v{vt+2}'); a(f'v_or3_b32 v{vt+9}, v{vt+9}, v{vt+3}, v{vt+4}')
        a(f'v_or3_b32 v{vt+9}, v{vt+9}, v{vt+5}, v{vt+6}'); a(f'v_or_b32 v{vt+9}, v{vt+9}, v{vt+7}')
        a(f'v_cmp_eq_u32 vcc, {0x7fffffff if g.c.force_safe else 0x100}, v{vt+9}')
        a('s_cmp_eq_u64 vcc, -1')
        a(f's_cbranch_scc1 {l2}'); a('s_branch L_restart')
        a(f'{l1}:')
        a(f'buffer_load_dword v{vt}, v{vt+8}, {DBG}, 0 offen sc1')
        a('s_waitcnt vmcnt(0)')
        a(f'v_cmp_le_u32 vcc, 0x100, v{vt}')
        a('s_cmp_eq_u64 vcc, -1')
        a(f's_cbranch_scc0 {g.timeout(code, l1, True)}')
        a(f'{l2}:')

    def loaded(g):
        a = g.a; l = a.lab('ldd')
        a(f's_cmp_lg_u32 s{sW}, 0'); a(f's_cbranch_scc1 {l}')
        a(f's_mov_b32 s{sT0}, 12')
        g.lane0_off(2, sT0)
        a('v_mov_b32 v3, 1')
        a(f'buffer_atomic_add v3, v2, {DBG}, 0 offen sc1')
        a(f'{l}:')

    def wait_loaded(g, role, count):
        count = g.c.DL[role]
        if role not in g.c.delay or not {'QK', 'VM', 'WM'} <= g.c.roles: return
        a = g.a; l, l2 = a.lab('wl'), a.lab('wl2')
        if role == 'GU' and g.c.pull: g.pull()
        g.wait_start(8, 1); g.started = True
        a(f's_cmp_lg_u32 s{sW}, 0'); a(f's_cbranch_scc1 {l2}')
        a('v_mov_b32 v1, 12')
        a(f'{l}:')
        a(f'buffer_load_dword v2, v1, {DBG}, 0 offen sc1')
        a('s_waitcnt vmcnt(0)')
        a(f'v_cmp_le_u32 vcc, {count}, v2')
        a('s_cmp_eq_u64 vcc, -1')
        a(f's_cbranch_scc0 {g.timeout(19, l, True)}')
        a(f'{l2}:'); a('s_barrier')

    def get_par(g, dst, side):
        a = g.a; ln, ln2, ln3 = a.lab('near'), a.lab('near2'), a.lab('near3')
        a(f's_mov_b32 s{dst}, 0')
        a(f's_cmp_lg_u32 s{sRound}, 0'); a(f's_cbranch_scc1 {ln2}')
        a(f's_cmp_lg_u32 s{sCode}, 0'); a(f's_cbranch_scc1 {ln3}')
        a('v_mov_b32 v1, 160'); a(f'{ln}:')
        a(f'buffer_load_dword v1, v1, {DBG}, 0 offen sc1'); a('s_waitcnt vmcnt(0)')
        a(f'v_readfirstlane_b32 s{sCode}, v1'); a('v_mov_b32 v1, 160'); a(f's_cmp_eq_u32 s{sCode}, 0'); a(f's_cbranch_scc1 {g.timeout(24, ln, True)}')
        a(f'{ln3}:')
        a(f's_and_b32 s{dst}, s{sCode}, 2'); a(f's_lshl_b32 s{dst}, s{dst}, 12')
        a(f'{ln2}:')
        if side: a(f's_xor_b32 s{dst}, s{dst}, 0x2000')

    def half(g, r, par, t):
        return [f's_lshr_b32 s{t}, s{r}, 8', f's_xor_b32 s{t}, s{t}, s{par}', f's_and_b32 s{t}, s{t}, 0x2000', f's_add_u32 s{r}, s{r}, s{t}']

    def load_args(g):
        a = g.a
        a('s_load_dwordx8 s[24:31], s[0:1], 0'); a('s_load_dwordx4 s[32:35], s[0:1], 32')
        a('s_load_dwordx8 s[36:43], s[0:1], 64'); a('s_load_dwordx4 s[44:47], s[0:1], 96')
        a('v_mbcnt_lo_u32_b32 v0, -1, 0'); a('v_mbcnt_hi_u32_b32 v0, -1, v0')

    def help_first(g, role):
        if not g.c.HK: g.arrive(); return False
        a = g.a
        a(f's_mov_b32 s{sG}, s{sIdx}')
        for i0, n, p0 in helper_table(g.c.place)[role]:
            a(f's_add_i32 s{sT1}, s{sG}, {p0 - i0}'); a(f's_cmp_ge_u32 s{sG}, {i0}'); a(f's_cselect_b32 s{sIdx}, s{sT1}, s{sIdx}')
        g.my_flag(117, sIdx, 'PH', wave0=True); g.zero_flags(117, (0,)); g.arrive()
        a(f's_mov_b32 s{sHelp}, {1 if role == "GU" else 2}'); a('s_branch L_P2')
        a(f'L_{role}2:')
        g.started = True
        return True

    def pull(g):
        a = g.a; n = g.c.pull
        a(f's_lshl_b32 s{sT2}, s{sIdx}, 13'); a('v_lshlrev_b32 v1, 7, v0')
        a(f's_cmp_eq_u32 s{sW}, 0'); a(f's_cselect_b32 s12, s{P_WQ}, s{P_WK}'); a(f's_cselect_b32 s13, s{P_WQ+1}, s{P_WK+1}')
        a(f's_cmp_eq_u32 s{sW}, 2'); a(f's_cselect_b32 s12, s{P_WV}, s12'); a(f's_cselect_b32 s13, s{P_WV+1}, s13')
        a(f's_cmp_eq_u32 s{sW}, 3'); a(f's_cselect_b32 s12, s{P_WO}, s12'); a(f's_cselect_b32 s13, s{P_WO+1}, s13')
        a('s_and_b32 s13, s13, 0xffff'); a('s_mov_b32 s14, 0x800000'); a('s_mov_b32 s15, 0x20000')
        for i in range(n):
            a(f's_add_u32 s{sT0}, s{sT2}, {0x800000 - (i+1)*56*8192:#x}')
            a(f'buffer_load_dword v2, v1, {W1}, s{sT0} offen')
        a('s_waitcnt vmcnt(0)')

    def kvm_head(g, dst, sHead):
        a = g.a
        a(f's_lshr_b32 s{sT0}, s{sHead}, 1'); a(f's_lshl_b32 s{sT0}, s{sT0}, 14'); a(f's_and_b32 s{dst}, s{sHead}, 1'); a(f's_lshl_b32 s{dst}, s{dst}, 12')
        a(f's_add_u32 s{dst}, s{dst}, s{sT0}'); a(f's_add_u32 s{dst}, s{dst}, {KVM:#x}')

    def kvm_side(g, dst):
        if g.c.knear: g.get_par(sT2, g.c.knear - 1); g.a(f's_add_u32 s{dst}, s{dst}, s{sT2}')

    def kvm_addr(g, dst, base):
        assert KVM % 0x400000 == 0
        return [f's_and_b32 s{dst}, s{sN}, 8', f's_lshl_b32 s{dst}, s{dst}, 10', f's_xor_b32 s{dst}, s{dst}, s{base}',
                f's_lshl_b32 s{sT1}, s{sN}, 18', f's_add_u32 s{dst}, s{dst}, s{sT1}']

    def start_once(g):
        if not g.started: g.wait_start(48, 1, False)
        g.started = False
        g.a('s_barrier')

    def load_weights(g, chunks, nslots, slot_bytes, sStage):
        a = g.a; n = len(chunks)
        def issue(c):
            ch = chunks[c]
            for t in ch.get('pre', []): a(t)
            for i, (srd, va, sb, imm) in enumerate(ch['dma']):
                a(f's_add_u32 m0, s{sStage}, {(c % nslots)*slot_bytes + i*1024}')
                a(f's_add_u32 s{sT3}, s{sb}, {imm:#x}')
                a(f'buffer_load_dwordx4 v{va}, {srd}, s{sT3} offen lds')
        for c in range(min(nslots, n)): issue(c)
        for c in range(n):
            after = sum(len(chunks[k]['dma']) for k in range(c + 1, min(n, c + nslots)))
            assert after <= 63
            a(f's_waitcnt vmcnt({after})')
            for dest, vtr, imm in chunks[c]['reads']:
                a(f'ds_read_b64_tr_b16 {dest}, v{vtr} offset:{(c % nslots)*slot_bytes + imm}')
            a('s_waitcnt lgkmcnt(0)')
            for t in chunks[c].get('post', []): a(t)
            if c + nslots < n: issue(c + nslots)
            if c + nslots == n - 1:
                for t in g.start_look(48): a(t)
        for t in g.stamp(5): a(t)
        a('s_waitcnt lgkmcnt(0)')

    def endpgm(g):
        a = g.a
        if g.c.light:
            a(f's_memrealtime {s(sST,2)}'); a(f's_mov_b32 s{sN}, 0')
            g.stamp_store(8, 3, True)
        a('s_waitcnt vmcnt(0)'); a('s_endpgm')

    def mini_init(g, vA):
        if not g.c.mini: return
        a = g.a
        a(f's_lshl_b32 s{sT0}, s2, 12'); a(f's_add_u32 s{sT0}, s{sT0}, {STAMP:#x}')
        a(f's_cmp_eq_u32 s{sW}, 2'); a(f's_cselect_b32 s{sST+6}, s{sT0}, {OOB:#x}'); a(f'v_mov_b32 v{vA}, 0')
        a(f'v_mov_b32 v{vA+1}, s{sST+14}'); a(f'buffer_store_dword v{vA+1}, v{vA}, {WS}, s{sST+6} offen offset:28'); a('s_waitcnt vmcnt(0)')
    def mini_take(g): return [f's_memrealtime {s(sST,2)}'] if g.c.mini else []
    def mini_put(g, vA):
        if not g.c.mini: return []
        return [f's_lshl_b32 s{sST+7}, s{sN}, 5', f's_add_u32 s{sST+7}, s{sST+7}, s{sST+6}', f'v_mov_b32 v{vA+1}, s{sST}',
                f'buffer_store_dword v{vA+1}, v{vA}, {WS}, s{sST+7} offen']

    def mstamp(g, slot):
        if not (g.c.mini and 'ms' in g.c.x): return []
        return [f's_memrealtime {s(sST+8,2)}', f's_lshl_b32 s{sST+7}, s{sN}, 5', f's_add_u32 s{sST+7}, s{sST+7}, s{sST+6}', 's_waitcnt lgkmcnt(0)',
                f'v_mov_b32 v3, s{sST+8}', f'buffer_store_dword v3, v2, {WS}, s{sST+7} offen offset:{4*slot}']

    def light_start(g):
        if g.c.light: g.a(f's_memtime {s(sST+2,2)}'); g.a(f's_memrealtime {s(sST+4,2)}'); g.a('s_waitcnt lgkmcnt(0)')

    def stamp(g, i, real=True):
        if g.c.mini and i == 7: return [f's_memrealtime {s(sST+14,2)}']
        if g.c.light and i in (5, 7): return [f's_memrealtime {s(sST+2*i,2)}']
        if not g.c.stamps: return []
        if g.c.fine: return [f's_memtime {s(sST+2*i,2)}'] if i in g.c.fine else []
        return [f's_memrealtime {s(sST+2*i,2)}' if real else f's_memtime {s(sST+2*i,2)}']

    def stamp_store(g, vt, nst, force=False):
        if not g.c.stamps and not force: return
        a = g.a
        a('s_waitcnt lgkmcnt(0)')
        if g.c.fine:
            a(f's_memtime {s(sST+14,2)}'); a(f's_memrealtime {s(sST,2)}'); a('s_waitcnt lgkmcnt(0)')
            for i in range(8): a(f'v_mov_b32 v{vt+i}, s{sST+2*i}')
            a(f's_lshl_b32 s{sT0}, s2, 2'); a(f's_add_u32 s{sT0}, s{sT0}, s{sW}'); a(f's_lshl_b32 s{sT0}, s{sT0}, 12')
            a(f's_lshl_b32 s{sT1}, s{sN}, 5'); a(f's_add_u32 s{sT0}, s{sT0}, s{sT1}'); a(f's_add_u32 s{sT0}, s{sT0}, {0xFC00000:#x}')
        else:
            a(f's_memtime {s(sST+12,2)}'); a('s_waitcnt lgkmcnt(0)')
            for i in range(8): a(f'v_mov_b32 v{vt+i}, s{sST+2*(i if i >= 5 else min(i,nst-1))}')
            a(f's_lshl_b32 s{sT0}, s2, 12'); a(f's_lshl_b32 s{sT1}, s{sN}, 5'); a(f's_add_u32 s{sT0}, s{sT0}, s{sT1}')
            a(f's_add_u32 s{sT0}, s{sT0}, {STAMP + (0x100000 if force else 0):#x}')
            a(f's_cmp_eq_u32 s{sW}, 0'); a(f's_cselect_b32 s{sT0}, s{sT0}, {OOB:#x}')
        a(f'v_mov_b32 v{vt+8}, 0')
        a(f'buffer_store_dwordx4 {v(vt,4)}, v{vt+8}, {WS}, s{sT0} offen')
        a(f'buffer_store_dwordx4 {v(vt+4,4)}, v{vt+8}, {WS}, s{sT0} offen offset:16')
        a('s_nop 1')

    def v_j(g, d): g.a(f'v_and_b32 v{d}, 15, v0')
    def v_g(g, d): g.a(f'v_lshrrev_b32 v{d}, 4, v0')

    def tr_addr(g, d, rowpitch, gmul, colmul, sStage, chain=None):
        a = g.a
        a('v_lshrrev_b32 v1, 4, v0'); a('v_bfe_u32 v2, v0, 2, 2'); a('v_and_b32 v3, 3, v0')
        if chain is None:
            a(f'v_mul_u32_u24 v1, {gmul}, v1'); a('v_add_u32 v1, v1, v2')
        else:
            m_g1, m_g0, m_r1 = chain
            a('v_lshrrev_b32 v4, 1, v1'); a(f'v_mul_u32_u24 v4, {m_g1}, v4')
            a('v_and_b32 v1, 1, v1'); a(f'v_mul_u32_u24 v1, {m_g0}, v1'); a('v_add_u32 v1, v1, v4')
            a('v_lshrrev_b32 v4, 1, v2'); a(f'v_mul_u32_u24 v4, {m_r1}, v4'); a('v_add_u32 v1, v1, v4')
            a('v_and_b32 v2, 1, v2'); a('v_add_u32 v1, v1, v2')
        a(f'v_mul_u32_u24 v1, {rowpitch}, v1'); a(f'v_mul_u32_u24 v3, {colmul}, v3')
        a(f'v_add3_u32 v{d}, v1, v3, s{sStage}')

    def dma_addr64(g, d, pitch):
        a = g.a
        a('v_lshrrev_b32 v1, 2, v0'); a(f'v_mul_u32_u24 v1, {pitch}, v1')
        a('v_and_b32 v2, 3, v0'); a('v_lshlrev_b32 v2, 4, v2'); a(f'v_add_u32 v{d}, v1, v2')

    def colsum(g, ks, NT, vbase, vCS, vOnes):
        a = g.a
        if ks == 0:
            for i in range(4): a(f'v_mov_b32 v{vOnes+i}, 0x3f803f80')
        for n in range(NT):
            w = wreg((ks*NT+n)*4, 4, vbase); d = v(vCS+4*n, 4); c = '0' if ks == 0 else d
            a(f'v_mfma_f32_16x16x32_bf16 {d}, {w}, {v(vOnes,4)}, {c}')

    def stat_addr(g, d, vori):
        a = g.a
        if not vori:
            a('v_and_b32 v1, 31, v0'); a('v_lshrrev_b32 v2, 5, v0')
        else:
            a('v_bfe_u32 v1, v0, 2, 1'); a('v_lshlrev_b32 v1, 4, v1')
            a('v_lshrrev_b32 v2, 4, v0'); a('v_lshlrev_b32 v2, 2, v2'); a('v_add_u32 v1, v1, v2')
            a('v_and_b32 v2, 3, v0'); a('v_add_u32 v1, v1, v2'); a('v_bfe_u32 v2, v0, 3, 1')
        a('v_lshlrev_b32 v1, 4, v1'); a('v_lshlrev_b32 v2, 10, v2'); a(f'v_add_u32 v{d}, v1, v2')

    def stat_loads(g, S, vAddr, base):
        return [[f's_lshl_b32 s{sT2}, s{sN}, 11', f's_add_u32 s{sT2}, s{sT2}, {base:#x}'] +
                [f'buffer_load_dwordx4 {v(S+4*i,4)}, v{vAddr}, {WS}, s{sT2} offen offset:{512*i} sc1 ; @s' for i in range(2)]]

    def stat_math(g, S, R, vori):
        o = [f'v_add_f32 v{S}, v{S}, v{S+2}', f'v_add_f32 v{S+1}, v{S+1}, v{S+3}',
             f'v_add_f32 v{S+4}, v{S+4}, v{S+6}', f'v_add_f32 v{S+5}, v{S+5}, v{S+7}',
             f'v_add_f32 v{S}, v{S}, v{S+4}', f'v_add_f32 v{S+1}, v{S+1}, v{S+5}']
        if not vori:
            o += [f'v_permlane32_swap_b32 v{S}, v{S+1}', f'v_add_f32 v{S}, v{S}, v{S+1}', f'v_mov_b32 v{S+1}, v{S}',
                  f'v_permlane32_swap_b32 v{S}, v{S+1}']
        else:
            o += [f'v_add_f32_dpp v{S+2}, v{S}, v{S} row_ror:8 row_mask:0xf bank_mask:0xf',
                  f'v_add_f32_dpp v{S+3}, v{S+1}, v{S+1} row_ror:8 row_mask:0xf bank_mask:0xf',
                  f'v_mov_b32 v{S}, v{S+2}', f'v_mov_b32 v{S+1}, v{S+3}']
        k = fbits(1.0/1024)
        o += [f'v_mul_f32 v{S}, {k}, v{S}', f'v_mul_f32 v{S+1}, {k}, v{S+1}',
              f'v_fma_f32 v{S+1}, -v{S}, v{S}, v{S+1}', f'v_max_f32 v{S+1}, 0, v{S+1}',
              f'v_cvt_pk_bf16_f32 v{S+2}, v{S}, v{S+1}',
              f'v_lshlrev_b32 v{S}, 16, v{S+2}', f'v_and_b32 v{S+1}, 0xffff0000, v{S+2}',
              f'v_add_f32 v{S+1}, {fbits(1e-5)}, v{S+1}',
              f'v_cvt_pk_bf16_f32 v{S+1}, v{S+1}, v{S+1}', f'v_lshlrev_b32 v{S+1}, 16, v{S+1}',
              f'v_sqrt_f32 v{S+1}, v{S+1}',
              f'v_cvt_pk_bf16_f32 v{S+1}, v{S+1}, v{S+1}', f'v_lshlrev_b32 v{S+1}, 16, v{S+1}',
              f'v_rcp_f32 v{R}, v{S+1}',
              f'v_sub_f32 v{R+2}, 0, v{S}',
              f'v_mov_b32 v{R+1}, v{R}', f'v_mov_b32 v{R+3}, v{R+2}']
        if not vori:
            o += [f'v_permlane16_swap_b32 v{R}, v{R+1}', f'v_permlane16_swap_b32 v{R+2}, v{R+3}']
        else:
            o += [f'v_mov_b32 v{S}, v{R}', f'v_mov_b32 v{S+1}, v{R+2}',
                  f'v_mov_b32_dpp v{R}, v{S} row_ror:4 row_mask:0xf bank_mask:0xa',
                  f'v_mov_b32_dpp v{R+1}, v{S} row_ror:4 row_mask:0xf bank_mask:0x5',
                  f'v_mov_b32_dpp v{R+2}, v{S+1} row_ror:4 row_mask:0xf bank_mask:0xa',
                  f'v_mov_b32_dpp v{R+3}, v{S+1} row_ror:4 row_mask:0xf bank_mask:0x5']
        return o

    def row_stats(g, X, D, one):
        o = []
        for i in range(len(X[0])):
            for t in range(2):
                c0 = '0' if i == 0 else f'v{D+t}'; c1 = '0' if i == 0 else f'v{D+2+t}'
                o.append(f'v_dot2_f32_bf16 v{D+t}, v{X[t][i]}, {one}, {c0}')
                o.append(f'v_dot2_f32_bf16 v{D+2+t}, v{X[t][i]}, v{X[t][i]}, {c1}')
        return ['\n'.join(o), '@brk', f'v_permlane32_swap_b32 v{D}, v{D+1}', f'v_permlane32_swap_b32 v{D+2}, v{D+3}',
                    f'v_add_f32 v{D}, v{D}, v{D+1}', f'v_add_f32 v{D+2}, v{D+2}, v{D+3}', '@brk',
                    f'v_permlane16_swap_b32 v{D}, v{D+2}', f'v_add_f32 v{D}, v{D}, v{D+2}']

    def stat_store_addr(g, d, sSlice):
        a = g.a
        a('v_lshrrev_b32 v1, 5, v0'); a('v_lshlrev_b32 v1, 8, v1')
        a('v_and_b32 v2, 15, v0'); a('v_lshlrev_b32 v2, 4, v2'); a('v_add_u32 v1, v1, v2')
        a('v_bfe_u32 v2, v0, 4, 1'); a('v_lshlrev_b32 v2, 2, v2')
        a(f's_lshr_b32 s{sT0}, s{sSlice}, 1'); a(f's_lshl_b32 s{sT0}, s{sT0}, 9')
        a(f's_and_b32 s{sT1}, s{sSlice}, 1'); a(f's_lshl_b32 s{sT1}, s{sT1}, 3'); a(f's_add_u32 s{sT0}, s{sT0}, s{sT1}')
        a(f'v_add3_u32 v{d}, v1, v2, s{sT0}')

    def half_tile_addr(g, d, sTile):
        a = g.a
        a(f's_lshr_b32 s{sT0}, s{sTile}, 1'); a(f's_lshl_b32 s{sT0}, s{sT0}, 11')
        a(f's_and_b32 s{sT1}, s{sTile}, 1'); a(f's_lshl_b32 s{sT1}, s{sT1}, 9'); a(f's_add_u32 s{sT0}, s{sT0}, s{sT1}')
        a('v_bfe_u32 v1, v0, 4, 1'); a('v_lshlrev_b32 v1, 10, v1')
        a('v_lshrrev_b32 v2, 5, v0'); a('v_lshlrev_b32 v2, 8, v2'); a('v_add_u32 v1, v1, v2')
        a('v_and_b32 v2, 15, v0'); a('v_lshlrev_b32 v2, 4, v2'); a(f'v_add3_u32 v{d}, v1, v2, s{sT0}')

    def coop_load(g, NK, groups, pitch, vtr, reads, cs=None):
        a = g.a; ng = len(groups); sz = ng * 4096; per = 65536 // sz; ns = min(163840 // sz, 3 * per, 62 // ng + 1); vA = vtr + 3
        a('v_lshrrev_b32 v1, 3, v0'); a(f's_lshl_b32 s{sT0}, s{sW}, 3'); a(f'v_add_u32 v1, s{sT0}, v1'); a(f'v_mul_u32_u24 v1, {pitch}, v1')
        a('v_and_b32 v2, 7, v0'); a('v_lshlrev_b32 v2, 4, v2'); a(f'v_add_u32 v{vA}, v1, v2')
        for i in (1, 2): a(f'v_add_u32 v{vtr+i}, {i*per*sz}, v{vtr}')
        a(f's_lshl_b32 s{sT2}, s{sW}, 10')
        def issue(ks):
            for i, (srd, sb) in enumerate(groups):
                a(f's_add_u32 m0, s{sT2}, {(ks % ns)*sz + i*4096}')
                a(f's_add_u32 s{sT3}, s{sb}, {ks*32*pitch:#x}')
                a(f'buffer_load_dwordx4 v{vA}, {srd}, s{sT3} offen lds')
        for ks in range(min(ns, NK)): issue(ks)
        issued = min(ns, NK)
        for ks in range(NK):
            a(f's_waitcnt vmcnt({(issued - 1 - ks) * ng}) lgkmcnt(0)'); a('s_barrier')
            if ks and issued < NK: issue(issued); issued += 1
            if ks == NK - 8 and not g.started:
                for t in g.start_look(48): a(t)
            sl = ks % ns
            for dest, imm in reads(ks): a(f'ds_read_b64_tr_b16 {dest}, v{vtr + sl // per} offset:{(sl % per)*sz + imm}')
            if cs and ks: g.colsum(ks - 1, *cs)
        for t in g.stamp(5): a(t)
        a('s_waitcnt lgkmcnt(0)')
        if cs: g.colsum(NK - 1, *cs)

    def poll_addr(g, d, sFirst, count, group):
        a = g.a
        if group == 'XA':
            a('v_lshrrev_b32 v1, 3, v0'); a(f'v_mul_u32_u24 v1, {max(g.c.FS,32)}, v1'); a('v_and_b32 v2, 7, v0'); a('v_lshlrev_b32 v2, 2, v2')
            a('v_add_u32 v1, v1, v2'); a(f'v_add_u32 v{d}, {FOFF[group]}, v1'); return
        a(f'v_min_u32 v1, {count-1}, v0'); a(f'v_add_u32 v1, s{sFirst}, v1')
        a(f'v_mul_u32_u24 v1, {g.c.FS}, v1'); a(f'v_add_u32 v{d}, {FOFF[group]}, v1'); g.expand(d)

    def my_flag(g, d, sIndex, group, nl=1, wave0=False):
        a = g.a
        fs = 4 if group == 'XA' else g.c.FS
        if group == 'XA':
            a(f's_lshr_b32 s{sT0}, s{sIndex}, 3'); a(f's_mul_i32 s{sT0}, s{sT0}, {max(g.c.FS,32)}'); a(f's_and_b32 s{sT1}, s{sIndex}, 7')
            a(f's_lshl_b32 s{sT1}, s{sT1}, 2'); a(f's_add_u32 s{sT0}, s{sT0}, s{sT1}')
        else: a(f's_mul_i32 s{sT0}, s{sIndex}, {fs}')
        a(f's_add_u32 s{sT0}, s{sT0}, {FOFF[group]}'); a(f's_and_b32 s{sT1}, s{sT0}, 0xffffe000'); a(f's_add_u32 s{sT0}, s{sT0}, s{sT1}')
        g.lane0_off(d, sT0, nl, fs if nl > 1 else 0)
        if wave0: g.wave0_off(d, 1)

    def resolve_vm(g, lo, hi):
        L = g.a.L
        isvm = lambda t: t.startswith('buffer_') and '@alt' not in t
        for k in range(lo, hi):
            if not L[k].startswith('@vm '): continue
            p = L[k].split(); tag = '@' + p[1]; n = 0; j = k
            while True:
                j = j - 1 if j > lo else hi - 1
                assert j != k, 'tag not found ' + tag
                if isvm(L[j]):
                    if tag in L[j].split(';')[-1].split(): break
                    n += 1
            assert n <= 63
            L[k] = f's_waitcnt vmcnt({n})' + (' ' + ' '.join(p[2:]) if len(p) > 2 else '')

    def resolve_lg(g, lo, hi, q):
        L = g.a.L; q = list(q)
        for k in range(lo, hi):
            t = L[k]
            if t.startswith('ds_'):
                q.append(t.split('#')[1].strip() if '#' in t else '')
                L[k] = t.split('#')[0].rstrip(' ;')
            elif t.startswith('@lg '):
                tag = t.split()[1]
                if tag not in q: L[k] = ''; continue
                p = len(q) - 1 - q[::-1].index(tag)
                q = q[p + 1:]
                L[k] = f's_waitcnt lgkmcnt({min(len(q), 15)})'
            elif 'lgkmcnt(0)' in t: q = []

    def wave0_off(g, d, w=0):
        a = g.a
        a(f's_cmp_eq_u32 s{sW}, {w}'); a(f's_cselect_b32 s{sT0}, 0, {OOB:#x}'); a(f'v_or_b32 v{d}, s{sT0}, v{d}')

    def spin0(g, vPoll, vOff, n, fl, code, also=()):
        l, l2 = g.a.lab('sp'), g.a.lab('spd')
        return [f's_cmp_lg_u32 s{sW}, 0', f's_cbranch_scc1 {l2}', f'{l}:'] + list(also) + [
                f'buffer_load_dword v{vPoll}, v{vOff}, {WS}, s{fl} offen sc1', 's_waitcnt vmcnt(0)',
                f'v_cmp_lt_u32 vcc, s{n}, v{vPoll}', 's_cmp_eq_u64 vcc, -1', f's_cbranch_scc0 {g.timeout(code, l)}',
                f'{l2}:', 's_barrier']

    def ws_loop(g, name, NK, NT, wA, vbase, R, seq, src_base, src_stride, sSrcC, code, T, PL,
                D, so, off, top=(), post=(), pub_shift=0, late=None, pipe=False, mneed=None, local=False, gate=None, leave=None, touch=()):
        a = g.a; c = g.c; PF = T.get('PF', c.PF)
        ahead, KP, KM, KD = T['ahead'], T.get('KP', 0), T['KM'], T['KD']; lock = not ahead
        BUF = NK * 2048; nd = NK // 2
        TOP, SLOW, EXIT = (f'L{name}_{x}' for x in ('top', 'slow', 'exit'))
        sNxx, sW0, sFl2, sPL = 24, 25, 26, 27
        P0, P1 = R['poll'], R['poll'] + 1
        n4 = NK % (PF + 1)
        sets = list(range(PF + 2)) * n4 + list(range(PF + 1)) * ((NK - (PF + 2) * n4) // (PF + 1))
        assert len(sets) == NK and R['fr'] + 8 * (max(sets) + 1) <= R['res']
        fr = lambda ks, t: v(R['fr'] + (sets[ks % NK] * 2 + t) * 4, 4)
        def rd(ks, t):
            off_ = (ks % NK) * 2048 + t * 1024
            return f'ds_read_b128 {fr(ks,t)}, v{R["rd"] + (off_ >> 16)} offset:{off_ & 0xffff} # f{ks}'
        def prep(slow=False):
            o = [f's_mul_i32 s{sSrc}, s{sNx}, {src_stride:#x}']
            o.append(f's_add_u32 s{sSrc}, s{sSrc}, s{sSrcC}' if sSrcC is not None else f's_add_u32 s{sSrc}, s{sSrc}, {src_base:#x}')
            o += [f's_add_u32 s{sM0}, s{sW0}, s{sBuf}' if slow else f's_sub_u32 s{sM0}, s{sWoff}, s{sBuf}']
            return o
        gs = min(nd // 4, 4); ng = 4; rem = nd - gs * ng; sQ, sSo = 28, 32
        inbuf = PL is None
        if inbuf:
            assert ahead and not late and rem > 0 and T['KP2'] > KM >= nd // 2 + 1
            PL = (nd - 1) * 1024; vPL0 = R['pl'] + 1; sPL0 = 41
        def dma(srd):
            o = []
            for q, cnt in ([(0, gs), (1, gs), (2, gs), (3, gs), (-1, rem)] if inbuf else [(0, gs), (-1, rem), (1, gs), (2, gs), (3, gs)]):
                for i in range(cnt):
                    grp = []
                    if i == 0:
                        x = f's{sQ+q}' if q >= 0 else f'{gs*ng*1024}'
                        grp = [f's_add_u32 m0, s{sM0}, {x}', f's_add_u32 s{sSo}, s{sSrc}, {x}']
                    grp.append(f'buffer_load_dwordx4 v{R["dma"]}, {srd}, s{sSo} offen offset:{i*1024} sc1 lds ; @e')
                    o.append(grp)
            return o
        rdp = f'ds_read_b32 v{P0}, v{R["pl"]} # p0'
        def poll_main(n, tag):
            f = [f's_cmp_lt_u32 s{n}, 64', f's_cselect_b32 s{sFl}, 0, {FL_L:#x}'] if c.NEND > 64 else g.fl_of(n, sFl)
            return [f's_mov_b32 m0, s{sPL}'] + f + [f'buffer_load_dword v{R["poff"]}, {WS}, s{sFl} offen sc1 lds ; {tag}']
        ev_main = [f'v_cmp_lt_u32 vcc, s{sNx}, v{P0}', 's_cmp_eq_u64 vcc, -1', f's_cselect_b32 s10, {WS_BYTES:#x}, 0']
        pub = f'buffer_store_dword v{R["fval"]}, v{R["my"]}, {WS}, s{sPFl} offen sc1'
        def pubs():
            if not local: return [pub] + list(touch)
            l1, l2 = a.lab('wb'), a.lab('wbc')
            g.tail.append([f'{l1}:', 'buffer_wbl2 sc1', 's_waitcnt vmcnt(0)', pub, f's_branch {l2}'])
            return [f's_cmp_lg_u32 s{sRound}, 0', f's_cbranch_scc1 {l1}\n' + pub.replace(' sc1', '') + f'\n{l2}:']
        if pub_shift == 0: fv = [f's_add_u32 s{sT0}, s{sN}, 1', f's_mov_b32 s{sPFl}, s{sFl2}', f'v_mov_b32 v{R["fval"]}, s{sT0}']
        else: fv = [f's_add_u32 s{sT0}, s{sN}, 65', f'v_mov_b32 v{R["fval"]}, s{sT0}', f's_cmp_lt_u32 s{sN}, 64',
                    f's_mov_b32 s{sPFl}, {OOB:#x}', f's_cselect_b32 s{sPFl}, {FL_L:#x}, s{sPFl}']
        if 'KX' in T:
            D = ['@vm st', 's_barrier', '@pub'] + [t.replace('@e', '@st') for t in D]; mneed += 3
        xpub = '@pub' in D
        if xpub:
            sFvN, sPFlN = 44, 45
            shift = [f'v_mov_b32 v{R["fval"]}, s{sFvN}', f's_mov_b32 s{sPFl}, s{sPFlN}']
            if pub_shift == 0: fv = shift + [f's_add_u32 s{sFvN}, s{sN}, 1', f's_mov_b32 s{sPFlN}, s{sFl2}']
            else: fv = shift + [f's_add_u32 s{sFvN}, s{sN}, 65', f's_cmp_lt_u32 s{sN}, 64', f's_mov_b32 s{sPFlN}, {OOB:#x}',
                                f's_cselect_b32 s{sPFlN}, {FL_L:#x}, s{sPFlN}']
            D = [pub if t == '@pub' else t for t in D]
            a(f's_mov_b32 s{sFvN}, 0'); a(f's_mov_b32 s{sPFlN}, {OOB:#x}')
        if late and T.get('LC'): off = off + ['s_mov_b32 s41, 0x2000']
        seq_init, next_n = seq
        if sSrcC is not None: a(f's_add_u32 s{sSrcC}, s{sSrcC}, {src_base:#x}')
        a(f's_mul_i32 s{sW0}, s{sW}, {nd*1024}')
        a(f'v_add_u32 v{R["dma"]}, s{sW0}, v{R["l16"]}')
        a(f's_add_u32 s{sWoff}, s{sW0}, {BUF}')
        for q in range(4):
            if 'norot' in c.x: a(f's_mov_b32 s{sQ+q}, {q*gs*1024}'); continue
            a(f's_add_u32 s{sQ+q}, s{sIdx}, {q}'); a(f's_and_b32 s{sQ+q}, s{sQ+q}, 3'); a(f's_mul_i32 s{sQ+q}, s{sQ+q}, {gs*1024}')
        a(f's_lshl_b32 s{sPL}, s{sW}, 9'); a(f's_add_u32 s{sPL}, s{sPL}, {PL}')
        a(f'v_lshrrev_b32 v{R["pl"]}, 2, v{R["l16"]}'); a(f'v_add_u32 v{R["pl"]}, {PL}, v{R["pl"]}')
        if inbuf:
            a(f's_cmp_eq_u32 s{sW}, 0'); a(f's_mov_b32 s{sPL0}, {PL-1024}'); a(f's_cselect_b32 s{sPL0}, {PL}, s{sPL0}'); a(f'v_mov_b32 v{vPL0}, v{R["pl"]}')
            a(f's_add_u32 s{sPL}, s{sPL0}, {BUF}'); a(f'v_add_u32 v{R["pl"]}, {BUF}, v{vPL0}')
        g.wave0_off(R['poff'])
        if lock:
            a(f'v_mov_b32 v{P0}, 0'); a(f'ds_write_b32 v{R["pl"]}, v{P0}'); a(f'ds_write_b32 v{R["pl"]}, v{P0} offset:2048'); a('s_waitcnt lgkmcnt(0)')
        if late: g.wave0_off(late['poff'])
        a(f's_mov_b32 s{sNx}, 0'); a(f's_mov_b32 s{sBuf}, 0'); a(f's_mov_b32 s{sN}, 0')
        a(f'v_mov_b32 v{R["rd"]}, v{R["l16"]}')
        a(f's_mov_b32 s{sPFl}, {OOB:#x}'); a(f'v_mov_b32 v{R["fval"]}, 0')
        for t in seq_init + off: a(t)
        if late and not T.get('LC'): g.srd(12, P_WS, WS_BYTES); a('s_mov_b32 s41, 0')
        if ahead:
            for t in next_n(sNxx, sNx): a(t)
        if c.probe:
            for i_ in range(8): a(f's_mov_b32 s{33+i_}, 0')
        g.mini_init(2)
        g.light_start()
        a(f's_branch {SLOW}')
        a('.p2align 6')
        lo = len(a.L)
        a(f'{TOP}:')
        free = []
        chain = []
        head = [f's_mov_b32 s{sN}, s{sNx}'] + g.stamp(0) + g.mini_take()
        sRn = 51
        ev2 = [f'v_cmp_lt_u32 vcc, s{sNxx}, v{P0}', 's_cmp_eq_u64 vcc, -1', f's_cselect_b32 s{sRn}, {WS_BYTES:#x}, 0']
        blk = T.get('block'); hs = c.halfstart and ahead and not late
        if ahead: head += [f's_mov_b32 s{sNx}, s{sNxx}', f's_mov_b32 s10, s{sRn}'] + prep()
        if BUF > 65536: head.append(f'v_add_u32 v{R["rd"]+1}, 0x10000, v{R["rd"]}')
        if gate: head += gate
        free.append((-2, head, None, 'head'))
        assert inbuf or PL % 4096 == 0
        if lock:
            seqf = next_n(sNx, sN) + [f's_cmp_lg_u32 s{sT0}, s{sNx}', f's_cselect_b32 s10, {WS_BYTES:#x}, 0'] + g.fl_of(sNx, sFl) + \
                   [f's_lshr_b32 s{sT1}, s{sFl}, 7', f's_add_u32 m0, s{sPL}, s{sT1}', f'v_add_u32 v{P1}, s{sT1}, v{R["pl"]}']
            lpoll = f'buffer_load_dword v{R["poff"]}, {WS}, s{sFl} offen sc1 lds'
            free.append((-1, seqf, None, 'fl'))
            chain.append((-1, [lpoll], 'fl', None))
            free.append((T['KB'] - 2, g.fl_of(sN, sFl2) + prep(), None, 'prep'))
            lb, lc, ll, l0 = a.lab('blk'), a.lab('blkc'), a.lab('blkl'), a.lab('blk0')
            chain.append((T['KB'] - 1.5, [f'ds_read_b32 v{P0}, v{P1} # p'], 'fl', None))
            chain.append((T['KB'], ['@lg p'] + ev_main[:2] + [f's_cbranch_scc0 {lb}\n{lc}:'] + g.stamp(1), 'prep', None))
            g.tail.append([f'{lb}:', 's_cmp_eq_u32 s10, 0', f's_cbranch_scc1 {lc}', f'{ll}:', f's_cmp_lg_u32 s{sW}, 0', f's_cbranch_scc1 {l0}',
                           lpoll, f'{l0}:', f'ds_read_b32 v{P0}, v{P1}', 's_waitcnt lgkmcnt(0)'] + ev_main[:2] +
                          [f's_cbranch_scc1 {lc}', f's_branch {g.timeout(code, ll)}'])
            if 'KP2' in T:
                chain.append((T['KP2'], [f's_lshr_b32 s{sT1}, s{sFl2}, 7', f's_add_u32 m0, s{sPL}, s{sT1}', 's_nop 0',
                                         lpoll.replace(f's{sFl} ', f's{sFl2} ')], None, None))
            assert KD[0] > T['KB'] and not late and not pipe
        else:
            tog = [f's_xor_b32 s{sPL}, s{sPL}, 2048', f'v_xor_b32 v{R["pl"]}, 2048, v{R["pl"]}']
            seqf = g.fl_of(sN, sFl2) + tog
            if inbuf:
                tog = [f's_add_u32 s{sPL}, s{sPL}, 256', f'v_add_u32 v{R["pl"]}, 256, v{R["pl"]}']
                seqf = g.fl_of(sN, sFl2) + [f's_add_u32 s{sPL}, s{sPL0}, s{sBuf}', f'v_add_u32 v{R["pl"]}, s{sBuf}, v{vPL0}']
            free.append((KP - 1.5, seqf, None, 'fl'))
        afterM = False; prev = None; lastst = None
        for i, t in enumerate(D):
            kk = T.get('K0', 0) + (i * (T['KA'] - T.get('K0', 0))) / len(D)
            if 'KX' in T and i < 3: kk = T['KX']
            if t == '@M': afterM = True; continue
            if afterM: kk = KM + 0.005
            if t.startswith('buffer_') and t != pub: chain.append((kk, [t], prev, f'd{i}')); lastst = f'd{i}'
            else: free.append((kk, [t], 'M' if afterM else None, f'd{i}'))
            prev = f'd{i}'
        for grp in top: chain.append((T.get('KT', 0), grp, 'head', 'top'))
        le = late and T.get('LE')
        sLn = 41
        lc_ = late and T.get('LC')
        if lc_:
            le = True
            chain.append((T['KP2'] + 0.001, [f's_add_u32 m0, s{sPL}, 256', 's_nop 0', f'buffer_load_dword v{late["poff"]}, {WS}, s{sFl2} offen sc1 lds ; @e'], 'fl', None))
            ll = late['loads'](WS, '@late', sLn)
            for i, grp in enumerate(ll): chain.append((-1, grp, None, 'll' if i == len(ll) - 1 else None))
            free = [(k, grp, 'll' if grp == ['@vm late'] else n_, g_) for k, grp, n_, g_ in free]
            so = so + [f's_mov_b32 s{sLn}, s{sN}']
        elif le:
            f_ = g.fl_of(sNx, sT3)
            chain.append((T['KP2'] + 0.001, f_[:-1] + [f's_add_u32 m0, s{sPL}, 256', f_[-1], f'buffer_load_dword v{late["poff"]}, {WS}, s{sT3} offen sc1 lds ; @e'], 'fl', None))
            head.append(f's_mov_b32 s14, s{sLn}')
        elif late: chain.append((KP, [f's_add_u32 m0, s{sPL}, 256', 's_nop 0', f'buffer_load_dword v{late["poff"]}, {WS}, s{sFl2} offen sc1 lds ; @m'], 'fl', None))
        m = (['@lg a'] if mneed is not None else []) + ((['@vm s', '@mbar'] if hs else ['s_nop 0']) if pipe and ahead and not late else ['@mbar'] if le else ['@vm m', '@mbar'])
        if late and not le: m.append(f'ds_read_b32 v{P1}, v{R["pl"]} offset:256 # p')
        assert not (hs and pipe) or T['KT'] < KM
        chain.append((KM, m + ([] if lock else g.stamp(1)), None if mneed is None else f'd{mneed}', 'M'))
        if not pipe: chain.append((KM, pubs(), None, 'pub'))
        KE = KM + 0.01
        if late:
            if not le: chain.append((KE, ['@gap', '@lg p', f'v_cmp_lt_u32 vcc, s{sN}, v{P1}', 's_cmp_eq_u64 vcc, -1', f's_cselect_b32 s14, {WS_BYTES:#x}, 0'], None, None))
            for grp in ([] if lc_ else late['loads'](W1, '@late')): chain.append((T.get('KL', KE), grp, None, None))
        pf = dma(WSC)
        n1 = T.get('N1', gs + rem) if len(KD) == 3 else 0
        for i, grp in enumerate(pf):
            kk = KD[0] + i * T.get('D1', 0.8) if i < n1 else KD[-2] + ((i - n1) * (KD[-1] - KD[-2])) / (nd - n1)
            chain.append((kk, grp, 'M' if inbuf and i == nd - 1 else 'head', None))
            assert not (inbuf and i == nd - 1) or kk > KM
        if ahead:
            chain.append((T['KP2'], next_n(sNxx, sNx) + poll_main(sNxx, '@e'), 'fl', None))
        free.append((NK - PF - 2, so, 'pub' if touch else lastst, None))
        if not pipe: free.append((NK - PF - 1.5, fv, 'pub', None))
        k2 = T.get('KS', KM); np_ = len(post); span = NK - PF - 2.5 - k2
        assert not post or k2 >= T['KA']
        if post: free.append((k2, ['@vm s'], 'top', None))
        for i, t in enumerate(post): free.append((k2 + (i * span) / max(np_, 1), [t], None, None))
        if 'novmw' in c.x: chain = [(k, [t for t in grp if t != '@vm m'], n_, g_) for k, grp, n_, g_ in chain]
        if 'nodma' in c.x: chain = [(k, [t for t in grp if not (t.startswith('buffer_load_dwordx4') and ' lds' in t and '@late' not in t)] or ['s_nop 0'], n_, g_) for k, grp, n_, g_ in chain]
        if 'nod' in c.x: free = [(k, ['s_nop 0'] if (g_ or '').startswith('d') and grp[0].startswith('v_') else grp, n_, g_) for k, grp, n_, g_ in free]
        free.sort(key=lambda x: x[0]); chain.sort(key=lambda x: x[0])
        ch2 = []
        for k, grp, nd_, gv in chain:
            subs = [[]]
            for t in grp:
                subs[-1].append(t)
                if t.startswith('buffer_'): subs.append([])
            subs = [x for x in subs if x]
            for i, x in enumerate(subs): ch2.append((k, x, nd_, gv if i == len(subs) - 1 else None))
        chain = []; own = None
        for k, x, nd_, gv in ch2:
            isd = x[-1].startswith(f'buffer_load_dwordx4 v{R["dma"]},')
            m0w = [t for t in x if ' m0,' in t]
            if isd and m0w: own = m0w[0]; clean = True
            elif isd and not clean: x = [own] + x; clean = True
            elif m0w: clean = False
            chain.append((k, x, nd_, gv))
        marks = {None}; st = dict(t=0, tm=-16, tv=-999, tM=0, cur=[], gv=None)
        DV = T.get('dv', 72)
        scalar = lambda t: t.startswith(('s_', '@'))
        def after(t):
            if t.startswith('v_mfma'):
                tm = max(st['t'], st['tm'] + 16); return tm + 4, tm
            if scalar(t): return st['t'] + 4, st['tm']
            if t.startswith(('v_dot', 'v_pk')): return max(st['t'], st['tm'] + 28) + 4, st['tm']
            return max(st['t'], st['tm'] + 8) + (8 if t.startswith(('v_exp', 'v_rcp', 'v_sqrt', 'v_perml')) else 4), st['tm']
        def emit(t):
            for u in t.split('\n'):
                if u == '@mbar': u = 's_barrier'; st['tM'] = st['t']; st['kM'] = (st['k'], st['t'])
                a(u)
                if u.endswith(':'): continue
                st['t'], st['tm'] = after(u)
                if u.startswith('buffer_'):
                    st['tv'] = st['t'] + (20 if u.startswith('buffer_store_dwordx4') else 0)
                    if u != pub: st['kv'] = (st['k'], st['t'])
                    if u.startswith('buffer_store') and u != pub: st['ks'] = (st['k'], st['t'])
        def cands(pos, force):
            o = []
            if chain and chain[0][2] in marks and (force or chain[0][0] <= pos):
                grp = chain[0][1]; ok = True
                if not force:
                    if grp[-1].startswith('buffer_') and st['t'] + 4 * len(grp) < st['tv'] + DV: ok = False
                    if grp[0] == '@gap' and st['t'] < st['tM'] + 100: ok = False
                if ok: o.append(chain)
            if free and free[0][2] in marks and (force or free[0][0] <= pos): o.append(free)
            return o
        first = lambda q: [t for t in q[0][1] if t != '@gap'][0]
        def peek(pos, force=False, want=None):
            if st['cur']: return None, st['cur'][0]
            for q in cands(pos, force):
                if want is None or want(first(q)): return q, first(q)
            return None, None
        def take(q):
            if q is not None:
                it = q.pop(0); st['cur'] = [t for t in it[1] if t != '@gap']; st['gv'] = it[3]
            t = st['cur'].pop(0)
            if not st['cur']: marks.add(st['gv'])
            return t
        def flush():
            n = 0
            while st['cur'] or chain or free:
                q, t = peek(99, True)
                assert t is not None, (name, chain[:1], free[:1])
                t = take(q)
                if t != '@brk': emit(t); n += 1
            return n
        quota = T.get('quota', lambda ks: 2)
        left = 0; carry = []
        st['k'] = 0; emit('@lg f0')
        for ks in range(NK):
            st['k'] = ks
            if c.probe and ks in c.probe:
                emit(f's_memtime {s(sST+2*c.probe.index(ks),2)}'); g.left.setdefault(name + '_t', []).append(st['t'])
            mand = carry + [rd(ks + PF, 0), rd(ks + PF, 1)]; carry = []
            if ks == NK - PF:
                carry = ([f'ds_read2st64_b32 {v(P0,2)}, v{R["pl"]} offset0:0 offset1:1 # p0'] if le else [rdp] if ahead else []) + mand
                mand = []
                free.append((0, [f's_sub_u32 s{sBuf}, {BUF}, s{sBuf}', f'v_add_u32 v{R["rd"]}, s{sBuf}, v{R["l16"]}'], None, None))
            k = 0
            for t in range(2):
                for n in (range(NT) if t == 0 or not c.snake else range(NT - 1, -1, -1)):
                    d = v(R['acc'] + (t * NT + n) * 4, 4)
                    cc = d if ks else '0'
                    if ks == NK - 1: d = v(R['res'] + (t * NT + n) * 4, 4)
                    w = wreg((ks * NT + n) * 4, 4, vbase)
                    if wA: emit(f'v_mfma_f32_16x16x32_bf16 {d}, {w}, {fr(ks,t)}, {cc}')
                    else:  emit(f'v_mfma_f32_16x16x32_bf16 {d}, {fr(ks,t)}, {w}, {cc}')
                    k += 1
                    pos = ks + k / (2 * NT); B = 8 + 4 * quota(ks)
                    if ks == NK - PF and k == 2 * NT:
                        left += flush()
                        if c.probe and 'pe' in c.x:
                            for t_ in [f'@lg f{NK-1}', f's_memtime {s(sST+10,2)}', 's_waitcnt lgkmcnt(0)', '@vm e', f's_memtime {s(sST+12,2)}', 's_waitcnt lgkmcnt(0)',
                                       's_barrier', f's_memtime {s(sST+14,2)}', 's_waitcnt lgkmcnt(0)']: emit(t_)
                            g.left[name + '_t'] += [st['t']] * 3
                        else:
                            for t_ in [f'@lg f{NK-1}', 's_nop 0' if 'novme' in c.x else '@vm e', 's_barrier']: emit(t_)
                        if c.probe:
                            acc_ = []
                            for i_ in range(7 if 'pe' in c.x else len(c.probe) - 1):
                                acc_ += [f's_sub_u32 s{sT1}, s{sST+2*i_+2}, s{sST+2*i_}', f's_add_u32 s{33+i_}, s{33+i_}, s{sT1}']
                            acc_ += [f's_sub_u32 s{sT1}, s{sST}, s43', f's_min_u32 s{sT1}, s{sT1}, 1500', f's_add_u32 s40, s40, s{sT1}', f's_mov_b32 s43, s{sST+14 if "pe" in c.x else sST+2*len([k_ for k_ in c.probe if k_ <= NK-PF])-2}'] if name != 'DNF_' else []
                            free.append((0, acc_, None, None))
                        if PF == 2:
                            for t_ in carry[:2]: emit(t_)
                            carry = carry[2:]
                        free.append((0, g.stamp(2) + (fv if xpub else [pub] + fv if pipe else []) + g.mini_put(2) + ['s_nop 0'], None, None))
                        fin = []
                        if ahead: fin = ['@lg p0'] + ev2
                        if lc_: fin += [f'v_cmp_lt_u32 vcc, s{sN}, v{P1}', 's_cmp_eq_u64 vcc, -1', 's_cselect_b32 s14, -1, 0']
                        elif le: fin += [f'v_cmp_lt_u32 vcc, s{sNx}, v{P1}', 's_cmp_eq_u64 vcc, -1', f's_cselect_b32 s{sLn}, {WS_BYTES:#x}, 0']
                        if ahead and blk:
                            if name == 'P': fin += [f's_xor_b32 s{sT1}, s{sNx}, s{sNxx}', f's_and_b32 s{sT1}, s{sT1}, 0xc0', f's_cmp_lg_u32 s{sT1}, 64']
                            else: fin += [f's_add_u32 s{sT1}, s{sNx}, 1', f's_cmp_eq_u32 s{sT1}, s{sNxx}'] if blk is True else [f's_cmp_ge_u32 s{sNxx}, {blk}']
                            fin += [f's_cselect_b32 s{sNeed}, -1, s{sRn}', f's_and_b32 s{sNeed}, s{sNeed}, s10']
                            if late: fin.append(f's_and_b32 s{sRdy}, s{sNeed}, s14')
                        else: fin += [f's_and_b32 s{sRdy}, s10, s14'] if late else ['s_cmp_lg_u32 s10, 0']
                        free.append((NK - 1 + (0.2 if PF > 2 else 0.7), fin, None, None))
                        continue
                    if k == 2 * NT and ks + 1 < NK: emit(f'@lg f{ks+1}')
                    else:
                        q, t_ = peek(pos, want=lambda x: scalar(x) and x != '@brk')
                        if t_ is not None and scalar(t_) and t_ != '@brk': emit(take(q))
                    for _ in range(2 if len(mand) > 2 else 1):
                        if mand: emit(mand.pop(0))
                    nv = 0
                    while True:
                        q, t_ = peek(pos)
                        if t_ is None: break
                        if t_.startswith('v_') and not t_.startswith('v_mfma'):
                            nv += 1
                            if nv > T.get('nv', lambda k_: 9)(k): break
                        if t_ == '@brk': take(q); break
                        if '\n' not in t_ and not t_.startswith('v_mfma') and after(t_)[0] > st['tm'] + B: break
                        emit(take(q))
                        if '\n' in t_: break
        left += flush()
        g.left[name] = dict(left=left, M=st.get('kM'), st=st.get('ks'), lastvm=st.get('kv'), t=st['t'])
        q0 = [f'f{k}' for k in range(PF) for t in range(2)]
        g.resolve_lg(lo, len(a.L), q0)
        if c.stamps:
            a(f's_cselect_b32 s{sRdy}, 1, 0')
            for t in g.stamp(3): a(t)
            g.stamp_store(R['acc'], 4)
            a(f's_cmp_lg_u32 s{sRdy}, 0')
        a(f's_cbranch_scc1 {TOP}')
        hi_ = len(a.L); g.resolve_vm(lo, hi_)
        for t in g.mstamp(1): a(t)
        if late:
            l1 = a.lab('lw')
            a('s_cmp_lg_u32 s14, 0'); a(f's_cbranch_scc1 {l1}')
            l3 = a.lab('lg')
            if xpub:
                for t in tog + poll_main(sNxx, '') + [f's_add_u32 m0, s{sPL}, 256', 's_nop 0',
                        f'buffer_load_dword v{late["poff"]}, {WS}, s{sFl2} offen sc1 lds', 's_waitcnt vmcnt(0) lgkmcnt(0)', 's_barrier',
                        f'ds_read2st64_b32 {v(P0,2)}, v{R["pl"]} offset0:0 offset1:1', pub, 's_waitcnt lgkmcnt(0)',
                        f'v_cmp_lt_u32 vcc, s{sN}, v{P1}', 's_cmp_eq_u64 vcc, -1', f's_cbranch_scc1 {l3}']: a(t)
            for t in tog + g.spin0(P1, late['poff'], sN, sFl2, late['code'], poll_main(sNxx, '')) + [rdp.split('#')[0], f'{l3}:'] + g.mstamp(2) + \
                     [t for grp in ([] if lc_ else late['loads'](WS, '')) for t in grp] + ['s_waitcnt lgkmcnt(0)'] + ev2: a(t)
            assert not blk
            if lc_: pass
            elif T.get('LW'):
                k_ = max(k for k in range(lo, hi_) if '@late' in a.L[k])
                a(f's_mov_b32 s{sT1}, {OOB:#x}')
                for k in range(k_ + 1, hi_):
                    if a.L[k].startswith('buffer_'): a(pub.replace(f's{sPFl} ', f's{sT1} '))
            else: a('s_waitcnt vmcnt(0)')
            a(f's_cmp_lg_u32 s{sNeed if blk else 10}, 0'); a(f's_cbranch_scc1 {TOP}')
            fe = c.fin_early and 'KX' in T
            if fe:
                lb, lfin = a.lab('fe'), a.lab('fef')
                a(ev_main[0]); a(f's_min_u32 s{sT1}, s{sNxx}, 127'); a(f's_xor_b32 s{sT1}, s{sT1}, s{sNx}')
                lno = a.lab('fen')
                for t in ev_main[1:] + [f's_cmp_lt_u32 s{sT1}, 64', 's_cselect_b32 s10, s10, 0', 's_cmp_eq_u32 s10, 0', f's_cbranch_scc1 {lno}'] + \
                         prep(True) + [t for grp in dma(WS) for t in grp]: a(t)
                a(f's_waitcnt vmcnt({nd})'); a(f's_branch {lb}')
                a(f'{lno}:'); a('s_waitcnt vmcnt(0)'); a(f's_branch {lb}')
            a(f'{l1}:')
            if lc_:
                for grp in late['loads'](WS, ''):
                    for t in grp: a(t)
        k0 = len(a.L)
        for i, t in enumerate(D):
            if late and fe and i == 3: a(f'{lb}:')
            if t == '@M': a('s_waitcnt lgkmcnt(0)'); a('s_barrier')
            elif t == '@vm late' and 'KX' in T: pass
            elif t.startswith('@vm'): a('s_waitcnt vmcnt(0)')
            elif t != '@brk': a(t)
        g.resolve_lg(k0, len(a.L), [])
        for t in ([] if touch else off) + (shift if xpub else []): a(t)
        lgo = a.lab('go')
        if lock:
            a('s_waitcnt vmcnt(0)'); a('s_barrier'); a(pub)
            a(f's_cmp_ge_u32 s{sNx}, {c.NEND}'); a(f's_cbranch_scc1 {EXIT}')
        else:
            if blk:
                l2 = a.lab('sc')
                a('s_cmp_lg_u32 s10, 0'); a(f's_cbranch_scc1 {l2}')
                g.tail.append([f'{l2}:'] + tog + poll_main(sNxx, '') + ['s_waitcnt vmcnt(0) lgkmcnt(0)', 's_barrier', rdp.split('#')[0]] + pubs() + g.mstamp(3) + (off if touch else []) +
                              [f's_mov_b32 s{sRn}, {WS_BYTES:#x}', 's_waitcnt lgkmcnt(0)'] + ev2[:2] + [f's_cbranch_scc1 {TOP}'] +
                              g.spin0(P0, R['poff'], sNxx, sFl, code) + [f's_branch {TOP}'])
            for t in tog: a(t)
            lrd = a.lab('rd'); lrd2 = a.lab('rd2')
            if late and fe:
                a('s_cmp_lg_u32 s10, 0'); a(f's_cbranch_scc1 {lfin}')
                g.tail.append([f'{lfin}:'] + poll_main(sNxx, '') + ['s_waitcnt vmcnt(0) lgkmcnt(0)', 's_barrier', pub] + g.mstamp(3) + [f's_branch {lrd2}'])
            if c.med:
                lm, ln = a.lab('med'), a.lab('nomed')
                a(f's_min_u32 s{sT1}, s{sNxx}, 127'); a(f's_xor_b32 s{sT1}, s{sT1}, s{sNx}'); a(f's_cmp_ge_u32 s{sT1}, 64'); a(f's_cbranch_scc1 {ln}')
                a(ev_main[0]); a(ev_main[1]); a(f's_cbranch_scc1 {lm}'); a(f'{ln}:')
                pb = pubs(); npb = 1 + len(touch)
                g.tail.append([f'{lm}:'] + prep(True) + [t for grp in dma(WS) for t in grp] + poll_main(sNxx, '') +
                              [f's_waitcnt vmcnt({nd+1}) lgkmcnt(0)', 's_barrier'] + pb + (off if touch else []) + [f's_waitcnt vmcnt({npb})', f's_branch {lrd}'])
            for t in poll_main(sNx, '') + prep(True): a(t)
            a('s_waitcnt vmcnt(0) lgkmcnt(0)'); a('s_barrier'); a(rdp.split('#')[0])
            for t in pubs() + g.mstamp(3) + (off if touch else []): a(t)
            a(f's_cmp_ge_u32 s{sNx}, {c.NEND}'); a(f's_cbranch_scc1 {EXIT}')
            for t in tog: a(t)
            a('s_waitcnt lgkmcnt(0)'); a(ev_main[0]); a(ev_main[1]); a(f's_cbranch_scc1 {lgo}')
        a(f'{SLOW}:')
        for t in g.fl_of(sNx, sFl) + prep(True) + g.spin0(P0, R['poff'], sNx, sFl, code): a(t)
        a(f'{lgo}:')
        for t in g.mstamp(4): a(t)
        if hs:
            need = 2 * (st['kM'][0] + PF + 1); n1 = -(-need // 4)
            for t in poll_main(sNxx, ''): a(t)
            a(f's_lshl_b32 s{sT1}, s{sW}, 10'); a(f's_add_u32 s{sSrc}, s{sSrc}, s{sT1}'); a(f's_add_u32 s{sM0}, s{sBuf}, s{sT1}')
            for i in range(nd):
                a(f's_add_u32 m0, s{sM0}, {i*4096}'); a(f's_add_u32 s{sSo}, s{sSrc}, {i*4096}')
                a(f'buffer_load_dwordx4 v{R["l16"]}, {WS}, s{sSo} offen sc1 lds')
            a(f's_waitcnt vmcnt({nd - n1})')
        else:
            for grp in dma(WS):
                for t in grp: a(t)
            if ahead:
                for t in poll_main(sNxx, ''): a(t)
            a('s_waitcnt vmcnt(0)')
        if not lock: a(f'{lrd}:')
        a('s_barrier')
        if not lock: a(f'{lrd2}:')
        for t in ([rdp] if ahead else []) + [rd(k, t) for k in range(PF) for t in range(2)]: a(t.split('#')[0])
        if ahead:
            a(f's_waitcnt lgkmcnt({2*PF})')
            for t in ev2: a(t)
        a(f's_branch {TOP}')
        a(f'{EXIT}:')
        if leave: leave()
        if c.probe:
            for i_ in range(8): a(f'v_mov_b32 v{8+i_}, s{33+i_}')
            a(f's_lshl_b32 s{sT0}, s2, 12'); a(f's_add_u32 s{sT0}, s{sT0}, {STAMP+32:#x}'); a(f's_lshl_b32 s{sT1}, s{sW}, 5'); a(f's_add_u32 s{sT0}, s{sT0}, s{sT1}')
            a('v_mov_b32 v16, 0'); a(f'buffer_store_dwordx4 v[8:11], v16, {WS}, s{sT0} offen'); a(f'buffer_store_dwordx4 v[12:15], v16, {WS}, s{sT0} offen offset:16')
            a('s_waitcnt vmcnt(0)')
        g.endpgm()
        g.flush_tail()

    def mask_seq(g, order):
        bits = sum(1 << i for i in range(len(order) - 1) if order[i] // 64 != order[i + 1] // 64 and not (order[i] == 63 and order[i + 1] == 64))
        init = [f's_mov_b32 s{44+i}, {(bits >> (32*i)) & 0xffffffff:#x}' for i in range(4)] + [f's_mov_b32 s{sOth}, 64', f's_mov_b32 s{sCnt}, 0']
        jump = []
        if g.c.HK:
            h0, h1 = g.c.H0, g.c.H0 + g.c.HK; sFrom, sTo = sC + 8, sC + 9
            init += [f's_cmp_eq_u32 s{sHelp}, 0', f's_cselect_b32 s{sFrom}, {h0}, {h1}', f's_cselect_b32 s{sTo}, {h1}, 0x80',
                     f's_cselect_b32 s{sNx}, 0, {h0}', 's_cselect_b64 s[44:45], s[44:45], 0']
            jump = [f's_cmp_eq_u32 s{sT0}, s{sFrom}', f's_cselect_b32 s{sT0}, s{sTo}, s{sT0}']
        def nxt(dst, src):
            return [f's_add_u32 s{sT0}, s{src}, 1'] + jump + [f's_bitcmp1_b64 s[44:45], s{sCnt}',
                    f's_cselect_b32 s{dst}, s{sOth}, s{sT0}', f's_cselect_b32 s{sOth}, s{sT0}, s{sOth}',
                    f's_add_u32 s{sCnt}, s{sCnt}, 1', f's_cmp_eq_u32 s{sCnt}, 64', 's_cselect_b64 s[44:45], s[46:47], s[44:45]',
                    f's_min_u32 s{sCnt}, s{sCnt}, 127']
        return init, nxt

    def lag(g, role):
        return min(g.c.L + g.c.DLAG[('AT', 'WOP', 'WOF', 'GU', 'DNP', 'DNF').index(role)], 64)

    def lag_seq(g, L):
        return g.seq_init(L), (lambda dst, src: g.next_n(dst, src, L))

    def near_side(g, part):
        a = g.a; l = a.lab('ns'); lp = a.lab('nsl')
        a(f's_cmp_lg_u32 s{sW}, 3'); a(f's_cbranch_scc1 {l}'); a(f's_cmp_lg_u32 s{sIdx}, 0'); a(f's_cbranch_scc1 {l}')
        a(f's_mov_b32 s{sT0}, {CAL:#x}'); g.lane0_off(2, sT0)
        m0, m1, cnt = sNeed, sFl, sPFl
        if part == 0: a(f's_mov_b32 s{m0}, -1'); a(f's_mov_b32 s{m1}, -1')
        a(f's_mov_b32 s{cnt}, 0'); a(f's_mov_b32 s{sT2}, 0x2000')
        a(f'{lp}:')
        for m, so in ((m0, '0'), (m1, f's{sT2}')):
            a(f's_memtime {s(sC+10,2)}'); a('s_waitcnt lgkmcnt(0)')
            a(f'buffer_store_dword v0, v2, {WS}, {so} offen sc1'); a('s_waitcnt vmcnt(0)')
            a(f's_memtime {s(sC+12,2)}'); a('s_waitcnt lgkmcnt(0)')
            a(f's_sub_u32 s{sT1}, s{sC+12}, s{sC+10}'); a(f's_min_u32 s{m}, s{m}, s{sT1}'); a(f's_add_u32 s{cnt}, s{cnt}, s{sT1}')
        a(f's_cmp_lt_u32 s{cnt}, {(5000, g.c.CALT)[part]}'); a(f's_cbranch_scc1 {lp}')
        if part == 1:
            a(f's_cmp_lt_u32 s{m1}, s{m0}'); a(f's_cselect_b32 s{sT1}, 1, 0')
            a(f's_lshr_b32 s{sT2}, s{sXcc}, 2'); a(f's_xor_b32 s{sT1}, s{sT1}, s{sT2}'); a(f's_add_u32 s{sT1}, s{sT1}, 1')
            if 'flip' in g.c.x: a(f's_xor_b32 s{sT1}, s{sT1}, 3')
            a(f'v_mov_b32 v3, s{sT1}'); a(f's_mov_b32 s{sT0}, 160'); g.lane0_off(2, sT0)
            a(f'buffer_store_dword v3, v2, {DBG}, 0 offen sc1')
            if g.c.light or g.c.stamps:
                a(f's_lshl_b32 s{m1}, s{m1}, 16'); a(f's_or_b32 s{m0}, s{m0}, s{m1}'); a(f'v_mov_b32 v3, s{m0}')
                a(f'buffer_store_dword v3, v2, {DBG}, 0 offen offset:4 sc1')
        a(f'{l}:')

    def role_p(g):
        a = g.a; c = g.c
        a('L_P:')
        VB = 128
        R = dict(acc=8, fr=32, res=64, rd=112, l16=113, dma=114, poff=115, poll=4, pl=116, my=117, fval=118)
        CS, RES, RS, S, vStat, vOut = 88, 64, 100, 104, 119, 120
        sOut, sGam = sC + 4, sC + 5
        g.my_flag(R['my'], sIdx, 'P', wave0=True); g.zero_flags(R['my']); g.arrive()
        a('L_P2:')
        srds = (8, 12, 16)
        for n in range(3):
            gm = sGam + n; d = srds[n]
            a(f's_mul_i32 s{gm}, s{sIdx}, 3'); a(f's_add_u32 s{gm}, s{gm}, {n}')
            a(f's_cmp_lt_u32 s{gm}, 64'); a(f's_cselect_b32 s{d}, s{P_WQ}, s{P_WK}'); a(f's_cselect_b32 s{d+1}, s{P_WQ+1}, s{P_WK+1}')
            a(f's_cmp_lt_u32 s{gm}, 128'); a(f's_cselect_b32 s{d}, s{d}, s{P_WV}'); a(f's_cselect_b32 s{d+1}, s{d+1}, s{P_WV+1}')
            a(f's_and_b32 s{d+1}, s{d+1}, 0xffff'); a(f's_mov_b32 s{d+2}, 0x800000'); a(f's_mov_b32 s{d+3}, 0x20000')
            a(f's_and_b32 s{sC+n}, s{gm}, 63'); a(f's_lshl_b32 s{sC+n}, s{sC+n}, 7')
        a(f's_lshl_b32 s{sT1}, s{sW}, 5'); g.tr_addr(8, 128, 8, 8, sT1)
        g.coop_load(32, [(s(srds[n], 4), sC + n) for n in range(3)], 8192, 8,
                    lambda ks: [(wreg((ks * 3 + n) * 4 + 2 * hh, 2, VB), n * 4096 + hh * 512) for n in range(3) for hh in range(2)], (3, VB, CS, 12))
        g.srd(8, P_WS, WS_BYTES)
        a(f'v_lshlrev_b32 v{R["l16"]}, 4, v0')
        g.stat_addr(vStat, False)
        a(f's_mov_b32 s{sT2}, 0'); g.poll_addr(R['poff'], sT2, 64, 'XA')
        for n in range(3):
            a(f's_and_b32 s{sT2}, s{sGam+n}, 63'); a(f's_lshl_b32 s{sT2}, s{sT2}, 2'); a(f's_add_u32 s{sT2}, s{sT2}, s{sW}')
            g.half_tile_addr(vOut + n, sT2)
            a(f's_lshr_b32 s{sT0}, s{sGam+n}, 6'); a(f's_mul_i32 s{sT0}, s{sT0}, {KX-QX:#x}'); a(f'v_add_u32 v{vOut+n}, s{sT0}, v{vOut+n}')
        g.start_once()
        if c.HK: lh = a.lab('nh'); a(f's_cmp_lg_u32 s{sHelp}, 0'); a(f's_cbranch_scc1 {lh}')
        g.to_side([(R['my'], 'P')])
        if c.HK: a(f'{lh}:')
        post = g.stat_math(S, RS, False)
        def ln(n):
            o = []
            for t in range(2):
                d = RES + (t * 3 + n) * 4
                o += [f'v_fmac_f32 v{d+r}, v{RS+2+t}, v{CS+4*n+r}' for r in range(4)]
                o += [f'v_mul_f32 v{d+r}, v{RS+t}, v{d+r}' for r in range(4)]
            return o
        cv = lambda n: [f'v_cvt_pk_bf16_f32 v{RES+4*n+2*t+h}, v{RES+(t*3+n)*4+2*h}, v{RES+(t*3+n)*4+2*h+1}' for t in range(2) for h in range(2)]
        sw = lambda n: [f'v_permlane16_swap_b32 v{RES+4*n}, v{RES+4*n+2}', f'v_permlane16_swap_b32 v{RES+4*n+1}, v{RES+4*n+3}']
        sto = lambda n: [f'buffer_store_dwordx4 {v(RES+4*n,4)}, v{vOut+n}, {WS}, s{sOut} offen sc1 ; ' + ('@e' if c.T_KV.get('pipe') else '@m')]
        D = ln(0) + cv(0) + ln(1)[:2] + sw(0) + sto(0) + ln(1)[2:] + cv(1) + ln(2)[:2] + sw(1) + sto(1) + ln(2)[2:] + cv(2) + ['@brk'] + sw(2) + sto(2)
        so = [f's_lshl_b32 s{sOut}, s{sN}, 18', f's_add_u32 s{sOut}, s{sOut}, {QX:#x}']
        gate = leave = None
        if c.HK:
            l1, l2, l3 = a.lab('gate'), a.lab('gatec'), a.lab('gatel')
            gate = [f's_cmp_eq_u32 s{sN}, {c.H0 + c.HK}', f's_cbranch_scc1 {l1}\n{l2}:']
            g.tail.append([f'{l1}:', f's_cmp_lg_u32 s{sW}, 1', f's_cbranch_scc1 {l2}', f's_mul_i32 s{sT1}, s{sIdx}, {c.FS}',
                           f's_add_u32 s{sT1}, s{sT1}, {FOFF["PH"]}', f's_and_b32 s{sT3}, s{sT1}, 0xffffe000', f's_add_u32 s{sT1}, s{sT1}, s{sT3}', 'v_mov_b32 v6, 0', f'{l3}:',
                           f'buffer_load_dword v7, v6, {WS}, s{sT1} offen sc1', 's_waitcnt vmcnt(0)',
                           f'v_cmp_le_u32 vcc, {c.H0 + c.HK}, v7', 's_cmp_eq_u64 vcc, -1', f's_cbranch_scc1 {l2}', f's_branch {g.timeout(25, l3)}'])
            def leave():
                l = a.lab('lv')
                a(f's_cmp_eq_u32 s{sHelp}, 0'); a(f's_cbranch_scc1 {l}')
                a('s_waitcnt vmcnt(0) lgkmcnt(0)'); a('s_barrier')
                g.load_args(); a(f's_mov_b32 s{sIdx}, s{sG}'); a('s_waitcnt lgkmcnt(0)'); g.srd(8, P_WS, WS_BYTES)
                a(f's_cmp_eq_u32 s{sHelp}, 1'); a('s_cbranch_scc1 L_GU2'); a('s_branch L_DNF2')
                a(f'{l}:')
        g.ws_loop('P', 32, 3, True, VB, R, g.mask_seq(p_order(c.LK, c.LM, c.H0, c.HK)), XA, 65536, None, 2, c.T_KV, 131072,
                  D, so, [f's_mov_b32 s{sOut}, {OOB:#x}'], top=g.stat_loads(S, vStat, SA), post=post, pipe=c.T_KV.get('pipe'), gate=gate, leave=leave)

    def build(g):
        a = g.a; c = g.c
        a('.amdgcn_target "amdgcn-amd-amdhsa--gfx950"')
        a('.text'); a(f'.globl {KNAME}'); a('.p2align 8'); a(f'.type {KNAME},@function'); a(f'{KNAME}:')
        a('s_cmp_ge_u32 s2, 0x100'); a('s_cbranch_scc1 L_done')
        for t in g.stamp(7): a(t)
        a('v_lshrrev_b32 v1, 6, v0'); a(f'v_readfirstlane_b32 s{sW}, v1')
        a(f's_getreg_b32 s{sXcc}, hwreg(HW_REG_XCC_ID)'); a(f's_and_b32 s{sXcc}, s{sXcc}, 7')
        pm = sum(x << (4 * i) for i, x in enumerate(c.perm))
        a(f's_lshl_b32 s{sT0}, s{sXcc}, 2'); a(f's_lshr_b32 s{sG}, {pm:#x}, s{sT0}'); a(f's_and_b32 s{sG}, s{sG}, 7')
        a(f's_mov_b32 s{sRound}, 0'); a(f's_mov_b32 s{sTO}, 0')
        a('s_branch L_begin')
        a('L_restart:')
        a(f's_and_b32 s{sG}, s2, 7'); a(f's_mov_b32 s{sRound}, 1')
        a('s_barrier')
        a('L_begin:')
        g.load_args(); a(f's_mov_b32 s{sHelp}, 0')
        a(f's_lshr_b32 s{sIdx}, s2, 3'); a(f's_mov_b32 s{sN}, 0')
        a('s_waitcnt lgkmcnt(0)')
        g.srd(4, P_WS, WS_BYTES); g.srd(8, P_WS, WS_BYTES); g.srd(20, P_DBG, 256)
        table = role_table(c.place)
        a(f's_lshl_b32 s{sT0}, s{sG}, 5'); a(f's_add_u32 s{sT0}, s{sT0}, s{sIdx}')
        for x, f, n, role, off in table:
            if role[:2] not in c.roles and role not in c.roles: continue
            l = a.lab('disp')
            a(f's_sub_u32 s{sIdx}, s{sT0}, {x*32+f}'); a(f's_cmp_ge_u32 s{sIdx}, {n}'); a(f's_cbranch_scc1 {l}')
            if off: a(f's_add_u32 s{sIdx}, s{sIdx}, {off}')
            a(f's_branch L_{role}'); a(f'{l}:')
        g.arrive()
        g.wait_start(8, 1)
        a('L_done:'); a('s_endpgm')
        g.flush_tail()
        a('L_fail:')
        a(f's_lshl_b32 s{sT0}, s2, 16'); a(f's_lshl_b32 s{sT1}, s{sW}, 8'); a(f's_or_b32 s{sT0}, s{sT0}, s{sT1}')
        a(f's_or_b32 s{sT0}, s{sT0}, s{sN}'); a(f's_bitset1_b32 s{sT0}, 31')
        a(f'v_mov_b32 v1, s{sT0}'); a(f's_lshl_b32 s{sT1}, s{sCode}, 2'); a(f's_add_u32 s{sT1}, s{sT1}, 16'); a('v_mov_b32 v2, 0')
        a(f'buffer_store_dword v1, v2, {DBG}, s{sT1} offen sc1'); a('s_waitcnt vmcnt(0)'); a('s_endpgm')
        if 'P' in c.roles: g.role_p()
        import roles2
        roles2.emit(g)
        a('.section .rodata,"a"'); a('.p2align 6'); a(f'.amdhsa_kernel {KNAME}')
        for t in ('next_free_vgpr 512', 'next_free_sgpr 102', 'accum_offset 256', 'group_segment_fixed_size 0',
                  'kernarg_size 112', 'user_sgpr_count 2', 'user_sgpr_kernarg_segment_ptr 1', 'system_sgpr_workgroup_id_x 1'):
            a('.amdhsa_' + t)
        a('.end_amdhsa_kernel')
        a.L = [t for t in a.L if t]
        import re
        if c.ring:
            out = []; nrep = 0
            keep = {f'{x:#x}' for x in (XA, SA, SA + 64 * 2048)}
            for k, t in enumerate(a.L):
                m_ = re.match(r'^s_(lshl_b32|mul_i32) (s\d+), (s5[23]), (1[1-9]|0x\w+)$', t)
                if m_:
                    nx = next(u for u in a.L[k+1:] if u.startswith(f's_add_u32 {m_.group(2)}, {m_.group(2)},'))
                    cst = nx.split(',')[-1].strip()
                    try: small = int(cst, 0) < XB and int(cst, 0) != SB
                    except ValueError: small = False
                    if not small:
                        big = m_.group(4) == '18' and 'OXMARK' not in nx
                        out.append(f's_and_b32 {m_.group(2)}, {m_.group(3)}, {c.ring:#x}')
                        t = t.replace(m_.group(3), m_.group(2)); nrep += 1
                out.append(t)
            a.L = out; g.left['ring'] = nrep
        for key, rep in (('ldplain', ''), ('ldnt', ' nt'), ('ldsys', ' sc0 sc1')):
            if key in c.x:
                k0 = a.L.index('L_QK:')
                a.L = [t.replace(' sc1', rep) if k < k0 and t.startswith('buffer_load_dwordx4') and 's[20:23]' not in t else t for k, t in enumerate(a.L)]
        for key, rep in (('stnt', ' sc1 nt'), ('stsys', ' sc0 sc1')):
            if key in c.x:
                k0 = a.L.index('L_QK:')
                a.L = [t.replace(' sc1', rep) if k < k0 and t.startswith('buffer_store_dwordx4') else t for k, t in enumerate(a.L)]
        if 'free' in c.x:
            a.L = [re.sub(r'^v_cmp_lt_u32 vcc, (s\d+), v\d+$', (r'v_cmp_eq_u32 vcc, v0, v0' if 'QK' in c.roles else r'v_mov_b32 v1, 128\nv_cmp_lt_u32 vcc, \1, v1'), t) for t in a.L]
            a.L = [u for t in a.L for u in t.split('\n')]
            if 'hot' in c.x: a.L = [re.sub(r'^s_(lshl_b32|mul_i32) (s\d+), s5[23], (1[1-9]|0x\w+)$', r's_mov_b32 \2, 0', t) for t in a.L]
            if 'nost' in c.x: a.L = [t.replace('s[4:7]', 's[20:23]') if t.startswith('buffer_store_dwordx4') and '@' in t else t for t in a.L]
        lines, added = a.fix()
        head = ['; Persistent weight-stationary dataflow kernel (generated by my own script, gen/gen.py).',
                '; @launch grid=(256,1,1) block=(256,1,1) lds=163840']
        return '\n'.join(head + lines) + '\n'

def make(**kw):
    c = Cfg()
    for k, val in kw.items(): setattr(c, k, val)
    global LAST
    set_fs(c.FS); set_sides(c.place)
    LAST = Gen(c)
    return LAST.build()

if __name__ == '__main__':
    out = sys.argv[1] if len(sys.argv) > 1 else 'interleave_layers__memory_aug_recurrent_mem_tr__glu_gated_geglu__prompt.s'
    open(out, 'w').write(make())
    print('wrote', out)
```

```python
class _F:
    FS=16
FCNT=dict(XA=8,XB=8,P=64,M=128,O=64,H=56,PW=32,PD=16,PH=64,N=64)
FOFF={}
FSIDE=dict(XB=1,P=0,M=0,N=0,O=1,H=1,PW=1,PD=1)
def set_fs(fs):
    _F.FS=fs; o=0
    for k,v in FCNT.items():
        FOFF[k]=o; o+=v*(max(fs,32) if k=='XA' else fs)
    assert o<=0x1FF00
set_fs(16)
FL_L=0x40000
CAL=0x3DF00
TWB=0x80000; TW_SZ=0x40000
SA=0x180000; SB=0x1C0000
RING=0x200000; RING_SZ=0x50000
HUB=RING+4*RING_SZ
R_MEM=0; R_OM=0x10000; R_VML=0x30000
STAMP=0xF800000
XA=0x400000; XB=0xC00000; QX=0x1400000; KX=0x3400000; VX=0x5400000; KVM=0x7400000
OX=0x9400000; HH=0xB400000; PW=0xD000000; PD=0xE800000
WS_BYTES=0x10000000
HH_U=112*2048
OOB=0x40000000
WO_NP=36; DN_NP=38

def role_table(place):
    if True:
        mix = {0: dict(P=(24,24,16,0,0,0), AT=(8,8,0,0,0,0), GU=(0,0,0,24,24,8),
                       WOP=(0,0,8,0,0,16), WOF=(0,0,0,0,0,8), DNP=(0,0,0,8,8,0), DNF=(0,0,8,0,0,0)),
               1: dict(P=(12,12,10,10,10,10), AT=(4,4,2,2,2,2), GU=(8,8,12,12,12,4),
                       WOP=(8,8,0,0,0,8), WOF=(0,0,0,0,0,8), DNP=(0,0,8,8,0,0), DNF=(0,0,0,0,8,0)),
               2: dict(P=(16,16,8,8,8,8), AT=(8,8,0,0,0,0), GU=(0,0,16,16,16,8),
                       WOP=(8,8,0,0,0,8), WOF=(0,0,0,0,0,8), DNP=(0,0,8,8,0,0), DNF=(0,0,0,0,8,0)),
               3: dict(P=(16,16,16,16,0,0), AT=(4,4,4,4,0,0), GU=(12,12,12,12,8,0),
                       WOP=(0,0,0,0,0,24), WOF=(0,0,0,0,0,8), DNP=(0,0,0,0,16,0), DNF=(0,0,0,0,8,0)),
               4: dict(P=(14,14,14,14,8,0), AT=(4,4,4,4,0,0), GU=(14,14,14,14,0,0),
                       WOP=(0,0,0,0,0,24), WOF=(0,0,0,0,0,8), DNP=(0,0,0,0,16,0), DNF=(0,0,0,0,8,0)),
               5: dict(P=(22,0,21,0,21,0), AT=(5,0,6,0,5,0), GU=(5,32,5,8,6,0),
                       WOP=(0,0,0,0,0,24), WOF=(0,0,0,0,0,8), DNP=(0,0,0,16,0,0), DNF=(0,0,0,8,0,0)),
               6: dict(P=(22,0,21,0,21,0), AT=(2,6,2,4,2,0), GU=(8,26,9,4,9,0),
                       WOP=(0,0,0,0,0,24), WOF=(0,0,0,0,0,8), DNP=(0,0,0,16,0,0), DNF=(0,0,0,8,0,0)),
               7: dict(P=(18,10,18,0,18,0), AT=(3,7,3,0,3,0), GU=(11,15,11,8,11,0),
                       WOP=(0,0,0,0,0,24), WOF=(0,0,0,0,0,8), DNP=(0,0,0,16,0,0), DNF=(0,0,0,8,0,0)),
               8: dict(P=(24,0,20,0,20,0), AT=(8,0,4,0,4,0), GU=(0,32,0,16,0,8),
                       WOP=(0,0,0,0,0,24), WOF=(0,0,8,0,0,0), DNP=(0,0,0,16,0,0), DNF=(0,0,0,0,8,0)),
               9: dict(P=(22,0,22,0,20,0), AT=(2,6,2,4,2,0), GU=(8,26,8,12,2,0),
                       WOP=(0,0,0,0,0,24), WOF=(0,0,0,0,0,8), DNP=(0,0,0,16,0,0), DNF=(0,0,0,0,8,0)),
               10: dict(P=(22,0,22,0,20,0), AT=(3,3,2,3,2,3), GU=(7,29,0,13,2,5),
                       WOP=(0,0,0,0,0,24), WOF=(0,0,8,0,0,0), DNP=(0,0,0,16,0,0), DNF=(0,0,0,0,8,0)),
               11: dict(P=(20,12,16,0,16,0), AT=(2,6,2,4,2,0), GU=(10,14,14,4,14,0),
                       WOP=(0,0,0,0,0,24), WOF=(0,0,0,0,0,8), DNP=(0,0,0,16,0,0), DNF=(0,0,0,8,0,0)),
               12: dict(P=(20,14,16,8,6,0), AT=(2,5,3,6,0,0), GU=(10,13,13,18,2,0),
                       WOP=(0,0,0,0,0,24), WOF=(0,0,0,0,0,8), DNP=(0,0,0,0,16,0), DNF=(0,0,0,0,8,0)),
               13: dict(P=(16,12,12,8,10,6), AT=(0,4,2,4,2,4), GU=(8,8,10,12,12,6),
                       WOP=(0,8,0,8,0,8), WOF=(0,0,0,0,0,8), DNP=(8,0,8,0,0,0), DNF=(0,0,0,0,8,0)),
               14: dict(P=(24,24,8,0,8,0), AT=(8,8,0,0,0,0), GU=(0,0,24,8,24,0),
                       WOP=(0,0,0,0,0,24), WOF=(0,0,0,0,0,8), DNP=(0,0,0,16,0,0), DNF=(0,0,0,8,0,0)),
               15: dict(P=(26,22,8,0,8,0), AT=(6,10,0,0,0,0), GU=(0,0,24,24,0,8),
                       WOP=(0,0,0,0,0,24), WOF=(0,0,0,8,0,0), DNP=(0,0,0,0,16,0), DNF=(0,0,0,0,8,0)),
               16: dict(P=(16,16,16,0,16,0), AT=(4,4,2,4,2,0), GU=(12,12,14,4,14,0),
                       WOP=(0,0,0,0,0,24), WOF=(0,0,0,0,0,8), DNP=(0,0,0,16,0,0), DNF=(0,0,0,8,0,0)),
               17: dict(P=(14,14,18,0,18,0), AT=(5,5,1,4,1,0), GU=(13,13,13,4,13,0),
                       WOP=(0,0,0,0,0,24), WOF=(0,0,0,0,0,8), DNP=(0,0,0,16,0,0), DNF=(0,0,0,8,0,0)),
               18: dict(P=(20,10,17,0,17,0), AT=(1,5,1,8,1,0), GU=(11,17,14,0,14,0),
                       WOP=(0,0,0,0,0,24), WOF=(0,0,0,0,0,8), DNP=(0,0,0,16,0,0), DNF=(0,0,0,8,0,0)),
               19: dict(P=(24,24,8,0,8,0), AT=(2,2,4,4,4,0), GU=(6,6,20,4,20,0),
                       WOP=(0,0,0,0,0,24), WOF=(0,0,0,0,0,8), DNP=(0,0,0,16,0,0), DNF=(0,0,0,8,0,0)),
               20: dict(P=(28,28,4,0,4,0), AT=(2,2,4,4,4,0), GU=(2,2,24,4,24,0),
                       WOP=(0,0,0,0,0,24), WOF=(0,0,0,0,0,8), DNP=(0,0,0,16,0,0), DNF=(0,0,0,8,0,0)),
               21: dict(P=(32,32,0,0,0,0), AT=(0,0,6,4,6,0), GU=(0,0,26,4,26,0),
                       WOP=(0,0,0,0,0,24), WOF=(0,0,0,0,0,8), DNP=(0,0,0,16,0,0), DNF=(0,0,0,8,0,0)),
               22: dict(P=(20,20,12,0,12,0), AT=(2,2,4,4,4,0), GU=(10,10,16,4,16,0),
                       WOP=(0,0,0,0,0,24), WOF=(0,0,0,0,0,8), DNP=(0,0,0,16,0,0), DNF=(0,0,0,8,0,0)),
               23: dict(P=(12,32,10,0,10,0), AT=(6,0,3,4,3,0), GU=(14,0,19,4,19,0),
                       WOP=(0,0,0,0,0,24), WOF=(0,0,0,0,0,8), DNP=(0,0,0,16,0,0), DNF=(0,0,0,8,0,0)),
               24: dict(P=(0,32,16,0,16,0), AT=(6,0,3,4,3,0), GU=(26,0,13,4,13,0),
                       WOP=(0,0,0,0,0,24), WOF=(0,0,0,0,0,8), DNP=(0,0,0,16,0,0), DNF=(0,0,0,8,0,0)),
               25: dict(P=(20,24,6,0,14,0), AT=(2,0,6,6,2,0), GU=(10,8,20,2,16,0),
                       WOP=(0,0,0,0,0,24), WOF=(0,0,0,0,0,8), DNP=(0,0,0,16,0,0), DNF=(0,0,0,8,0,0)),
               26: dict(P=(20,8,18,0,18,0), AT=(2,0,4,6,4,0), GU=(10,0,10,26,10,0),
                       WOP=(0,0,0,0,0,24), WOF=(0,0,0,0,0,8), DNP=(0,16,0,0,0,0), DNF=(0,8,0,0,0,0)),
               27: dict(P=(0,8,22,0,20,14), AT=(0,0,2,6,2,6), GU=(0,0,8,26,10,12),
                       WOP=(24,0,0,0,0,0), WOF=(8,0,0,0,0,0), DNP=(0,16,0,0,0,0), DNF=(0,8,0,0,0,0)),
               28: dict(P=(22,8,18,0,16,0), AT=(2,0,3,7,4,0), GU=(8,0,11,25,12,0),
                       WOP=(0,0,0,0,0,24), WOF=(0,0,0,0,0,8), DNP=(0,16,0,0,0,0), DNF=(0,8,0,0,0,0)),
               29: dict(P=(24,8,16,0,16,0), AT=(0,0,4,8,4,0), GU=(8,0,12,24,12,0),
                       WOP=(0,0,0,0,0,24), WOF=(0,0,0,0,0,8), DNP=(0,16,0,0,0,0), DNF=(0,8,0,0,0,0)),
               30: dict(P=(4,16,20,6,18,0), AT=(2,4,2,6,2,0), GU=(2,12,10,20,12,0),
                       WOP=(0,0,0,0,0,24), WOF=(0,0,0,0,0,8), DNP=(16,0,0,0,0,0), DNF=(8,0,0,0,0,0)),
               31: dict(P=(14,4,20,6,20,0), AT=(6,4,1,4,1,0), GU=(12,0,11,22,11,0),
                       WOP=(0,0,0,0,0,24), WOF=(0,0,0,0,0,8), DNP=(0,16,0,0,0,0), DNF=(0,8,0,0,0,0)),
               32: dict(P=(0,4,21,9,21,9), AT=(0,4,2,4,2,4), GU=(0,0,9,19,9,19),
                       WOP=(24,0,0,0,0,0), WOF=(8,0,0,0,0,0), DNP=(0,16,0,0,0,0), DNF=(0,8,0,0,0,0)),
               33: dict(P=(28,8,16,0,12,0), AT=(0,0,4,6,6,0), GU=(4,0,12,26,14,0),
                       WOP=(0,0,0,0,0,24), WOF=(0,0,0,0,0,8), DNP=(0,16,0,0,0,0), DNF=(0,8,0,0,0,0)),
               34: dict(P=(32,8,14,0,10,0), AT=(0,0,4,6,6,0), GU=(0,0,14,26,16,0),
                       WOP=(0,0,0,0,0,24), WOF=(0,0,0,0,0,8), DNP=(0,16,0,0,0,0), DNF=(0,8,0,0,0,0)),
               35: dict(P=(24,16,14,0,10,0), AT=(0,0,4,6,6,0), GU=(0,0,14,26,16,0),
                       WOP=(0,0,0,0,0,24), WOF=(0,0,0,0,0,8), DNP=(0,16,0,0,0,0), DNF=(8,0,0,0,0,0)),
               36: dict(P=(24,24,8,0,8,0), AT=(0,0,4,8,4,0), GU=(0,0,12,24,20,0),
                       WOP=(0,0,0,0,0,24), WOF=(0,0,0,0,0,8), DNP=(8,8,0,0,0,0), DNF=(0,0,8,0,0,0))}[place]
        table = []; nxt = [0]*6
        for role, cnt in mix.items():
            off = 0
            for x, n in enumerate(cnt):
                if n: table.append((2+x, nxt[x], n, role, off)); nxt[x] += n; off += n
        assert max(nxt) <= 32, nxt
    for G in (0, 1): table += [(G, 0, 16, 'QK', 0), (G, 16, 8, 'VM', 0), (G, 24, 8, 'WM', 0)]
    return table

def helper_table(place):
    t = role_table(place)
    ps = [(x, o + i) for x, f, n, r, o in t if r == 'P' for i in range(n)]
    hs = [(x, r, o + i) for x, f, n, r, o in t if r in ('GU', 'DNF') for i in range(n)]
    m = {}
    for x in range(8):
        a = [p for p in ps if p[0] == x]; b = [h for h in hs if h[0] == x]
        for p, h in zip(a, b): m[h[1:]] = p[1]; ps.remove(p); hs.remove(h)
    for p, h in zip(ps, hs): m[h[1:]] = p[1]
    assert sorted(m.values()) == list(range(64))
    out = {}
    for (r, i), p in sorted(m.items()):
        l = out.setdefault(r, [])
        if l and l[-1][0] + l[-1][1] == i and l[-1][2] + l[-1][1] == p: l[-1][1] += 1
        else: l.append([i, 1, p])
    return out

def set_sides(place):
    side = lambda role: int(min(x for x, f, n, r, o in role_table(place) if r == role) >= 4)
    FSIDE.update(O=side('WOP'), PW=side('WOF'), H=side('DNP'), PD=side('DNF'))
```

```python
from gen import *

def ln_apply(RES, RS, CS, ts=(0, 1)):
    o = []
    for t in ts:
        o += [f'v_fmac_f32 v{RES+t*8+i}, v{RS+2+t}, v{CS+i}' for i in range(8)]
        o += [f'v_mul_f32 v{RES+t*8+i}, v{RS+t}, v{RES+t*8+i}' for i in range(8)]
    return o

def role_gu(g):
    a = g.a
    a('L_GU:')
    R = dict(acc=8, fr=32, res=64, rd=104, l16=105, dma=106, poff=107, poll=4, pl=108, my=109, fval=110)
    CS, RES, RS, S, vStat, vOut, E = 80, 64, 92, 96, 111, 112, 116
    gw, stage = sC, sC + 2
    g.my_flag(R['my'], sIdx, 'H', wave0=True); g.zero_flags(R['my'])
    if g.help_first('GU'): g.my_flag(R['my'], sIdx, 'H', wave0=True)
    else: g.wait_loaded('GU', 32)
    g.srd(12, P_WG, 0x700000); g.srd(16, P_WU, 0x700000)
    a(f's_lshl_b32 s{gw}, s{sIdx}, 2'); a(f's_add_u32 s{gw}, s{gw}, s{sW}')
    a(f's_lshl_b32 s{sC+3}, s{sIdx}, 7')
    a(f's_lshl_b32 s{sT1}, s{sW}, 5'); g.tr_addr(8, 128, 8, 8, sT1)
    g.coop_load(32, [(W1, sC + 3), (W2, sC + 3)], 7168, 8,
                lambda ks: [(wreg((ks * 2 + n) * 4 + 2 * hh, 2, 0), n * 4096 + hh * 512) for n in range(2) for hh in range(2)], (2, 0, CS, 12))
    a(f'v_lshlrev_b32 v{R["l16"]}, 4, v0')
    g.stat_addr(vStat, False)
    a(f's_mov_b32 s{sT2}, 0'); g.poll_addr(R['poff'], sT2, 8, 'XB')
    g.half_tile_addr(vOut, gw)
    ca = -2.0 * 0.7978845608028654 * 1.4426950408889634
    a(f's_mov_b32 s{sC+4}, {fbits(ca*0.044715)}'); a(f'v_mov_b32 v{vOut+1}, {fbits(ca)}')
    g.start_once()
    g.to_side([(R['my'], 'H'), (R['poff'], 'XB')])
    post = g.stat_math(S, RS, False)
    sOut = sC + 5
    idx = [(t, r) for t in range(2) for r in range(4)]
    G = lambda t, r: RES + t * 8 + r
    U = lambda t, r: RES + t * 8 + 4 + r
    D = ln_apply(RES, RS, CS)
    D += [f'v_mul_f32 v{E+i}, v{G(t,r)}, v{G(t,r)}' for i, (t, r) in enumerate(idx)]
    D += [f'v_fma_f32 v{E+i}, v{E+i}, s{sC+4}, v{vOut+1}' for i, (t, r) in enumerate(idx)]
    D += [f'v_mul_f32 v{E+i}, v{E+i}, v{G(t,r)}' for i, (t, r) in enumerate(idx)]
    for i, (t, r) in enumerate(idx): D += [f'v_exp_f32 v{E+i}, v{E+i}', f'v_mul_f32 v{U(t,r)}, v{U(t,r)}, v{G(t,r)}']
    D += [f'v_add_f32 v{E}, 1.0, v{E}']
    for i in range(8): D += ([f'v_add_f32 v{E+i+1}, 1.0, v{E+i+1}'] if i < 7 else []) + [f'v_rcp_f32 v{E+i}, v{E+i}']
    D += [f'v_mul_f32 v{E+i}, v{E+i}, v{U(t,r)}' for i, (t, r) in enumerate(idx)]
    o = 124
    D += [f'v_cvt_pk_bf16_f32 v{o+i}, v{E+2*i}, v{E+2*i+1}' for i in (0, 2, 1, 3)]
    D += ['@brk', f'v_permlane16_swap_b32 v{o}, v{o+2}', f'v_permlane16_swap_b32 v{o+1}, v{o+3}',
          f'buffer_store_dwordx4 {v(o,4)}, v{vOut}, {WS}, s{sOut} offen sc1 ; ' + ('@e' if g.c.T_GU.get('pipe') else '@m')]
    so = [f's_mul_i32 s{sOut}, s{sN}, {HH_U:#x}', f's_add_u32 s{sOut}, s{sOut}, {HH:#x}']
    g.ws_loop('GU', 32, 2, True, 0, R, g.lag_seq(g.lag('GU')), XB, 65536, None, 4, g.c.T_GU, 131072,
              D, so, [f's_mov_b32 s{sOut}, {OOB:#x}'], top=g.stat_loads(S, vStat, SB), post=post, pipe=g.c.T_GU.get('pipe'))

def role_proj(g, kind, fin):
    a = g.a; name = kind + ('F' if fin else 'P')
    isWO = kind == 'WO'
    nparts = 3 if isWO else 2
    NP = g.c.WONP if isWO else g.c.DNNP
    NK = ((128 if isWO else 112) - nparts * NP) if fin else NP
    a(f'L_{name}:')
    if name == 'DNP': g.near_side(0)
    helped = name == 'DNF' and g.c.HK
    if helped:
        a(f's_lshl_b32 s{sT2}, s{sIdx}, 3'); g.my_flag(110, sT2, 'XA', 8, wave0=True); g.zero_flags(110, (1,))
        g.help_first('DNF')
    g.srd(12, P_WO if isWO else P_WD, 0x800000 if isWO else 0x700000)
    VB = 192
    R = dict(acc=8, fr=32, res=72, rd=104, l16=106, dma=107, poff=113, poll=108, pl=120, my=110, fval=111)
    vP, vSt, vX, vRow, vL4, vP2 = 112, 114, 115, 116, 117, 119
    RES, PR, OUT = 72, 124, 156
    part, col, cw, stage, k0, src = sC, sC + 1, sC + 2, sC + 3, sC + 4, sC + 5
    if fin:
        a(f's_mov_b32 s{part}, {nparts}'); a(f's_mov_b32 s{col}, s{sIdx}')
    else:
        a(f's_lshr_b32 s{part}, s{sIdx}, 3'); a(f's_and_b32 s{col}, s{sIdx}, 7')
    a(f's_lshl_b32 s{cw}, s{col}, 2'); a(f's_add_u32 s{cw}, s{cw}, s{sW}')
    a(f's_mul_i32 s{k0}, s{part}, {NP}')
    a(f's_lshl_b32 s{src}, s{k0}, 11')
    pg = 'PW' if isWO else 'PD'
    if fin:
        if isWO: g.my_flag(R['my'], col, 'XB', wave0=True)
        else: a(f's_lshl_b32 s{sT2}, s{col}, 3'); g.my_flag(R['my'], sT2, 'XA', 8, wave0=True)
        if not helped: g.zero_flags(R['my'], (0, 1) if isWO else (1,))
    else:
        a(f's_lshl_b32 s{sT2}, s{col}, {2 if isWO else 1}'); a(f's_add_u32 s{sT2}, s{sT2}, s{part}')
        g.my_flag(R['my'], sT2, pg, wave0=True); g.zero_flags(R['my'])
    if not helped:
        g.arrive(later=kind not in g.c.delay)
        if name == 'DNP': g.near_side(1)
        g.wait_loaded(kind, 8 if isWO else 48)
        if isWO and g.c.pull:
            a(f's_lshl_b32 s{sT1}, s{part}, 5'); a(f's_add_u32 s{sT1}, s{sT1}, s{cw}'); g.pull(sT1)
    a(f's_lshr_b32 s{sT1}, s{sW}, 1'); a(f's_lshl_b32 s{sT1}, s{sT1}, 12'); a(f's_and_b32 s{sT0}, s{sW}, 1'); a(f's_lshl_b32 s{sT0}, s{sT0}, 6')
    a(f's_add_u32 s{sT1}, s{sT1}, s{sT0}'); g.tr_addr(8, 128, 4 if isWO else 8, 16, sT1)
    a(f's_lshl_b32 s{sC+6}, s{k0}, 16'); a(f's_lshl_b32 s{sT0}, s{col}, 8'); a(f's_add_u32 s{sC+6}, s{sC+6}, s{sT0}'); a(f's_add_u32 s{stage}, s{sC+6}, 128')
    hhs = 2048 if isWO else 512
    g.coop_load(NK, [(W1, sC + 6), (W1, stage)], 2048, 8,
                lambda ks: [(wreg((ks * 2 + n) * 4 + 2 * hh, 2, VB), hh * hhs + n * 8) for n in range(2) for hh in range(2)])
    a(f'v_lshlrev_b32 v{R["l16"]}, 4, v0')
    sh = 1
    assert NP % (4 if isWO else 2) == 0 and NK % (4 if isWO else 2) == 0
    a(f's_lshr_b32 s{sT2}, s{k0}, {sh}'); g.poll_addr(R['poff'], sT2, NK >> sh, 'O' if isWO else 'H')
    a(f's_lshl_b32 s{sT0}, s{cw}, 11'); a(f'v_add_u32 v{vP}, s{sT0}, v{R["l16"]}')
    pbase = PW if isWO else PD; pstride = nparts * 0x10000
    pn = g.c.pnear is not None; vPP = vP; sPar = 42
    def paddr(dst, add, sN=sN):
        if not pn: return [f's_mul_i32 s{dst}, s{sN}, {pstride:#x}', f's_add_u32 s{dst}, s{dst}, {add}']
        return [f's_and_b32 s{dst}, s{sN}, 64', f's_lshr_b32 s{dst}, s{dst}, 1', f's_and_b32 s{sT3}, s{sN}, 31', f's_or_b32 s{dst}, s{dst}, s{sT3}',
                f's_lshl_b32 s{dst}, s{dst}, 17', f's_add_u32 s{dst}, s{dst}, {add}'] + g.half(dst, sPar, sT3)
    pstep = 0x800000 if pn else 0x10000
    if pn:
        vPP = 122
        a(f's_lshr_b32 s{sT0}, s{cw}, 2'); a(f's_lshl_b32 s{sT0}, s{sT0}, 13'); a(f'v_add_u32 v{vPP}, s{sT0}, v{vP}')
    src_base, src_stride = (OX, 0x40000) if isWO else (HH, HH_U)
    T = getattr(g.c, 'T_' + name); PL = 2 * NK * 2048 if NK < 40 else None
    if not fin:
        a(f's_mul_i32 s{sC+7}, s{part}, {pstep:#x}'); a(f's_add_u32 s{sC+7}, s{sC+7}, {pbase:#x}')
        g.start_once()
        g.to_side([(R['my'], pg), (R['poff'], 'O' if isWO else 'H')])
        if pn: g.get_par(sPar, g.c.pnear)
        sOut = sC + 8
        local = g.c.local and len({x for x, f, n, r, o in role_table(g.c.place) if r[:2] == kind}) == 1
        D = []
        for t in range(2):
            D += [f'v_cvt_pk_bf16_f32 v{OUT+4*t+i}, v{RES+8*t+2*i}, v{RES+8*t+2*i+1}' for i in range(4)]
            D.append(f'buffer_store_dwordx4 {v(OUT+4*t,4)}, v{vPP}, {WS}, s{sOut} offen offset:{t*1024}{"" if local else " sc1"} ; @m')
        so = paddr(sOut, f's{sC+7}')
        off = [f's_mov_b32 s{sOut}, {OOB:#x}']; touch = []
        if g.c.touch:
            a('v_and_b32 v1, 15, v0'); a('v_lshlrev_b32 v1, 7, v1'); a(f's_lshl_b32 s{sT0}, s{cw}, 11'); a(f'v_add_u32 v123, s{sT0}, v1')
            touch = [f'buffer_load_dword v{PR}, v123, {WS}, s{sOut} offen sc1']
            if g.c.touch > 1:
                sR = sC + 9
                a(f's_cmp_eq_u32 s{part}, 0'); a(f's_mov_b32 s{sC+10}, {OOB:#x}'); a(f's_cselect_b32 s{sC+10}, {XA if isWO else XB:#x}, s{sC+10}')
                so += [f's_lshl_b32 s{sR}, s{sN}, 16', f's_add_u32 s{sR}, s{sR}, s{sC+10}']; off.append(f's_mov_b32 s{sR}, {OOB:#x}')
                touch.append(f'buffer_load_dword v{PR}, v123, {WS}, s{sR} offen sc1')
        g.ws_loop(name, NK, 2, True, VB, R, g.lag_seq(g.lag(name)), src_base, src_stride, src, 5 if isWO else 7, T, PL,
                  D, so, off, local=local, touch=touch)
        return
    a(f's_lshl_b32 s{sT2}, s{col}, {2 if isWO else 1}'); g.poll_addr(vP2, sT2, nparts, pg)
    g.stat_store_addr(vSt, col); g.wave0_off(vSt)
    LST = PL + 4096
    a(f'v_lshlrev_b32 v{vL4}, 2, v0'); a(f'v_add_u32 v{vL4}, {LST}, v{vL4}')
    a(f's_lshl_b32 s{sT0}, s{sW}, 8'); a(f'v_add_u32 v{vL4+1}, s{sT0}, v{vL4}')
    sL, sOne, sO0, sO1, sSt = sC + 7, sC + 10, sC + 11, sC + 12, sC + 13
    a(f's_mov_b32 s{sOne}, 0x3f803f80')
    SEL = 24
    a('v_bfe_u32 v1, v0, 2, 2'); g.v_g(2); a('v_cmp_eq_u32 vcc, v1, v2')
    a('v_and_b32 v1, 1, v0'); a('v_lshlrev_b32 v1, 4, v1'); a('v_mov_b32 v2, 0x3f80'); a('v_lshlrev_b32 v1, v1, v2')
    a('v_cndmask_b32 v1, 0, v1, vcc'); a('v_and_b32 v2, 2, v0'); a('v_cmp_eq_u32 vcc, 0, v2')
    a(f'v_cndmask_b32 v{SEL}, 0, v1, vcc'); a(f'v_sub_u32 v{SEL+1}, v1, v{SEL}')
    for i in (2, 3, 4, 5): a(f'v_mov_b32 v{SEL+i}, 0')
    a(f'v_mov_b32 v{SEL+6}, v{SEL}'); a(f'v_mov_b32 v{SEL+7}, v{SEL+1}')
    if not isWO:
        mo = T.get('mo')
        if mo: g.srd(16, P_WS, WS_BYTES); a(f's_and_b32 s{sC+9}, s{P_OUT+1}, 0xffff'); a(f's_mov_b32 s{sC+8}, s{P_OUT}')
        else: g.srd(16, P_OUT, 0x400000)
        g.v_j(1); a('v_lshlrev_b32 v1, 11, v1'); g.v_g(2); a('v_lshlrev_b32 v2, 4, v2')
        a(f's_lshl_b32 s{sT0}, s{cw}, 6'); a(f'v_add3_u32 v{vRow}, v1, v2, s{sT0}'); a(f'v_add_u32 v{vX}, 0x8000, v{vRow}')
    g.start_once()
    g.to_side([(R['my'], 'XB' if isWO else 'XA'), (R['poff'], 'O' if isWO else 'H'), (vP2, pg)])
    if pn: g.get_par(sPar, g.c.pnear)
    rbase = XA if isWO else XB
    def loads(srd, tag, n=sN):
        o = [[f's_lshl_b32 s{sL}, s{n}, 16', f's_add_u32 s{sL}, s{sL}, {rbase:#x}'] +
             [f'buffer_load_dwordx4 {v(PR+nparts*8+t*4,4)}, v{vP}, {srd}, s{sL} offen offset:{t*1024} sc1 ; {tag}' for t in range(2)]]
        for p in range(nparts):
            grp = paddr(sL, f'{pbase:#x}', n) if p == 0 else [f's_add_u32 s{sL}, s{sL}, {pstep:#x}']
            o.append(grp + [f'buffer_load_dwordx4 {v(PR+p*8+t*4,4)}, v{vPP}, {srd}, s{sL} offen offset:{t*1024} sc1 ; {tag}' for t in range(2)])
        return o
    o = OUT; SD = o + 8
    D = ['@vm late']
    valu = T.get('valu', 0)
    for p in range(valu):
        for i in range(8):
            x = PR + p * 8 + i
            D += [f'v_lshlrev_b32 v{OUT+12+(i&1)}, 16, v{x}', f'v_and_b32 v{x}, 0xffff0000, v{x}',
                  f'v_add_f32 v{RES+2*i}, v{RES+2*i}, v{OUT+12+(i&1)}', f'v_add_f32 v{RES+2*i+1}, v{RES+2*i+1}, v{x}']
    for p in range(valu, nparts + 1):
        for t in range(2):
            for n in range(2):
                d = v(RES + (t * 2 + n) * 4, 4)
                D.append(f'v_mfma_f32_16x16x32_bf16 {d}, {v(SEL+4*n,4)}, {v(PR+p*8+t*4,4)}, {d}')
    D += ['@brk', '@brk']
    for t in range(2):
        D += [f'v_cvt_pk_bf16_f32 v{o+i}, v{RES+2*i}, v{RES+2*i+1}' for i in range(4 * t, 4 * t + 4)]
        if isWO or not mo: D.append(f'buffer_store_dwordx4 {v(o+4*t,4)}, v{vP}, {WS}, s{sO0} offen offset:{t*1024} sc1 ; @e')
        else: D.append(f'buffer_store_dwordx4 {v(o+4*t,4)}, v{vX}, {W2}, s{(sO0, sO1)[t]} offen sc1 ; @e')
    if not isWO and not mo: D += [f'buffer_store_dwordx4 {v(o+4*t,4)}, v{(vRow, vX)[t]}, {W2}, s{sO1} offen' for t in range(2)]
    D += g.row_stats([[o + 4 * t + i for i in range(4)] for t in range(2)], SD, f's{sOne}')
    D.append(f'ds_write_b32 v{vL4+1}, v{SD} # a')
    mneed = len(D) - 1
    D += ['@M', f'ds_read2st64_b32 {v(SD,2)}, v{vL4} offset0:0 offset1:1 # b', f'ds_read2st64_b32 {v(SD+2,2)}, v{vL4} offset0:2 offset1:3 # b',
          '@brk', '@brk', '@brk', '@brk', '@lg b',
          f'v_add_f32 v{SD}, v{SD}, v{SD+1}', f'v_add_f32 v{SD+2}, v{SD+2}, v{SD+3}', f'v_add_f32 v{SD}, v{SD}, v{SD+2}',
          f'buffer_store_dword v{SD}, v{vSt}, {WS}, s{sSt} offen sc1 ; @e']
    if isWO:
        so = [f's_lshl_b32 s{sO0}, s{sN}, 16', f's_add_u32 s{sO0}, s{sO0}, {XB:#x}', f's_lshl_b32 s{sSt}, s{sN}, 11', f's_add_u32 s{sSt}, s{sSt}, {SB:#x}']
        off = [f's_mov_b32 s{sO0}, {OOB:#x}', f's_mov_b32 s{sSt}, {OOB:#x}']
    else:
        so = [f's_and_b32 s{sO1}, s{sN}, 63', f's_lshl_b32 s{sO1}, s{sO1}, 16', f's_add_u32 s{sO0}, s{sO1}, {XA + 64*65536:#x}',
              f's_lshl_b32 s{sSt}, s{sN}, 11', f's_add_u32 s{sSt}, s{sSt}, {SA + 64*2048:#x}', f's_cmp_lt_u32 s{sN}, 64',
              f's_cselect_b32 s{sSt}, s{sSt}, {OOB:#x}', f's_cselect_b32 s{sO0}, s{sO0}, {OOB:#x}', f's_cselect_b32 s{sO1}, {OOB:#x}, s{sO1}']
        if mo: so = [f's_and_b32 s{sO0}, s{sN}, 63', f's_lshl_b32 s{sO0}, s{sO0}, 16', f's_lshl_b32 s{sSt}, s{sN}, 11',
              f's_add_u32 s{sSt}, s{sSt}, {SA + 64*2048:#x}', f's_mov_b32 s{sO1}, 0x8000', f's_cmp_lt_u32 s{sN}, 64',
              f's_cselect_b32 s16, s4, s{sC+8}', f's_cselect_b32 s17, s5, s{sC+9}', 's_cselect_b32 s18, s6, 0x400000',
              f's_cselect_b32 s{sSt}, s{sSt}, {OOB:#x}', f's_cselect_b32 s{sO1}, 0x400, s{sO1}', f's_cselect_b32 s{sT1}, {XA + 64*65536:#x}, 0',
              's_cselect_b64 vcc, -1, 0', f's_add_u32 s{sO0}, s{sO0}, s{sT1}', f's_add_u32 s{sO1}, s{sO1}, s{sO0}',
              f'v_cndmask_b32 v{vX}, v{vRow}, v{vP}, vcc']
        off = [f's_mov_b32 s{sO0}, {OOB:#x}', f's_mov_b32 s{sO1}, {OOB:#x}', f's_mov_b32 s{sSt}, {OOB:#x}']
    g.ws_loop(name, NK, 2, True, VB, R, g.lag_seq(g.lag(name)), src_base, src_stride, src, 6 if isWO else 8, T, PL, D, so, off,
              pub_shift=0 if isWO else 1, late=dict(poff=vP2, loads=loads, code=20 if isWO else 21), pipe=True, mneed=mneed)

def softmax_l(S, T, P, sScale):
    o = [f'v_max3_f32 v{T+i}, v{S+3*i}, v{S+3*i+1}, v{S+3*i+2}' for i in range(3)]
    o += [f'v_max3_f32 v{T}, v{T}, v{T+1}, v{S+9}', f'v_max_f32 v{T}, v{T}, v{T+2}',
          f'v_mov_b32 v{T+1}, v{T}', f'v_permlane16_swap_b32 v{T}, v{T+1}', f'v_max_f32 v{T}, v{T}, v{T+1}',
          f'v_mov_b32 v{T+1}, v{T}', f'v_permlane32_swap_b32 v{T}, v{T+1}', f'v_max_f32 v{T}, v{T}, v{T+1}',
          f'v_mul_f32 v{T}, s{sScale}, v{T}']
    o += [f'v_fma_f32 v{S+i}, v{S+i}, s{sScale}, -v{T}' for i in range(10)]
    for i in range(10):
        o.append(f'v_exp_f32 v{S+i}, v{S+i}')
        if i >= 2 and i % 2 == 0: o.append(f'v_cvt_pk_bf16_f32 v{P+i//2-1}, v{S+i-2}, v{S+i-1}')
    o += [f'v_cvt_pk_bf16_f32 v{P+4}, v{S+8}, v{S+9}', f'v_cvt_pk_bf16_f32 v{P+7}, v{S+8}, v{S+9}']
    return o

NEG = fbits(-1e30)

def role_at(g):
    a = g.a; c = g.c
    a('L_AT:')
    if 'DN' not in c.roles: g.near_side(0); g.near_side(1)
    aw, tq, hd = sC, sC + 1, sC + 2
    a(f's_lshl_b32 s{aw}, s{sIdx}, 2'); a(f's_add_u32 s{aw}, s{aw}, s{sW}'); a(f's_and_b32 s{tq}, s{sW}, 1'); a(f's_lshr_b32 s{hd}, s{aw}, 1')
    vMy, vMx = 4, 5
    g.my_flag(vMy, aw, 'O'); g.zero_flags(vMy)
    xs, cl = sC + 3, sC + 4
    a(f's_and_b32 s{xs}, s{aw}, 7'); a(f's_lshr_b32 s{cl}, s{aw}, 3')
    a(f's_lshl_b32 s{sT2}, s{xs}, 3'); a(f's_add_u32 s{sT2}, s{sT2}, s{cl}'); g.my_flag(vMx, sT2, 'XA')
    a(f'v_mov_b32 v1, s{cl}'); a(f'buffer_store_dword v1, v{vMx}, {WS}, 0 offen sc1')
    g.srd(12, P_X, 0x400000)
    vIn, vOut, vSt, D, T, X = 6, 7, 20, 24, 28, 32
    g.v_j(1); a('v_lshlrev_b32 v1, 11, v1'); g.v_g(2); a('v_lshlrev_b32 v2, 4, v2')
    a(f's_lshl_b32 s{sT0}, s{xs}, 8'); a(f'v_add3_u32 v{vIn}, v1, v2, s{sT0}')
    a(f's_mov_b32 s{sN}, s{cl}')
    reg = lambda b, ks, t: X + b * 32 + (ks * 2 + t) * 4
    def loads(b, ahead):
        for t in range(2):
            a(f's_lshl_b32 s{sT0}, s{sN}, 16'); a(f's_add_u32 s{sT0}, s{sT0}, {ahead*8*65536 + t*32768}')
            for ks in range(4):
                a(f'buffer_load_dwordx4 {v(reg(b,ks,t),4)}, v{vIn}, {W1}, s{sT0} offen offset:{ks*64}')
    def stores(b, k):
        for h in range(2):
            a(f's_lshl_b32 s{sT0}, s{sN}, 16'); a(f's_add_u32 s{sT0}, s{sT0}, {XA + k*8*65536 + h*4096:#x}')
            for i in range(4):
                a(f'buffer_store_dwordx4 {v(reg(b,2*h+i//2,i%2),4)}, v{vOut}, {WS}, s{sT0} offen offset:{i*1024} sc1')
        for t_ in g.row_stats([[reg(b, ks, t) + i for ks in range(4) for i in range(4)] for t in range(2)], D, f'v{T}'):
            if t_ != '@brk': a(t_)
        a(f's_lshl_b32 s{sT0}, s{sN}, 11'); a(f's_add_u32 s{sT0}, s{sT0}, {SA + k*8*2048:#x}')
        a(f'buffer_store_dword v{D}, v{vSt}, {WS}, s{sT0} offen sc1')
    def done(k):
        a(f's_add_u32 s{sT0}, s{sN}, {8*k+8}'); a(f's_min_u32 s{sT0}, s{sT0}, 64'); a(f'v_mov_b32 v{T+1}, s{sT0}')
        a(f'buffer_store_dword v{T+1}, v{vMx}, {WS}, 0 offen sc1')
    loads(0, 0)
    a(f's_lshl_b32 s{sT0}, s{xs}, 13'); a(f'v_lshlrev_b32 v1, 4, v0'); a(f'v_add_u32 v{vOut}, s{sT0}, v1')
    g.stat_store_addr(vSt, xs)
    a(f'v_mov_b32 v{T}, 0x3f803f80')
    g.arrive()
    stores(0, 0)
    for k in range(1, 5): loads(k, k)
    a('s_waitcnt vmcnt(32)'); done(0)
    a('s_waitcnt vmcnt(25)'); stores(1, 1); a('s_waitcnt vmcnt(26)'); stores(2, 2)
    loads(5, 5); loads(6, 6); loads(0, 7)
    a('s_waitcnt vmcnt(24)'); done(2)
    stores(3, 3); stores(4, 4)
    a('s_waitcnt vmcnt(19)'); stores(5, 5)
    a('s_waitcnt vmcnt(9)'); done(4)
    stores(6, 6); stores(0, 7)
    for t in g.start_look(8): a(t)
    a('s_waitcnt vmcnt(0)'); done(7)
    g.wait_start(8, 1, False)
    for t in g.stamp(5): a(t)
    if not {'QK', 'P'} <= c.roles: g.endpgm(); g.flush_tail(); return
    vL16, vT1, vKm, vVm, vTr, vPo, vPa, vPoll, vF = 6, 7, 8, 9, 10, 11, 12, 13, 14
    MK, Q, Q2, KXr, KMr, VXr, VMr, S, P, T, ONE, SUM, O, OUT = 16, 28, 44, 60, 92, 108, 140, 156, 168, 176, 180, 184, 188, 220
    sSc, sH13, sH12, sE, sE2, sLds, sFlN, sO = (sC + 5 + i for i in range(8))
    a('s_waitcnt vmcnt(0)')
    a(f'v_lshlrev_b32 v{vL16}, 4, v0')
    a(f's_cmp_eq_u32 s{tq}, 0'); a(f's_cselect_b32 s{sT0}, {OOB:#x}, 0'); a(f'v_add_u32 v{vT1}, s{sT0}, v{vL16}')
    a(f'v_mov_b32 v3, v{vMy}'); row16(g, 2); a(f'v_mov_b32 v{vMy}, v3')
    g.v_g(1); a('v_lshlrev_b32 v1, 7, v1'); a(f'v_add_u32 v{vKm}, v1, v2')
    a(f'v_mov_b32 v{P+5}, 0'); a(f'v_mov_b32 v{P+6}, 0')
    a(f's_lshl_b32 s{sLds}, s{sW}, 13'); v_tr_addr(g, vTr); a(f'v_add_u32 v{vTr}, s{sLds}, v{vTr}')
    a(f's_lshl_b32 s{sT2}, s{hd}, 2'); g.poll_addr(vPo, sT2, 4, 'M')
    if c.QT == 4:
        a('v_and_b32 v1, 1, v0'); a(f's_lshl_b32 s{sT0}, s{hd}, 1'); a(f'v_add_u32 v1, s{sT0}, v1'); a(f'v_mul_u32_u24 v1, {c.FS}, v1')
        a(f'v_add_u32 v2, {FOFF["N"]}, v1'); g.expand(2); a('v_cmp_gt_u32 vcc, 4, v0'); a(f'v_cndmask_b32 v{vPo}, v2, v{vPo}, vcc')
    a('v_bfe_u32 v1, v0, 1, 2'); a('v_min_u32 v1, 2, v1'); a('v_lshlrev_b32 v1, 6, v1'); a('v_and_b32 v2, 1, v0'); a('v_add_u32 v1, v1, v2')
    a(f's_lshl_b32 s{sT0}, s{hd}, 1'); a(f'v_add_u32 v1, s{sT0}, v1'); a('v_mul_u32_u24 v1, 683, v1'); a('v_lshrrev_b32 v1, 11, v1')
    a(f'v_mul_u32_u24 v1, {g.c.FS}, v1'); a(f'v_add_u32 v2, {FOFF["P"]}, v1'); g.expand(2)
    a('v_cmp_gt_u32 vcc, 32, v0'); a(f'v_cndmask_b32 v{vPo}, v2, v{vPo}, vcc')
    assert FSIDE['P'] == FSIDE['M']
    g.to_side([(vMy, 'O'), (vPo, 'M')])
    a(f's_lshl_b32 s{sH13}, s{hd}, 13'); g.kvm_head(sH12, hd); g.kvm_side(sH12)
    g.v_j(1); a(f's_lshl_b32 s{sT0}, s{tq}, 4'); a(f'v_add_u32 v1, s{sT0}, v1')
    g.v_g(2); a('v_lshlrev_b32 v2, 2, v2'); a(f'v_mov_b32 v{vF}, {NEG}')
    for kt in range(2):
        for r in range(4):
            a(f'v_add_u32 v3, {16*kt+r}, v2'); a('v_cmp_gt_u32 vcc, v3, v1'); a(f'v_cndmask_b32 v{MK+4*kt+r}, 0, v{vF}, vcc')
    for i in range(4): a(f'v_mov_b32 v{ONE+i}, 0x3f803f80')
    a(f's_mov_b32 s{sSc}, {fbits(SOFTC)}'); a(f's_lshl_b32 s{tq}, s{tq}, 10')
    def early(srd):
        o = []
        for i in range(8):
            pre = [f's_lshl_b32 s{sE}, s{sNx}, 18', f's_add_u32 s{sE}, s{sE}, s{sH13}', f's_add_u32 s{sE}, s{sE}, {KX:#x}', f's_add_u32 s{sE2}, s{sE}, 4096'] if i == 0 else []
            o.append(pre + [f'buffer_load_dwordx4 {v(KXr+4*i,4)}, v{vT1 if i & 1 else vL16}, {srd}, s{sE if i < 4 else sE2} offen offset:{(i&3)*1024} sc1'])
        for es in range(4):
            pre = {0: [f's_sub_u32 s{sE2}, s{sE}, {KX-QX:#x}', f's_add_u32 s{sE2}, s{sE2}, s{tq}'], 2: [f's_add_u32 s{sE2}, s{sE2}, 4096']}.get(es, [])
            o.append(pre + [f'buffer_load_dwordx4 {v(Q+4*es,4)}, v{vL16}, {srd}, s{sE2} offen offset:{(es&1)*2048} sc1'])
        for hf in range(2):
            for i in range(4):
                pre = [f's_add_u32 m0, s{sLds}, {hf*4096}', f's_add_u32 s{sE2}, s{sE}, {VX-KX+hf*4096:#x}'] if i == 0 else []
                o.append(pre + [f'buffer_load_dwordx4 v{vT1 if i & 1 else vL16}, {srd}, s{sE2} offen offset:{i*1024} sc1 lds'])
        return o
    sN2 = 24
    def poll_prep(n, nx):
        for t in g.fl_of(n, sFl) + g.fl_of(nx, sFlN): a(t)
        a('s_mov_b32 vcc_lo, -1'); a('s_mov_b32 vcc_hi, 0')
        a(f'v_mov_b32 v1, s{sFlN}'); a(f'v_mov_b32 v2, s{sFl}'); a('v_cndmask_b32 v1, v1, v2, vcc'); a(f'v_add_u32 v{vPa}, v1, v{vPo}')
        a(f'v_mov_b32 v1, s{nx}'); a(f'v_mov_b32 v2, s{n}'); a(f'v_cndmask_b32 v{vF}, v1, v2, vcc')
    poll = f'buffer_load_dword v{vPoll}, v{vPa}, {WS}, 0 offen sc1'
    pub = f'buffer_store_dword v15, v{vMy}, {WS}, s{sPFl} offen sc1'
    for t in g.seq_init(g.lag('AT')): a(t)
    a(f's_mov_b32 s{sN}, 0'); a(f's_mov_b32 s{sNx}, 0'); a(f's_mov_b32 s{sPFl}, {OOB:#x}'); a('v_mov_b32 v15, 0')
    for t in g.next_n(sN2, sNx, g.lag('AT')): a(t)
    g.mini_init(236); g.light_start()
    a('LAT_slow:')
    poll_prep(sNx, sNx)
    a('LAT_slow2:')
    a(poll); a('s_waitcnt vmcnt(0)'); a(f'v_cmp_lt_u32 vcc, v{vF}, v{vPoll}'); a('s_cmp_eq_u32 vcc_hi, -1')
    a(f's_cbranch_scc0 {g.timeout(9, "LAT_slow2")}')
    for grp in early(WS):
        for t in grp: a(t)
    poll_prep(sNx, sN2); a(poll)
    a('s_waitcnt vmcnt(0)')
    a('.p2align 6'); a('LAT_top:')
    a(f's_mov_b32 s{sN}, s{sNx}'); a(f's_mov_b32 s{sNx}, s{sN2}')
    for t in g.stamp(0): a(t)
    for t in g.kvm_addr(sT2, sH12): a(t)
    def kvm():
        for es in range(4): a(f'buffer_load_dwordx4 {v(KMr+4*es,4)}, v{vKm}, {WS}, s{sT2} offen offset:{es*512} sc1')
        for i in range(2): a(f'buffer_load_dwordx4 {v(VMr+4*i,4)}, v{vL16}, {WS}, s{sT2} offen offset:{2048+i*1024} sc1')
    def xpart(younger):
        a(f's_waitcnt vmcnt({younger + 4 + (2 if c.stamps else 0) + (1 if c.mini else 0)})')
        for et in range(8):
            for t in range(2): a(f'ds_read_b64_tr_b16 {v(VXr+4*et+2*t,2)}, v{vTr} offset:{(et>>1)*2048 + t*1024 + (et&1)*512}')
            es, kt = et >> 1, et & 1
            a(f'v_mfma_f32_16x16x32_bf16 {v(S+4*kt,4)}, {v(KXr+4*et,4)}, {v(Q+4*es,4)}, {v(MK+4*kt,4) if es == 0 else v(S+4*kt,4)}')
        for i in range(16): a(f'v_mov_b32 v{Q2+i}, v{Q+i}')
    a(f'v_cmp_lt_u32 vcc, v{vF}, v{vPoll}'); a('s_cmp_eq_u64 vcc, -1'); a('s_cbranch_scc0 LAT_look')
    for t in g.stamp(1) + g.mini_take(): a(t)
    kvm(); xpart(6); a('s_waitcnt lgkmcnt(0)'); a('s_branch LAT_go')
    a('LAT_look:')
    a(poll); xpart(1)
    a('s_waitcnt vmcnt(0) lgkmcnt(0)')
    a(pub)
    a(f'v_cmp_lt_u32 vcc, v{vF}, v{vPoll}'); a('s_cmp_eq_u32 vcc_lo, -1'); a('s_cbranch_scc1 LAT_seen')
    a('LAT_spin:')
    a(poll); a('s_waitcnt vmcnt(0)'); a(f'v_cmp_lt_u32 vcc, v{vF}, v{vPoll}'); a('s_cmp_eq_u32 vcc_lo, -1')
    a(f's_cbranch_scc0 {g.timeout(10, "LAT_spin")}')
    a('LAT_seen:')
    for t in g.stamp(1) + g.mini_take(): a(t)
    kvm()
    a('LAT_go:')
    a('s_cmp_eq_u32 vcc_hi, -1'); a(f's_cselect_b32 s10, {WS_BYTES:#x}, 0')
    a(f's_mov_b32 s{sT3}, s{sFl}')
    for t in g.next_n(sN2, sNx, g.lag('AT')): a(t)
    poll_prep(sNx, sN2)
    a(f's_lshl_b32 s{sO}, s{sN}, 18'); a(f's_add_u32 s{sO}, s{sO}, s{sH13}'); a(f's_add_u32 s{sO}, s{sO}, s{tq}'); a(f's_add_u32 s{sO}, s{sO}, {OX:#x}')
    E = early(WSC); NE0 = c.ATE
    for grp in E[:NE0]:
        for t in grp: a(t)
    E = E[NE0:]
    a(f's_waitcnt vmcnt({2 + NE0})')
    a(pub); a(poll)
    a(f's_add_u32 s{sT0}, s{sN}, 1'); a(f'v_mov_b32 v15, s{sT0}'); a(f's_mov_b32 s{sPFl}, s{sT3}'); a(f's_add_u32 s{sT1}, s{sO}, 4096')
    for t in g.stamp(2): a(t)
    body = [f'v_mfma_f32_16x16x32_bf16 {v(S+8,4)}, {v(KMr+4*es,4)}, {v(Q2+4*es,4)}, {0 if es == 0 else v(S+8,4)}' for es in range(4)]
    body += [t for t in softmax_l(S, T, P, sSc) if t != '@brk']
    body.append(f'v_mfma_f32_16x16x32_bf16 {v(SUM,4)}, {v(ONE,4)}, {v(P,4)}, 0')
    body += [f'v_mfma_f32_16x16x32_bf16 {v(O+4*i,4)}, {v(VXr+4*i,4)}, {v(P,4)}, 0' for i in range(8)]
    body.append('@vm')
    body.append(f'v_mfma_f32_16x16x16_bf16 {v(SUM,4)}, {v(ONE,2)}, {v(P+4,2)}, {v(SUM,4)}')
    body += [f'v_mfma_f32_16x16x16_bf16 {v(O+4*i,4)}, {v(VMr+(i&6),2)}, {v(P+4+2*(i&1),2)}, {v(O+4*i,4)}' for i in range(8)]
    tt = 0; nxt = 0; n_e = NE0; step = 640 / max(len(E), 1)
    for t in body:
        if t == '@vm': t = f's_waitcnt vmcnt({2 + n_e})'
        a(t); tt += 16 if t.startswith('v_mfma') else 8 if t.startswith(('v_exp', 'v_perm')) else 4
        if E and tt >= nxt:
            for u in E.pop(0): a(u)
            n_e += 1; nxt += step
    for grp in E:
        for u in grp: a(u)
    a(f'v_rcp_f32 v{T}, v{SUM}')
    for h in range(4):
        for i in range(8 * h, 8 * h + 8, 2): a(f'v_pk_mul_f32 {v(O+i,2)}, {v(O+i,2)}, {v(T,2)} op_sel_hi:[1,0]')
        for i in range(4 * h, 4 * h + 4): a(f'v_cvt_pk_bf16_f32 v{OUT+i}, v{O+2*i}, v{O+2*i+1}')
        a(f'buffer_store_dwordx4 {v(OUT+4*h,4)}, v{vL16}, {WS}, s{sO if h < 2 else sT1} offen offset:{(h&1)*2048} sc1')
    for t in g.stamp(3): a(t)
    if c.mini: a('s_waitcnt lgkmcnt(0)')
    for t in g.mini_put(236): a(t)
    g.stamp_store(O, 4)
    a(f's_waitcnt vmcnt({20 - NE0 + 4 + (2 if c.stamps else 0) + (1 if c.mini else 0)})')
    a('s_cmp_lg_u32 s10, 0'); a('s_cbranch_scc1 LAT_top')
    a('s_waitcnt vmcnt(0)'); a(pub)
    a(f's_cmp_lt_u32 s{sNx}, {c.NEND}'); a('s_cbranch_scc1 LAT_slow')
    g.endpgm(); g.flush_tail()

def row16(g, d):
    a = g.a
    a(f'v_bfe_u32 v{d}, v0, 2, 2'); a(f'v_lshlrev_b32 v{d}, 5, v{d}'); a('v_and_b32 v4, 1, v0'); a('v_lshlrev_b32 v4, 4, v4'); a(f'v_add_u32 v{d}, v{d}, v4')

def v_tr_addr(g, d):
    a = g.a
    a('v_bfe_u32 v1, v0, 1, 1'); a('v_lshlrev_b32 v1, 8, v1'); a('v_lshrrev_b32 v2, 2, v0'); a('v_lshlrev_b32 v2, 4, v2'); a('v_add_u32 v1, v1, v2')
    a('v_and_b32 v2, 1, v0'); a('v_lshlrev_b32 v2, 3, v2'); a(f'v_add_u32 v{d}, v1, v2')

def emit(g):
    r = g.c.roles
    if 'GU' in r: role_gu(g)
    if 'WO' in r: role_proj(g, 'WO', False); role_proj(g, 'WO', True)
    if 'DN' in r: role_proj(g, 'DN', False); role_proj(g, 'DN', True)
    if 'AT' in r: role_at(g)
    import roles3
    roles3.emit(g)
```

```python
from gen import *
from roles2 import NEG, v_tr_addr, row16

VB = 96
RESW = 24576
STG = 98304
sR0, sStage, sWb = sC, sC + 1, sC + 2
sN1, sN2 = sNx, sC + 3

class Lg:
    def __init__(s, a): s.a = a; s.q = []
    def rd(s, tag, text): s.q.append(tag); return text
    def wait(s, tag):
        if tag not in s.q: return None
        i = len(s.q) - 1 - s.q[::-1].index(tag)
        n = len(s.q) - 1 - i; s.q = s.q[i + 1:]
        assert n <= 15
        return f's_waitcnt lgkmcnt({n})'

def glue(l):
    o = []
    for t in l:
        if t.startswith('s_cselect'): o[-1] += '\n' + t
        else: o.append(t)
    return o

def frag_map(resident, nsteps, ntiles):
    m = {}; r = 0; l = 0
    for st in range(nsteps):
        for n in range(ntiles):
            if resident(st, n): m[st, n] = ('l', l); l += 1
            else: m[st, n] = ('r', r); r += 8
    assert l == 12 and r == 416
    return m

def chain_setup(g, vIdx, vL16, vRes):
    a = g.a
    a(f's_mul_i32 s{sR0}, s{sG}, {RING_SZ:#x}'); a(f's_add_u32 s{sR0}, s{sR0}, {RING:#x}')
    a(f's_lshl_b32 s{sStage}, s{sW}, 14'); a(f's_add_u32 s{sStage}, s{sStage}, {STG}')
    a(f's_lshl_b32 s{sWoff}, s{sG}, 8'); a(f's_add_u32 s{sWoff}, s{sWoff}, {HUB:#x}')
    a(f'v_lshlrev_b32 v{vL16}, 4, v0')
    a(f's_mul_i32 s{sT0}, s{sW}, {RESW}'); a(f'v_add_u32 v{vRes}, s{sT0}, v{vL16}')
    a('v_mov_b32 v1, 0x4444'); a('v_mov_b32 v2, 0xeeee'); a('v_and_b32 v3, 2, v0'); a('v_cmp_eq_u32 vcc, 0, v3')
    a(f'v_cndmask_b32 v{vIdx}, v2, v1, vcc')

def poison_init(g, vAddr, sOff, sub, slot_bytes, width, first=0):
    a = g.a
    for i in range(4): a(f'v_mov_b32 v{16+i}, -1')
    for l in range(2):
        for sl in range(first, 4):
            a(f's_add_u32 s{sT0}, s{sR0}, {l*2*RING_SZ + sub + sl*slot_bytes:#x}'); a(f's_add_u32 s{sT0}, s{sT0}, s{sOff}')
            a(f'buffer_store_dwordx{width} {v(16,width)}, v{vAddr}, {WS}, s{sT0} offen sc1')

def chain_load(g, fm, chunk_src, nsteps, nquads, vRes, rowmap, grow, pitch):
    a = g.a
    vA, vTr, TMPR = 20, 21, 24
    a('v_lshrrev_b32 v1, 3, v0'); a(f'v_mul_u32_u24 v1, {pitch}, v1')
    a('v_and_b32 v2, 7, v0'); a('v_lshlrev_b32 v2, 4, v2'); a(f'v_add_u32 v{vA}, v1, v2')
    g.tr_addr(vTr, 128, 0, 8, sStage, chain=rowmap)
    chunks = []
    for st in range(nsteps):
        for p in range(nquads):
            for hq in range(2):
                pre, sb, imm = chunk_src(st, p)
                ch = dict(pre=pre if hq == 0 else [], dma=[(W1, vA, sb, imm + grow(hq, i) * pitch) for i in range(4)], reads=[], post=[])
                for k in range(4):
                    kind, idx = fm[st, 4 * p + k]
                    for q in range(2):
                        dest = wreg(idx + 4 * hq + 2 * q, 2, VB) if kind == 'r' else v(TMPR + 4 * k + 2 * q, 2)
                        ch['reads'].append((dest, vTr, 2 * q * 128 + k * 32))
                    if kind == 'l':
                        ch['post'].append(f'ds_write_b128 v{vRes}, {v(TMPR+4*k,4)} offset:{idx*2048+hq*1024}')
                if ch['post']: ch['post'].append('s_waitcnt lgkmcnt(0)')
                chunks.append(ch)
    g.load_weights(chunks, 4, 4096, sStage)

def pick_mode(g, name):
    a = g.a
    g.wait_start(48, 1, False)
    a(f's_add_u32 s{sRdy}, s{sRound}, 1')
    for t in g.seq_init(g.c.L): a(t)
    g.light_start()
    a('s_barrier')

sX = 24

def ring_calc(n, base, s15=None, s15x=None, s14=None, add14=0, s14x=None):
    o = [f's_cmp_lt_u32 s{n}, 64', f's_cselect_b32 s{base}, 0, {2*RING_SZ:#x}', f's_add_u32 s{base}, s{base}, s{sR0}']
    if s15 is not None:
        o += [f's_and_b32 s{s15}, s{n}, 3', f's_lshl_b32 s{s15}, s{s15}, 15']
        if s15x is not None: o += [f's_xor_b32 s{s15x}, s{s15}, 0x10000', f's_add_u32 s{s15x}, s{s15x}, s{base}']
        o += [f's_add_u32 s{s15}, s{s15}, s{base}']
    if s14 is not None:
        o += [f's_add_u32 s{s14}, s{n}, {add14}', f's_and_b32 s{s14}, s{s14}, 3'] if add14 else [f's_and_b32 s{s14}, s{n}, 3']
        o += [f's_lshl_b32 s{s14}, s{s14}, 14']
        if s14x is not None: o += [f's_xor_b32 s{s14x}, s{s14}, 0x8000', f's_add_u32 s{s14x}, s{s14x}, s{base}']
        o += [f's_add_u32 s{s14}, s{s14}, s{base}']
    return o

def heads_up(g, vT, vZ, code):
    a = g.a; l = a.lab('hu')
    a(f's_and_b32 s{sT1}, s{sN}, 64'); a(f's_lshl_b32 s{sT1}, s{sT1}, 3'); a(f's_add_u32 s{sT1}, s{sT1}, s{sWoff}'); a(f'v_mov_b32 v{vZ}, 0')
    a(f'{l}:'); a(f'buffer_load_dword v{vT}, v{vZ}, {WS}, s{sT1} offen sc1')
    for t in tick(g, code): a(t)
    a('s_waitcnt vmcnt(0)'); a(f'v_cmp_gt_u32 vcc, s{sN}, v{vT}'); a(f's_cbranch_vccnz {l}')

def check4(t, d):
    return [f'v_max3_u32 v{t}, v{d}, v{d+1}, v{d+2}', f'v_max_u32 v{t}, v{t}, v{d+3}', f'v_cmp_eq_u32 vcc, -1, v{t}']

def tick(g, code):
    lab = g.a.lab('to')
    g.tail.append([f'{lab}:', f's_mov_b32 s{sCode}, {code}', 's_branch L_fail'])
    return [f's_add_u32 s{sTO}, s{sTO}, 1', f's_cmp_ge_u32 s{sTO}, {g.c.TIMEOUT}', f's_cbranch_scc1 {lab}']

def gm_loads(G, vL16, sMem, lo, hi):
    return [f'buffer_load_dwordx4 {v(G+4*i,4)}, v{vL16}, {WS}, s{sMem} offen offset:{i*1024} sc1' for i in range(lo, hi)]

def gm_check(G, T, lo, hi, younger):
    o = []
    for i in range(lo, hi):
        o.append(f's_waitcnt vmcnt({hi-1-i+younger})')
        d = G + 4 * i
        if i == lo: o += [f'v_max3_u32 v{T}, v{d}, v{d+1}, v{d+2}', f'v_max_u32 v{T}, v{T}, v{d+3}']
        else: o += [f'v_max3_u32 v{T}, v{T}, v{d}, v{d+1}', f'v_max3_u32 v{T}, v{T}, v{d+2}, v{d+3}']
    o.append(f'v_cmp_eq_u32 vcc, -1, v{T}')
    return o

def step_order(NP):
    return [(q, i) for q in range(4) for i in range(NP)] + [(q, i) for q in range(4) for i in range(NP, 4)]

def w_pre(WB, vRes):
    return [f'ds_read_b128 {v(WB+8*u+4*hh,4)}, v{vRes} offset:{u*2048+hh*1024}' for u in range(2) for hh in range(2)]

def proj16(g, fm, ACC, G, AF, WB, vIdx, vStg, vRes, vT, vC, vL16, sMem, code, reads, extra, endfill, fold):
    assert g.c.NP == 4
    a = g.a; lg = Lg(a)
    af = lambda st: v(G + 4 * st, 4) if st < 4 else v(AF + 4 * (st % 3), 4)
    def mm(st, n):
        kind, idx = fm[st, n]
        B = wreg(idx, 8, VB) if kind == 'r' else v(WB + 8 * (idx % 2), 8)
        return f'v_smfmac_f32_16x16x64_bf16 {v(ACC+4*n,4)}, {af(st)}, {B}, v{vIdx}'
    xr = lambda q: f'v_xor_b32 v{vT}, {q<<12}, v{vStg}'
    rdA = lambda st: ('A', st, f'ds_read_b128 {af(st)}, v{vT} offset:{(st&3)*1024}')
    rdW = lambda st, hh: ('W', st, f'ds_read_b128 {v(WB+8*((st-1)%2)+4*hh,4)}, v{vRes} offset:{(st-1)*2048+hh*1024}')
    seq = [(st, n) for st in range(13) for n in (0, 2, 1, 3)] + [(st, n) for p in range(2) for st in (13, 14, 15) for n in (p, p + 2)]
    fixed = {i: ('S', i, f'ds_write_b128 v{vStg}, {v(G+4*i,4)} offset:{i*1024}') for i in range(4)}
    fixed.update({5: xr(1), 7: rdA(4), 10: rdA(5), 11: rdA(6), 22: xr(2), 38: xr(3)})
    for st in range(2, 12): fixed[4 * st] = rdW(st + 1, 0); fixed[4 * st + 1] = rdW(st + 1, 1)
    for st in range(4, 13): fixed[4 * st + 3] = rdA(st + 3)
    reads = list(reads); q = list(extra); endfill = list(endfill); f0 = fold(0, False)
    scal = lambda t: t.startswith('s_')
    def emit(t):
        if isinstance(t, tuple): a(lg.rd((t[0], t[1]), t[2]))
        else: a(t)
    lg.q = [('W', 1), ('W', 1), ('W', 2), ('W', 2)]
    def waits(st, n):
        tags = [('A', st)] + ([('W', st)] if fm[st, n][0] == 'l' else [])
        best = None
        for t in tags:
            if t in lg.q and (best is None or lg.q.index(t) > lg.q.index(best)): best = t
        return [lg.wait(best)] if best else []
    for pos, (st, n) in enumerate(seq):
        a(mm(st, n))
        sc = []
        if pos == 6: sc = ['s_waitcnt lgkmcnt(0)']; lg.q = []
        if pos == 7: sc = ['s_barrier'] + (g.stamp(5) if g.c.fine else [])
        if pos + 1 < len(seq): sc += waits(*seq[pos + 1])
        for t in sc: a(t)
        ns = 2 - len(sc)
        while ns > 0 and q and q[0][0] <= pos and scal(q[0][1]):
            t = q.pop(0)[1]; a(t); ns -= len([u for u in t.split('\n') if not u.endswith(':')])
        if 57 <= pos <= 59: a('s_nop 0')
        if pos in fixed: emit(fixed[pos])
        elif q and q[0][0] <= pos and not scal(q[0][1]): a(q.pop(0)[1])
        elif reads and pos > 15 and (len(reads) > 4 or all(scal(x[1]) for x in q) or g.c.QT == 3): emit(('X', pos, reads.pop(0)[1]))
        elif pos >= 60 and f0: a(f0.pop(0))
        elif pos > 51 and endfill: a(endfill.pop(0))
    assert not q, q
    for p_, t in reads: a(t)
    for t in f0 + endfill + fold(1, True): a(t)

def fold_add(d, x, packed):
    if packed: return [f'v_pk_add_f32 {v(d,2)}, {v(x,2)}, {v(x+2,2)}']
    return [f'v_add_f32 v{d+r}, v{x+r}, v{x+2+r}' for r in range(2)]

def mem_weights(g, vRes, sCol):
    fm = frag_map(lambda st, n: 1 <= st <= 12 and n == 3, 16, 4)
    def src(st, p):
        q, i = step_order(g.c.NP)[st]
        pre = [f's_xor_b32 s{sWb}, s{sW}, {q}', f's_lshl_b32 s{sWb}, s{sWb}, 21', f's_add_u32 s{sWb}, s{sWb}, s{sCol}']
        return pre, sWb, i * 64 * 8192
    chain_load(g, fm, src, 16, 1, vRes, (16, 4, 8), lambda hq, i: 32 * hq + 8 * i, 8192)
    g.loaded()
    return fm

def role_qk(g):
    a = g.a; c = g.c
    a('L_QK:')
    a(f's_cmp_lt_u32 s{sW}, 2'); a(f's_cselect_b32 s{P_WQ}, s{P_WQ}, s{P_WK}'); a(f's_cselect_b32 s{P_WQ+1}, s{P_WQ+1}, s{P_WK+1}')
    g.srd(12, P_WQ, 0x800000)
    vIdx, vL16, vStg, vRes, vXw, vXr, vOst, vKm, vVm, vPoff, vMy, vPoll, vG16 = 5, 6, 7, 8, 9, 10, 11, 12, 13, 14, 15, 4, 94
    vT0, vT1, vVt, vT2 = 0, 1, 2, 81
    ACC, G, AF, WB, KX2, VMf = 16, 32, 48, 60, 76, 92
    F, S, VXf, P, T2, O, OUT, PZ = 48, 64, 16, 24, 30, 48, 56, 60
    KVB, EXC = 114688, 147456
    hw, cO, cV, sKV, sW8, sW12, sFv, cK, cM, sW11 = (sC + 4 + i for i in range(10))
    sMem, sVm, sO, sOp, sKm, sDk, sDv, sMk, sB = (sX + i for i in range(9))
    sSc, sMemN, sFl2, sPF2, sKok = sX + 10, sX + 12, sX + 13, sX + 14, sX + 15
    assert c.QT == 4 and not c.QS2 and not c.QG
    chain_setup(g, vIdx, vL16, vRes)
    a(f's_lshl_b32 s{hw}, s{sG}, 4'); a(f's_add_u32 s{hw}, s{hw}, s{sIdx}'); a(f's_lshl_b32 s{hw}, s{hw}, 2'); a(f's_add_u32 s{hw}, s{hw}, s{sW}')
    g.my_flag(vMy, hw, 'M'); g.zero_flags(vMy)
    a('v_and_b32 v1, 13, v0'); a('v_lshlrev_b32 v1, 4, v1'); a('v_and_b32 v2, 16, v0'); a('v_lshlrev_b32 v2, 1, v2'); a('v_add_u32 v1, v1, v2')
    a('v_and_b32 v2, 32, v0'); a('v_lshlrev_b32 v2, 3, v2'); a('v_add_u32 v1, v1, v2')
    row16(g, 2)
    a(f'v_mov_b32 v3, {OOB:#x}'); a('v_and_b32 v4, 2, v0'); a('v_cmp_eq_u32 vcc, 0, v4')
    a(f'v_cndmask_b32 v{vOst}, v1, v3, vcc')
    g.v_g(1); a('v_lshlrev_b32 v1, 7, v1'); a('v_add_u32 v1, v1, v2'); a(f'v_cndmask_b32 v{vKm}, v3, v1, vcc')
    a(f's_lshl_b32 s{cO}, s{sIdx}, 11'); a(f's_lshl_b32 s{sT0}, s{sW}, 9'); a(f's_add_u32 s{cO}, s{cO}, s{sT0}')
    poison_init(g, vOst, cO, R_OM, 0x8000, 4)
    g.arrive(chain=True)
    a(f's_add_u32 s{cO}, s{cO}, {R_OM:#x}')
    a(f's_lshr_b32 s{cK}, s{hw}, 2'); a(f's_lshl_b32 s{cK}, s{cK}, 8'); a(f's_and_b32 s{sT0}, s{sW}, 1'); a(f's_lshl_b32 s{sT0}, s{sT0}, 7')
    a(f's_add_u32 s{cK}, s{cK}, s{sT0}')
    fm = mem_weights(g, vRes, cK)
    a(f's_lshl_b32 s{sW12}, s{sW}, 12'); a(f's_lshl_b32 s{sW11}, s{sW}, 11')
    a(f's_add_u32 s{sT0}, s{sW12}, {STG}'); a(f'v_add_u32 v{vStg}, s{sT0}, v{vL16}')
    def exbase(src_):
        a(f'v_lshlrev_b32 v1, 10, v{src_}'); a(f'v_and_b32 v3, 1, v{src_}'); a('v_lshlrev_b32 v3, 5, v3'); a('v_add_u32 v1, v1, v3')
        a(f'v_lshrrev_b32 v3, 1, v{src_}'); a('v_lshlrev_b32 v3, 7, v3'); a('v_add_u32 v1, v1, v3')
    g.v_g(2); exbase(2); g.v_j(2); a('v_lshlrev_b32 v2, 3, v2')
    a(f's_and_b32 s{sT0}, s{sW}, 1'); a(f's_lshl_b32 s{sT0}, s{sT0}, 9'); a(f's_and_b32 s{sT1}, s{sW}, 2'); a(f's_xor_b32 s{sT1}, s{sT1}, 2')
    a(f's_lshl_b32 s{sT1}, s{sT1}, 1'); a(f's_add_u32 s{sT0}, s{sT0}, s{sT1}'); a(f's_add_u32 s{sT0}, s{sT0}, {EXC}'); a(f'v_add3_u32 v{vXw}, v1, v2, s{sT0}')
    a('v_and_b32 v2, 3, v0'); exbase(2); g.v_g(2); a('v_lshlrev_b32 v2, 6, v2'); a('v_add_u32 v1, v1, v2')
    a('v_bfe_u32 v2, v0, 2, 2'); a('v_lshlrev_b32 v2, 3, v2'); a('v_add_u32 v1, v1, v2'); a(f'v_add_u32 v{vXr}, {EXC}, v1')
    a(f's_lshl_b32 s{cV}, s{sIdx}, 1'); a(f's_lshr_b32 s{sT0}, s{sW}, 1'); a(f's_add_u32 s{cV}, s{cV}, s{sT0}'); a(f's_lshl_b32 s{cV}, s{cV}, 10')
    a(f's_and_b32 s{sT0}, s{sW}, 1'); a(f's_lshl_b32 s{sT0}, s{sT0}, 3'); a(f's_add_u32 s{cV}, s{cV}, s{sT0}'); a(f's_add_u32 s{cV}, s{cV}, {R_VML:#x}')
    a(f's_lshl_b32 s{cK}, s{hw}, 11'); a(f's_add_u32 s{cK}, s{cK}, {KX:#x}')
    a(f's_lshr_b32 s{cM}, s{hw}, 2'); g.kvm_head(cM, cM); a(f's_lshl_b32 s{sT0}, s{sW}, 9'); a(f's_add_u32 s{cM}, s{cM}, s{sT0}')
    a('v_and_b32 v1, 1, v0'); a('v_lshlrev_b32 v1, 6, v1'); a(f's_lshr_b32 s{sT0}, s{hw}, 1'); a(f's_add_u32 s{sT0}, s{sT0}, 64'); a(f'v_add_u32 v1, s{sT0}, v1')
    a('v_mul_u32_u24 v1, 683, v1'); a('v_lshrrev_b32 v1, 11, v1'); a(f'v_mul_u32_u24 v1, {g.c.FS}, v1')
    a(f'v_add_u32 v{vPoff}, {FOFF["P"]}, v1'); g.expand(vPoff)
    v_tr_addr(g, vVt); a(f'v_add_u32 v{vVt}, s{sW11}, v{vVt}')
    a(f's_mov_b32 s{sSc}, {fbits(SOFTC)}'); a(f's_mov_b32 s{sSc+1}, s{sSc}'); a(f's_lshl_b32 s{sW8}, s{sW}, 8')
    pick_mode(g, 'QK')
    g.to_side([(vMy, 'M'), (vPoff, 'P')]); g.kvm_side(cM)
    def kv_prep(n):
        return [f's_lshl_b32 s{sDk}, s{n}, 18', f's_add_u32 s{sDk}, s{sDk}, s{cK}', f's_cmp_lt_u32 s{n}, {c.NEND}',
                f's_cselect_b32 s{sDk}, s{sDk}, {OOB:#x}', f's_add_u32 s{sDv}, s{sDk}, {VX-KX:#x}',
                f's_sub_u32 s{sMk}, {2*KVB+16384}, s{sKV}', f's_add_u32 s{sMk}, s{sMk}, s{sW11}']
    kv_dma = [f's_mov_b32 m0, s{sMk}',
              f'buffer_load_dwordx4 v{vL16}, {WS}, s{sDk} offen sc1 lds',
              f'buffer_load_dwordx4 v{vL16}, {WS}, s{sDk} offen offset:1024 sc1 lds',
              f's_add_u32 m0, s{sMk}, 8192',
              f'buffer_load_dwordx4 v{vL16}, {WS}, s{sDv} offen sc1 lds',
              f'buffer_load_dwordx4 v{vL16}, {WS}, s{sDv} offen offset:1024 sc1 lds']
    def need0(n):
        return g.fl_of(n, sFl) + [f's_cmp_lt_u32 s{n}, {c.NEND}', f's_cselect_b32 s{sNeed}, s{n}, 0']
    def phase_scalars():
        return ring_calc(sN, sB, s15=sO, s15x=sOp) + [f's_add_u32 s{sVm}, s{sO}, s{cV}', f's_add_u32 s{sO}, s{sO}, s{cO}',
                f's_add_u32 s{sOp}, s{sOp}, s{cO}'] + (g.kvm_addr(sKm, cM) if c.QT == 4 or c.QG else []) + kv_prep(sN1) + need0(sN1) + g.next_n(sN2, sN1, c.L) + g.fl_of(sN2, sFl2) + \
               ring_calc(sN1, sB, s14=sMemN) + [f's_add_u32 s{sMemN}, s{sMemN}, s{sW12}', f'v_add_u32 v{vT1}, s{sKV}, v{vL16}']
    a(f's_mov_b32 s{sN}, 0'); a(f's_mov_b32 s{sKV}, {KVB+16384}')
    for t in need0(sN): a(t)
    g.spin_flags(vPoll, vPoff, sNeed, sFl, 11)
    for t in kv_prep(sN) + kv_dma: a(t)
    a(f's_mov_b32 s{sKV}, {KVB}')
    for t in g.next_n(sN1, sN, c.L): a(t)
    a(f's_mov_b32 s{sPFl}, {OOB:#x}'); a(f's_mov_b32 s{sPF2}, {OOB:#x}'); a(f's_mov_b32 s{sKm}, {OOB:#x}'); a(f's_mov_b32 s{sFv}, 0')
    for t in w_pre(WB, vRes) + [f'v_mov_b32 v{ACC+i}, 0' for i in range(16)] + \
             (need0(sN1) + [f'v_add_u32 v{vT1}, s{sKV}, v{vL16}'] if c.QS2 else phase_scalars()): a(t)
    if c.QS2: PZ = KX2 + 8
    a(f'buffer_load_dword v{vPoll}, v{vPoff}, {WS}, s{sFl} offen sc1')
    a(f's_add_u32 s{sMem}, s{sR0}, s{sW12}'); a(f's_mov_b32 s{sKok}, 0'); a('s_mov_b32 s10, 0')
    a(f's_cmp_lg_u32 s{sRdy}, 1'); a('s_cbranch_scc1 LQK_poll_s')
    for mode in ('f', 's'):
        LS = '' if mode == 'f' else ' sc1'
        POLL, GO = f'LQK_poll_{mode}', f'LQK_go_{mode}'
        a('.p2align 6'); a(f'{POLL}:')
        if c.HU & 1: heads_up(g, vT0, G, 26); a(f'{POLL}2:')
        if c.PPQ:
            for t in gm_loads(G, vL16, sMem, 0, c.NP): a(t)
            a(f's_nop {c.PPQ}'); a(f's_nop {c.PPQ}'); a(f'{POLL}2:')
        for t in gm_loads(G, vL16, sMem, 0, c.NP) + tick(g, 12) + gm_check(G, vT0, 0, c.NP, c.NP if c.PPQ else 0): a(t)
        a(f's_cbranch_vccnz {POLL}' + ('2' if c.PPQ or c.HU & 1 else ''))
        a(f'{GO}:')
        for t in g.stamp(1): a(t)
        lk, lk2 = a.lab('kvs'), a.lab('kvc')
        pub = f'buffer_store_dword v{vT2}, v{vMy}, {WS}, s{sPFl} offen sc1'
        kvm_st = [f'buffer_store_dwordx4 {v(VMf,4)}, v{vVm}, {WS}, s{sKm} offen offset:2048 sc1',
                  f'buffer_store_dwordx4 {v(KX2,4)}, v{vKm}, {WS}, s{sKm} offen sc1']
        poll = f'buffer_load_dword v{vPoll}, v{vPoff}, {WS}, s{sFl2} offen sc1'
        extra = [(2, t) for t in [f'v_cmp_lt_u32 vcc, s{sNeed}, v{vPoll}', kv_dma[0], 's_cmp_eq_u64 vcc, -1', f's_cbranch_scc0 {lk}\n{lk2}:']]
        kvd = kv_dma
        if c.KLB: extra = [(2, kv_dma[0])]; kvd = [t.replace(WS, WSC) for t in kv_dma]
        if c.KLB == 2:
            le1, le2, le3 = a.lab('kve'), a.lab('kvec'), a.lab('kvel')
            extra = [(1, 's_cmp_eq_u32 s10, 0'), (1, f's_cbranch_scc1 {le1}\n{le2}:')] + extra
            g.tail.append([f'{le1}:', f's_add_u32 s{sT0}, s{sN}, 1', f's_cmp_eq_u32 s{sT0}, s{sN1}', f's_cbranch_scc1 {le2}', f'{le3}:',
                           f'buffer_load_dword v{vPoll}, v{vPoff}, {WS}, s{sFl} offen sc1', 's_waitcnt vmcnt(0)',
                           f'v_cmp_lt_u32 vcc, s{sNeed}, v{vPoll}', 's_cmp_eq_u64 vcc, -1', f's_cbranch_scc0 {g.timeout(13, le3)}',
                           f's_mov_b32 s10, {WS_BYTES:#x}', f's_branch {le2}'])
        extra += sorted([(c.QM, t) for t in kvd[1:] + [poll]] + [(c.QS, t) for t in (kvm_st + [pub], kvm_st, [], [], [])[c.QT]], key=lambda x: x[0])
        if c.QT == 4: extra = sorted(extra + [(c.QPP, pub)], key=lambda x: x[0])
        if c.QT == 2 and c.QG: extra = sorted(extra + [(c.QPP, pub)], key=lambda x: x[0])
        elif c.QT == 2: extra += [(30, 's_waitcnt vmcnt(5)'), (30, pub)]
        if c.QT == 3:
            extra = [(2, f's_cmp_lg_u32 s{sKok}, 0'), (2, f's_cbranch_scc0 {lk}\n{lk2}:'), (2, kv_dma[0])] + [(4, t) for t in kvm_st] + \
                    [(8, t) for t in kv_dma[1:] + [poll, f'v_mov_b32 v{VMf}, s{sFv}']] + \
                    [(c.QP, 's_waitcnt vmcnt(5)'), (c.QP, pub.replace(f'v{vT2},', f'v{VMf},').replace(f's{sPFl} ', f's{sPF2} '))]
        if c.QS2:
            assert c.QT == 2 and c.KLB == 2
            extra = [(0, t) for t in glue(need0(sN1) + kv_prep(sN1)[:4])] + [(4, f'v_cmp_lt_u32 vcc, s{sNeed}, v{vPoll}')] + \
                    [(4, t) for t in glue(kv_prep(sN1)[4:] + ['s_cmp_eq_u64 vcc, -1', f's_cselect_b32 s10, {WS_BYTES:#x}, 0'])] + \
                    [(4, f's_cbranch_scc0 {le1}\n{le2}:'), (4, kv_dma[0])] + [(4, t) for t in glue(g.next_n(sN2, sN1, c.L) + g.fl_of(sN2, sFl2))] + \
                    [(8, t) for t in kvd[1:5]]
            rest = glue(ring_calc(sN, sB, s15=sO, s15x=sOp) + [f's_add_u32 s{sVm}, s{sO}, s{cV}', f's_add_u32 s{sO}, s{sO}, s{cO}',
                        f's_add_u32 s{sOp}, s{sOp}, s{cO}'] + ring_calc(sN1, sB, s14=sMem) + [f's_add_u32 s{sMem}, s{sMem}, s{sW12}'] + g.kvm_addr(sKm, cM))
            extra += [(8, t) for t in rest[:10] + [kvd[5]] + rest[10:15] + [poll] + rest[15:20] + ['s_waitcnt vmcnt(5)', pub] + rest[20:]]
            extra += [(8, t) for t in [f's_add_u32 s{sFv}, s{sN}, 1'] + g.fl_of(sN, sPFl)]
        if c.KLB:
            lk3, lk4 = a.lab('kvs2'), a.lab('kvs3')
            look = [f'buffer_load_dword v{vT0}, v{vPoff}, {WS}, s{sFl} offen sc1', 's_waitcnt vmcnt(0)',
                    f'v_cmp_lt_u32 vcc, s{sNeed}, v{vT0}', 's_cmp_eq_u64 vcc, -1']
            g.tail.append([f'{lk}:'] + look + [f's_cbranch_scc1 {lk4}', pub, f'{lk3}:'] + look + [f's_cbranch_scc0 {g.timeout(13, lk3)}', f'{lk4}:'] +
                          kv_dma + [f's_branch {lk2}'])
        else:
            g.tail.append([f'{lk}:', f'buffer_load_dword v{vPoll}, v{vPoff}, {WS}, s{sFl} offen sc1', 's_waitcnt vmcnt(0)',
                           f'v_cmp_lt_u32 vcc, s{sNeed}, v{vPoll}', 's_cmp_eq_u64 vcc, -1', f's_cbranch_scc1 {lk2}',
                           f's_branch {g.timeout(13, lk)}'])
        kxr = lambda i: (G + 4 * i) if i < 4 else (KX2 + 4 * (i - 4))
        reads = [(p, f'ds_read_b128 {v(kxr(i),4)}, v{vT1} offset:{i*1024}') for p, i in
                 ((46, 0), (48, 1), (50, 2), (52, 3), (53, 4), (54, 5), (55, 6), (56, 7))]
        def fold(p, packed):
            x, y = ACC + 4 * p, ACC + 8 + 4 * p
            return fold_add(x, x, packed) + fold_add(y, y, packed) + \
                   [f'v_cvt_pk_bf16_f32 v{x}, v{x}, v{x+1}', f'v_cvt_pk_bf16_f32 v{y}, v{y}, v{y+1}',
                    f'ds_write2_b32 v{vXw}, v{x}, v{y} offset0:{32*p} offset1:{32*p+64}']
        endfill = [f'v_add_u32 v{vT1}, s{sKV}, v{vVt}'] + g.stamp(2)
        proj16(g, fm, ACC, G, AF, WB, vIdx, vStg, vRes, vT0, KX2 + 4, vL16, sMem, 22, reads, extra, endfill, fold)
        a('s_waitcnt lgkmcnt(0)'); a('s_barrier')
        for t in (g.stamp(6) if c.fine else []): a(t)
        for es in range(4):
            for hh in range(2): a(f'ds_read_b64_tr_b16 {v(F+4*es+2*hh,2)}, v{vXr} offset:{es*256+hh*32}')
        for i in range(4): a(f'ds_read_b64_tr_b16 {v(VXf+2*i,2)}, v{vT1} offset:{8192 + (i&1)*1024 + (i>>1)*512}')
        vml = f'buffer_load_dwordx2 {v(VMf,2)}, v{vL16}, {WS}, s{sVm} offen sc1'
        for es in range(4):
            a(f's_waitcnt lgkmcnt({10-2*es})')
            for kt in range(3):
                A = v(kxr(es * 2 + kt), 4) if kt < 2 else v(F + 4 * es, 4)
                cc = '0' if es == 0 else v(S + 4 * kt, 4)
                a(f'v_mfma_f32_16x16x32_bf16 {v(S+4*kt,4)}, {A}, {v(F+4*es,4)}, {cc}')
        ONE, SUM, T = G + 4, G + 8, G + 12
        a(vml)
        a(f'v_add_u32 v{vT1}, s{sW8}, v{vXr}')
        for hh in range(2): a(f'ds_read_b64_tr_b16 {v(KX2+2*hh,2)}, v{vT1} offset:{hh*32}')
        for t in g.stamp(3): a(t)
        for i in range(2): a(f'v_mov_b32 v{ONE+i}, 0x3f803f80')
        for i in range(3): a(f'v_max3_f32 v{T+i}, v{S+3*i}, v{S+3*i+1}, v{S+3*i+2}')
        a(f'v_max3_f32 v{T}, v{T}, v{T+1}, v{S+9}')
        a(f'v_max_f32 v{T+1}, v{T}, v{T+2}'); a(f'v_max_f32 v{T}, v{T}, v{T+2}')
        for i in range(2, 4): a(f'v_mov_b32 v{ONE+i}, 0x3f803f80')
        a(f'v_permlane16_swap_b32 v{T}, v{T+1}')
        a(f'v_max_f32 v{T+2}, v{T}, v{T+1}'); a(f'v_max_f32 v{T}, v{T}, v{T+1}')
        a(f'v_mov_b32 v{P+5}, 0'); a(f'v_mov_b32 v{P+6}, 0')
        a(f'v_permlane32_swap_b32 v{T}, v{T+2}')
        a('s_waitcnt lgkmcnt(0)')
        a(vml); a(kvm_st[1])
        a(f'v_max_f32 v{T}, v{T}, v{T+2}'); a(f'v_mul_f32 v{T}, s{sSc}, v{T}')
        for i in range(0, 10, 2):
            a(f'v_pk_fma_f32 {v(S+i,2)}, {v(S+i,2)}, {s(sSc,2)}, {v(T,2)} op_sel_hi:[1,1,0] neg_lo:[0,0,1] neg_hi:[0,0,1]')
        ex = lambda i: a(f'v_exp_f32 v{S+i}, v{S+i}')
        cv = lambda i, d=None: a(f'v_cvt_pk_bf16_f32 v{P+(i if d is None else d)}, v{S+2*i}, v{S+2*i+1}')
        ex(0); ex(1); ex(2); cv(0); ex(3); ex(4); cv(1); ex(5); ex(6); cv(2); ex(7); ex(8); cv(3); ex(9)
        lv, lv2, lv3 = a.lab('vm'), a.lab('vmr'), a.lab('vmr2')
        ck2 = [f'v_max_u32 v{vT0}, v{VMf}, v{VMf+1}', f'v_cmp_eq_u32 vcc, -1, v{vT0}']
        a('s_nop 0')
        a(f'v_mfma_f32_16x16x32_bf16 {v(SUM,4)}, {v(ONE,4)}, {v(P,4)}, 0')
        cv(4); cv(4, 7)
        a(f'v_mfma_f32_16x16x32_bf16 {v(O,4)}, {v(VXf,4)}, {v(P,4)}, 0')
        a('s_waitcnt vmcnt(2)'); a(ck2[0]); a(ck2[1])
        a(f'v_mfma_f32_16x16x32_bf16 {v(O+4,4)}, {v(VXf+4,4)}, {v(P,4)}, 0')
        a(f'v_mfma_f32_16x16x16_bf16 {v(SUM,4)}, {v(ONE,2)}, {v(P+4,2)}, {v(SUM,4)}')
        a(f's_cbranch_vccnz {lv2}'); a(f'{lv}:')
        g.tail.append([f'{lv2}:', 's_waitcnt vmcnt(1)'] + ck2 + [f's_cbranch_vccz {lv}', f'{lv3}:', vml] + tick(g, 14) +
                      ['s_waitcnt vmcnt(0)'] + ck2 + [f's_cbranch_vccz {lv}', f's_branch {lv3}'])
        for i in range(2):
            a(f'v_mfma_f32_16x16x16_bf16 {v(O+4*i,4)}, {v(VMf,2)}, {v(P+4+2*i,2)}, {v(O+4*i,4)}')
            if i == 0: a('s_nop 0')
            for k in range(2): a(f'v_mov_b32 v{PZ+2*i+k}, -1')
        a(f'v_rcp_f32 v{T}, v{SUM}')
        for i in range(0, 8, 2): a(f'v_pk_mul_f32 {v(O+i,2)}, {v(O+i,2)}, {v(T,2)} op_sel_hi:[1,0]')
        for i in range(4): a(f'v_cvt_pk_bf16_f32 v{OUT+i}, v{O+2*i}, v{O+2*i+1}')
        a(f'buffer_store_dwordx4 {v(OUT,4)}, v{vOst}, {WS}, s{sO} offen{LS}')
        for t in g.stamp(4): a(t)
        if c.QS2:
            for t in gm_loads(G, vL16, sMem, 0, 4) + w_pre(WB, vRes): a(t)
            g.stamp_store(F, 5)
            z = [f'v_mov_b32 v{ACC+i}, 0' for i in range(16)]
            for t in z[:8] + [f'v_mov_b32 v{vT2}, s{sFv}', f's_sub_u32 s{sKV}, {2*KVB+16384}, s{sKV}', f'v_add_u32 v{vT1}, s{sKV}, v{vL16}'] + z[8:] + \
                     kvm_st[:1] + [f's_mov_b32 s{sN}, s{sN1}', f's_mov_b32 s{sN1}, s{sN2}'] + kvm_st[1:] + g.stamp(0) + \
                     [f'buffer_store_dwordx4 {v(PZ,4)}, v{vOst}, {WS}, s{sOp} offen{LS}']: a(t)
            l1 = a.lab('qkn')
            a(f's_cmp_eq_u32 s{sFv}, s{sN}'); a(f's_cbranch_scc1 {l1}')
            for t in gm_check(G, vT0, 0, 4, 3 + (2 if c.stamps else 0)): a(t)
            a(f's_cbranch_vccz {GO}'); a(f's_branch {POLL}')
            a(f'{l1}:')
            a('s_cmp_eq_u32 s10, 0'); a(f's_cbranch_scc1 {lk}')
            a('s_waitcnt vmcnt(0)')
            a(f'{lk2}:'); a(pub)
            a(f's_cmp_lt_u32 s{sN}, {c.NEND}'); a(f's_cbranch_scc1 {POLL}')
            g.endpgm(); g.flush_tail()
            continue
        a(f's_mov_b32 s{sMem}, s{sMemN}')
        if c.QG:
            assert c.QT == 2
            for t in kvm_st: a(t)
        else:
            for t in gm_loads(G, vL16, sMem, 0, c.NP): a(t)
        a(f'buffer_store_dwordx4 {v(PZ,4)}, v{vOst}, {WS}, s{sOp} offen{LS}')
        if c.QG == 1:
            for t in gm_loads(G, vL16, sMem, 0, c.NP): a(t)
        g.stamp_store(F, 5)
        for t in w_pre(WB, vRes): a(t)
        a(f'v_mov_b32 v{vT2}, s{sFv}'); a(f's_mov_b32 s{sPFl}, s{sPF2}')
        if c.QT == 1: a(pub)
        a(f's_add_u32 s{sFv}, s{sN}, 1')
        for t in g.fl_of(sN, sPF2): a(t)
        if not c.QG:
            for t in g.kvm_addr(sKm, cM): a(t)
        if c.QT == 2 and not c.QG:
            for t in kvm_st: a(t)
        if c.QT in (2, 4): a(f'v_mov_b32 v{vT2}, s{sFv}'); a(f's_mov_b32 s{sPFl}, s{sPF2}')
        if c.KLB:
            assert c.QT != 3
            a(f's_mov_b32 s{sKok}, s10'); a('s_cmp_eq_u32 s10, 0'); a(f's_cbranch_scc1 {lk}'); a(f'{lk2}:')
        a(f's_sub_u32 s{sKV}, {2*KVB+16384}, s{sKV}')
        a(f's_mov_b32 s{sN}, s{sN1}'); a(f's_mov_b32 s{sN1}, s{sN2}')
        ps = phase_scalars() + [f'v_mov_b32 v{ACC+i}, 0' for i in range(16)] + g.stamp(0)
        if c.QG >= 2: ps = ps[:c.QG] + gm_loads(G, vL16, sMem, 0, c.NP) + ps[c.QG:]
        for t in ps: a(t)
        if c.QT == 3:
            a(f'v_cmp_lt_u32 vcc, s{sNeed}, v{vPoll}'); a('s_cmp_eq_u64 vcc, -1'); a(f's_cselect_b32 s{sKok}, 1, 0')
        if c.KLB:
            a(f'v_cmp_lt_u32 vcc, s{sNeed}, v{vPoll}'); a('s_cmp_eq_u64 vcc, -1'); a(f's_cselect_b32 s10, {WS_BYTES:#x}, 0')
        l1 = a.lab('qkn')
        a(f's_cmp_eq_u32 s{sFv}, s{sN}'); a(f's_cbranch_scc1 {l1}')
        if c.KLB: a(f's_cmp_eq_u32 s{sKok}, 0'); a(f's_cbranch_scc1 {POLL}')
        for t in gm_check(G, vT0, 0, c.NP, 0 if c.QG else 1 + (0, 1, 2, 0, 0)[c.QT] + (2 if c.stamps else 0)): a(t)
        a(f's_cbranch_vccz {GO}'); a(f's_branch {POLL}')
        a(f'{l1}:')
        if c.QT == 0: a(pub)
        if c.QT not in (2, 4):
            for t in kvm_st: a(t)
            a(f'v_mov_b32 v{vT2}, s{sFv}'); a(f's_mov_b32 s{sPFl}, s{sPF2}'); a(f's_mov_b32 s{sKm}, {OOB:#x}')
        a('s_waitcnt vmcnt(0)'); a(pub)
        a(f's_cmp_lt_u32 s{sN}, {c.NEND}'); a(f's_cbranch_scc1 {POLL}')
        g.endpgm()
        g.flush_tail()

def role_vm(g):
    a = g.a; c = g.c
    a('L_VM:')
    g.srd(12, P_WV, 0x800000)
    vIdx, vL16, vStg, vRes, vT0 = 5, 6, 7, 8, 0
    ACC, G, AF, WB, OUT, PZ = 16, 32, 48, 60, 76, 80
    cV, sW12, sCol = sC + 4, sC + 5, sC + 6
    sMem, sV, sVp, sB, sPf, cP = (sX + i for i in range(6))
    vPoff, vPoll, vL128, vG16 = 9, 10, 11, 12
    chain_setup(g, vIdx, vL16, vRes)
    a(f's_lshl_b32 s{cV}, s{sIdx}, 2'); a(f's_add_u32 s{cV}, s{cV}, s{sW}')
    a(f's_lshl_b32 s{sCol}, s{sG}, 5'); a(f's_add_u32 s{sCol}, s{sCol}, s{cV}'); a(f's_lshl_b32 s{sCol}, s{sCol}, 7')
    a(f's_lshl_b32 s{cV}, s{cV}, 10')
    if c.QT == 4:
        a(f's_lshr_b32 s{sT2}, s{sCol}, 7'); g.my_flag(vPoff, sT2, 'N'); g.zero_flags(vPoff)
        a(f's_lshr_b32 s{sC+7}, s{sCol}, 8'); g.kvm_head(sC + 7, sC + 7); a(f's_and_b32 s{sT0}, s{sW}, 1'); a(f's_lshl_b32 s{sT0}, s{sT0}, 10')
        a(f's_add_u32 s{sC+7}, s{sC+7}, s{sT0}'); a(f's_add_u32 s{sC+7}, s{sC+7}, 2048')
    poison_init(g, vL16, cV, R_VML, 0x8000, 4)
    g.arrive(chain=True)
    a(f's_add_u32 s{cV}, s{cV}, {R_VML:#x}')
    fm = mem_weights(g, vRes, sCol)
    a(f's_lshl_b32 s{sW12}, s{sW}, 12'); a(f's_add_u32 s{sT0}, s{sW12}, {STG}'); a(f'v_add_u32 v{vStg}, s{sT0}, v{vL16}')
    for i in range(4): a(f'v_mov_b32 v{PZ+i}, -1')
    a(f'v_lshlrev_b32 v{vL128}, 7, v0'); a(f's_lshl_b32 s{sT0}, s{sIdx}, 2'); a(f's_add_u32 s{sT0}, s{sT0}, s{sW}'); a(f's_mul_i32 s{sT0}, s{sT0}, {RING_SZ//32}')
    a(f'v_add_u32 v{vL128}, s{sT0}, v{vL128}')
    def warm(layer):
        return [f's_add_u32 s{sPf}, s{sR0}, {layer*2*RING_SZ:#x}', f'buffer_load_dword v{vPoll}, v{vL128}, {WS}, s{sPf} offen sc1',
                f'buffer_load_dword v{vPoll}, v{vL128}, {WS}, s{sPf} offen offset:2048 sc1'] if c.warm else []
    pick_mode(g, 'VM')
    if c.QT == 4: g.to_side([(vPoff, 'N')]); g.kvm_side(sC + 7)
    for t in warm(0): a(t)
    a(f's_mov_b32 s{sN}, 0')
    a(f's_cmp_lg_u32 s{sRdy}, 1'); a('s_cbranch_scc1 LVM_top_s')
    for mode in ('f', 's'):
        LS = '' if mode == 'f' else ' sc1'
        TOP, POLL, CHK = f'LVM_top_{mode}', f'LVM_poll_{mode}', f'LVM_chk_{mode}'
        a('.p2align 6'); a(f'{TOP}:')
        for t in ring_calc(sN, sB, s14=sMem) + [f's_add_u32 s{sMem}, s{sMem}, s{sW12}'] + ([] if c.HU & 2 else gm_loads(G, vL16, sMem, 0, c.NP)): a(t)
        for t in w_pre(WB, vRes) + [f'v_mov_b32 v{ACC+i}, 0' for i in range(16)] + ring_calc(sN, sB, s15=sV, s15x=sVp): a(t)
        a(f's_add_u32 s{sV}, s{sV}, s{cV}'); a(f's_add_u32 s{sVp}, s{sVp}, s{cV}')
        for t in g.next_n(sN1, sN, c.L) + g.stamp(0): a(t)
        if c.HU & 2: heads_up(g, vT0, G, 26)
        else: a(f's_branch {CHK}')
        a(f'{POLL}:')
        for t in gm_loads(G, vL16, sMem, 0, c.NP) + tick(g, 15): a(t)
        a(f'{CHK}:')
        for t in gm_check(G, vT0, 0, c.NP, 0): a(t)
        a(f's_cbranch_vccnz {POLL}')
        for t in g.stamp(1): a(t)
        def fold(p, packed):
            x, y = ACC + 4 * p, ACC + 8 + 4 * p
            return fold_add(x, x, packed) + fold_add(y, y, packed) + \
                   [f'v_cvt_pk_bf16_f32 v{OUT+p}, v{x}, v{x+1}', f'v_cvt_pk_bf16_f32 v{OUT+2+p}, v{y}, v{y+1}']
        proj16(g, fm, ACC, G, AF, WB, vIdx, vStg, vRes, vT0, 1, vL16, sMem, 23, [], [], g.stamp(2), fold)
        a(f'buffer_store_dwordx4 {v(OUT,4)}, v{vL16}, {WS}, s{sV} offen{LS}')
        a(f'buffer_store_dwordx4 {v(PZ,4)}, v{vL16}, {WS}, s{sVp} offen{LS}')
        for t in g.stamp(3): a(t)
        if c.QT == 4:
            if c.VMB == 1: a('s_barrier')
            if c.VMB == 2: a('s_waitcnt vmcnt(0)')
            if c.VMB == 3: a('s_waitcnt vmcnt(0)'); a('s_barrier')
            for t in g.kvm_addr(cP, sC + 7): a(t)
            a(f'buffer_store_dwordx4 {v(OUT,4)}, v{vL16}, {WS}, s{cP} offen sc1')
            for t in g.fl_of(sN, sFl) + [f's_add_u32 s{sT0}, s{sN}, 1', f'v_mov_b32 v{vPoll}, s{sT0}', 's_waitcnt vmcnt(0)',
                                         f'buffer_store_dword v{vPoll}, v{vPoff}, {WS}, s{sFl} offen sc1']: a(t)
        g.stamp_store(AF, 4)
        if c.warm:
            lw = a.lab('warm')
            a(f's_cmp_lg_u32 s{sN}, {max(c.L-2, 0)}'); a(f's_cbranch_scc1 {lw}')
            for t in warm(1): a(t)
            a(f'{lw}:')
        a(f'v_xor_b32 v{vStg}, 0x4000, v{vStg}')
        a(f's_mov_b32 s{sN}, s{sN1}')
        a(f's_cmp_lt_u32 s{sN}, {c.NEND}'); a(f's_cbranch_scc1 {TOP}')
        g.endpgm()
        g.flush_tail()

def role_wm(g):
    a = g.a; c = g.c
    a('L_WM:')
    g.srd(12, P_WO, 0x800000); g.srd(16, P_MEM0, 0x4000)
    vIdx, vL16, vRes, vRw, vRr, vL8, vT0 = 5, 6, 8, 9, 10, 11, 0
    PZ = 12
    ACC, GA, WB = 16, 48, 80
    RED, REDSZ = STG, 17408
    cT, cM, cO, sTog, sTwin = (sC + 4 + i for i in range(5))
    sOm, sOm2, sTw, sTp, sTr, sMs, sMp, sB = (sX + i for i in range(8))
    chain_setup(g, vIdx, vL16, vRes)
    a(f'v_lshlrev_b32 v{vL8}, 3, v0')
    a(f's_lshl_b32 s{cM}, s{sIdx}, 2'); a(f's_add_u32 s{cM}, s{cM}, s{sW}')
    a(f's_lshr_b32 s{cT}, s{cM}, 3'); a(f's_lshl_b32 s{cT}, s{cT}, 14'); a(f's_and_b32 s{sT0}, s{cM}, 7'); a(f's_lshl_b32 s{sT0}, s{sT0}, 10')
    a(f's_add_u32 s{cT}, s{cT}, s{sT0}'); a(f's_mul_i32 s{sT0}, s{sG}, {TW_SZ:#x}'); a(f's_add_u32 s{cT}, s{cT}, s{sT0}')
    a(f's_add_u32 s{cT}, s{cT}, {TWB:#x}')
    a('v_bfe_u32 v1, v0, 3, 2'); a('v_lshlrev_b32 v1, 12, v1'); a('v_and_b32 v2, 2, v0'); a('v_lshlrev_b32 v2, 10, v2'); a('v_add_u32 v1, v1, v2')
    a('v_and_b32 v2, 32, v0'); a('v_add_u32 v1, v1, v2'); a('v_and_b32 v2, 4, v0'); a('v_lshlrev_b32 v2, 2, v2'); a('v_add_u32 v1, v1, v2')
    a('v_and_b32 v2, 1, v0'); a('v_lshlrev_b32 v2, 3, v2'); a('v_add_u32 v1, v1, v2')
    a(f's_lshl_b32 s{sT0}, s{cM}, 6')
    a(f'buffer_load_dwordx2 v[20:21], v1, {W2}, s{sT0} offen')
    a(f's_lshl_b32 s{cM}, s{cM}, 9')
    vHu = 7
    a(f's_cmp_eq_u32 s{cM}, 0'); a(f's_cselect_b32 s{sT0}, s{sWoff}, {OOB:#x}'); g.lane0_off(vHu, sT0)
    a('v_mov_b32 v1, 0'); a(f'buffer_store_dword v1, v{vHu}, {WS}, 0 offen sc1')
    a('v_mov_b32 v2, 64'); a(f'buffer_store_dword v2, v{vHu}, {WS}, 0 offen offset:512 sc1')
    poison_init(g, vL8, cM, R_MEM, 0x4000, 2, first=1)
    for l in range(2):
        for sl in range(4):
            for hf in range(2):
                a(f's_add_u32 s{sT0}, s{cT}, {l*2*TW_SZ + sl*0x10000 + hf*0x2000:#x}')
                a(f'buffer_store_dwordx4 v[16:19], v{vL16}, {WS}, s{sT0} offen sc1')
    a('s_waitcnt vmcnt(0)')
    for l in range(2):
        a(f's_add_u32 s{sT0}, s{sR0}, {l*2*RING_SZ + R_MEM:#x}'); a(f's_add_u32 s{sT0}, s{sT0}, s{cM}')
        a(f'buffer_store_dwordx2 v[20:21], v{vL8}, {WS}, s{sT0} offen sc1')
    g.arrive(chain=True)
    fm = frag_map(lambda st, n: st < 6 and n in (5, 7), 8, 8)
    a(f's_lshl_b32 s{sWb}, s{sG}, 2'); a(f's_add_u32 s{sWb}, s{sWb}, s{sW}'); a(f's_lshl_b32 s{sWb}, s{sWb}, 20')
    a(f's_lshl_b32 s{sT0}, s{sIdx}, 8'); a(f's_add_u32 s{sWb}, s{sWb}, s{sT0}')
    chain_load(g, fm, lambda st, p: ([], sWb, st * 64 * 2048 + p * 128), 8, 2, vRes,
               (8, 16, 4), lambda hq, i: 32 * hq + 8 * i, 2048)
    g.loaded()
    a('v_bfe_u32 v2, v0, 2, 2'); a('v_mul_u32_u24 v2, 1088, v2'); a('v_and_b32 v3, 3, v0'); a('v_mul_u32_u24 v3, 272, v3'); a('v_add_u32 v2, v2, v3')
    a('v_and_b32 v3, 48, v0'); a('v_add_u32 v2, v2, v3')
    a(f's_lshl_b32 s{sT0}, s{sW}, 6'); a(f's_add_u32 s{sT0}, s{sT0}, {RED}'); a(f'v_add_u32 v{vRw}, s{sT0}, v2')
    a('v_lshrrev_b32 v2, 5, v0'); a('v_lshlrev_b32 v2, 1, v2'); a('v_and_b32 v3, 1, v0'); a('v_add_u32 v2, v2, v3'); a('v_mul_u32_u24 v2, 1088, v2')
    a('v_bfe_u32 v3, v0, 1, 4'); a('v_lshlrev_b32 v3, 2, v3'); a('v_add_u32 v2, v2, v3')
    a(f's_mul_i32 s{sT0}, s{sW}, 4352'); a(f's_add_u32 s{sT0}, s{sT0}, {RED}'); a(f'v_add_u32 v{vRr}, s{sT0}, v2')
    a('v_and_b32 v1, 27, v0'); a('v_lshlrev_b32 v1, 3, v1'); a('v_and_b32 v2, 4, v0'); a('v_lshlrev_b32 v2, 6, v2'); a('v_add_u32 v1, v1, v2')
    a('v_and_b32 v2, 32, v0'); a(f'v_add_u32 v{vL8}, v1, v2')
    a(f's_lshl_b32 s{cO}, s{sW}, 13'); a(f's_add_u32 s{cO}, s{cO}, {R_OM:#x}')
    for i in range(4): a(f'v_mov_b32 v{PZ+i}, -1')
    a(f's_mov_b32 s{sTog}, {REDSZ}')
    a(f's_cmp_eq_u32 s{sG}, 0'); a(f's_mov_b32 s{sTwin}, {TW_SZ:#x}'); a(f's_cselect_b32 s{sTwin}, s{sTwin}, {(-TW_SZ)&0xffffffff:#x}')
    pick_mode(g, 'WM')
    g.get_par(sT2, 0); a(f's_add_u32 s{cT}, s{cT}, s{sT2}')
    om_off = lambda n: ring_calc(n, sB, s15=sOm) + [f's_add_u32 s{sOm}, s{sOm}, s{cO}', f's_add_u32 s{sOm2}, s{sOm}, 4096']
    tw_off = lambda n: [f's_and_b32 s{sB}, s{n}, 64', f's_lshl_b32 s{sB}, s{sB}, 13', f's_add_u32 s{sB}, s{sB}, s{cT}',
                        f's_and_b32 s{sTw}, s{n}, 3', f's_lshl_b32 s{sTw}, s{sTw}, 16', f's_xor_b32 s{sTp}, s{sTw}, 0x20000',
                        f's_add_u32 s{sTw}, s{sTw}, s{sB}', f's_add_u32 s{sTp}, s{sTp}, s{sB}']
    assert 2 * TW_SZ == 64 << 13
    a(f's_mov_b32 s{sN}, 0')
    a(f's_mov_b32 s{sMp}, {OOB:#x}')
    for t in om_off(sN) + tw_off(sN) + w_pre(WB, vRes) + [f'v_mov_b32 v{ACC+i}, 0' for i in range(32)]: a(t)
    g.mini_init(2)
    a(f's_cmp_lg_u32 s{sRdy}, 1'); a('s_cbranch_scc1 LWM_poll_s')
    RD, SM = GA + 12, GA + 28
    NP0 = c.WMP
    for mode in ('f', 's'):
        LS = '' if mode == 'f' else ' sc1'
        POLL = f'LWM_poll_{mode}'
        lg = Lg(a); lg.q = [('W', 0), ('W', 0), ('W', 1), ('W', 1)]
        ld = lambda i: f'buffer_load_dwordx4 {v(GA+4*i,4)}, v{vL16}, {WS}, s{sOm if i < 4 else sOm2} offen offset:{(i&3)*1024} sc1'
        rdW = lambda u: [lg.rd(('W', u), f'ds_read_b128 {v(WB+8*(u%2)+4*hh,4)}, v{vRes} offset:{u*2048+hh*1024}') for hh in range(2)]
        GO = f'LWM_go_{mode}'
        a('.p2align 6'); a(f'{POLL}:')
        if c.PPW:
            for i in range(NP0): a(ld(i))
            a(f's_nop {c.PPW}'); a(f's_nop {c.PPW}'); a(f'{POLL}2:')
        for i in range(NP0): a(ld(i))
        for t in tick(g, 16): a(t)
        a(f's_waitcnt vmcnt({NP0 if c.PPW else 0})')
        for t in check4(vT0, GA): a(t)
        a(f's_cbranch_vccnz {POLL}' + ('2' if c.PPW else ''))
        a(f'{GO}:')
        for t in g.stamp(1) + g.mini_take(): a(t)
        def mm(st, n):
            kind, idx = fm[st, n]
            B = wreg(idx, 8, VB) if kind == 'r' else v(WB + 8 * (idx % 2), 8)
            a(f'v_smfmac_f32_16x16x64_bf16 {v(ACC+4*n,4)}, {v(GA+4*st,4)}, {B}, v{vIdx}')
        rd1 = lambda u, hh: a(lg.rd(('W', u), f'ds_read_b128 {v(WB+8*(u%2)+4*hh,4)}, v{vRes} offset:{u*2048+hh*1024}'))
        issued = NP0
        for st in range(6):
            i = st + 1
            if c.WCP and st % 2 == 0 and st > 0: ck = None
            elif st == 0 or (st < 5 and not c.WCP): ck = check4(vT0, GA + 4 * i); last = i
            else:
                d = GA + 4 * i; last = i + 1
                ck = [f'v_max3_u32 v{vT0}, v{d}, v{d+1}, v{d+2}', f'v_max3_u32 v{vT0}, v{vT0}, v{d+3}, v{d+4}',
                      f'v_max3_u32 v{vT0}, v{vT0}, v{d+5}, v{d+6}', f'v_max_u32 v{vT0}, v{vT0}, v{d+7}', f'v_cmp_eq_u32 vcc, -1, v{vT0}']
            c0 = 6 - len(ck) if ck else 9
            for n in range(8):
                mm(st, n)
                if n in (4, 6):
                    w = lg.wait(('W', 2 * st + (n == 6)))
                    if w: a(w)
                if n == c0 and last >= NP0: a(f's_waitcnt vmcnt({issued-1-last})')
                if n == 7 and ck:
                    lb, lc = a.lab('wb'), a.lab('wc')
                    a(f's_cbranch_vccnz {lb}'); a(f'{lc}:')
                    g.tail.append([f'{lb}:'] + [ld(k) for k in range(i, issued)] + tick(g, 17) + ['s_waitcnt vmcnt(0)' if i < NP0 - 1 else f's_waitcnt vmcnt({issued-1-last})'] + ck +
                                  [f's_cbranch_vccz {lc}', f's_branch {lb}'])
                if n < 2 and st > 0: rd1(2 * st + 1, n)
                if n in (6, 7) and st < 5: rd1(2 * st + 2, n - 6)
                if issued < 8 and (n == 2 or (st == 0 and n < 2) or (st == 1 and n == 0)): a(ld(issued)); issued += 1
                if c0 <= n < 6: a(ck[n - c0])
        def fold(p, packed=False):
            x, y = ACC + 8 * p, ACC + 8 * p + 4
            return fold_add(x, x, packed) + fold_add(x + 2, y, packed) + [f'ds_write_b128 v{vRw}, {v(x,4)} offset:{p*4352}']
        nn = glue(g.next_n(sN1, sN, c.L) + [f's_add_u32 s{sTr}, s{sTw}, s{sTwin}'])
        twp = f'buffer_store_dwordx4 {v(PZ,4)}, v{vL16}, {WS}, s{sTp} offen sc1'
        q = [twp, None, None, f'buffer_store_dwordx2 {v(PZ,2)}, v{vL8}, {WS}, s{sMp} offen{LS}']
        for k, (st, n) in enumerate([(s_, n_) for p in range(4) for n_ in (2 * p, 2 * p + 1) for s_ in (6, 7)]):
            mm(st, n)
            a(nn.pop(0) if nn else 's_nop 1')
            if k >= 4 and k % 4 == 0: q += fold(k // 4 - 1)
            t = q.pop(0)
            if t: a(t)
        for t in q + g.stamp(2) + fold(3, True): a(t)
        a('s_waitcnt lgkmcnt(0)'); a('s_barrier')
        for t in (g.stamp(5) if c.fine else []): a(t)
        for sr in range(4):
            for y2 in range(2):
                a(f'ds_read2_b32 {v(RD+4*sr+2*y2,2)}, v{vRr} offset0:{sr*16+y2*136} offset1:{sr*16+y2*136+68}')
        a('s_waitcnt lgkmcnt(4)')
        for y in (0, 2): a(f'v_pk_add_f32 {v(SM+y,2)}, {v(RD+y,2)}, {v(RD+4+y,2)}')
        a('s_waitcnt lgkmcnt(2)')
        for y in (0, 2): a(f'v_pk_add_f32 {v(SM+y,2)}, {v(SM+y,2)}, {v(RD+8+y,2)}')
        a('s_waitcnt lgkmcnt(0)')
        for y in (0, 2): a(f'v_pk_add_f32 {v(SM+y,2)}, {v(SM+y,2)}, {v(RD+12+y,2)}')
        a(f'buffer_store_dwordx4 {v(SM,4)}, v{vL16}, {WS}, s{sTw} offen sc1')
        if c.HU:
            a(f's_add_u32 s{sT0}, s{sN}, 1'); a(f'v_mov_b32 v{vT0}, s{sT0}'); a(f's_and_b32 s{sT1}, s{sN}, 64'); a(f's_lshl_b32 s{sT1}, s{sT1}, 3')
            a(f'buffer_store_dword v{vT0}, v{vHu}, {WS}, s{sT1} offen{LS}')
        for t in g.stamp(3) + g.mini_put(2): a(t)
        a(f'v_add_u32 v{vRw}, s{sTog}, v{vRw}'); a(f'v_add_u32 v{vRr}, s{sTog}, v{vRr}'); a(f's_sub_u32 s{sTog}, 0, s{sTog}')
        for t in w_pre(WB, vRes) + [f'v_mov_b32 v{ACC+i}, 0' for i in range(32)]: a(t)
        for t in ring_calc(sN, sB, s14=sMs, add14=1, s14x=sMp) + [f's_add_u32 s{sMs}, s{sMs}, s{cM}', f's_add_u32 s{sMp}, s{sMp}, s{cM}'] + \
                 om_off(sN1) + tw_off(sN1): a(t)
        TW, RS_ = RD + 4, RD + 8
        assert NP0 <= 4
        lt = a.lab('tw')
        a(f'{lt}:')
        a(f'buffer_load_dwordx4 {v(TW,4)}, v{vL16}, {WS}, s{sTr} offen sc1')
        pk = c.WPK
        if pk:
            for i in range(NP0): a(ld(i))
        for t in tick(g, 18): a(t)
        a(f's_waitcnt vmcnt({NP0 if pk else 0})')
        for t in check4(vT0, TW): a(t)
        for y in (0, 2): a(f'v_pk_add_f32 {v(RS_+y,2)}, {v(SM+y,2)}, {v(TW+y,2)}')
        a(f's_cbranch_vccnz {lt}')
        for y in range(2): a(f'v_cvt_pk_bf16_f32 v{RS_+4+y}, v{RS_+2*y}, v{RS_+1+2*y}')
        a(f'buffer_store_dwordx2 {v(RS_+4,2)}, v{vL8}, {WS}, s{sMs} offen{LS}')
        for t in g.stamp(4): a(t)
        g.stamp_store(RD + 4, 5)
        for t in g.stamp(0): a(t)
        a(f's_mov_b32 s{sN}, s{sN1}')
        lx = a.lab('wmx')
        a(f's_cmp_ge_u32 s{sN}, {c.NEND}'); a(f's_cbranch_scc1 {lx}')
        if pk:
            a(f's_waitcnt vmcnt({1 + (2 if c.stamps else 0)})')
            for t in check4(vT0, GA): a(t)
            a(f's_cbranch_vccz {GO}')
        a(f's_branch {POLL}')
        a(f'{lx}:')
        g.endpgm()
        g.flush_tail()

def emit(g):
    r = g.c.roles
    if 'QK' in r: role_qk(g)
    if 'VM' in r: role_vm(g)
    if 'WM' in r: role_wm(g)
```

```python
import sys, struct
from asmlib import Asm
from layout import *

KNAME = 'interleave_layers__memory_aug_recurrent_mem_tr__glu_gated_geglu__prompt_kernel'

class Cfg:
    L = 12
    LM = 51
    LK = 21
    NEND = 128
    roles = {'AT', 'P', 'QK', 'VM', 'WM', 'WO', 'GU', 'DN'}
    stamps = False
    light = False
    fine = ()
    TIMEOUT = 1 << 20
    force_safe = False
    place = 35
    x = ()
    early_load = False
    first_pub = False
    perm = (0, 2, 1, 3, 4, 5, 6, 7)
    WPK = False
    PPW = 0
    PPQ = 0
    WCP = False
    KLB = 2
    QS2 = False
    QG = 0
    TWW = 0
    TWS = 0
    TWE = ()
    HU = 0
    WTP = 0
    VMB = 0
    QPP = 7.5
    fin_early = True
    halfstart = True
    knear = 1
    QP = 50
    med = True
    pull = 3
    hpull = False
    fnear = 1
    touch = 0
    HK = 5
    H0 = 8
    pnear = None
    FS = 256
    snake = True
    CALT = 8000
    local = False
    QT = 4
    DNNP = 40
    WONP = 36
    warm = True
    DLAG = (0, 1, 2, 3, 4, 5)
    DL = dict(GU=32, WO=1, DN=48)
    mini = False
    ring = 0
    ATE = 8
    probe = None
    PF = 3
    XS = 2
    NP = 4
    CK = 17
    B2 = 28
    WMP = 2
    TWP = 1
    TWD = 15
    T_KV = dict(ahead=True, block=True, KP=1, KT=9, KA=10, KM=23, KS=20, KD=(0.5, 20), KP2=19.5, dv=72, nv=lambda k: 2 if k == 4 else 1)
    T_GU = dict(ahead=True, pipe=True, block=True, KP=1, KT=1, KA=13, KM=11, KS=20, KD=(0.5, 16), KP2=16.5, dv=60, quota=lambda ks: 3 if ks < 15 else 2)
    T_WOP = dict(ahead=True, block=True, KP=1, KA=1, KM=14, KD=(1.5, 21), KP2=22, dv=60)
    T_WOF = dict(ahead=True, LW=True, KX=4, KP=0, K0=9, KA=12, KM=11.5, KL=13, KD=(0.5, 9), KP2=9.5, dv=52, quota=lambda ks: 4)
    T_DNP = dict(ahead=True, block=True, KP=1, KA=1, KM=14, KD=(1.5, 23), KP2=26, dv=60)
    T_DNF = dict(ahead=True, LW=True, KX=2, KP=5, mo=True, K0=13, KA=18, KM=17.5, KL=20, KD=(0.2, 13), KP2=13.5, dv=52)
    QM = 8
    QS = 9
    delay = {'DN', 'GU', 'WO'}

def fbits(x):
    return '0x%08x' % struct.unpack('<I', struct.pack('<f', x))[0]

def v(i, n=1): return f'v{i}' if n == 1 else f'v[{i}:{i+n-1}]'
def s(i, n=1): return f's{i}' if n == 1 else f's[{i}:{i+n-1}]'
def wreg(i, n, vbase):
    if i < 256: return f'a{i}' if n == 1 else f'a[{i}:{i+n-1}]'
    return v(vbase + i - 256, n)

WS = 's[4:7]'; WSC = 's[8:11]'; W1 = 's[12:15]'; W2 = 's[16:19]'; DBG = 's[20:23]'
P_X, P_MEM0, P_WQ, P_WK, P_WV, P_WO, P_WG, P_WU, P_WD, P_OUT, P_DBG, P_WS = 24, 26, 28, 30, 32, 34, 36, 38, 40, 42, 44, 46
sW, sIdx, sG = 48, 49, 50
sN, sNx, sBuf, sSrc, sM0, sNeed, sFl, sPFl = 52, 53, 54, 55, 56, 57, 58, 59
sT0, sT1, sT2, sT3 = 60, 61, 62, 63
sRdy, sWoff = 64, 65
sC = 66
sST = 80
sTO, sCode, sOth, sCnt, sRound, sXcc = 96, 97, 98, 99, 100, 101
sHelp = 3

SOFTC = 128 ** -0.5 * 1.4426950408889634

def p_order(n0, m1, h0=0, hk=0):
    l0 = [u for u in range(64) if not h0 <= u < h0 + hk]
    n0 = min(n0, len(l0)); rest = len(l0) - n0; m1 = max(m1, rest)
    o = l0[:n0]; k = 0
    for u in range(64):
        o.append(64 + u)
        while k < rest and (k + 1) * m1 <= (u + 1) * rest: o.append(l0[n0 + k]); k += 1
    assert sorted(o) == l0 + list(range(64, 128))
    return o

class Gen:
    def __init__(g, cfg):
        g.c = cfg; g.a = Asm(); g.left = {}; g.started = False; g.pending = False; g.tail = []

    def srd(g, base, ptr, size):
        a = g.a
        a(f's_mov_b32 s{base}, s{ptr}'); a(f's_and_b32 s{base+1}, s{ptr+1}, 0xffff')
        a(f's_mov_b32 s{base+2}, {size:#x}'); a(f's_mov_b32 s{base+3}, 0x20000')

    def seq_init(g, L):
        return [f's_mov_b32 s{sOth}, 64', f's_mov_b32 s{sCnt}, {(-L-1) & 0xffffffff:#x}']

    def next_n(g, dst, src, L):
        return [f's_add_u32 s{sT0}, s{src}, 1', f's_add_u32 s{sCnt}, s{sCnt}, 1',
                f's_cmp_lt_u32 s{sCnt}, {max(127-2*L, 0)}',
                f's_cselect_b32 s{dst}, s{sOth}, s{sT0}', f's_cselect_b32 s{sOth}, s{sT0}, s{sOth}']

    def fl_of(g, n, fl):
        assert FL_L == 64 << 12
        if g.c.NEND == 64: return [f's_mov_b32 s{fl}, 0']
        return [f's_and_b32 s{fl}, s{n}, 64', f's_lshl_b32 s{fl}, s{fl}, 12']

    def timeout(g, code, back, back_off=False):
        lab = g.a.lab('rt')
        g.tail.append([f'{lab}:'] + [] + [f's_add_u32 s{sTO}, s{sTO}, 1', f's_cmp_lt_u32 s{sTO}, {g.c.TIMEOUT}',
                       f's_cbranch_scc1 {back}', f's_mov_b32 s{sCode}, {code}', 's_branch L_fail'])
        return lab

    def flush_tail(g):
        for b in g.tail:
            for t in b: g.a(t)
        g.tail = []

    def spin_flags(g, vPoll, vOff, need, fl, code):
        a = g.a; l = a.lab('spin')
        a(f'{l}:')
        a(f'buffer_load_dword v{vPoll}, v{vOff}, {WS}, s{fl} offen sc1')
        a('s_waitcnt vmcnt(0)')
        a(f'v_cmp_lt_u32 vcc, s{need}, v{vPoll}')
        a('s_cmp_eq_u64 vcc, -1')
        a(f's_cbranch_scc0 {g.timeout(code, l)}')

    def lane0_off(g, dst, soff, nl=1, stride=0):
        a = g.a
        if stride: a(f'v_mul_u32_u24 v{dst}, {stride}, v0'); a(f'v_add_u32 v{dst}, s{soff}, v{dst}')
        else: a(f'v_mov_b32 v{dst}, s{soff}')
        a(f'v_mov_b32 v1, {OOB:#x}')
        a(f'v_cmp_gt_u32 vcc, {nl}, v0')
        a(f'v_cndmask_b32 v{dst}, v1, v{dst}, vcc')

    def zero_flags(g, vMy, layers=(0, 1)):
        a = g.a
        a('v_mov_b32 v1, 0')
        for l in layers:
            for h in range(2):
                a(f's_mov_b32 s{sT0}, {l*FL_L + h*0x2000:#x}')
                a(f'buffer_store_dword v1, v{vMy}, {WS}, s{sT0} offen sc1')

    def expand(g, d):
        g.a(f'v_and_b32 v1, 0xffffe000, v{d}'); g.a(f'v_add_u32 v{d}, v1, v{d}')

    def to_side(g, regs):
        regs = [(d, FSIDE[grp]) for d, grp in regs if grp in FSIDE]
        if not g.c.fnear or not regs: return
        g.get_par(sT2, 0 if g.c.fnear == 1 else 1); g.a(f's_xor_b32 s{sT3}, s{sT2}, 0x2000')
        for d, side in regs: g.a(f'v_add_u32 v{d}, s{sT3 if side else sT2}, v{d}')

    def arrive(g, chain=False, later=False, younger=0):
        if later and g.c.early_load: g.pending = True; return
        a = g.a; l = a.lab('arr')
        a(f's_waitcnt vmcnt({younger})'); a('s_barrier')
        a(f's_cmp_lg_u32 s{sW}, 0'); a(f's_cbranch_scc1 {l}')
        a(f's_mov_b32 s{sT0}, 0')
        g.lane0_off(2, sT0)
        a(f's_sub_u32 s{sT1}, s{sXcc}, s2'); a(f's_and_b32 s{sT1}, s{sT1}, 7')
        a(f's_lshl_b32 s{sT1}, s{sT1}, 2'); a(f's_add_u32 s{sT1}, s{sT1}, 128')
        a(f's_cmp_eq_u32 s{sRound}, 0'); a(f's_cselect_b32 s{sT1}, s{sT1}, 0')
        a('v_mov_b32 v3, 1')
        a(f'buffer_atomic_add v3, v2, {DBG}, s{sT1} offen sc1')
        a(f'{l}:')

    def start_look(g, vt):
        return [f'v_mov_b32 v{vt+8}, 0', f'buffer_load_dwordx4 {v(vt,4)}, v{vt+8}, {DBG}, 0 offen offset:128 sc1',
                f'buffer_load_dwordx4 {v(vt+4,4)}, v{vt+8}, {DBG}, 0 offen offset:144 sc1',
                f'buffer_load_dword v{vt+10}, v{vt+8}, {DBG}, 0 offen offset:160 sc1']

    def wait_start(g, vt, code, solo=True):
        a = g.a; l, l1, l2, lw, lw1 = a.lab('ws'), a.lab('ws1'), a.lab('ws2'), a.lab('wsw'), a.lab('wsw1')
        a(f'v_mov_b32 v{vt+8}, 0')
        a(f's_cmp_lg_u32 s{sRound}, 0'); a(f's_cbranch_scc1 {l1}')
        if solo: a(f's_cmp_eq_u32 s{sW}, 0'); a(f's_cbranch_scc1 {l}'); a('s_barrier')
        else: a(f's_branch {lw1}')
        a(f'{l}:')
        for t in g.start_look(vt): a(t)
        a(f'{lw1}:')
        a('s_waitcnt vmcnt(0)')
        a(f'v_readfirstlane_b32 s{sCode}, v{vt+10}')
        a(f'v_add3_u32 v{vt+9}, v{vt}, v{vt+1}, v{vt+2}'); a(f'v_add3_u32 v{vt+9}, v{vt+9}, v{vt+3}, v{vt+4}')
        a(f'v_add3_u32 v{vt+9}, v{vt+9}, v{vt+5}, v{vt+6}'); a(f'v_add_u32 v{vt+9}, v{vt+9}, v{vt+7}')
        a(f'v_cmp_le_u32 vcc, 0x100, v{vt+9}')
        a('s_cmp_eq_u64 vcc, -1')
        a(f's_cbranch_scc0 {g.timeout(code, l, True)}')
        if solo: a(f's_cmp_lg_u32 s{sW}, 0'); a(f's_cbranch_scc1 {lw}'); a('s_barrier'); a(f'{lw}:')
        a(f'v_or3_b32 v{vt+9}, v{vt}, v{vt+1}, v{vt+2}'); a(f'v_or3_b32 v{vt+9}, v{vt+9}, v{vt+3}, v{vt+4}')
        a(f'v_or3_b32 v{vt+9}, v{vt+9}, v{vt+5}, v{vt+6}'); a(f'v_or_b32 v{vt+9}, v{vt+9}, v{vt+7}')
        a(f'v_cmp_eq_u32 vcc, {0x7fffffff if g.c.force_safe else 0x100}, v{vt+9}')
        a('s_cmp_eq_u64 vcc, -1')
        a(f's_cbranch_scc1 {l2}'); a('s_branch L_restart')
        a(f'{l1}:')
        a(f'buffer_load_dword v{vt}, v{vt+8}, {DBG}, 0 offen sc1')
        a('s_waitcnt vmcnt(0)')
        a(f'v_cmp_le_u32 vcc, 0x100, v{vt}')
        a('s_cmp_eq_u64 vcc, -1')
        a(f's_cbranch_scc0 {g.timeout(code, l1, True)}')
        a(f'{l2}:')

    def loaded(g):
        a = g.a; l = a.lab('ldd')
        a(f's_cmp_lg_u32 s{sW}, 0'); a(f's_cbranch_scc1 {l}')
        a(f's_mov_b32 s{sT0}, 12')
        g.lane0_off(2, sT0)
        a('v_mov_b32 v3, 1')
        a(f'buffer_atomic_add v3, v2, {DBG}, 0 offen sc1')
        a(f'{l}:')

    def wait_loaded(g, role, count):
        count = g.c.DL[role]
        if role not in g.c.delay or not {'QK', 'VM', 'WM'} <= g.c.roles: return
        a = g.a; l, l2 = a.lab('wl'), a.lab('wl2')
        g.wait_start(8, 1); g.started = True
        a(f's_cmp_lg_u32 s{sW}, 0'); a(f's_cbranch_scc1 {l2}')
        a('v_mov_b32 v1, 12')
        a(f'{l}:')
        a(f'buffer_load_dword v2, v1, {DBG}, 0 offen sc1')
        a('s_waitcnt vmcnt(0)')
        a(f'v_cmp_le_u32 vcc, {count}, v2')
        a('s_cmp_eq_u64 vcc, -1')
        a(f's_cbranch_scc0 {g.timeout(19, l, True)}')
        a(f'{l2}:'); a('s_barrier')

    def get_par(g, dst, side):
        a = g.a; ln, ln2, ln3 = a.lab('near'), a.lab('near2'), a.lab('near3')
        a(f's_mov_b32 s{dst}, 0')
        a(f's_cmp_lg_u32 s{sRound}, 0'); a(f's_cbranch_scc1 {ln2}')
        a(f's_cmp_lg_u32 s{sCode}, 0'); a(f's_cbranch_scc1 {ln3}')
        a('v_mov_b32 v1, 160'); a(f'{ln}:')
        a(f'buffer_load_dword v1, v1, {DBG}, 0 offen sc1'); a('s_waitcnt vmcnt(0)')
        a(f'v_readfirstlane_b32 s{sCode}, v1'); a('v_mov_b32 v1, 160'); a(f's_cmp_eq_u32 s{sCode}, 0'); a(f's_cbranch_scc1 {g.timeout(24, ln, True)}')
        a(f'{ln3}:')
        a(f's_and_b32 s{dst}, s{sCode}, 2'); a(f's_lshl_b32 s{dst}, s{dst}, 12')
        a(f'{ln2}:')
        if side: a(f's_xor_b32 s{dst}, s{dst}, 0x2000')

    def half(g, r, par, t):
        return [f's_lshr_b32 s{t}, s{r}, 8', f's_xor_b32 s{t}, s{t}, s{par}', f's_and_b32 s{t}, s{t}, 0x2000', f's_add_u32 s{r}, s{r}, s{t}']

    def load_args(g):
        a = g.a
        a('s_load_dwordx8 s[24:31], s[0:1], 0'); a('s_load_dwordx4 s[32:35], s[0:1], 32')
        a('s_load_dwordx8 s[36:43], s[0:1], 64'); a('s_load_dwordx4 s[44:47], s[0:1], 96')
        a('v_mbcnt_lo_u32_b32 v0, -1, 0'); a('v_mbcnt_hi_u32_b32 v0, -1, v0')

    def help_first(g, role):
        if not g.c.HK: g.arrive(); return False
        a = g.a
        a(f's_mov_b32 s{sG}, s{sIdx}')
        for i0, n, p0 in helper_table(g.c.place)[role]:
            a(f's_add_i32 s{sT1}, s{sG}, {p0 - i0}'); a(f's_cmp_ge_u32 s{sG}, {i0}'); a(f's_cselect_b32 s{sIdx}, s{sT1}, s{sIdx}')
        g.my_flag(117, sIdx, 'PH', wave0=True); g.zero_flags(117, (0,))
        if not g.c.early_load: g.arrive()
        a(f's_mov_b32 s{sHelp}, {1 if role == "GU" else 2}'); a('s_branch L_P2')
        a(f'L_{role}2:')
        g.started = True
        return True

    def pull(g, sWave):
        a = g.a; n = g.c.pull
        a(f's_lshr_b32 s{sT2}, s{sWave}, 4'); a(f's_lshl_b32 s{sT2}, s{sT2}, 20'); a(f's_and_b32 s{sT0}, s{sWave}, 15'); a(f's_lshl_b32 s{sT0}, s{sT0}, 13')
        a(f's_add_u32 s{sT2}, s{sT2}, s{sT0}'); a('v_lshlrev_b32 v1, 7, v0')
        for i in range(8 - n, 8):
            a(f's_add_u32 s{sT0}, s{sT2}, {i * 0x20000:#x}')
            a(f'buffer_load_dword v5, v1, {W1}, s{sT0} offen')

    def kvm_head(g, dst, sHead):
        a = g.a
        a(f's_lshr_b32 s{sT0}, s{sHead}, 1'); a(f's_lshl_b32 s{sT0}, s{sT0}, 14'); a(f's_and_b32 s{dst}, s{sHead}, 1'); a(f's_lshl_b32 s{dst}, s{dst}, 12')
        a(f's_add_u32 s{dst}, s{dst}, s{sT0}'); a(f's_add_u32 s{dst}, s{dst}, {KVM:#x}')

    def kvm_side(g, dst):
        if g.c.knear: g.get_par(sT2, g.c.knear - 1); g.a(f's_add_u32 s{dst}, s{dst}, s{sT2}')

    def kvm_addr(g, dst, base):
        assert KVM % 0x400000 == 0
        return [f's_and_b32 s{dst}, s{sN}, 8', f's_lshl_b32 s{dst}, s{dst}, 10', f's_xor_b32 s{dst}, s{dst}, s{base}',
                f's_lshl_b32 s{sT1}, s{sN}, 18', f's_add_u32 s{dst}, s{dst}, s{sT1}']

    def start_once(g):
        if not g.started: g.wait_start(48, 1, False)
        g.started = False
        g.a('s_barrier')

    def load_weights(g, chunks, nslots, slot_bytes, sStage):
        a = g.a; n = len(chunks)
        def issue(c):
            ch = chunks[c]
            for t in ch.get('pre', []): a(t)
            for i, (srd, va, sb, imm) in enumerate(ch['dma']):
                a(f's_add_u32 m0, s{sStage}, {(c % nslots)*slot_bytes + i*1024}')
                a(f's_add_u32 s{sT3}, s{sb}, {imm:#x}')
                a(f'buffer_load_dwordx4 v{va}, {srd}, s{sT3} offen lds')
        for c in range(min(nslots, n)): issue(c)
        if g.pending: g.arrive(younger=sum(len(chunks[k]['dma']) for k in range(nslots))); g.pending = False
        for c in range(n):
            after = sum(len(chunks[k]['dma']) for k in range(c + 1, min(n, c + nslots)))
            assert after <= 63
            a(f's_waitcnt vmcnt({after})')
            for dest, vtr, imm in chunks[c]['reads']:
                a(f'ds_read_b64_tr_b16 {dest}, v{vtr} offset:{(c % nslots)*slot_bytes + imm}')
            a('s_waitcnt lgkmcnt(0)')
            for t in chunks[c].get('post', []): a(t)
            if c + nslots < n: issue(c + nslots)
            if c + nslots == n - 1:
                for t in g.start_look(48): a(t)
        for t in g.stamp(5): a(t)
        a('s_waitcnt lgkmcnt(0)')

    def endpgm(g):
        a = g.a
        if g.c.light:
            a(f's_memrealtime {s(sST,2)}'); a(f's_mov_b32 s{sN}, 0')
            g.stamp_store(8, 3, True)
        a('s_waitcnt vmcnt(0)'); a('s_endpgm')

    def mini_init(g, vA):
        if not g.c.mini: return
        a = g.a
        a(f's_lshl_b32 s{sT0}, s2, 12'); a(f's_add_u32 s{sT0}, s{sT0}, {STAMP:#x}')
        a(f's_cmp_eq_u32 s{sW}, 2'); a(f's_cselect_b32 s{sST+6}, s{sT0}, {OOB:#x}'); a(f'v_mov_b32 v{vA}, 0')
        a(f'v_mov_b32 v{vA+1}, s{sST+14}'); a(f'buffer_store_dword v{vA+1}, v{vA}, {WS}, s{sST+6} offen offset:28'); a('s_waitcnt vmcnt(0)')
    def mini_take(g): return [f's_memrealtime {s(sST,2)}'] if g.c.mini else []
    def mini_put(g, vA):
        if not g.c.mini: return []
        return [f's_lshl_b32 s{sST+7}, s{sN}, 5', f's_add_u32 s{sST+7}, s{sST+7}, s{sST+6}', f'v_mov_b32 v{vA+1}, s{sST}',
                f'buffer_store_dword v{vA+1}, v{vA}, {WS}, s{sST+7} offen']

    def mstamp(g, slot):
        if not (g.c.mini and 'ms' in g.c.x): return []
        return [f's_memrealtime {s(sST+8,2)}', f's_lshl_b32 s{sST+7}, s{sN}, 5', f's_add_u32 s{sST+7}, s{sST+7}, s{sST+6}', 's_waitcnt lgkmcnt(0)',
                f'v_mov_b32 v3, s{sST+8}', f'buffer_store_dword v3, v2, {WS}, s{sST+7} offen offset:{4*slot}']

    def light_start(g):
        if g.c.light: g.a(f's_memtime {s(sST+2,2)}'); g.a(f's_memrealtime {s(sST+4,2)}'); g.a('s_waitcnt lgkmcnt(0)')

    def stamp(g, i, real=True):
        if g.c.mini and i == 7: return [f's_memrealtime {s(sST+14,2)}']
        if g.c.light and i in (5, 7): return [f's_memrealtime {s(sST+2*i,2)}']
        if not g.c.stamps: return []
        if g.c.fine: return [f's_memtime {s(sST+2*i,2)}'] if i in g.c.fine else []
        return [f's_memrealtime {s(sST+2*i,2)}' if real else f's_memtime {s(sST+2*i,2)}']

    def stamp_store(g, vt, nst, force=False):
        if not g.c.stamps and not force: return
        a = g.a
        a('s_waitcnt lgkmcnt(0)')
        if g.c.fine:
            a(f's_memtime {s(sST+14,2)}'); a(f's_memrealtime {s(sST,2)}'); a('s_waitcnt lgkmcnt(0)')
            for i in range(8): a(f'v_mov_b32 v{vt+i}, s{sST+2*i}')
            a(f's_lshl_b32 s{sT0}, s2, 2'); a(f's_add_u32 s{sT0}, s{sT0}, s{sW}'); a(f's_lshl_b32 s{sT0}, s{sT0}, 12')
            a(f's_lshl_b32 s{sT1}, s{sN}, 5'); a(f's_add_u32 s{sT0}, s{sT0}, s{sT1}'); a(f's_add_u32 s{sT0}, s{sT0}, {0xFC00000:#x}')
        else:
            a(f's_memtime {s(sST+12,2)}'); a('s_waitcnt lgkmcnt(0)')
            for i in range(8): a(f'v_mov_b32 v{vt+i}, s{sST+2*(i if i >= 5 else min(i,nst-1))}')
            a(f's_lshl_b32 s{sT0}, s2, 12'); a(f's_lshl_b32 s{sT1}, s{sN}, 5'); a(f's_add_u32 s{sT0}, s{sT0}, s{sT1}')
            a(f's_add_u32 s{sT0}, s{sT0}, {STAMP + (0x100000 if force else 0):#x}')
            a(f's_cmp_eq_u32 s{sW}, 0'); a(f's_cselect_b32 s{sT0}, s{sT0}, {OOB:#x}')
        a(f'v_mov_b32 v{vt+8}, 0')
        a(f'buffer_store_dwordx4 {v(vt,4)}, v{vt+8}, {WS}, s{sT0} offen')
        a(f'buffer_store_dwordx4 {v(vt+4,4)}, v{vt+8}, {WS}, s{sT0} offen offset:16')
        a('s_nop 1')

    def v_j(g, d): g.a(f'v_and_b32 v{d}, 15, v0')
    def v_g(g, d): g.a(f'v_lshrrev_b32 v{d}, 4, v0')

    def tr_addr(g, d, rowpitch, gmul, colmul, sStage, chain=None):
        a = g.a
        a('v_lshrrev_b32 v1, 4, v0'); a('v_bfe_u32 v2, v0, 2, 2'); a('v_and_b32 v3, 3, v0')
        if chain is None:
            a(f'v_mul_u32_u24 v1, {gmul}, v1'); a('v_add_u32 v1, v1, v2')
        else:
            m_g1, m_g0, m_r1 = chain
            a('v_lshrrev_b32 v4, 1, v1'); a(f'v_mul_u32_u24 v4, {m_g1}, v4')
            a('v_and_b32 v1, 1, v1'); a(f'v_mul_u32_u24 v1, {m_g0}, v1'); a('v_add_u32 v1, v1, v4')
            a('v_lshrrev_b32 v4, 1, v2'); a(f'v_mul_u32_u24 v4, {m_r1}, v4'); a('v_add_u32 v1, v1, v4')
            a('v_and_b32 v2, 1, v2'); a('v_add_u32 v1, v1, v2')
        a(f'v_mul_u32_u24 v1, {rowpitch}, v1'); a(f'v_mul_u32_u24 v3, {colmul}, v3')
        a(f'v_add3_u32 v{d}, v1, v3, s{sStage}')

    def dma_addr64(g, d, pitch):
        a = g.a
        a('v_lshrrev_b32 v1, 2, v0'); a(f'v_mul_u32_u24 v1, {pitch}, v1')
        a('v_and_b32 v2, 3, v0'); a('v_lshlrev_b32 v2, 4, v2'); a(f'v_add_u32 v{d}, v1, v2')

    def colsum(g, ks, NT, vbase, vCS, vOnes):
        a = g.a
        if ks == 0:
            for i in range(4): a(f'v_mov_b32 v{vOnes+i}, 0x3f803f80')
        for n in range(NT):
            w = wreg((ks*NT+n)*4, 4, vbase); d = v(vCS+4*n, 4); c = '0' if ks == 0 else d
            a(f'v_mfma_f32_16x16x32_bf16 {d}, {w}, {v(vOnes,4)}, {c}')

    def stat_addr(g, d, vori):
        a = g.a
        if not vori:
            a('v_and_b32 v1, 31, v0'); a('v_lshrrev_b32 v2, 5, v0')
        else:
            a('v_bfe_u32 v1, v0, 2, 1'); a('v_lshlrev_b32 v1, 4, v1')
            a('v_lshrrev_b32 v2, 4, v0'); a('v_lshlrev_b32 v2, 2, v2'); a('v_add_u32 v1, v1, v2')
            a('v_and_b32 v2, 3, v0'); a('v_add_u32 v1, v1, v2'); a('v_bfe_u32 v2, v0, 3, 1')
        a('v_lshlrev_b32 v1, 4, v1'); a('v_lshlrev_b32 v2, 10, v2'); a(f'v_add_u32 v{d}, v1, v2')

    def stat_loads(g, S, vAddr, base):
        return [[f's_lshl_b32 s{sT2}, s{sN}, 11', f's_add_u32 s{sT2}, s{sT2}, {base:#x}'] +
                [f'buffer_load_dwordx4 {v(S+4*i,4)}, v{vAddr}, {WS}, s{sT2} offen offset:{512*i} sc1 ; @s' for i in range(2)]]

    def stat_math(g, S, R, vori):
        o = [f'v_add_f32 v{S}, v{S}, v{S+2}', f'v_add_f32 v{S+1}, v{S+1}, v{S+3}',
             f'v_add_f32 v{S+4}, v{S+4}, v{S+6}', f'v_add_f32 v{S+5}, v{S+5}, v{S+7}',
             f'v_add_f32 v{S}, v{S}, v{S+4}', f'v_add_f32 v{S+1}, v{S+1}, v{S+5}']
        if not vori:
            o += [f'v_permlane32_swap_b32 v{S}, v{S+1}', f'v_add_f32 v{S}, v{S}, v{S+1}', f'v_mov_b32 v{S+1}, v{S}',
                  f'v_permlane32_swap_b32 v{S}, v{S+1}']
        else:
            o += [f'v_add_f32_dpp v{S+2}, v{S}, v{S} row_ror:8 row_mask:0xf bank_mask:0xf',
                  f'v_add_f32_dpp v{S+3}, v{S+1}, v{S+1} row_ror:8 row_mask:0xf bank_mask:0xf',
                  f'v_mov_b32 v{S}, v{S+2}', f'v_mov_b32 v{S+1}, v{S+3}']
        k = fbits(1.0/1024)
        o += [f'v_mul_f32 v{S}, {k}, v{S}', f'v_mul_f32 v{S+1}, {k}, v{S+1}',
              f'v_fma_f32 v{S+1}, -v{S}, v{S}, v{S+1}', f'v_max_f32 v{S+1}, 0, v{S+1}',
              f'v_cvt_pk_bf16_f32 v{S+2}, v{S}, v{S+1}',
              f'v_lshlrev_b32 v{S}, 16, v{S+2}', f'v_and_b32 v{S+1}, 0xffff0000, v{S+2}',
              f'v_add_f32 v{S+1}, {fbits(1e-5)}, v{S+1}',
              f'v_cvt_pk_bf16_f32 v{S+1}, v{S+1}, v{S+1}', f'v_lshlrev_b32 v{S+1}, 16, v{S+1}',
              f'v_sqrt_f32 v{S+1}, v{S+1}',
              f'v_cvt_pk_bf16_f32 v{S+1}, v{S+1}, v{S+1}', f'v_lshlrev_b32 v{S+1}, 16, v{S+1}',
              f'v_rcp_f32 v{R}, v{S+1}',
              f'v_sub_f32 v{R+2}, 0, v{S}',
              f'v_mov_b32 v{R+1}, v{R}', f'v_mov_b32 v{R+3}, v{R+2}']
        if not vori:
            o += [f'v_permlane16_swap_b32 v{R}, v{R+1}', f'v_permlane16_swap_b32 v{R+2}, v{R+3}']
        else:
            o += [f'v_mov_b32 v{S}, v{R}', f'v_mov_b32 v{S+1}, v{R+2}',
                  f'v_mov_b32_dpp v{R}, v{S} row_ror:4 row_mask:0xf bank_mask:0xa',
                  f'v_mov_b32_dpp v{R+1}, v{S} row_ror:4 row_mask:0xf bank_mask:0x5',
                  f'v_mov_b32_dpp v{R+2}, v{S+1} row_ror:4 row_mask:0xf bank_mask:0xa',
                  f'v_mov_b32_dpp v{R+3}, v{S+1} row_ror:4 row_mask:0xf bank_mask:0x5']
        return o

    def row_stats(g, X, D, one):
        o = []
        for i in range(len(X[0])):
            for t in range(2):
                c0 = '0' if i == 0 else f'v{D+t}'; c1 = '0' if i == 0 else f'v{D+2+t}'
                o.append(f'v_dot2_f32_bf16 v{D+t}, v{X[t][i]}, {one}, {c0}')
                o.append(f'v_dot2_f32_bf16 v{D+2+t}, v{X[t][i]}, v{X[t][i]}, {c1}')
        return ['\n'.join(o), '@brk', f'v_permlane32_swap_b32 v{D}, v{D+1}', f'v_permlane32_swap_b32 v{D+2}, v{D+3}',
                    f'v_add_f32 v{D}, v{D}, v{D+1}', f'v_add_f32 v{D+2}, v{D+2}, v{D+3}', '@brk',
                    f'v_permlane16_swap_b32 v{D}, v{D+2}', f'v_add_f32 v{D}, v{D}, v{D+2}']

    def stat_store_addr(g, d, sSlice):
        a = g.a
        a('v_lshrrev_b32 v1, 5, v0'); a('v_lshlrev_b32 v1, 8, v1')
        a('v_and_b32 v2, 15, v0'); a('v_lshlrev_b32 v2, 4, v2'); a('v_add_u32 v1, v1, v2')
        a('v_bfe_u32 v2, v0, 4, 1'); a('v_lshlrev_b32 v2, 2, v2')
        a(f's_lshr_b32 s{sT0}, s{sSlice}, 1'); a(f's_lshl_b32 s{sT0}, s{sT0}, 9')
        a(f's_and_b32 s{sT1}, s{sSlice}, 1'); a(f's_lshl_b32 s{sT1}, s{sT1}, 3'); a(f's_add_u32 s{sT0}, s{sT0}, s{sT1}')
        a(f'v_add3_u32 v{d}, v1, v2, s{sT0}')

    def half_tile_addr(g, d, sTile):
        a = g.a
        a(f's_lshr_b32 s{sT0}, s{sTile}, 1'); a(f's_lshl_b32 s{sT0}, s{sT0}, 11')
        a(f's_and_b32 s{sT1}, s{sTile}, 1'); a(f's_lshl_b32 s{sT1}, s{sT1}, 9'); a(f's_add_u32 s{sT0}, s{sT0}, s{sT1}')
        a('v_bfe_u32 v1, v0, 4, 1'); a('v_lshlrev_b32 v1, 10, v1')
        a('v_lshrrev_b32 v2, 5, v0'); a('v_lshlrev_b32 v2, 8, v2'); a('v_add_u32 v1, v1, v2')
        a('v_and_b32 v2, 15, v0'); a('v_lshlrev_b32 v2, 4, v2'); a(f'v_add3_u32 v{d}, v1, v2, s{sT0}')

    def coop_load(g, NK, groups, pitch, vtr, reads, cs=None, hoist=None):
        a = g.a; ng = len(groups); sz = ng * 4096; per = 65536 // sz; ns = min(163840 // sz, 3 * per, 62 // ng + 1); vA = vtr + 3
        a('v_lshrrev_b32 v1, 3, v0'); a(f's_lshl_b32 s{sT0}, s{sW}, 3'); a(f'v_add_u32 v1, s{sT0}, v1'); a(f'v_mul_u32_u24 v1, {pitch}, v1')
        a('v_and_b32 v2, 7, v0'); a('v_lshlrev_b32 v2, 4, v2'); a(f'v_add_u32 v{vA}, v1, v2')
        for i in (1, 2): a(f'v_add_u32 v{vtr+i}, {i*per*sz}, v{vtr}')
        a(f's_lshl_b32 s{sT2}, s{sW}, 10')
        def issue(ks):
            for i, (srd, sb) in enumerate(groups):
                a(f's_add_u32 m0, s{sT2}, {(ks % ns)*sz + i*4096}')
                a(f's_add_u32 s{sT3}, s{sb}, {ks*32*pitch:#x}')
                a(f'buffer_load_dwordx4 v{vA}, {srd}, s{sT3} offen lds')
        for ks in range(min(ns, NK)):
            issue(ks)
            if ks == 3 and g.pending: g.arrive(younger=4 * ng); g.pending = False
        issued = min(ns, NK)
        if hoist: hoist(); a(f's_lshl_b32 s{sT2}, s{sW}, 10')
        for ks in range(NK):
            a(f's_waitcnt vmcnt({(issued - 1 - ks) * ng}) lgkmcnt(0)'); a('s_barrier')
            if ks and issued < NK: issue(issued); issued += 1
            if ks == NK - 8 and not g.started:
                for t in g.start_look(48): a(t)
            sl = ks % ns
            for dest, imm in reads(ks): a(f'ds_read_b64_tr_b16 {dest}, v{vtr + sl // per} offset:{(sl % per)*sz + imm}')
            if cs and ks: g.colsum(ks - 1, *cs)
        for t in g.stamp(5): a(t)
        a('s_waitcnt lgkmcnt(0)')
        if cs: g.colsum(NK - 1, *cs)

    def poll_addr(g, d, sFirst, count, group):
        a = g.a
        if group == 'XA':
            a('v_lshrrev_b32 v1, 3, v0'); a(f'v_mul_u32_u24 v1, {max(g.c.FS,32)}, v1'); a('v_and_b32 v2, 7, v0'); a('v_lshlrev_b32 v2, 2, v2')
            a('v_add_u32 v1, v1, v2'); a(f'v_add_u32 v{d}, {FOFF[group]}, v1'); return
        a(f'v_min_u32 v1, {count-1}, v0'); a(f'v_add_u32 v1, s{sFirst}, v1')
        a(f'v_mul_u32_u24 v1, {g.c.FS}, v1'); a(f'v_add_u32 v{d}, {FOFF[group]}, v1'); g.expand(d)

    def my_flag(g, d, sIndex, group, nl=1, wave0=False):
        a = g.a
        fs = 4 if group == 'XA' else g.c.FS
        if group == 'XA':
            a(f's_lshr_b32 s{sT0}, s{sIndex}, 3'); a(f's_mul_i32 s{sT0}, s{sT0}, {max(g.c.FS,32)}'); a(f's_and_b32 s{sT1}, s{sIndex}, 7')
            a(f's_lshl_b32 s{sT1}, s{sT1}, 2'); a(f's_add_u32 s{sT0}, s{sT0}, s{sT1}')
        else: a(f's_mul_i32 s{sT0}, s{sIndex}, {fs}')
        a(f's_add_u32 s{sT0}, s{sT0}, {FOFF[group]}'); a(f's_and_b32 s{sT1}, s{sT0}, 0xffffe000'); a(f's_add_u32 s{sT0}, s{sT0}, s{sT1}')
        g.lane0_off(d, sT0, nl, fs if nl > 1 else 0)
        if wave0: g.wave0_off(d, 1)

    def resolve_vm(g, lo, hi):
        L = g.a.L
        isvm = lambda t: t.startswith('buffer_') and '@alt' not in t
        for k in range(lo, hi):
            if not L[k].startswith('@vm '): continue
            p = L[k].split(); tag = '@' + p[1]; n = 0; j = k
            while True:
                j = j - 1 if j > lo else hi - 1
                assert j != k, 'tag not found ' + tag
                if isvm(L[j]):
                    if tag in L[j].split(';')[-1].split(): break
                    n += 1
            assert n <= 63
            L[k] = f's_waitcnt vmcnt({n})' + (' ' + ' '.join(p[2:]) if len(p) > 2 else '')

    def resolve_lg(g, lo, hi, q):
        L = g.a.L; q = list(q)
        for k in range(lo, hi):
            t = L[k]
            if t.startswith('ds_'):
                q.append(t.split('#')[1].strip() if '#' in t else '')
                L[k] = t.split('#')[0].rstrip(' ;')
            elif t.startswith('@lg '):
                tag = t.split()[1]
                if tag not in q: L[k] = ''; continue
                p = len(q) - 1 - q[::-1].index(tag)
                q = q[p + 1:]
                L[k] = f's_waitcnt lgkmcnt({min(len(q), 15)})'
            elif 'lgkmcnt(0)' in t: q = []

    def wave0_off(g, d, w=0):
        a = g.a
        a(f's_cmp_eq_u32 s{sW}, {w}'); a(f's_cselect_b32 s{sT0}, 0, {OOB:#x}'); a(f'v_or_b32 v{d}, s{sT0}, v{d}')

    def spin0(g, vPoll, vOff, n, fl, code, also=()):
        l, l2 = g.a.lab('sp'), g.a.lab('spd')
        return [f's_cmp_lg_u32 s{sW}, 0', f's_cbranch_scc1 {l2}', f'{l}:'] + list(also) + [
                f'buffer_load_dword v{vPoll}, v{vOff}, {WS}, s{fl} offen sc1', 's_waitcnt vmcnt(0)',
                f'v_cmp_lt_u32 vcc, s{n}, v{vPoll}', 's_cmp_eq_u64 vcc, -1', f's_cbranch_scc0 {g.timeout(code, l)}',
                f'{l2}:', 's_barrier']

    def ws_loop(g, name, NK, NT, wA, vbase, R, seq, src_base, src_stride, sSrcC, code, T, PL,
                D, so, off, top=(), post=(), pub_shift=0, late=None, pipe=False, mneed=None, local=False, gate=None, leave=None, touch=()):
        a = g.a; c = g.c; PF = T.get('PF', c.PF)
        ahead, KP, KM, KD = T['ahead'], T.get('KP', 0), T['KM'], T['KD']; lock = not ahead
        BUF = NK * 2048; nd = NK // 2
        TOP, SLOW, EXIT = (f'L{name}_{x}' for x in ('top', 'slow', 'exit'))
        sNxx, sW0, sFl2, sPL = 24, 25, 26, 27
        P0, P1 = R['poll'], R['poll'] + 1
        n4 = NK % (PF + 1)
        sets = list(range(PF + 2)) * n4 + list(range(PF + 1)) * ((NK - (PF + 2) * n4) // (PF + 1))
        assert len(sets) == NK and R['fr'] + 8 * (max(sets) + 1) <= R['res']
        fr = lambda ks, t: v(R['fr'] + (sets[ks % NK] * 2 + t) * 4, 4)
        def rd(ks, t):
            off_ = (ks % NK) * 2048 + t * 1024
            return f'ds_read_b128 {fr(ks,t)}, v{R["rd"] + (off_ >> 16)} offset:{off_ & 0xffff} # f{ks}'
        def prep(slow=False):
            o = [f's_mul_i32 s{sSrc}, s{sNx}, {src_stride:#x}']
            o.append(f's_add_u32 s{sSrc}, s{sSrc}, s{sSrcC}' if sSrcC is not None else f's_add_u32 s{sSrc}, s{sSrc}, {src_base:#x}')
            o += [f's_add_u32 s{sM0}, s{sW0}, s{sBuf}' if slow else f's_sub_u32 s{sM0}, s{sWoff}, s{sBuf}']
            return o
        gs = min(nd // 4, 4); ng = 4; rem = nd - gs * ng; sQ, sSo = 28, 32
        inbuf = PL is None
        if inbuf:
            assert ahead and not late and rem > 0 and T['KP2'] > KM >= nd // 2 + 1
            PL = (nd - 1) * 1024; vPL0 = R['pl'] + 1; sPL0 = 41
        def dma(srd):
            o = []
            for q, cnt in ([(0, gs), (1, gs), (2, gs), (3, gs), (-1, rem)] if inbuf else [(0, gs), (-1, rem), (1, gs), (2, gs), (3, gs)]):
                for i in range(cnt):
                    grp = []
                    if i == 0:
                        x = f's{sQ+q}' if q >= 0 else f'{gs*ng*1024}'
                        grp = [f's_add_u32 m0, s{sM0}, {x}', f's_add_u32 s{sSo}, s{sSrc}, {x}']
                    grp.append(f'buffer_load_dwordx4 v{R["dma"]}, {srd}, s{sSo} offen offset:{i*1024} sc1 lds ; @e')
                    o.append(grp)
            return o
        rdp = f'ds_read_b32 v{P0}, v{R["pl"]} # p0'
        def poll_main(n, tag):
            f = [f's_cmp_lt_u32 s{n}, 64', f's_cselect_b32 s{sFl}, 0, {FL_L:#x}'] if c.NEND > 64 else g.fl_of(n, sFl)
            return [f's_mov_b32 m0, s{sPL}'] + f + [f'buffer_load_dword v{R["poff"]}, {WS}, s{sFl} offen sc1 lds ; {tag}']
        ev_main = [f'v_cmp_lt_u32 vcc, s{sNx}, v{P0}', 's_cmp_eq_u64 vcc, -1', f's_cselect_b32 s10, {WS_BYTES:#x}, 0']
        pub = f'buffer_store_dword v{R["fval"]}, v{R["my"]}, {WS}, s{sPFl} offen sc1'
        def pubs():
            if not local: return [pub] + list(touch)
            l1, l2 = a.lab('wb'), a.lab('wbc')
            g.tail.append([f'{l1}:', 'buffer_wbl2 sc1', 's_waitcnt vmcnt(0)', pub, f's_branch {l2}'])
            return [f's_cmp_lg_u32 s{sRound}, 0', f's_cbranch_scc1 {l1}\n' + pub.replace(' sc1', '') + f'\n{l2}:']
        if pub_shift == 0: fv = [f's_add_u32 s{sT0}, s{sN}, 1', f's_mov_b32 s{sPFl}, s{sFl2}', f'v_mov_b32 v{R["fval"]}, s{sT0}']
        else: fv = [f's_add_u32 s{sT0}, s{sN}, 65', f'v_mov_b32 v{R["fval"]}, s{sT0}', f's_cmp_lt_u32 s{sN}, 64',
                    f's_mov_b32 s{sPFl}, {OOB:#x}', f's_cselect_b32 s{sPFl}, {FL_L:#x}, s{sPFl}']
        if 'KX' in T:
            D = ['@vm st', 's_barrier', '@pub'] + [t.replace('@e', '@st') for t in D]; mneed += 3
        xpub = '@pub' in D
        if xpub:
            sFvN, sPFlN = 44, 45
            shift = [f'v_mov_b32 v{R["fval"]}, s{sFvN}', f's_mov_b32 s{sPFl}, s{sPFlN}']
            if pub_shift == 0: fv = shift + [f's_add_u32 s{sFvN}, s{sN}, 1', f's_mov_b32 s{sPFlN}, s{sFl2}']
            else: fv = shift + [f's_add_u32 s{sFvN}, s{sN}, 65', f's_cmp_lt_u32 s{sN}, 64', f's_mov_b32 s{sPFlN}, {OOB:#x}',
                                f's_cselect_b32 s{sPFlN}, {FL_L:#x}, s{sPFlN}']
            D = [pub if t == '@pub' else t for t in D]
            a(f's_mov_b32 s{sFvN}, 0'); a(f's_mov_b32 s{sPFlN}, {OOB:#x}')
        if late and T.get('LC'): off = off + ['s_mov_b32 s41, 0x2000']
        seq_init, next_n = seq
        if sSrcC is not None: a(f's_add_u32 s{sSrcC}, s{sSrcC}, {src_base:#x}')
        a(f's_mul_i32 s{sW0}, s{sW}, {nd*1024}')
        a(f'v_add_u32 v{R["dma"]}, s{sW0}, v{R["l16"]}')
        a(f's_add_u32 s{sWoff}, s{sW0}, {BUF}')
        for q in range(4):
            if 'norot' in c.x: a(f's_mov_b32 s{sQ+q}, {q*gs*1024}'); continue
            a(f's_add_u32 s{sQ+q}, s{sIdx}, {q}'); a(f's_and_b32 s{sQ+q}, s{sQ+q}, 3'); a(f's_mul_i32 s{sQ+q}, s{sQ+q}, {gs*1024}')
        a(f's_lshl_b32 s{sPL}, s{sW}, 9'); a(f's_add_u32 s{sPL}, s{sPL}, {PL}')
        a(f'v_lshrrev_b32 v{R["pl"]}, 2, v{R["l16"]}'); a(f'v_add_u32 v{R["pl"]}, {PL}, v{R["pl"]}')
        if inbuf:
            a(f's_cmp_eq_u32 s{sW}, 0'); a(f's_mov_b32 s{sPL0}, {PL-1024}'); a(f's_cselect_b32 s{sPL0}, {PL}, s{sPL0}'); a(f'v_mov_b32 v{vPL0}, v{R["pl"]}')
            a(f's_add_u32 s{sPL}, s{sPL0}, {BUF}'); a(f'v_add_u32 v{R["pl"]}, {BUF}, v{vPL0}')
        g.wave0_off(R['poff'])
        if lock:
            a(f'v_mov_b32 v{P0}, 0'); a(f'ds_write_b32 v{R["pl"]}, v{P0}'); a(f'ds_write_b32 v{R["pl"]}, v{P0} offset:2048'); a('s_waitcnt lgkmcnt(0)')
        if late: g.wave0_off(late['poff'])
        a(f's_mov_b32 s{sNx}, 0'); a(f's_mov_b32 s{sBuf}, 0'); a(f's_mov_b32 s{sN}, 0')
        a(f'v_mov_b32 v{R["rd"]}, v{R["l16"]}')
        a(f's_mov_b32 s{sPFl}, {OOB:#x}'); a(f'v_mov_b32 v{R["fval"]}, 0')
        for t in seq_init + off: a(t)
        if late and not T.get('LC'): g.srd(12, P_WS, WS_BYTES); a('s_mov_b32 s41, 0')
        if ahead:
            for t in next_n(sNxx, sNx): a(t)
        if c.probe:
            for i_ in range(8): a(f's_mov_b32 s{33+i_}, 0')
        g.mini_init(2)
        g.light_start()
        a(f's_branch {SLOW}')
        a('.p2align 6')
        lo = len(a.L)
        a(f'{TOP}:')
        free = []
        chain = []
        head = [f's_mov_b32 s{sN}, s{sNx}'] + g.stamp(0) + g.mini_take()
        sRn = 51
        ev2 = [f'v_cmp_lt_u32 vcc, s{sNxx}, v{P0}', 's_cmp_eq_u64 vcc, -1', f's_cselect_b32 s{sRn}, {WS_BYTES:#x}, 0']
        blk = T.get('block'); hs = c.halfstart and ahead and not late
        if ahead: head += [f's_mov_b32 s{sNx}, s{sNxx}', f's_mov_b32 s10, s{sRn}'] + prep()
        if BUF > 65536: head.append(f'v_add_u32 v{R["rd"]+1}, 0x10000, v{R["rd"]}')
        if gate: head += gate
        free.append((-2, head, None, 'head'))
        assert inbuf or PL % 4096 == 0
        if lock:
            seqf = next_n(sNx, sN) + [f's_cmp_lg_u32 s{sT0}, s{sNx}', f's_cselect_b32 s10, {WS_BYTES:#x}, 0'] + g.fl_of(sNx, sFl) + \
                   [f's_lshr_b32 s{sT1}, s{sFl}, 7', f's_add_u32 m0, s{sPL}, s{sT1}', f'v_add_u32 v{P1}, s{sT1}, v{R["pl"]}']
            lpoll = f'buffer_load_dword v{R["poff"]}, {WS}, s{sFl} offen sc1 lds'
            free.append((-1, seqf, None, 'fl'))
            chain.append((-1, [lpoll], 'fl', None))
            free.append((T['KB'] - 2, g.fl_of(sN, sFl2) + prep(), None, 'prep'))
            lb, lc, ll, l0 = a.lab('blk'), a.lab('blkc'), a.lab('blkl'), a.lab('blk0')
            chain.append((T['KB'] - 1.5, [f'ds_read_b32 v{P0}, v{P1} # p'], 'fl', None))
            chain.append((T['KB'], ['@lg p'] + ev_main[:2] + [f's_cbranch_scc0 {lb}\n{lc}:'] + g.stamp(1), 'prep', None))
            g.tail.append([f'{lb}:', 's_cmp_eq_u32 s10, 0', f's_cbranch_scc1 {lc}', f'{ll}:', f's_cmp_lg_u32 s{sW}, 0', f's_cbranch_scc1 {l0}',
                           lpoll, f'{l0}:', f'ds_read_b32 v{P0}, v{P1}', 's_waitcnt lgkmcnt(0)'] + ev_main[:2] +
                          [f's_cbranch_scc1 {lc}', f's_branch {g.timeout(code, ll)}'])
            if 'KP2' in T:
                chain.append((T['KP2'], [f's_lshr_b32 s{sT1}, s{sFl2}, 7', f's_add_u32 m0, s{sPL}, s{sT1}', 's_nop 0',
                                         lpoll.replace(f's{sFl} ', f's{sFl2} ')], None, None))
            assert KD[0] > T['KB'] and not late and not pipe
        else:
            tog = [f's_xor_b32 s{sPL}, s{sPL}, 2048', f'v_xor_b32 v{R["pl"]}, 2048, v{R["pl"]}']
            seqf = g.fl_of(sN, sFl2) + tog
            if inbuf:
                tog = [f's_add_u32 s{sPL}, s{sPL}, 256', f'v_add_u32 v{R["pl"]}, 256, v{R["pl"]}']
                seqf = g.fl_of(sN, sFl2) + [f's_add_u32 s{sPL}, s{sPL0}, s{sBuf}', f'v_add_u32 v{R["pl"]}, s{sBuf}, v{vPL0}']
            free.append((KP - 1.5, seqf, None, 'fl'))
        afterM = False; prev = None; lastst = None
        for i, t in enumerate(D):
            kk = T.get('K0', 0) + (i * (T['KA'] - T.get('K0', 0))) / len(D)
            if 'KX' in T and i < 3: kk = T['KX']
            if t == '@M': afterM = True; continue
            if afterM: kk = KM + 0.005
            if t.startswith('buffer_') and t != pub: chain.append((kk, [t], prev, f'd{i}')); lastst = f'd{i}'
            else: free.append((kk, [t], 'M' if afterM else None, f'd{i}'))
            prev = f'd{i}'
        for grp in top: chain.append((T.get('KT', 0), grp, 'head', 'top'))
        le = late and T.get('LE')
        sLn = 41
        lc_ = late and T.get('LC')
        if lc_:
            le = True
            chain.append((T['KP2'] + 0.001, [f's_add_u32 m0, s{sPL}, 256', 's_nop 0', f'buffer_load_dword v{late["poff"]}, {WS}, s{sFl2} offen sc1 lds ; @e'], 'fl', None))
            ll = late['loads'](WS, '@late', sLn)
            for i, grp in enumerate(ll): chain.append((-1, grp, None, 'll' if i == len(ll) - 1 else None))
            free = [(k, grp, 'll' if grp == ['@vm late'] else n_, g_) for k, grp, n_, g_ in free]
            so = so + [f's_mov_b32 s{sLn}, s{sN}']
        elif le:
            f_ = g.fl_of(sNx, sT3)
            chain.append((T['KP2'] + 0.001, f_[:-1] + [f's_add_u32 m0, s{sPL}, 256', f_[-1], f'buffer_load_dword v{late["poff"]}, {WS}, s{sT3} offen sc1 lds ; @e'], 'fl', None))
            head.append(f's_mov_b32 s14, s{sLn}')
        elif late: chain.append((KP, [f's_add_u32 m0, s{sPL}, 256', 's_nop 0', f'buffer_load_dword v{late["poff"]}, {WS}, s{sFl2} offen sc1 lds ; @m'], 'fl', None))
        m = (['@lg a'] if mneed is not None else []) + ((['@vm s', '@mbar'] if hs else ['s_nop 0']) if pipe and ahead and not late else ['@mbar'] if le else ['@vm m', '@mbar'])
        if late and not le: m.append(f'ds_read_b32 v{P1}, v{R["pl"]} offset:256 # p')
        assert not (hs and pipe) or T['KT'] < KM
        chain.append((KM, m + ([] if lock else g.stamp(1)), None if mneed is None else f'd{mneed}', 'M'))
        if not pipe: chain.append((KM, pubs(), None, 'pub'))
        KE = KM + 0.01
        if late:
            if not le: chain.append((KE, ['@gap', '@lg p', f'v_cmp_lt_u32 vcc, s{sN}, v{P1}', 's_cmp_eq_u64 vcc, -1', f's_cselect_b32 s14, {WS_BYTES:#x}, 0'], None, None))
            for grp in ([] if lc_ else late['loads'](W1, '@late')): chain.append((T.get('KL', KE), grp, None, None))
        pf = dma(WSC)
        n1 = T.get('N1', gs + rem) if len(KD) == 3 else 0
        for i, grp in enumerate(pf):
            kk = KD[0] + i * T.get('D1', 0.8) if i < n1 else KD[-2] + ((i - n1) * (KD[-1] - KD[-2])) / (nd - n1)
            chain.append((kk, grp, 'M' if inbuf and i == nd - 1 else 'head', None))
            assert not (inbuf and i == nd - 1) or kk > KM
        if ahead:
            chain.append((T['KP2'], next_n(sNxx, sNx) + poll_main(sNxx, '@e'), 'fl', None))
        free.append((NK - PF - 2, so, 'pub' if touch else lastst, None))
        if not pipe: free.append((NK - PF - 1.5, fv, 'pub', None))
        k2 = T.get('KS', KM); np_ = len(post); span = NK - PF - 2.5 - k2
        assert not post or k2 >= T['KA']
        if post: free.append((k2, ['@vm s'], 'top', None))
        for i, t in enumerate(post): free.append((k2 + (i * span) / max(np_, 1), [t], None, None))
        if 'novmw' in c.x: chain = [(k, [t for t in grp if t != '@vm m'], n_, g_) for k, grp, n_, g_ in chain]
        if 'nodma' in c.x: chain = [(k, [t for t in grp if not (t.startswith('buffer_load_dwordx4') and ' lds' in t and '@late' not in t)] or ['s_nop 0'], n_, g_) for k, grp, n_, g_ in chain]
        if 'nod' in c.x: free = [(k, ['s_nop 0'] if (g_ or '').startswith('d') and grp[0].startswith('v_') else grp, n_, g_) for k, grp, n_, g_ in free]
        free.sort(key=lambda x: x[0]); chain.sort(key=lambda x: x[0])
        ch2 = []
        for k, grp, nd_, gv in chain:
            subs = [[]]
            for t in grp:
                subs[-1].append(t)
                if t.startswith('buffer_'): subs.append([])
            subs = [x for x in subs if x]
            for i, x in enumerate(subs): ch2.append((k, x, nd_, gv if i == len(subs) - 1 else None))
        chain = []; own = None
        for k, x, nd_, gv in ch2:
            isd = x[-1].startswith(f'buffer_load_dwordx4 v{R["dma"]},')
            m0w = [t for t in x if ' m0,' in t]
            if isd and m0w: own = m0w[0]; clean = True
            elif isd and not clean: x = [own] + x; clean = True
            elif m0w: clean = False
            chain.append((k, x, nd_, gv))
        marks = {None}; st = dict(t=0, tm=-16, tv=-999, tM=0, cur=[], gv=None)
        DV = T.get('dv', 72)
        scalar = lambda t: t.startswith(('s_', '@'))
        def after(t):
            if t.startswith('v_mfma'):
                tm = max(st['t'], st['tm'] + 16); return tm + 4, tm
            if scalar(t): return st['t'] + 4, st['tm']
            if t.startswith(('v_dot', 'v_pk')): return max(st['t'], st['tm'] + 28) + 4, st['tm']
            return max(st['t'], st['tm'] + 8) + (8 if t.startswith(('v_exp', 'v_rcp', 'v_sqrt', 'v_perml')) else 4), st['tm']
        def emit(t):
            for u in t.split('\n'):
                if u == '@mbar': u = 's_barrier'; st['tM'] = st['t']; st['kM'] = (st['k'], st['t'])
                a(u)
                if u.endswith(':'): continue
                st['t'], st['tm'] = after(u)
                if u.startswith('buffer_'):
                    st['tv'] = st['t'] + (20 if u.startswith('buffer_store_dwordx4') else 0)
                    if u != pub: st['kv'] = (st['k'], st['t'])
                    if u.startswith('buffer_store') and u != pub: st['ks'] = (st['k'], st['t'])
        def cands(pos, force):
            o = []
            if chain and chain[0][2] in marks and (force or chain[0][0] <= pos):
                grp = chain[0][1]; ok = True
                if not force:
                    if grp[-1].startswith('buffer_') and st['t'] + 4 * len(grp) < st['tv'] + DV: ok = False
                    if grp[0] == '@gap' and st['t'] < st['tM'] + 100: ok = False
                if ok: o.append(chain)
            if free and free[0][2] in marks and (force or free[0][0] <= pos): o.append(free)
            return o
        first = lambda q: [t for t in q[0][1] if t != '@gap'][0]
        def peek(pos, force=False, want=None):
            if st['cur']: return None, st['cur'][0]
            for q in cands(pos, force):
                if want is None or want(first(q)): return q, first(q)
            return None, None
        def take(q):
            if q is not None:
                it = q.pop(0); st['cur'] = [t for t in it[1] if t != '@gap']; st['gv'] = it[3]
            t = st['cur'].pop(0)
            if not st['cur']: marks.add(st['gv'])
            return t
        def flush():
            n = 0
            while st['cur'] or chain or free:
                q, t = peek(99, True)
                assert t is not None, (name, chain[:1], free[:1])
                t = take(q)
                if t != '@brk': emit(t); n += 1
            return n
        quota = T.get('quota', lambda ks: 2)
        left = 0; carry = []
        st['k'] = 0; emit('@lg f0')
        for ks in range(NK):
            st['k'] = ks
            if c.probe and ks in c.probe:
                emit(f's_memtime {s(sST+2*c.probe.index(ks),2)}'); g.left.setdefault(name + '_t', []).append(st['t'])
            mand = carry + [rd(ks + PF, 0), rd(ks + PF, 1)]; carry = []
            if ks == NK - PF:
                carry = ([f'ds_read2st64_b32 {v(P0,2)}, v{R["pl"]} offset0:0 offset1:1 # p0'] if le else [rdp] if ahead else []) + mand
                mand = []
                free.append((0, [f's_sub_u32 s{sBuf}, {BUF}, s{sBuf}', f'v_add_u32 v{R["rd"]}, s{sBuf}, v{R["l16"]}'], None, None))
            k = 0
            for t in range(2):
                for n in (range(NT) if t == 0 or not c.snake else range(NT - 1, -1, -1)):
                    d = v(R['acc'] + (t * NT + n) * 4, 4)
                    cc = d if ks else '0'
                    if ks == NK - 1: d = v(R['res'] + (t * NT + n) * 4, 4)
                    w = wreg((ks * NT + n) * 4, 4, vbase)
                    if wA: emit(f'v_mfma_f32_16x16x32_bf16 {d}, {w}, {fr(ks,t)}, {cc}')
                    else:  emit(f'v_mfma_f32_16x16x32_bf16 {d}, {fr(ks,t)}, {w}, {cc}')
                    k += 1
                    pos = ks + k / (2 * NT); B = 8 + 4 * quota(ks)
                    if ks == NK - PF and k == 2 * NT:
                        left += flush()
                        if c.probe and 'pe' in c.x:
                            for t_ in [f'@lg f{NK-1}', f's_memtime {s(sST+10,2)}', 's_waitcnt lgkmcnt(0)', '@vm e', f's_memtime {s(sST+12,2)}', 's_waitcnt lgkmcnt(0)',
                                       's_barrier', f's_memtime {s(sST+14,2)}', 's_waitcnt lgkmcnt(0)']: emit(t_)
                            g.left[name + '_t'] += [st['t']] * 3
                        else:
                            for t_ in [f'@lg f{NK-1}', 's_nop 0' if 'novme' in c.x else '@vm e', 's_barrier']: emit(t_)
                        if c.probe:
                            acc_ = []
                            for i_ in range(7 if 'pe' in c.x else len(c.probe) - 1):
                                acc_ += [f's_sub_u32 s{sT1}, s{sST+2*i_+2}, s{sST+2*i_}', f's_add_u32 s{33+i_}, s{33+i_}, s{sT1}']
                            acc_ += [f's_sub_u32 s{sT1}, s{sST}, s43', f's_min_u32 s{sT1}, s{sT1}, 1500', f's_add_u32 s40, s40, s{sT1}', f's_mov_b32 s43, s{sST+14 if "pe" in c.x else sST+2*len([k_ for k_ in c.probe if k_ <= NK-PF])-2}'] if name != 'DNF_' else []
                            free.append((0, acc_, None, None))
                        if PF == 2:
                            for t_ in carry[:2]: emit(t_)
                            carry = carry[2:]
                        free.append((0, g.stamp(2) + (fv if xpub else [pub] + fv if pipe else []) + g.mini_put(2) + ['s_nop 0'], None, None))
                        fin = []
                        if ahead: fin = ['@lg p0'] + ev2
                        if lc_: fin += [f'v_cmp_lt_u32 vcc, s{sN}, v{P1}', 's_cmp_eq_u64 vcc, -1', 's_cselect_b32 s14, -1, 0']
                        elif le: fin += [f'v_cmp_lt_u32 vcc, s{sNx}, v{P1}', 's_cmp_eq_u64 vcc, -1', f's_cselect_b32 s{sLn}, {WS_BYTES:#x}, 0']
                        if ahead and blk:
                            if name == 'P': fin += [f's_xor_b32 s{sT1}, s{sNx}, s{sNxx}', f's_and_b32 s{sT1}, s{sT1}, 0xc0', f's_cmp_lg_u32 s{sT1}, 64']
                            else: fin += [f's_add_u32 s{sT1}, s{sNx}, 1', f's_cmp_eq_u32 s{sT1}, s{sNxx}'] if blk is True else [f's_cmp_ge_u32 s{sNxx}, {blk}']
                            fin += [f's_cselect_b32 s{sNeed}, -1, s{sRn}', f's_and_b32 s{sNeed}, s{sNeed}, s10']
                            if name == 'P' and c.first_pub: fin += [f's_cmp_lg_u32 s{sN}, 0', f's_cselect_b32 s{sNeed}, s{sNeed}, 0', f's_cmp_lg_u32 s{sNeed}, 0']
                            if late: fin.append(f's_and_b32 s{sRdy}, s{sNeed}, s14')
                        else: fin += [f's_and_b32 s{sRdy}, s10, s14'] if late else ['s_cmp_lg_u32 s10, 0']
                        free.append((NK - 1 + (0.2 if PF > 2 else 0.7), fin, None, None))
                        continue
                    if k == 2 * NT and ks + 1 < NK: emit(f'@lg f{ks+1}')
                    else:
                        q, t_ = peek(pos, want=lambda x: scalar(x) and x != '@brk')
                        if t_ is not None and scalar(t_) and t_ != '@brk': emit(take(q))
                    for _ in range(2 if len(mand) > 2 else 1):
                        if mand: emit(mand.pop(0))
                    nv = 0
                    while True:
                        q, t_ = peek(pos)
                        if t_ is None: break
                        if t_.startswith('v_') and not t_.startswith('v_mfma'):
                            nv += 1
                            if nv > T.get('nv', lambda k_: 9)(k): break
                        if t_ == '@brk': take(q); break
                        if '\n' not in t_ and not t_.startswith('v_mfma') and after(t_)[0] > st['tm'] + B: break
                        emit(take(q))
                        if '\n' in t_: break
        left += flush()
        g.left[name] = dict(left=left, M=st.get('kM'), st=st.get('ks'), lastvm=st.get('kv'), t=st['t'])
        q0 = [f'f{k}' for k in range(PF) for t in range(2)]
        g.resolve_lg(lo, len(a.L), q0)
        if c.stamps:
            a(f's_cselect_b32 s{sRdy}, 1, 0')
            for t in g.stamp(3): a(t)
            g.stamp_store(R['acc'], 4)
            a(f's_cmp_lg_u32 s{sRdy}, 0')
        a(f's_cbranch_scc1 {TOP}')
        hi_ = len(a.L); g.resolve_vm(lo, hi_)
        for t in g.mstamp(1): a(t)
        if late:
            l1 = a.lab('lw')
            a('s_cmp_lg_u32 s14, 0'); a(f's_cbranch_scc1 {l1}')
            l3 = a.lab('lg')
            if xpub:
                for t in tog + poll_main(sNxx, '') + [f's_add_u32 m0, s{sPL}, 256', 's_nop 0',
                        f'buffer_load_dword v{late["poff"]}, {WS}, s{sFl2} offen sc1 lds', 's_waitcnt vmcnt(0) lgkmcnt(0)', 's_barrier',
                        f'ds_read2st64_b32 {v(P0,2)}, v{R["pl"]} offset0:0 offset1:1', pub, 's_waitcnt lgkmcnt(0)',
                        f'v_cmp_lt_u32 vcc, s{sN}, v{P1}', 's_cmp_eq_u64 vcc, -1', f's_cbranch_scc1 {l3}']: a(t)
            for t in tog + g.spin0(P1, late['poff'], sN, sFl2, late['code'], poll_main(sNxx, '')) + [rdp.split('#')[0], f'{l3}:'] + g.mstamp(2) + \
                     [t for grp in ([] if lc_ else late['loads'](WS, '')) for t in grp] + ['s_waitcnt lgkmcnt(0)'] + ev2: a(t)
            assert not blk
            if lc_: pass
            elif T.get('LW'):
                k_ = max(k for k in range(lo, hi_) if '@late' in a.L[k])
                a(f's_mov_b32 s{sT1}, {OOB:#x}')
                for k in range(k_ + 1, hi_):
                    if a.L[k].startswith('buffer_'): a(pub.replace(f's{sPFl} ', f's{sT1} '))
            else: a('s_waitcnt vmcnt(0)')
            a(f's_cmp_lg_u32 s{sNeed if blk else 10}, 0'); a(f's_cbranch_scc1 {TOP}')
            fe = c.fin_early and 'KX' in T
            if fe:
                lb, lfin = a.lab('fe'), a.lab('fef')
                a(ev_main[0]); a(f's_min_u32 s{sT1}, s{sNxx}, 127'); a(f's_xor_b32 s{sT1}, s{sT1}, s{sNx}')
                lno = a.lab('fen')
                for t in ev_main[1:] + [f's_cmp_lt_u32 s{sT1}, 64', 's_cselect_b32 s10, s10, 0', 's_cmp_eq_u32 s10, 0', f's_cbranch_scc1 {lno}'] + \
                         prep(True) + [t for grp in dma(WS) for t in grp]: a(t)
                a(f's_waitcnt vmcnt({nd})'); a(f's_branch {lb}')
                a(f'{lno}:'); a('s_waitcnt vmcnt(0)'); a(f's_branch {lb}')
            a(f'{l1}:')
            if lc_:
                for grp in late['loads'](WS, ''):
                    for t in grp: a(t)
        k0 = len(a.L)
        for i, t in enumerate(D):
            if late and fe and i == 3: a(f'{lb}:')
            if t == '@M': a('s_waitcnt lgkmcnt(0)'); a('s_barrier')
            elif t == '@vm late' and 'KX' in T: pass
            elif t.startswith('@vm'): a('s_waitcnt vmcnt(0)')
            elif t != '@brk': a(t)
        g.resolve_lg(k0, len(a.L), [])
        for t in ([] if touch else off) + (shift if xpub else []): a(t)
        lgo = a.lab('go')
        def dma_k():
            o = [f's_lshl_b32 s{sT1}, s{sW}, 10', f's_add_u32 s{sSrc}, s{sSrc}, s{sT1}', f's_add_u32 s{sM0}, s{sBuf}, s{sT1}']
            for i in range(nd):
                o += [f's_add_u32 m0, s{sM0}, {i*4096}', f's_add_u32 s{sSo}, s{sSrc}, {i*4096}', f'buffer_load_dwordx4 v{R["l16"]}, {WS}, s{sSo} offen sc1 lds']
            return o
        if hs: n1k = -(-2 * (st['kM'][0] + PF + 1) // 4)
        if lock:
            a('s_waitcnt vmcnt(0)'); a('s_barrier'); a(pub)
            a(f's_cmp_ge_u32 s{sNx}, {c.NEND}'); a(f's_cbranch_scc1 {EXIT}')
        else:
            if blk:
                l2 = a.lab('sc')
                a('s_cmp_lg_u32 s10, 0'); a(f's_cbranch_scc1 {l2}')
                g.tail.append([f'{l2}:'] + tog + poll_main(sNxx, '') + ['s_waitcnt vmcnt(0) lgkmcnt(0)', 's_barrier', rdp.split('#')[0]] + pubs() + g.mstamp(3) + (off if touch else []) +
                              [f's_mov_b32 s{sRn}, {WS_BYTES:#x}', 's_waitcnt lgkmcnt(0)'] + ev2[:2] + [f's_cbranch_scc1 {TOP}'] +
                              g.spin0(P0, R['poff'], sNxx, sFl, code) + [f's_branch {TOP}'])
            for t in tog: a(t)
            lrd = a.lab('rd'); lrd2 = a.lab('rd2')
            if late and fe:
                a('s_cmp_lg_u32 s10, 0'); a(f's_cbranch_scc1 {lfin}')
                g.tail.append([f'{lfin}:'] + poll_main(sNxx, '') + ['s_waitcnt vmcnt(0) lgkmcnt(0)', 's_barrier', pub] + g.mstamp(3) + [f's_branch {lrd2}'])
            if c.med:
                lm, ln = a.lab('med'), a.lab('nomed')
                a(f's_min_u32 s{sT1}, s{sNxx}, 127'); a(f's_xor_b32 s{sT1}, s{sT1}, s{sNx}'); a(f's_cmp_ge_u32 s{sT1}, 64'); a(f's_cbranch_scc1 {ln}')
                a(ev_main[0]); a(ev_main[1]); a(f's_cbranch_scc1 {lm}'); a(f'{ln}:')
                pb = pubs(); npb = 1 + len(touch)
                g.tail.append([f'{lm}:'] + prep(True) + poll_main(sNxx, '') + (dma_k() if hs else [t for grp in dma(WS) for t in grp]) +
                              [f's_waitcnt vmcnt({nd+1}) lgkmcnt(0)', 's_barrier'] + pb + (off if touch else []) +
                              [f's_waitcnt vmcnt({npb + (nd - n1k if hs else 0)})', f's_branch {lrd}'])
            for t in poll_main(sNx, '') + prep(True): a(t)
            a('s_waitcnt vmcnt(0) lgkmcnt(0)'); a('s_barrier'); a(rdp.split('#')[0])
            for t in pubs() + g.mstamp(3) + (off if touch else []): a(t)
            a(f's_cmp_ge_u32 s{sNx}, {c.NEND}'); a(f's_cbranch_scc1 {EXIT}')
            for t in tog: a(t)
            a('s_waitcnt lgkmcnt(0)'); a(ev_main[0]); a(ev_main[1]); a(f's_cbranch_scc1 {lgo}')
        a(f'{SLOW}:')
        for t in g.fl_of(sNx, sFl) + prep(True) + g.spin0(P0, R['poff'], sNx, sFl, code): a(t)
        a(f'{lgo}:')
        for t in g.mstamp(4): a(t)
        if hs:
            for t in poll_main(sNxx, '') + dma_k(): a(t)
            a(f's_waitcnt vmcnt({nd - n1k})')
        else:
            for grp in dma(WS):
                for t in grp: a(t)
            if ahead:
                for t in poll_main(sNxx, ''): a(t)
            a('s_waitcnt vmcnt(0)')
        if not lock: a(f'{lrd}:')
        a('s_barrier')
        if not lock: a(f'{lrd2}:')
        for t in ([rdp] if ahead else []) + [rd(k, t) for k in range(PF) for t in range(2)]: a(t.split('#')[0])
        if ahead:
            a(f's_waitcnt lgkmcnt({2*PF})')
            for t in ev2: a(t)
        a(f's_branch {TOP}')
        a(f'{EXIT}:')
        if leave: leave()
        if c.probe:
            for i_ in range(8): a(f'v_mov_b32 v{8+i_}, s{33+i_}')
            a(f's_lshl_b32 s{sT0}, s2, 12'); a(f's_add_u32 s{sT0}, s{sT0}, {STAMP+32:#x}'); a(f's_lshl_b32 s{sT1}, s{sW}, 5'); a(f's_add_u32 s{sT0}, s{sT0}, s{sT1}')
            a('v_mov_b32 v16, 0'); a(f'buffer_store_dwordx4 v[8:11], v16, {WS}, s{sT0} offen'); a(f'buffer_store_dwordx4 v[12:15], v16, {WS}, s{sT0} offen offset:16')
            a('s_waitcnt vmcnt(0)')
        g.endpgm()
        g.flush_tail()

    def mask_seq(g, order):
        bits = sum(1 << i for i in range(len(order) - 1) if order[i] // 64 != order[i + 1] // 64 and not (order[i] == 63 and order[i + 1] == 64))
        init = [f's_mov_b32 s{44+i}, {(bits >> (32*i)) & 0xffffffff:#x}' for i in range(4)] + [f's_mov_b32 s{sOth}, 64', f's_mov_b32 s{sCnt}, 0']
        jump = []
        if g.c.HK:
            h0, h1 = g.c.H0, g.c.H0 + g.c.HK; sFrom, sTo = sC + 8, sC + 9
            init += [f's_cmp_eq_u32 s{sHelp}, 0', f's_cselect_b32 s{sFrom}, {h0}, {h1}', f's_cselect_b32 s{sTo}, {h1}, 0x80',
                     f's_cselect_b32 s{sNx}, 0, {h0}', 's_cselect_b64 s[44:45], s[44:45], 0']
            jump = [f's_cmp_eq_u32 s{sT0}, s{sFrom}', f's_cselect_b32 s{sT0}, s{sTo}, s{sT0}']
        def nxt(dst, src):
            return [f's_add_u32 s{sT0}, s{src}, 1'] + jump + [f's_bitcmp1_b64 s[44:45], s{sCnt}',
                    f's_cselect_b32 s{dst}, s{sOth}, s{sT0}', f's_cselect_b32 s{sOth}, s{sT0}, s{sOth}',
                    f's_add_u32 s{sCnt}, s{sCnt}, 1', f's_cmp_eq_u32 s{sCnt}, 64', 's_cselect_b64 s[44:45], s[46:47], s[44:45]',
                    f's_min_u32 s{sCnt}, s{sCnt}, 127']
        return init, nxt

    def lag(g, role):
        return min(g.c.L + g.c.DLAG[('AT', 'WOP', 'WOF', 'GU', 'DNP', 'DNF').index(role)], 64)

    def lag_seq(g, L):
        return g.seq_init(L), (lambda dst, src: g.next_n(dst, src, L))

    def near_side(g, part):
        a = g.a; l = a.lab('ns'); lp = a.lab('nsl')
        a(f's_cmp_lg_u32 s{sW}, 3'); a(f's_cbranch_scc1 {l}'); a(f's_cmp_lg_u32 s{sIdx}, 0'); a(f's_cbranch_scc1 {l}')
        a(f's_mov_b32 s{sT0}, {CAL:#x}'); g.lane0_off(2, sT0)
        m0, m1, cnt = sNeed, sFl, sPFl
        if part == 0: a(f's_mov_b32 s{m0}, -1'); a(f's_mov_b32 s{m1}, -1')
        a(f's_mov_b32 s{cnt}, 0'); a(f's_mov_b32 s{sT2}, 0x2000')
        a(f'{lp}:')
        for m, so in ((m0, '0'), (m1, f's{sT2}')):
            a(f's_memtime {s(sC+10,2)}'); a('s_waitcnt lgkmcnt(0)')
            a(f'buffer_store_dword v0, v2, {WS}, {so} offen sc1'); a('s_waitcnt vmcnt(0)')
            a(f's_memtime {s(sC+12,2)}'); a('s_waitcnt lgkmcnt(0)')
            a(f's_sub_u32 s{sT1}, s{sC+12}, s{sC+10}'); a(f's_min_u32 s{m}, s{m}, s{sT1}'); a(f's_add_u32 s{cnt}, s{cnt}, s{sT1}')
        a(f's_cmp_lt_u32 s{cnt}, {(5000, g.c.CALT)[part]}'); a(f's_cbranch_scc1 {lp}')
        if part == 1:
            a(f's_cmp_lt_u32 s{m1}, s{m0}'); a(f's_cselect_b32 s{sT1}, 1, 0')
            a(f's_lshr_b32 s{sT2}, s{sXcc}, 2'); a(f's_xor_b32 s{sT1}, s{sT1}, s{sT2}'); a(f's_add_u32 s{sT1}, s{sT1}, 1')
            if 'flip' in g.c.x: a(f's_xor_b32 s{sT1}, s{sT1}, 3')
            a(f'v_mov_b32 v3, s{sT1}'); a(f's_mov_b32 s{sT0}, 160'); g.lane0_off(2, sT0)
            a(f'buffer_store_dword v3, v2, {DBG}, 0 offen sc1')
            if g.c.light or g.c.stamps:
                a(f's_lshl_b32 s{m1}, s{m1}, 16'); a(f's_or_b32 s{m0}, s{m0}, s{m1}'); a(f'v_mov_b32 v3, s{m0}')
                a(f'buffer_store_dword v3, v2, {DBG}, 0 offen offset:4 sc1')
        a(f'{l}:')

    def role_p(g):
        a = g.a; c = g.c
        a('L_P:')
        VB = 128
        R = dict(acc=8, fr=32, res=64, rd=112, l16=113, dma=114, poff=115, poll=4, pl=116, my=117, fval=118)
        CS, RES, RS, S, vStat, vOut = 88, 64, 100, 104, 119, 120
        sOut, sGam = sC + 4, sC + 5
        g.my_flag(R['my'], sIdx, 'P', wave0=True); g.zero_flags(R['my']); g.arrive(later=True)
        a('L_P2:')
        srds = (8, 12, 16)
        for n in range(3):
            gm = sGam + n; d = srds[n]
            a(f's_mul_i32 s{gm}, s{sIdx}, 3'); a(f's_add_u32 s{gm}, s{gm}, {n}')
            a(f's_cmp_lt_u32 s{gm}, 64'); a(f's_cselect_b32 s{d}, s{P_WQ}, s{P_WK}'); a(f's_cselect_b32 s{d+1}, s{P_WQ+1}, s{P_WK+1}')
            a(f's_cmp_lt_u32 s{gm}, 128'); a(f's_cselect_b32 s{d}, s{d}, s{P_WV}'); a(f's_cselect_b32 s{d+1}, s{d+1}, s{P_WV+1}')
            a(f's_and_b32 s{d+1}, s{d+1}, 0xffff'); a(f's_mov_b32 s{d+2}, 0x800000'); a(f's_mov_b32 s{d+3}, 0x20000')
            a(f's_and_b32 s{sC+n}, s{gm}, 63'); a(f's_lshl_b32 s{sC+n}, s{sC+n}, 7')
        a(f's_lshl_b32 s{sT1}, s{sW}, 5'); g.tr_addr(8, 128, 8, 8, sT1)
        def setup():
            a(f'v_lshlrev_b32 v{R["l16"]}, 4, v0')
            g.stat_addr(vStat, False)
            a(f's_mov_b32 s{sT2}, 0'); g.poll_addr(R['poff'], sT2, 64, 'XA')
            for n in range(3):
                a(f's_and_b32 s{sT2}, s{sGam+n}, 63'); a(f's_lshl_b32 s{sT2}, s{sT2}, 2'); a(f's_add_u32 s{sT2}, s{sT2}, s{sW}')
                g.half_tile_addr(vOut + n, sT2)
                a(f's_lshr_b32 s{sT0}, s{sGam+n}, 6'); a(f's_mul_i32 s{sT0}, s{sT0}, {KX-QX:#x}'); a(f'v_add_u32 v{vOut+n}, s{sT0}, v{vOut+n}')
        g.coop_load(32, [(s(srds[n], 4), sC + n) for n in range(3)], 8192, 8,
                    lambda ks: [(wreg((ks * 3 + n) * 4 + 2 * hh, 2, VB), n * 4096 + hh * 512) for n in range(3) for hh in range(2)], (3, VB, CS, 12), setup)
        g.srd(8, P_WS, WS_BYTES)
        g.start_once()
        if c.HK: lh = a.lab('nh'); a(f's_cmp_lg_u32 s{sHelp}, 0'); a(f's_cbranch_scc1 {lh}')
        g.to_side([(R['my'], 'P')])
        if c.HK: a(f'{lh}:')
        post = g.stat_math(S, RS, False)
        def ln(n):
            o = []
            for t in range(2):
                d = RES + (t * 3 + n) * 4
                o += [f'v_fmac_f32 v{d+r}, v{RS+2+t}, v{CS+4*n+r}' for r in range(4)]
                o += [f'v_mul_f32 v{d+r}, v{RS+t}, v{d+r}' for r in range(4)]
            return o
        cv = lambda n: [f'v_cvt_pk_bf16_f32 v{RES+4*n+2*t+h}, v{RES+(t*3+n)*4+2*h}, v{RES+(t*3+n)*4+2*h+1}' for t in range(2) for h in range(2)]
        sw = lambda n: [f'v_permlane16_swap_b32 v{RES+4*n}, v{RES+4*n+2}', f'v_permlane16_swap_b32 v{RES+4*n+1}, v{RES+4*n+3}']
        sto = lambda n: [f'buffer_store_dwordx4 {v(RES+4*n,4)}, v{vOut+n}, {WS}, s{sOut} offen sc1 ; ' + ('@e' if c.T_KV.get('pipe') else '@m')]
        D = ln(0) + cv(0) + ln(1)[:2] + sw(0) + sto(0) + ln(1)[2:] + cv(1) + ln(2)[:2] + sw(1) + sto(1) + ln(2)[2:] + cv(2) + ['@brk'] + sw(2) + sto(2)
        so = [f's_lshl_b32 s{sOut}, s{sN}, 18', f's_add_u32 s{sOut}, s{sOut}, {QX:#x}']
        gate = leave = None
        if c.HK:
            l1, l2, l3 = a.lab('gate'), a.lab('gatec'), a.lab('gatel')
            sGate = sC + 10; l4 = a.lab('gateh')
            a(f's_cmp_eq_u32 s{sHelp}, {1 if c.hpull else 9}'); a(f's_cselect_b32 s{sGate}, {c.H0}, {c.H0 + c.HK}')
            g.srd(12, P_WG, 0x700000); g.srd(16, P_WU, 0x700000)
            gate = [f's_cmp_eq_u32 s{sN}, s{sGate}', f's_cbranch_scc1 {l1}\n{l2}:']
            g.tail.append([f'{l4}:', f's_add_u32 s{sGate}, s{sGate}, 1', f's_sub_u32 s{sT1}, s{sN}, {c.H0}', f's_lshl_b32 s{sT1}, s{sT1}, 2',
                           f's_add_u32 s{sT1}, s{sT1}, s{sW}', f's_mul_i32 s{sT1}, s{sT1}, {64*7168}', f's_lshl_b32 s{sT3}, s{sG}, 7', f's_add_u32 s{sT1}, s{sT1}, s{sT3}',
                           f'v_mul_u32_u24 v6, 448, v{R["l16"]}', f'buffer_load_dword v7, v6, {W1}, s{sT1} offen', f'buffer_load_dword v7, v6, {W2}, s{sT1} offen',
                           f's_branch {l2}'])
            g.tail.append([f'{l1}:', f's_cmp_lg_u32 s{sHelp}, 0', f's_cbranch_scc1 {l4}', f's_cmp_lg_u32 s{sW}, 1', f's_cbranch_scc1 {l2}', f's_mul_i32 s{sT1}, s{sIdx}, {c.FS}',
                           f's_add_u32 s{sT1}, s{sT1}, {FOFF["PH"]}', f's_and_b32 s{sT3}, s{sT1}, 0xffffe000', f's_add_u32 s{sT1}, s{sT1}, s{sT3}', 'v_mov_b32 v6, 0', f'{l3}:',
                           f'buffer_load_dword v7, v6, {WS}, s{sT1} offen sc1', 's_waitcnt vmcnt(0)',
                           f'v_cmp_le_u32 vcc, {c.H0 + c.HK}, v7', 's_cmp_eq_u64 vcc, -1', f's_cbranch_scc1 {l2}', f's_branch {g.timeout(25, l3)}'])
            def leave():
                l = a.lab('lv')
                a(f's_cmp_eq_u32 s{sHelp}, 0'); a(f's_cbranch_scc1 {l}')
                a('s_waitcnt vmcnt(0) lgkmcnt(0)'); a('s_barrier')
                g.load_args(); a(f's_mov_b32 s{sIdx}, s{sG}'); a('s_waitcnt lgkmcnt(0)'); g.srd(8, P_WS, WS_BYTES)
                a(f's_cmp_eq_u32 s{sHelp}, 1'); a('s_cbranch_scc1 L_GU2'); a('s_branch L_DNF2')
                a(f'{l}:')
        g.ws_loop('P', 32, 3, True, VB, R, g.mask_seq(p_order(c.LK, c.LM, c.H0, c.HK)), XA, 65536, None, 2, c.T_KV, 131072,
                  D, so, [f's_mov_b32 s{sOut}, {OOB:#x}'], top=g.stat_loads(S, vStat, SA), post=post, pipe=c.T_KV.get('pipe'), gate=gate, leave=leave)

    def build(g):
        a = g.a; c = g.c
        a('.amdgcn_target "amdgcn-amd-amdhsa--gfx950"')
        a('.text'); a(f'.globl {KNAME}'); a('.p2align 8'); a(f'.type {KNAME},@function'); a(f'{KNAME}:')
        a('s_cmp_ge_u32 s2, 0x100'); a('s_cbranch_scc1 L_done')
        for t in g.stamp(7): a(t)
        a('v_lshrrev_b32 v1, 6, v0'); a(f'v_readfirstlane_b32 s{sW}, v1')
        a(f's_getreg_b32 s{sXcc}, hwreg(HW_REG_XCC_ID)'); a(f's_and_b32 s{sXcc}, s{sXcc}, 7')
        pm = sum(x << (4 * i) for i, x in enumerate(c.perm))
        a(f's_lshl_b32 s{sT0}, s{sXcc}, 2'); a(f's_lshr_b32 s{sG}, {pm:#x}, s{sT0}'); a(f's_and_b32 s{sG}, s{sG}, 7')
        a(f's_mov_b32 s{sRound}, 0'); a(f's_mov_b32 s{sTO}, 0')
        a('s_branch L_begin')
        a('L_restart:')
        a(f's_and_b32 s{sG}, s2, 7'); a(f's_mov_b32 s{sRound}, 1')
        a('s_barrier')
        a('L_begin:')
        g.load_args(); a(f's_mov_b32 s{sHelp}, 0')
        a(f's_lshr_b32 s{sIdx}, s2, 3'); a(f's_mov_b32 s{sN}, 0')
        a('s_waitcnt lgkmcnt(0)')
        g.srd(4, P_WS, WS_BYTES); g.srd(8, P_WS, WS_BYTES); g.srd(20, P_DBG, 256)
        table = role_table(c.place)
        a(f's_lshl_b32 s{sT0}, s{sG}, 5'); a(f's_add_u32 s{sT0}, s{sT0}, s{sIdx}')
        for x, f, n, role, off in table:
            if role[:2] not in c.roles and role not in c.roles: continue
            l = a.lab('disp')
            a(f's_sub_u32 s{sIdx}, s{sT0}, {x*32+f}'); a(f's_cmp_ge_u32 s{sIdx}, {n}'); a(f's_cbranch_scc1 {l}')
            if off: a(f's_add_u32 s{sIdx}, s{sIdx}, {off}')
            a(f's_branch L_{role}'); a(f'{l}:')
        g.arrive()
        g.wait_start(8, 1)
        a('L_done:'); a('s_endpgm')
        g.flush_tail()
        a('L_fail:')
        a(f's_lshl_b32 s{sT0}, s2, 16'); a(f's_lshl_b32 s{sT1}, s{sW}, 8'); a(f's_or_b32 s{sT0}, s{sT0}, s{sT1}')
        a(f's_or_b32 s{sT0}, s{sT0}, s{sN}'); a(f's_bitset1_b32 s{sT0}, 31')
        a(f'v_mov_b32 v1, s{sT0}'); a(f's_lshl_b32 s{sT1}, s{sCode}, 2'); a(f's_add_u32 s{sT1}, s{sT1}, 16'); a('v_mov_b32 v2, 0')
        a(f'buffer_store_dword v1, v2, {DBG}, s{sT1} offen sc1'); a('s_waitcnt vmcnt(0)'); a('s_endpgm')
        if 'P' in c.roles: g.role_p()
        import roles2
        roles2.emit(g)
        a('.section .rodata,"a"'); a('.p2align 6'); a(f'.amdhsa_kernel {KNAME}')
        for t in ('next_free_vgpr 512', 'next_free_sgpr 102', 'accum_offset 256', 'group_segment_fixed_size 0',
                  'kernarg_size 112', 'user_sgpr_count 2', 'user_sgpr_kernarg_segment_ptr 1', 'system_sgpr_workgroup_id_x 1'):
            a('.amdhsa_' + t)
        a('.end_amdhsa_kernel')
        a.L = [t for t in a.L if t]
        import re
        if c.ring:
            out = []; nrep = 0
            keep = {f'{x:#x}' for x in (XA, SA, SA + 64 * 2048)}
            for k, t in enumerate(a.L):
                m_ = re.match(r'^s_(lshl_b32|mul_i32) (s\d+), (s5[23]), (1[1-9]|0x\w+)$', t)
                if m_:
                    nx = next(u for u in a.L[k+1:] if u.startswith(f's_add_u32 {m_.group(2)}, {m_.group(2)},'))
                    cst = nx.split(',')[-1].strip()
                    try: small = int(cst, 0) < XB and int(cst, 0) != SB
                    except ValueError: small = False
                    if not small:
                        big = m_.group(4) == '18' and 'OXMARK' not in nx
                        out.append(f's_and_b32 {m_.group(2)}, {m_.group(3)}, {c.ring:#x}')
                        t = t.replace(m_.group(3), m_.group(2)); nrep += 1
                out.append(t)
            a.L = out; g.left['ring'] = nrep
        for key, rep in (('ldplain', ''), ('ldnt', ' nt'), ('ldsys', ' sc0 sc1')):
            if key in c.x:
                k0 = a.L.index('L_QK:')
                a.L = [t.replace(' sc1', rep) if k < k0 and t.startswith('buffer_load_dwordx4') and 's[20:23]' not in t else t for k, t in enumerate(a.L)]
        for key, rep in (('stnt', ' sc1 nt'), ('stsys', ' sc0 sc1')):
            if key in c.x:
                k0 = a.L.index('L_QK:')
                a.L = [t.replace(' sc1', rep) if k < k0 and t.startswith('buffer_store_dwordx4') else t for k, t in enumerate(a.L)]
        if 'free' in c.x:
            a.L = [re.sub(r'^v_cmp_lt_u32 vcc, (s\d+), v\d+$', (r'v_cmp_eq_u32 vcc, v0, v0' if 'QK' in c.roles else r'v_mov_b32 v1, 128\nv_cmp_lt_u32 vcc, \1, v1'), t) for t in a.L]
            a.L = [u for t in a.L for u in t.split('\n')]
            if 'hot' in c.x: a.L = [re.sub(r'^s_(lshl_b32|mul_i32) (s\d+), s5[23], (1[1-9]|0x\w+)$', r's_mov_b32 \2, 0', t) for t in a.L]
            if 'nost' in c.x: a.L = [t.replace('s[4:7]', 's[20:23]') if t.startswith('buffer_store_dwordx4') and '@' in t else t for t in a.L]
        lines, added = a.fix()
        head = ['; Persistent weight-stationary dataflow kernel (generated by my own script, gen/gen.py).',
                '; @launch grid=(256,1,1) block=(256,1,1) lds=163840']
        return '\n'.join(head + lines) + '\n'

def make(**kw):
    c = Cfg()
    for k, val in kw.items(): setattr(c, k, val)
    global LAST
    set_fs(c.FS); set_sides(c.place)
    LAST = Gen(c)
    return LAST.build()

if __name__ == '__main__':
    out = sys.argv[1] if len(sys.argv) > 1 else 'interleave_layers__memory_aug_recurrent_mem_tr__glu_gated_geglu__prompt.s'
    open(out, 'w').write(make())
    print('wrote', out)
```

```python
class _F:
    FS=16
FCNT=dict(XA=8,XB=8,P=64,M=128,O=64,H=56,PW=32,PD=16,PH=64,N=64)
FOFF={}
FSIDE=dict(XB=1,P=0,M=0,N=0,O=1,H=1,PW=1,PD=1)
def set_fs(fs):
    _F.FS=fs; o=0
    for k,v in FCNT.items():
        FOFF[k]=o; o+=v*(max(fs,32) if k=='XA' else fs)
    assert o<=0x1FF00
set_fs(16)
FL_L=0x40000
CAL=0x3DF00
TWB=0x80000; TW_SZ=0x40000
SA=0x180000; SB=0x1C0000
RING=0x200000; RING_SZ=0x50000
HUB=RING+4*RING_SZ
R_MEM=0; R_OM=0x10000; R_VML=0x30000
STAMP=0xF800000
XA=0x400000; XB=0xC00000; QX=0x1400000; KX=0x3400000; VX=0x5400000; KVM=0x7400000
OX=0x9400000; HH=0xB400000; PW=0xD000000; PD=0xE800000
WS_BYTES=0x10000000
HH_U=112*2048
OOB=0x40000000
WO_NP=36; DN_NP=38

def role_table(place):
    if True:
        mix = {0: dict(P=(24,24,16,0,0,0), AT=(8,8,0,0,0,0), GU=(0,0,0,24,24,8),
                       WOP=(0,0,8,0,0,16), WOF=(0,0,0,0,0,8), DNP=(0,0,0,8,8,0), DNF=(0,0,8,0,0,0)),
               1: dict(P=(12,12,10,10,10,10), AT=(4,4,2,2,2,2), GU=(8,8,12,12,12,4),
                       WOP=(8,8,0,0,0,8), WOF=(0,0,0,0,0,8), DNP=(0,0,8,8,0,0), DNF=(0,0,0,0,8,0)),
               2: dict(P=(16,16,8,8,8,8), AT=(8,8,0,0,0,0), GU=(0,0,16,16,16,8),
                       WOP=(8,8,0,0,0,8), WOF=(0,0,0,0,0,8), DNP=(0,0,8,8,0,0), DNF=(0,0,0,0,8,0)),
               3: dict(P=(16,16,16,16,0,0), AT=(4,4,4,4,0,0), GU=(12,12,12,12,8,0),
                       WOP=(0,0,0,0,0,24), WOF=(0,0,0,0,0,8), DNP=(0,0,0,0,16,0), DNF=(0,0,0,0,8,0)),
               4: dict(P=(14,14,14,14,8,0), AT=(4,4,4,4,0,0), GU=(14,14,14,14,0,0),
                       WOP=(0,0,0,0,0,24), WOF=(0,0,0,0,0,8), DNP=(0,0,0,0,16,0), DNF=(0,0,0,0,8,0)),
               5: dict(P=(22,0,21,0,21,0), AT=(5,0,6,0,5,0), GU=(5,32,5,8,6,0),
                       WOP=(0,0,0,0,0,24), WOF=(0,0,0,0,0,8), DNP=(0,0,0,16,0,0), DNF=(0,0,0,8,0,0)),
               6: dict(P=(22,0,21,0,21,0), AT=(2,6,2,4,2,0), GU=(8,26,9,4,9,0),
                       WOP=(0,0,0,0,0,24), WOF=(0,0,0,0,0,8), DNP=(0,0,0,16,0,0), DNF=(0,0,0,8,0,0)),
               7: dict(P=(18,10,18,0,18,0), AT=(3,7,3,0,3,0), GU=(11,15,11,8,11,0),
                       WOP=(0,0,0,0,0,24), WOF=(0,0,0,0,0,8), DNP=(0,0,0,16,0,0), DNF=(0,0,0,8,0,0)),
               8: dict(P=(24,0,20,0,20,0), AT=(8,0,4,0,4,0), GU=(0,32,0,16,0,8),
                       WOP=(0,0,0,0,0,24), WOF=(0,0,8,0,0,0), DNP=(0,0,0,16,0,0), DNF=(0,0,0,0,8,0)),
               9: dict(P=(22,0,22,0,20,0), AT=(2,6,2,4,2,0), GU=(8,26,8,12,2,0),
                       WOP=(0,0,0,0,0,24), WOF=(0,0,0,0,0,8), DNP=(0,0,0,16,0,0), DNF=(0,0,0,0,8,0)),
               10: dict(P=(22,0,22,0,20,0), AT=(3,3,2,3,2,3), GU=(7,29,0,13,2,5),
                       WOP=(0,0,0,0,0,24), WOF=(0,0,8,0,0,0), DNP=(0,0,0,16,0,0), DNF=(0,0,0,0,8,0)),
               11: dict(P=(20,12,16,0,16,0), AT=(2,6,2,4,2,0), GU=(10,14,14,4,14,0),
                       WOP=(0,0,0,0,0,24), WOF=(0,0,0,0,0,8), DNP=(0,0,0,16,0,0), DNF=(0,0,0,8,0,0)),
               12: dict(P=(20,14,16,8,6,0), AT=(2,5,3,6,0,0), GU=(10,13,13,18,2,0),
                       WOP=(0,0,0,0,0,24), WOF=(0,0,0,0,0,8), DNP=(0,0,0,0,16,0), DNF=(0,0,0,0,8,0)),
               13: dict(P=(16,12,12,8,10,6), AT=(0,4,2,4,2,4), GU=(8,8,10,12,12,6),
                       WOP=(0,8,0,8,0,8), WOF=(0,0,0,0,0,8), DNP=(8,0,8,0,0,0), DNF=(0,0,0,0,8,0)),
               14: dict(P=(24,24,8,0,8,0), AT=(8,8,0,0,0,0), GU=(0,0,24,8,24,0),
                       WOP=(0,0,0,0,0,24), WOF=(0,0,0,0,0,8), DNP=(0,0,0,16,0,0), DNF=(0,0,0,8,0,0)),
               15: dict(P=(26,22,8,0,8,0), AT=(6,10,0,0,0,0), GU=(0,0,24,24,0,8),
                       WOP=(0,0,0,0,0,24), WOF=(0,0,0,8,0,0), DNP=(0,0,0,0,16,0), DNF=(0,0,0,0,8,0)),
               16: dict(P=(16,16,16,0,16,0), AT=(4,4,2,4,2,0), GU=(12,12,14,4,14,0),
                       WOP=(0,0,0,0,0,24), WOF=(0,0,0,0,0,8), DNP=(0,0,0,16,0,0), DNF=(0,0,0,8,0,0)),
               17: dict(P=(14,14,18,0,18,0), AT=(5,5,1,4,1,0), GU=(13,13,13,4,13,0),
                       WOP=(0,0,0,0,0,24), WOF=(0,0,0,0,0,8), DNP=(0,0,0,16,0,0), DNF=(0,0,0,8,0,0)),
               18: dict(P=(20,10,17,0,17,0), AT=(1,5,1,8,1,0), GU=(11,17,14,0,14,0),
                       WOP=(0,0,0,0,0,24), WOF=(0,0,0,0,0,8), DNP=(0,0,0,16,0,0), DNF=(0,0,0,8,0,0)),
               19: dict(P=(24,24,8,0,8,0), AT=(2,2,4,4,4,0), GU=(6,6,20,4,20,0),
                       WOP=(0,0,0,0,0,24), WOF=(0,0,0,0,0,8), DNP=(0,0,0,16,0,0), DNF=(0,0,0,8,0,0)),
               20: dict(P=(28,28,4,0,4,0), AT=(2,2,4,4,4,0), GU=(2,2,24,4,24,0),
                       WOP=(0,0,0,0,0,24), WOF=(0,0,0,0,0,8), DNP=(0,0,0,16,0,0), DNF=(0,0,0,8,0,0)),
               21: dict(P=(32,32,0,0,0,0), AT=(0,0,6,4,6,0), GU=(0,0,26,4,26,0),
                       WOP=(0,0,0,0,0,24), WOF=(0,0,0,0,0,8), DNP=(0,0,0,16,0,0), DNF=(0,0,0,8,0,0)),
               22: dict(P=(20,20,12,0,12,0), AT=(2,2,4,4,4,0), GU=(10,10,16,4,16,0),
                       WOP=(0,0,0,0,0,24), WOF=(0,0,0,0,0,8), DNP=(0,0,0,16,0,0), DNF=(0,0,0,8,0,0)),
               23: dict(P=(12,32,10,0,10,0), AT=(6,0,3,4,3,0), GU=(14,0,19,4,19,0),
                       WOP=(0,0,0,0,0,24), WOF=(0,0,0,0,0,8), DNP=(0,0,0,16,0,0), DNF=(0,0,0,8,0,0)),
               24: dict(P=(0,32,16,0,16,0), AT=(6,0,3,4,3,0), GU=(26,0,13,4,13,0),
                       WOP=(0,0,0,0,0,24), WOF=(0,0,0,0,0,8), DNP=(0,0,0,16,0,0), DNF=(0,0,0,8,0,0)),
               25: dict(P=(20,24,6,0,14,0), AT=(2,0,6,6,2,0), GU=(10,8,20,2,16,0),
                       WOP=(0,0,0,0,0,24), WOF=(0,0,0,0,0,8), DNP=(0,0,0,16,0,0), DNF=(0,0,0,8,0,0)),
               26: dict(P=(20,8,18,0,18,0), AT=(2,0,4,6,4,0), GU=(10,0,10,26,10,0),
                       WOP=(0,0,0,0,0,24), WOF=(0,0,0,0,0,8), DNP=(0,16,0,0,0,0), DNF=(0,8,0,0,0,0)),
               27: dict(P=(0,8,22,0,20,14), AT=(0,0,2,6,2,6), GU=(0,0,8,26,10,12),
                       WOP=(24,0,0,0,0,0), WOF=(8,0,0,0,0,0), DNP=(0,16,0,0,0,0), DNF=(0,8,0,0,0,0)),
               28: dict(P=(22,8,18,0,16,0), AT=(2,0,3,7,4,0), GU=(8,0,11,25,12,0),
                       WOP=(0,0,0,0,0,24), WOF=(0,0,0,0,0,8), DNP=(0,16,0,0,0,0), DNF=(0,8,0,0,0,0)),
               29: dict(P=(24,8,16,0,16,0), AT=(0,0,4,8,4,0), GU=(8,0,12,24,12,0),
                       WOP=(0,0,0,0,0,24), WOF=(0,0,0,0,0,8), DNP=(0,16,0,0,0,0), DNF=(0,8,0,0,0,0)),
               30: dict(P=(4,16,20,6,18,0), AT=(2,4,2,6,2,0), GU=(2,12,10,20,12,0),
                       WOP=(0,0,0,0,0,24), WOF=(0,0,0,0,0,8), DNP=(16,0,0,0,0,0), DNF=(8,0,0,0,0,0)),
               31: dict(P=(14,4,20,6,20,0), AT=(6,4,1,4,1,0), GU=(12,0,11,22,11,0),
                       WOP=(0,0,0,0,0,24), WOF=(0,0,0,0,0,8), DNP=(0,16,0,0,0,0), DNF=(0,8,0,0,0,0)),
               32: dict(P=(0,4,21,9,21,9), AT=(0,4,2,4,2,4), GU=(0,0,9,19,9,19),
                       WOP=(24,0,0,0,0,0), WOF=(8,0,0,0,0,0), DNP=(0,16,0,0,0,0), DNF=(0,8,0,0,0,0)),
               33: dict(P=(28,8,16,0,12,0), AT=(0,0,4,6,6,0), GU=(4,0,12,26,14,0),
                       WOP=(0,0,0,0,0,24), WOF=(0,0,0,0,0,8), DNP=(0,16,0,0,0,0), DNF=(0,8,0,0,0,0)),
               34: dict(P=(32,8,14,0,10,0), AT=(0,0,4,6,6,0), GU=(0,0,14,26,16,0),
                       WOP=(0,0,0,0,0,24), WOF=(0,0,0,0,0,8), DNP=(0,16,0,0,0,0), DNF=(0,8,0,0,0,0)),
               35: dict(P=(24,16,14,0,10,0), AT=(0,0,4,6,6,0), GU=(0,0,14,26,16,0),
                       WOP=(0,0,0,0,0,24), WOF=(0,0,0,0,0,8), DNP=(0,16,0,0,0,0), DNF=(8,0,0,0,0,0)),
               36: dict(P=(24,24,8,0,8,0), AT=(0,0,4,8,4,0), GU=(0,0,12,24,20,0),
                       WOP=(0,0,0,0,0,24), WOF=(0,0,0,0,0,8), DNP=(8,8,0,0,0,0), DNF=(0,0,8,0,0,0)),
               37: dict(P=(24,16,12,0,12,0), AT=(0,0,5,4,5,2), GU=(0,0,15,12,15,14),
                       WOP=(0,0,0,16,0,8), WOF=(0,0,0,0,0,8), DNP=(0,16,0,0,0,0), DNF=(8,0,0,0,0,0)),
               38: dict(P=(22,8,17,0,17,0), AT=(0,0,4,4,4,4), GU=(10,0,11,12,11,12),
                       WOP=(0,0,0,16,0,8), WOF=(0,0,0,0,0,8), DNP=(0,16,0,0,0,0), DNF=(0,8,0,0,0,0))}[place]
        table = []; nxt = [0]*6
        for role, cnt in mix.items():
            off = 0
            for x, n in enumerate(cnt):
                if n: table.append((2+x, nxt[x], n, role, off)); nxt[x] += n; off += n
        assert max(nxt) <= 32, nxt
    for G in (0, 1): table += [(G, 0, 16, 'QK', 0), (G, 16, 8, 'VM', 0), (G, 24, 8, 'WM', 0)]
    return table

def helper_table(place):
    t = role_table(place)
    ps = [(x, o + i) for x, f, n, r, o in t if r == 'P' for i in range(n)]
    hs = [(x, r, o + i) for x, f, n, r, o in t if r in ('GU', 'DNF') for i in range(n)]
    m = {}
    for x in range(8):
        a = [p for p in ps if p[0] == x]; b = [h for h in hs if h[0] == x]
        for p, h in zip(a, b): m[h[1:]] = p[1]; ps.remove(p); hs.remove(h)
    for p, h in zip(ps, hs): m[h[1:]] = p[1]
    assert sorted(m.values()) == list(range(64))
    out = {}
    for (r, i), p in sorted(m.items()):
        l = out.setdefault(r, [])
        if l and l[-1][0] + l[-1][1] == i and l[-1][2] + l[-1][1] == p: l[-1][1] += 1
        else: l.append([i, 1, p])
    return out

def set_sides(place):
    side = lambda role: int(min(x for x, f, n, r, o in role_table(place) if r == role) >= 4)
    FSIDE.update(O=side('WOP'), PW=side('WOF'), H=side('DNP'), PD=side('DNF'))
```

```python
from gen import *
from roles2 import NEG, v_tr_addr, row16

VB = 96
RESW = 24576
STG = 98304
sR0, sStage, sWb = sC, sC + 1, sC + 2
sN1, sN2 = sNx, sC + 3

class Lg:
    def __init__(s, a): s.a = a; s.q = []
    def rd(s, tag, text): s.q.append(tag); return text
    def wait(s, tag):
        if tag not in s.q: return None
        i = len(s.q) - 1 - s.q[::-1].index(tag)
        n = len(s.q) - 1 - i; s.q = s.q[i + 1:]
        assert n <= 15
        return f's_waitcnt lgkmcnt({n})'

def glue(l):
    o = []
    for t in l:
        if t.startswith('s_cselect'): o[-1] += '\n' + t
        else: o.append(t)
    return o

def frag_map(resident, nsteps, ntiles):
    m = {}; r = 0; l = 0
    for st in range(nsteps):
        for n in range(ntiles):
            if resident(st, n): m[st, n] = ('l', l); l += 1
            else: m[st, n] = ('r', r); r += 8
    assert l == 12 and r == 416
    return m

def chain_setup(g, vIdx, vL16, vRes):
    a = g.a
    a(f's_mul_i32 s{sR0}, s{sG}, {RING_SZ:#x}'); a(f's_add_u32 s{sR0}, s{sR0}, {RING:#x}')
    a(f's_lshl_b32 s{sStage}, s{sW}, 14'); a(f's_add_u32 s{sStage}, s{sStage}, {STG}')
    a(f's_lshl_b32 s{sWoff}, s{sG}, 8'); a(f's_add_u32 s{sWoff}, s{sWoff}, {HUB:#x}')
    a(f'v_lshlrev_b32 v{vL16}, 4, v0')
    a(f's_mul_i32 s{sT0}, s{sW}, {RESW}'); a(f'v_add_u32 v{vRes}, s{sT0}, v{vL16}')
    a('v_mov_b32 v1, 0x4444'); a('v_mov_b32 v2, 0xeeee'); a('v_and_b32 v3, 2, v0'); a('v_cmp_eq_u32 vcc, 0, v3')
    a(f'v_cndmask_b32 v{vIdx}, v2, v1, vcc')

def poison_init(g, vAddr, sOff, sub, slot_bytes, width, first=0):
    a = g.a
    for i in range(4): a(f'v_mov_b32 v{16+i}, -1')
    for l in range(2):
        for sl in range(first, 4):
            a(f's_add_u32 s{sT0}, s{sR0}, {l*2*RING_SZ + sub + sl*slot_bytes:#x}'); a(f's_add_u32 s{sT0}, s{sT0}, s{sOff}')
            a(f'buffer_store_dwordx{width} {v(16,width)}, v{vAddr}, {WS}, s{sT0} offen sc1')

def chain_load(g, fm, chunk_src, nsteps, nquads, vRes, rowmap, grow, pitch):
    a = g.a
    vA, vTr, TMPR = 20, 21, 24
    a('v_lshrrev_b32 v1, 3, v0'); a(f'v_mul_u32_u24 v1, {pitch}, v1')
    a('v_and_b32 v2, 7, v0'); a('v_lshlrev_b32 v2, 4, v2'); a(f'v_add_u32 v{vA}, v1, v2')
    g.tr_addr(vTr, 128, 0, 8, sStage, chain=rowmap)
    chunks = []
    for st in range(nsteps):
        for p in range(nquads):
            for hq in range(2):
                pre, sb, imm = chunk_src(st, p)
                ch = dict(pre=pre if hq == 0 else [], dma=[(W1, vA, sb, imm + grow(hq, i) * pitch) for i in range(4)], reads=[], post=[])
                for k in range(4):
                    kind, idx = fm[st, 4 * p + k]
                    for q in range(2):
                        dest = wreg(idx + 4 * hq + 2 * q, 2, VB) if kind == 'r' else v(TMPR + 4 * k + 2 * q, 2)
                        ch['reads'].append((dest, vTr, 2 * q * 128 + k * 32))
                    if kind == 'l':
                        ch['post'].append(f'ds_write_b128 v{vRes}, {v(TMPR+4*k,4)} offset:{idx*2048+hq*1024}')
                if ch['post']: ch['post'].append('s_waitcnt lgkmcnt(0)')
                chunks.append(ch)
    g.load_weights(chunks, 4, 4096, sStage)

def pick_mode(g, name):
    a = g.a
    g.wait_start(48, 1, False)
    a(f's_add_u32 s{sRdy}, s{sRound}, 1')
    for t in g.seq_init(g.c.L): a(t)
    g.light_start()
    a('s_barrier')

sX = 24

def ring_calc(n, base, s15=None, s15x=None, s14=None, add14=0, s14x=None):
    o = [f's_cmp_lt_u32 s{n}, 64', f's_cselect_b32 s{base}, 0, {2*RING_SZ:#x}', f's_add_u32 s{base}, s{base}, s{sR0}']
    if s15 is not None:
        o += [f's_and_b32 s{s15}, s{n}, 3', f's_lshl_b32 s{s15}, s{s15}, 15']
        if s15x is not None: o += [f's_xor_b32 s{s15x}, s{s15}, 0x10000', f's_add_u32 s{s15x}, s{s15x}, s{base}']
        o += [f's_add_u32 s{s15}, s{s15}, s{base}']
    if s14 is not None:
        o += [f's_add_u32 s{s14}, s{n}, {add14}', f's_and_b32 s{s14}, s{s14}, 3'] if add14 else [f's_and_b32 s{s14}, s{n}, 3']
        o += [f's_lshl_b32 s{s14}, s{s14}, 14']
        if s14x is not None: o += [f's_xor_b32 s{s14x}, s{s14}, 0x8000', f's_add_u32 s{s14x}, s{s14x}, s{base}']
        o += [f's_add_u32 s{s14}, s{s14}, s{base}']
    return o

def heads_up(g, vT, vZ, code):
    a = g.a; l = a.lab('hu')
    a(f's_and_b32 s{sT1}, s{sN}, 64'); a(f's_lshl_b32 s{sT1}, s{sT1}, 3'); a(f's_add_u32 s{sT1}, s{sT1}, s{sWoff}'); a(f'v_mov_b32 v{vZ}, 0')
    a(f'{l}:'); a(f'buffer_load_dword v{vT}, v{vZ}, {WS}, s{sT1} offen sc1')
    for t in tick(g, code): a(t)
    a('s_waitcnt vmcnt(0)'); a(f'v_cmp_gt_u32 vcc, s{sN}, v{vT}'); a(f's_cbranch_vccnz {l}')

def check4(t, d):
    return [f'v_max3_u32 v{t}, v{d}, v{d+1}, v{d+2}', f'v_max_u32 v{t}, v{t}, v{d+3}', f'v_cmp_eq_u32 vcc, -1, v{t}']

def tick(g, code):
    lab = g.a.lab('to')
    g.tail.append([f'{lab}:', f's_mov_b32 s{sCode}, {code}', 's_branch L_fail'])
    return [f's_add_u32 s{sTO}, s{sTO}, 1', f's_cmp_ge_u32 s{sTO}, {g.c.TIMEOUT}', f's_cbranch_scc1 {lab}']

def gm_loads(G, vL16, sMem, lo, hi):
    return [f'buffer_load_dwordx4 {v(G+4*i,4)}, v{vL16}, {WS}, s{sMem} offen offset:{i*1024} sc1' for i in range(lo, hi)]

def gm_check(G, T, lo, hi, younger):
    o = []
    for i in range(lo, hi):
        o.append(f's_waitcnt vmcnt({hi-1-i+younger})')
        d = G + 4 * i
        if i == lo: o += [f'v_max3_u32 v{T}, v{d}, v{d+1}, v{d+2}', f'v_max_u32 v{T}, v{T}, v{d+3}']
        else: o += [f'v_max3_u32 v{T}, v{T}, v{d}, v{d+1}', f'v_max3_u32 v{T}, v{T}, v{d+2}, v{d+3}']
    o.append(f'v_cmp_eq_u32 vcc, -1, v{T}')
    return o

def step_order(NP):
    return [(q, i) for q in range(4) for i in range(NP)] + [(q, i) for q in range(4) for i in range(NP, 4)]

def w_pre(WB, vRes):
    return [f'ds_read_b128 {v(WB+8*u+4*hh,4)}, v{vRes} offset:{u*2048+hh*1024}' for u in range(2) for hh in range(2)]

def proj16(g, fm, ACC, G, AF, WB, vIdx, vStg, vRes, vT, vC, vL16, sMem, code, reads, extra, endfill, fold):
    assert g.c.NP == 4
    a = g.a; lg = Lg(a)
    af = lambda st: v(G + 4 * st, 4) if st < 4 else v(AF + 4 * (st % 3), 4)
    def mm(st, n):
        kind, idx = fm[st, n]
        B = wreg(idx, 8, VB) if kind == 'r' else v(WB + 8 * (idx % 2), 8)
        return f'v_smfmac_f32_16x16x64_bf16 {v(ACC+4*n,4)}, {af(st)}, {B}, v{vIdx}'
    xr = lambda q: f'v_xor_b32 v{vT}, {q<<12}, v{vStg}'
    rdA = lambda st: ('A', st, f'ds_read_b128 {af(st)}, v{vT} offset:{(st&3)*1024}')
    rdW = lambda st, hh: ('W', st, f'ds_read_b128 {v(WB+8*((st-1)%2)+4*hh,4)}, v{vRes} offset:{(st-1)*2048+hh*1024}')
    seq = [(st, n) for st in range(13) for n in (0, 2, 1, 3)] + [(st, n) for p in range(2) for st in (13, 14, 15) for n in (p, p + 2)]
    fixed = {i: ('S', i, f'ds_write_b128 v{vStg}, {v(G+4*i,4)} offset:{i*1024}') for i in range(4)}
    fixed.update({5: xr(1), 7: rdA(4), 10: rdA(5), 11: rdA(6), 22: xr(2), 38: xr(3)})
    for st in range(2, 12): fixed[4 * st] = rdW(st + 1, 0); fixed[4 * st + 1] = rdW(st + 1, 1)
    for st in range(4, 13): fixed[4 * st + 3] = rdA(st + 3)
    reads = list(reads); q = list(extra); endfill = list(endfill); f0 = fold(0, False)
    scal = lambda t: t.startswith('s_')
    def emit(t):
        if isinstance(t, tuple): a(lg.rd((t[0], t[1]), t[2]))
        else: a(t)
    lg.q = [('W', 1), ('W', 1), ('W', 2), ('W', 2)]
    def waits(st, n):
        tags = [('A', st)] + ([('W', st)] if fm[st, n][0] == 'l' else [])
        best = None
        for t in tags:
            if t in lg.q and (best is None or lg.q.index(t) > lg.q.index(best)): best = t
        return [lg.wait(best)] if best else []
    for pos, (st, n) in enumerate(seq):
        a(mm(st, n))
        sc = []
        if pos == 6: sc = ['s_waitcnt lgkmcnt(0)']; lg.q = []
        if pos == 7: sc = ['s_barrier'] + (g.stamp(5) if g.c.fine else [])
        if pos + 1 < len(seq): sc += waits(*seq[pos + 1])
        for t in sc: a(t)
        ns = 2 - len(sc)
        while ns > 0 and q and q[0][0] <= pos and scal(q[0][1]):
            t = q.pop(0)[1]; a(t); ns -= len([u for u in t.split('\n') if not u.endswith(':')])
        if 57 <= pos <= 59: a('s_nop 0')
        if pos in fixed: emit(fixed[pos])
        elif q and q[0][0] <= pos and not scal(q[0][1]): a(q.pop(0)[1])
        elif reads and pos > 15 and (len(reads) > 4 or all(scal(x[1]) for x in q) or g.c.QT == 3): emit(('X', pos, reads.pop(0)[1]))
        elif pos >= 60 and f0: a(f0.pop(0))
        elif pos > 51 and endfill: a(endfill.pop(0))
    assert not q, q
    for p_, t in reads: a(t)
    for t in f0 + endfill + fold(1, True): a(t)

def fold_add(d, x, packed):
    if packed: return [f'v_pk_add_f32 {v(d,2)}, {v(x,2)}, {v(x+2,2)}']
    return [f'v_add_f32 v{d+r}, v{x+r}, v{x+2+r}' for r in range(2)]

def mem_weights(g, vRes, sCol):
    fm = frag_map(lambda st, n: 1 <= st <= 12 and n == 3, 16, 4)
    def src(st, p):
        q, i = step_order(g.c.NP)[st]
        pre = [f's_xor_b32 s{sWb}, s{sW}, {q}', f's_lshl_b32 s{sWb}, s{sWb}, 21', f's_add_u32 s{sWb}, s{sWb}, s{sCol}']
        return pre, sWb, i * 64 * 8192
    chain_load(g, fm, src, 16, 1, vRes, (16, 4, 8), lambda hq, i: 32 * hq + 8 * i, 8192)
    g.loaded()
    return fm

def role_qk(g):
    a = g.a; c = g.c
    a('L_QK:')
    a(f's_cmp_lt_u32 s{sW}, 2'); a(f's_cselect_b32 s{P_WQ}, s{P_WQ}, s{P_WK}'); a(f's_cselect_b32 s{P_WQ+1}, s{P_WQ+1}, s{P_WK+1}')
    g.srd(12, P_WQ, 0x800000)
    vIdx, vL16, vStg, vRes, vXw, vXr, vOst, vKm, vVm, vPoff, vMy, vPoll, vG16 = 5, 6, 7, 8, 9, 10, 11, 12, 13, 14, 15, 4, 94
    vT0, vT1, vVt, vT2 = 0, 1, 2, 81
    ACC, G, AF, WB, KX2, VMf = 16, 32, 48, 60, 76, 92
    F, S, VXf, P, T2, O, OUT, PZ = 48, 64, 16, 24, 30, 48, 56, 60
    KVB, EXC = 114688, 147456
    hw, cO, cV, sKV, sW8, sW12, sFv, cK, cM, sW11 = (sC + 4 + i for i in range(10))
    sMem, sVm, sO, sOp, sKm, sDk, sDv, sMk, sB = (sX + i for i in range(9))
    sSc, sMemN, sFl2, sPF2, sKok = sX + 10, sX + 12, sX + 13, sX + 14, sX + 15
    assert c.QT == 4 and not c.QS2 and not c.QG
    chain_setup(g, vIdx, vL16, vRes)
    a(f's_lshl_b32 s{hw}, s{sG}, 4'); a(f's_add_u32 s{hw}, s{hw}, s{sIdx}'); a(f's_lshl_b32 s{hw}, s{hw}, 2'); a(f's_add_u32 s{hw}, s{hw}, s{sW}')
    g.my_flag(vMy, hw, 'M'); g.zero_flags(vMy)
    a('v_and_b32 v1, 13, v0'); a('v_lshlrev_b32 v1, 4, v1'); a('v_and_b32 v2, 16, v0'); a('v_lshlrev_b32 v2, 1, v2'); a('v_add_u32 v1, v1, v2')
    a('v_and_b32 v2, 32, v0'); a('v_lshlrev_b32 v2, 3, v2'); a('v_add_u32 v1, v1, v2')
    row16(g, 2)
    a(f'v_mov_b32 v3, {OOB:#x}'); a('v_and_b32 v4, 2, v0'); a('v_cmp_eq_u32 vcc, 0, v4')
    a(f'v_cndmask_b32 v{vOst}, v1, v3, vcc')
    g.v_g(1); a('v_lshlrev_b32 v1, 7, v1'); a('v_add_u32 v1, v1, v2'); a(f'v_cndmask_b32 v{vKm}, v3, v1, vcc')
    a(f's_lshl_b32 s{cO}, s{sIdx}, 11'); a(f's_lshl_b32 s{sT0}, s{sW}, 9'); a(f's_add_u32 s{cO}, s{cO}, s{sT0}')
    poison_init(g, vOst, cO, R_OM, 0x8000, 4)
    g.arrive(later=True)
    a(f's_add_u32 s{cO}, s{cO}, {R_OM:#x}')
    a(f's_lshr_b32 s{cK}, s{hw}, 2'); a(f's_lshl_b32 s{cK}, s{cK}, 8'); a(f's_and_b32 s{sT0}, s{sW}, 1'); a(f's_lshl_b32 s{sT0}, s{sT0}, 7')
    a(f's_add_u32 s{cK}, s{cK}, s{sT0}')
    fm = mem_weights(g, vRes, cK)
    a(f's_lshl_b32 s{sW12}, s{sW}, 12'); a(f's_lshl_b32 s{sW11}, s{sW}, 11')
    a(f's_add_u32 s{sT0}, s{sW12}, {STG}'); a(f'v_add_u32 v{vStg}, s{sT0}, v{vL16}')
    def exbase(src_):
        a(f'v_lshlrev_b32 v1, 10, v{src_}'); a(f'v_and_b32 v3, 1, v{src_}'); a('v_lshlrev_b32 v3, 5, v3'); a('v_add_u32 v1, v1, v3')
        a(f'v_lshrrev_b32 v3, 1, v{src_}'); a('v_lshlrev_b32 v3, 7, v3'); a('v_add_u32 v1, v1, v3')
    g.v_g(2); exbase(2); g.v_j(2); a('v_lshlrev_b32 v2, 3, v2')
    a(f's_and_b32 s{sT0}, s{sW}, 1'); a(f's_lshl_b32 s{sT0}, s{sT0}, 9'); a(f's_and_b32 s{sT1}, s{sW}, 2'); a(f's_xor_b32 s{sT1}, s{sT1}, 2')
    a(f's_lshl_b32 s{sT1}, s{sT1}, 1'); a(f's_add_u32 s{sT0}, s{sT0}, s{sT1}'); a(f's_add_u32 s{sT0}, s{sT0}, {EXC}'); a(f'v_add3_u32 v{vXw}, v1, v2, s{sT0}')
    a('v_and_b32 v2, 3, v0'); exbase(2); g.v_g(2); a('v_lshlrev_b32 v2, 6, v2'); a('v_add_u32 v1, v1, v2')
    a('v_bfe_u32 v2, v0, 2, 2'); a('v_lshlrev_b32 v2, 3, v2'); a('v_add_u32 v1, v1, v2'); a(f'v_add_u32 v{vXr}, {EXC}, v1')
    a(f's_lshl_b32 s{cV}, s{sIdx}, 1'); a(f's_lshr_b32 s{sT0}, s{sW}, 1'); a(f's_add_u32 s{cV}, s{cV}, s{sT0}'); a(f's_lshl_b32 s{cV}, s{cV}, 10')
    a(f's_and_b32 s{sT0}, s{sW}, 1'); a(f's_lshl_b32 s{sT0}, s{sT0}, 3'); a(f's_add_u32 s{cV}, s{cV}, s{sT0}'); a(f's_add_u32 s{cV}, s{cV}, {R_VML:#x}')
    a(f's_lshl_b32 s{cK}, s{hw}, 11'); a(f's_add_u32 s{cK}, s{cK}, {KX:#x}')
    a(f's_lshr_b32 s{cM}, s{hw}, 2'); g.kvm_head(cM, cM); a(f's_lshl_b32 s{sT0}, s{sW}, 9'); a(f's_add_u32 s{cM}, s{cM}, s{sT0}')
    a('v_and_b32 v1, 1, v0'); a('v_lshlrev_b32 v1, 6, v1'); a(f's_lshr_b32 s{sT0}, s{hw}, 1'); a(f's_add_u32 s{sT0}, s{sT0}, 64'); a(f'v_add_u32 v1, s{sT0}, v1')
    a('v_mul_u32_u24 v1, 683, v1'); a('v_lshrrev_b32 v1, 11, v1'); a(f'v_mul_u32_u24 v1, {g.c.FS}, v1')
    a(f'v_add_u32 v{vPoff}, {FOFF["P"]}, v1'); g.expand(vPoff)
    v_tr_addr(g, vVt); a(f'v_add_u32 v{vVt}, s{sW11}, v{vVt}')
    a(f's_mov_b32 s{sSc}, {fbits(SOFTC)}'); a(f's_mov_b32 s{sSc+1}, s{sSc}'); a(f's_lshl_b32 s{sW8}, s{sW}, 8')
    pick_mode(g, 'QK')
    g.to_side([(vMy, 'M'), (vPoff, 'P')]); g.kvm_side(cM)
    def kv_prep(n):
        return [f's_lshl_b32 s{sDk}, s{n}, 18', f's_add_u32 s{sDk}, s{sDk}, s{cK}', f's_cmp_lt_u32 s{n}, {c.NEND}',
                f's_cselect_b32 s{sDk}, s{sDk}, {OOB:#x}', f's_add_u32 s{sDv}, s{sDk}, {VX-KX:#x}',
                f's_sub_u32 s{sMk}, {2*KVB+16384}, s{sKV}', f's_add_u32 s{sMk}, s{sMk}, s{sW11}']
    kv_dma = [f's_mov_b32 m0, s{sMk}',
              f'buffer_load_dwordx4 v{vL16}, {WS}, s{sDk} offen sc1 lds',
              f'buffer_load_dwordx4 v{vL16}, {WS}, s{sDk} offen offset:1024 sc1 lds',
              f's_add_u32 m0, s{sMk}, 8192',
              f'buffer_load_dwordx4 v{vL16}, {WS}, s{sDv} offen sc1 lds',
              f'buffer_load_dwordx4 v{vL16}, {WS}, s{sDv} offen offset:1024 sc1 lds']
    def need0(n):
        return g.fl_of(n, sFl) + [f's_cmp_lt_u32 s{n}, {c.NEND}', f's_cselect_b32 s{sNeed}, s{n}, 0']
    def phase_scalars():
        return ring_calc(sN, sB, s15=sO, s15x=sOp) + [f's_add_u32 s{sVm}, s{sO}, s{cV}', f's_add_u32 s{sO}, s{sO}, s{cO}',
                f's_add_u32 s{sOp}, s{sOp}, s{cO}'] + (g.kvm_addr(sKm, cM) if c.QT == 4 or c.QG else []) + kv_prep(sN1) + need0(sN1) + g.next_n(sN2, sN1, c.L) + g.fl_of(sN2, sFl2) + \
               ring_calc(sN1, sB, s14=sMemN) + [f's_add_u32 s{sMemN}, s{sMemN}, s{sW12}', f'v_add_u32 v{vT1}, s{sKV}, v{vL16}']
    a(f's_mov_b32 s{sN}, 0'); a(f's_mov_b32 s{sKV}, {KVB+16384}')
    for t in need0(sN): a(t)
    g.spin_flags(vPoll, vPoff, sNeed, sFl, 11)
    for t in kv_prep(sN) + kv_dma: a(t)
    a(f's_mov_b32 s{sKV}, {KVB}')
    for t in g.next_n(sN1, sN, c.L): a(t)
    a(f's_mov_b32 s{sPFl}, {OOB:#x}'); a(f's_mov_b32 s{sPF2}, {OOB:#x}'); a(f's_mov_b32 s{sKm}, {OOB:#x}'); a(f's_mov_b32 s{sFv}, 0')
    for t in w_pre(WB, vRes) + [f'v_mov_b32 v{ACC+i}, 0' for i in range(16)] + \
             (need0(sN1) + [f'v_add_u32 v{vT1}, s{sKV}, v{vL16}'] if c.QS2 else phase_scalars()): a(t)
    if c.QS2: PZ = KX2 + 8
    a(f'buffer_load_dword v{vPoll}, v{vPoff}, {WS}, s{sFl} offen sc1')
    a(f's_add_u32 s{sMem}, s{sR0}, s{sW12}'); a(f's_mov_b32 s{sKok}, 0'); a('s_mov_b32 s10, 0')
    a(f's_cmp_lg_u32 s{sRdy}, 1'); a('s_cbranch_scc1 LQK_poll_s')
    for mode in ('f', 's'):
        LS = '' if mode == 'f' else ' sc1'
        POLL, GO = f'LQK_poll_{mode}', f'LQK_go_{mode}'
        a('.p2align 6'); a(f'{POLL}:')
        if c.HU & 1: heads_up(g, vT0, G, 26); a(f'{POLL}2:')
        if c.PPQ:
            for t in gm_loads(G, vL16, sMem, 0, c.NP): a(t)
            a(f's_nop {c.PPQ}'); a(f's_nop {c.PPQ}'); a(f'{POLL}2:')
        for t in gm_loads(G, vL16, sMem, 0, c.NP) + tick(g, 12) + gm_check(G, vT0, 0, c.NP, c.NP if c.PPQ else 0): a(t)
        a(f's_cbranch_vccnz {POLL}' + ('2' if c.PPQ or c.HU & 1 else ''))
        a(f'{GO}:')
        for t in g.stamp(1): a(t)
        lk, lk2 = a.lab('kvs'), a.lab('kvc')
        pub = f'buffer_store_dword v{vT2}, v{vMy}, {WS}, s{sPFl} offen sc1'
        kvm_st = [f'buffer_store_dwordx4 {v(VMf,4)}, v{vVm}, {WS}, s{sKm} offen offset:2048 sc1',
                  f'buffer_store_dwordx4 {v(KX2,4)}, v{vKm}, {WS}, s{sKm} offen sc1']
        poll = f'buffer_load_dword v{vPoll}, v{vPoff}, {WS}, s{sFl2} offen sc1'
        extra = [(2, t) for t in [f'v_cmp_lt_u32 vcc, s{sNeed}, v{vPoll}', kv_dma[0], 's_cmp_eq_u64 vcc, -1', f's_cbranch_scc0 {lk}\n{lk2}:']]
        kvd = kv_dma
        if c.KLB: extra = [(2, kv_dma[0])]; kvd = [t.replace(WS, WSC) for t in kv_dma]
        if c.KLB == 2:
            le1, le2, le3 = a.lab('kve'), a.lab('kvec'), a.lab('kvel')
            extra = [(1, 's_cmp_eq_u32 s10, 0'), (1, f's_cbranch_scc1 {le1}\n{le2}:')] + extra
            g.tail.append([f'{le1}:', f's_add_u32 s{sT0}, s{sN}, 1', f's_cmp_eq_u32 s{sT0}, s{sN1}', f's_cbranch_scc1 {le2}', f'{le3}:',
                           f'buffer_load_dword v{vPoll}, v{vPoff}, {WS}, s{sFl} offen sc1', 's_waitcnt vmcnt(0)',
                           f'v_cmp_lt_u32 vcc, s{sNeed}, v{vPoll}', 's_cmp_eq_u64 vcc, -1', f's_cbranch_scc0 {g.timeout(13, le3)}',
                           f's_mov_b32 s10, {WS_BYTES:#x}', f's_branch {le2}'])
        extra += sorted([(c.QM, t) for t in kvd[1:] + [poll]] + [(c.QS, t) for t in (kvm_st + [pub], kvm_st, [], [], [])[c.QT]], key=lambda x: x[0])
        if c.QT == 4: extra = sorted(extra + [(c.QPP, pub)], key=lambda x: x[0])
        if c.QT == 2 and c.QG: extra = sorted(extra + [(c.QPP, pub)], key=lambda x: x[0])
        elif c.QT == 2: extra += [(30, 's_waitcnt vmcnt(5)'), (30, pub)]
        if c.QT == 3:
            extra = [(2, f's_cmp_lg_u32 s{sKok}, 0'), (2, f's_cbranch_scc0 {lk}\n{lk2}:'), (2, kv_dma[0])] + [(4, t) for t in kvm_st] + \
                    [(8, t) for t in kv_dma[1:] + [poll, f'v_mov_b32 v{VMf}, s{sFv}']] + \
                    [(c.QP, 's_waitcnt vmcnt(5)'), (c.QP, pub.replace(f'v{vT2},', f'v{VMf},').replace(f's{sPFl} ', f's{sPF2} '))]
        if c.QS2:
            assert c.QT == 2 and c.KLB == 2
            extra = [(0, t) for t in glue(need0(sN1) + kv_prep(sN1)[:4])] + [(4, f'v_cmp_lt_u32 vcc, s{sNeed}, v{vPoll}')] + \
                    [(4, t) for t in glue(kv_prep(sN1)[4:] + ['s_cmp_eq_u64 vcc, -1', f's_cselect_b32 s10, {WS_BYTES:#x}, 0'])] + \
                    [(4, f's_cbranch_scc0 {le1}\n{le2}:'), (4, kv_dma[0])] + [(4, t) for t in glue(g.next_n(sN2, sN1, c.L) + g.fl_of(sN2, sFl2))] + \
                    [(8, t) for t in kvd[1:5]]
            rest = glue(ring_calc(sN, sB, s15=sO, s15x=sOp) + [f's_add_u32 s{sVm}, s{sO}, s{cV}', f's_add_u32 s{sO}, s{sO}, s{cO}',
                        f's_add_u32 s{sOp}, s{sOp}, s{cO}'] + ring_calc(sN1, sB, s14=sMem) + [f's_add_u32 s{sMem}, s{sMem}, s{sW12}'] + g.kvm_addr(sKm, cM))
            extra += [(8, t) for t in rest[:10] + [kvd[5]] + rest[10:15] + [poll] + rest[15:20] + ['s_waitcnt vmcnt(5)', pub] + rest[20:]]
            extra += [(8, t) for t in [f's_add_u32 s{sFv}, s{sN}, 1'] + g.fl_of(sN, sPFl)]
        if c.KLB:
            lk3, lk4 = a.lab('kvs2'), a.lab('kvs3')
            look = [f'buffer_load_dword v{vT0}, v{vPoff}, {WS}, s{sFl} offen sc1', 's_waitcnt vmcnt(0)',
                    f'v_cmp_lt_u32 vcc, s{sNeed}, v{vT0}', 's_cmp_eq_u64 vcc, -1']
            g.tail.append([f'{lk}:'] + look + [f's_cbranch_scc1 {lk4}', pub, f'{lk3}:'] + look + [f's_cbranch_scc0 {g.timeout(13, lk3)}', f'{lk4}:'] +
                          kv_dma + [f's_branch {lk2}'])
        else:
            g.tail.append([f'{lk}:', f'buffer_load_dword v{vPoll}, v{vPoff}, {WS}, s{sFl} offen sc1', 's_waitcnt vmcnt(0)',
                           f'v_cmp_lt_u32 vcc, s{sNeed}, v{vPoll}', 's_cmp_eq_u64 vcc, -1', f's_cbranch_scc1 {lk2}',
                           f's_branch {g.timeout(13, lk)}'])
        kxr = lambda i: (G + 4 * i) if i < 4 else (KX2 + 4 * (i - 4))
        reads = [(p, f'ds_read_b128 {v(kxr(i),4)}, v{vT1} offset:{i*1024}') for p, i in
                 ((46, 0), (48, 1), (50, 2), (52, 3), (53, 4), (54, 5), (55, 6), (56, 7))]
        def fold(p, packed):
            x, y = ACC + 4 * p, ACC + 8 + 4 * p
            return fold_add(x, x, packed) + fold_add(y, y, packed) + \
                   [f'v_cvt_pk_bf16_f32 v{x}, v{x}, v{x+1}', f'v_cvt_pk_bf16_f32 v{y}, v{y}, v{y+1}',
                    f'ds_write2_b32 v{vXw}, v{x}, v{y} offset0:{32*p} offset1:{32*p+64}']
        endfill = [f'v_add_u32 v{vT1}, s{sKV}, v{vVt}'] + g.stamp(2)
        proj16(g, fm, ACC, G, AF, WB, vIdx, vStg, vRes, vT0, KX2 + 4, vL16, sMem, 22, reads, extra, endfill, fold)
        a('s_waitcnt lgkmcnt(0)'); a('s_barrier')
        for t in (g.stamp(6) if c.fine else []): a(t)
        for es in range(4):
            for hh in range(2): a(f'ds_read_b64_tr_b16 {v(F+4*es+2*hh,2)}, v{vXr} offset:{es*256+hh*32}')
        vr = [f'ds_read_b64_tr_b16 {v(VXf+2*i,2)}, v{vT1} offset:{8192 + (i&1)*1024 + (i>>1)*512}' for i in range(4)]
        vml = f'buffer_load_dwordx2 {v(VMf,2)}, v{vL16}, {WS}, s{sVm} offen sc1'
        for es in range(4):
            a(f's_waitcnt lgkmcnt({(6, 4, 2, 2)[es]})')
            for kt in range(3):
                A = v(kxr(es * 2 + kt), 4) if kt < 2 else v(F + 4 * es, 4)
                cc = '0' if es == 0 else v(S + 4 * kt, 4)
                a(f'v_mfma_f32_16x16x32_bf16 {v(S+4*kt,4)}, {A}, {v(F+4*es,4)}, {cc}')
                if es >= 2 and kt < 2: a(vr.pop(0))
        ONE, SUM, T = G + 4, G + 8, G + 12
        a(vml)
        a(f'v_add_u32 v{vT1}, s{sW8}, v{vXr}')
        for hh in range(2): a(f'ds_read_b64_tr_b16 {v(KX2+2*hh,2)}, v{vT1} offset:{hh*32}')
        for t in g.stamp(3): a(t)
        for i in range(2): a(f'v_mov_b32 v{ONE+i}, 0x3f803f80')
        for i in range(3): a(f'v_max3_f32 v{T+i}, v{S+3*i}, v{S+3*i+1}, v{S+3*i+2}')
        a(f'v_max3_f32 v{T}, v{T}, v{T+1}, v{S+9}')
        a(f'v_max_f32 v{T+1}, v{T}, v{T+2}'); a(f'v_max_f32 v{T}, v{T}, v{T+2}')
        for i in range(2, 4): a(f'v_mov_b32 v{ONE+i}, 0x3f803f80')
        a(f'v_permlane16_swap_b32 v{T}, v{T+1}')
        a(f'v_max_f32 v{T+2}, v{T}, v{T+1}'); a(f'v_max_f32 v{T}, v{T}, v{T+1}')
        a(f'v_mov_b32 v{P+5}, 0'); a(f'v_mov_b32 v{P+6}, 0')
        a(f'v_permlane32_swap_b32 v{T}, v{T+2}')
        a('s_waitcnt lgkmcnt(0)')
        a(vml); a(kvm_st[1])
        a(f'v_max_f32 v{T}, v{T}, v{T+2}'); a(f'v_mul_f32 v{T}, s{sSc}, v{T}')
        for i in range(0, 10, 2):
            a(f'v_pk_fma_f32 {v(S+i,2)}, {v(S+i,2)}, {s(sSc,2)}, {v(T,2)} op_sel_hi:[1,1,0] neg_lo:[0,0,1] neg_hi:[0,0,1]')
        ex = lambda i: a(f'v_exp_f32 v{S+i}, v{S+i}')
        cv = lambda i, d=None: a(f'v_cvt_pk_bf16_f32 v{P+(i if d is None else d)}, v{S+2*i}, v{S+2*i+1}')
        ex(0); ex(1); ex(2); cv(0); ex(3); ex(4); cv(1); ex(5); ex(6); cv(2); ex(7); ex(8); cv(3); ex(9)
        lv, lv2, lv3 = a.lab('vm'), a.lab('vmr'), a.lab('vmr2')
        ck2 = [f'v_max_u32 v{vT0}, v{VMf}, v{VMf+1}', f'v_cmp_eq_u32 vcc, -1, v{vT0}']
        a('s_nop 0')
        a(f'v_mfma_f32_16x16x32_bf16 {v(SUM,4)}, {v(ONE,4)}, {v(P,4)}, 0')
        cv(4); cv(4, 7)
        a(f'v_mfma_f32_16x16x32_bf16 {v(O,4)}, {v(VXf,4)}, {v(P,4)}, 0')
        a('s_waitcnt vmcnt(2)'); a(ck2[0]); a(ck2[1])
        a(f'v_mfma_f32_16x16x32_bf16 {v(O+4,4)}, {v(VXf+4,4)}, {v(P,4)}, 0')
        a(f'v_mfma_f32_16x16x16_bf16 {v(SUM,4)}, {v(ONE,2)}, {v(P+4,2)}, {v(SUM,4)}')
        a(f's_cbranch_vccnz {lv2}'); a(f'{lv}:')
        g.tail.append([f'{lv2}:', 's_waitcnt vmcnt(1)'] + ck2 + [f's_cbranch_vccz {lv}', f'{lv3}:', vml] + tick(g, 14) +
                      ['s_waitcnt vmcnt(0)'] + ck2 + [f's_cbranch_vccz {lv}', f's_branch {lv3}'])
        for i in range(2):
            a(f'v_mfma_f32_16x16x16_bf16 {v(O+4*i,4)}, {v(VMf,2)}, {v(P+4+2*i,2)}, {v(O+4*i,4)}')
            if i == 0: a('s_nop 0')
            for k in range(2): a(f'v_mov_b32 v{PZ+2*i+k}, -1')
        a(f'v_rcp_f32 v{T}, v{SUM}')
        for i in range(0, 8, 2): a(f'v_pk_mul_f32 {v(O+i,2)}, {v(O+i,2)}, {v(T,2)} op_sel_hi:[1,0]')
        for i in range(4): a(f'v_cvt_pk_bf16_f32 v{OUT+i}, v{O+2*i}, v{O+2*i+1}')
        a(f'buffer_store_dwordx4 {v(OUT,4)}, v{vOst}, {WS}, s{sO} offen{LS}')
        for t in g.stamp(4): a(t)
        if c.QS2:
            for t in gm_loads(G, vL16, sMem, 0, 4) + w_pre(WB, vRes): a(t)
            g.stamp_store(F, 5)
            z = [f'v_mov_b32 v{ACC+i}, 0' for i in range(16)]
            for t in z[:8] + [f'v_mov_b32 v{vT2}, s{sFv}', f's_sub_u32 s{sKV}, {2*KVB+16384}, s{sKV}', f'v_add_u32 v{vT1}, s{sKV}, v{vL16}'] + z[8:] + \
                     kvm_st[:1] + [f's_mov_b32 s{sN}, s{sN1}', f's_mov_b32 s{sN1}, s{sN2}'] + kvm_st[1:] + g.stamp(0) + \
                     [f'buffer_store_dwordx4 {v(PZ,4)}, v{vOst}, {WS}, s{sOp} offen{LS}']: a(t)
            l1 = a.lab('qkn')
            a(f's_cmp_eq_u32 s{sFv}, s{sN}'); a(f's_cbranch_scc1 {l1}')
            for t in gm_check(G, vT0, 0, 4, 3 + (2 if c.stamps else 0)): a(t)
            a(f's_cbranch_vccz {GO}'); a(f's_branch {POLL}')
            a(f'{l1}:')
            a('s_cmp_eq_u32 s10, 0'); a(f's_cbranch_scc1 {lk}')
            a('s_waitcnt vmcnt(0)')
            a(f'{lk2}:'); a(pub)
            a(f's_cmp_lt_u32 s{sN}, {c.NEND}'); a(f's_cbranch_scc1 {POLL}')
            g.endpgm(); g.flush_tail()
            continue
        a(f's_mov_b32 s{sMem}, s{sMemN}')
        if c.QG:
            assert c.QT == 2
            for t in kvm_st: a(t)
        else:
            for t in gm_loads(G, vL16, sMem, 0, c.NP): a(t)
        a(f'buffer_store_dwordx4 {v(PZ,4)}, v{vOst}, {WS}, s{sOp} offen{LS}')
        if c.QG == 1:
            for t in gm_loads(G, vL16, sMem, 0, c.NP): a(t)
        g.stamp_store(F, 5)
        for t in w_pre(WB, vRes): a(t)
        a(f'v_mov_b32 v{vT2}, s{sFv}'); a(f's_mov_b32 s{sPFl}, s{sPF2}')
        if c.QT == 1: a(pub)
        a(f's_add_u32 s{sFv}, s{sN}, 1')
        for t in g.fl_of(sN, sPF2): a(t)
        if not c.QG:
            for t in g.kvm_addr(sKm, cM): a(t)
        if c.QT == 2 and not c.QG:
            for t in kvm_st: a(t)
        if c.QT in (2, 4): a(f'v_mov_b32 v{vT2}, s{sFv}'); a(f's_mov_b32 s{sPFl}, s{sPF2}')
        if c.KLB:
            assert c.QT != 3
            a(f's_mov_b32 s{sKok}, s10'); a('s_cmp_eq_u32 s10, 0'); a(f's_cbranch_scc1 {lk}'); a(f'{lk2}:')
        a(f's_sub_u32 s{sKV}, {2*KVB+16384}, s{sKV}')
        a(f's_mov_b32 s{sN}, s{sN1}'); a(f's_mov_b32 s{sN1}, s{sN2}')
        ps = phase_scalars() + [f'v_mov_b32 v{ACC+i}, 0' for i in range(16)] + g.stamp(0)
        if c.QG >= 2: ps = ps[:c.QG] + gm_loads(G, vL16, sMem, 0, c.NP) + ps[c.QG:]
        for t in ps: a(t)
        if c.QT == 3:
            a(f'v_cmp_lt_u32 vcc, s{sNeed}, v{vPoll}'); a('s_cmp_eq_u64 vcc, -1'); a(f's_cselect_b32 s{sKok}, 1, 0')
        if c.KLB:
            a(f'v_cmp_lt_u32 vcc, s{sNeed}, v{vPoll}'); a('s_cmp_eq_u64 vcc, -1'); a(f's_cselect_b32 s10, {WS_BYTES:#x}, 0')
        l1 = a.lab('qkn')
        a(f's_cmp_eq_u32 s{sFv}, s{sN}'); a(f's_cbranch_scc1 {l1}')
        if c.KLB: a(f's_cmp_eq_u32 s{sKok}, 0'); a(f's_cbranch_scc1 {POLL}')
        for t in gm_check(G, vT0, 0, c.NP, 0 if c.QG else 1 + (0, 1, 2, 0, 0)[c.QT] + (2 if c.stamps else 0)): a(t)
        a(f's_cbranch_vccz {GO}'); a(f's_branch {POLL}')
        a(f'{l1}:')
        if c.QT == 0: a(pub)
        if c.QT not in (2, 4):
            for t in kvm_st: a(t)
            a(f'v_mov_b32 v{vT2}, s{sFv}'); a(f's_mov_b32 s{sPFl}, s{sPF2}'); a(f's_mov_b32 s{sKm}, {OOB:#x}')
        a('s_waitcnt vmcnt(0)'); a(pub)
        a(f's_cmp_lt_u32 s{sN}, {c.NEND}'); a(f's_cbranch_scc1 {POLL}')
        g.endpgm()
        g.flush_tail()

def role_vm(g):
    a = g.a; c = g.c
    a('L_VM:')
    g.srd(12, P_WV, 0x800000)
    vIdx, vL16, vStg, vRes, vT0 = 5, 6, 7, 8, 0
    ACC, G, AF, WB, OUT, PZ = 16, 32, 48, 60, 76, 80
    cV, sW12, sCol = sC + 4, sC + 5, sC + 6
    sMem, sV, sVp, sB, sPf, cP = (sX + i for i in range(6))
    vPoff, vPoll, vL128, vG16 = 9, 10, 11, 12
    chain_setup(g, vIdx, vL16, vRes)
    a(f's_lshl_b32 s{cV}, s{sIdx}, 2'); a(f's_add_u32 s{cV}, s{cV}, s{sW}')
    a(f's_lshl_b32 s{sCol}, s{sG}, 5'); a(f's_add_u32 s{sCol}, s{sCol}, s{cV}'); a(f's_lshl_b32 s{sCol}, s{sCol}, 7')
    a(f's_lshl_b32 s{cV}, s{cV}, 10')
    if c.QT == 4:
        a(f's_lshr_b32 s{sT2}, s{sCol}, 7'); g.my_flag(vPoff, sT2, 'N'); g.zero_flags(vPoff)
        a(f's_lshr_b32 s{sC+7}, s{sCol}, 8'); g.kvm_head(sC + 7, sC + 7); a(f's_and_b32 s{sT0}, s{sW}, 1'); a(f's_lshl_b32 s{sT0}, s{sT0}, 10')
        a(f's_add_u32 s{sC+7}, s{sC+7}, s{sT0}'); a(f's_add_u32 s{sC+7}, s{sC+7}, 2048')
    poison_init(g, vL16, cV, R_VML, 0x8000, 4)
    g.arrive(later=True)
    a(f's_add_u32 s{cV}, s{cV}, {R_VML:#x}')
    fm = mem_weights(g, vRes, sCol)
    a(f's_lshl_b32 s{sW12}, s{sW}, 12'); a(f's_add_u32 s{sT0}, s{sW12}, {STG}'); a(f'v_add_u32 v{vStg}, s{sT0}, v{vL16}')
    for i in range(4): a(f'v_mov_b32 v{PZ+i}, -1')
    a(f'v_lshlrev_b32 v{vL128}, 7, v0'); a(f's_lshl_b32 s{sT0}, s{sIdx}, 2'); a(f's_add_u32 s{sT0}, s{sT0}, s{sW}'); a(f's_mul_i32 s{sT0}, s{sT0}, {RING_SZ//32}')
    a(f'v_add_u32 v{vL128}, s{sT0}, v{vL128}')
    def warm(layer):
        return [f's_add_u32 s{sPf}, s{sR0}, {layer*2*RING_SZ:#x}', f'buffer_load_dword v{vPoll}, v{vL128}, {WS}, s{sPf} offen sc1',
                f'buffer_load_dword v{vPoll}, v{vL128}, {WS}, s{sPf} offen offset:2048 sc1'] if c.warm else []
    pick_mode(g, 'VM')
    if c.QT == 4: g.to_side([(vPoff, 'N')]); g.kvm_side(sC + 7)
    for t in warm(0): a(t)
    a(f's_mov_b32 s{sN}, 0')
    a(f's_cmp_lg_u32 s{sRdy}, 1'); a('s_cbranch_scc1 LVM_top_s')
    for mode in ('f', 's'):
        LS = '' if mode == 'f' else ' sc1'
        TOP, POLL, CHK = f'LVM_top_{mode}', f'LVM_poll_{mode}', f'LVM_chk_{mode}'
        a('.p2align 6'); a(f'{TOP}:')
        for t in ring_calc(sN, sB, s14=sMem) + [f's_add_u32 s{sMem}, s{sMem}, s{sW12}'] + ([] if c.HU & 2 else gm_loads(G, vL16, sMem, 0, c.NP)): a(t)
        for t in w_pre(WB, vRes) + [f'v_mov_b32 v{ACC+i}, 0' for i in range(16)] + ring_calc(sN, sB, s15=sV, s15x=sVp): a(t)
        a(f's_add_u32 s{sV}, s{sV}, s{cV}'); a(f's_add_u32 s{sVp}, s{sVp}, s{cV}')
        for t in g.next_n(sN1, sN, c.L) + g.stamp(0): a(t)
        if c.HU & 2: heads_up(g, vT0, G, 26)
        else: a(f's_branch {CHK}')
        a(f'{POLL}:')
        for t in gm_loads(G, vL16, sMem, 0, c.NP) + tick(g, 15): a(t)
        a(f'{CHK}:')
        for t in gm_check(G, vT0, 0, c.NP, 0): a(t)
        a(f's_cbranch_vccnz {POLL}')
        for t in g.stamp(1): a(t)
        def fold(p, packed):
            x, y = ACC + 4 * p, ACC + 8 + 4 * p
            return fold_add(x, x, packed) + fold_add(y, y, packed) + \
                   [f'v_cvt_pk_bf16_f32 v{OUT+p}, v{x}, v{x+1}', f'v_cvt_pk_bf16_f32 v{OUT+2+p}, v{y}, v{y+1}']
        proj16(g, fm, ACC, G, AF, WB, vIdx, vStg, vRes, vT0, 1, vL16, sMem, 23, [], [], g.stamp(2), fold)
        a(f'buffer_store_dwordx4 {v(OUT,4)}, v{vL16}, {WS}, s{sV} offen{LS}')
        a(f'buffer_store_dwordx4 {v(PZ,4)}, v{vL16}, {WS}, s{sVp} offen{LS}')
        for t in g.stamp(3): a(t)
        if c.QT == 4:
            if c.VMB == 1: a('s_barrier')
            if c.VMB == 2: a('s_waitcnt vmcnt(0)')
            if c.VMB == 3: a('s_waitcnt vmcnt(0)'); a('s_barrier')
            for t in g.kvm_addr(cP, sC + 7): a(t)
            a(f'buffer_store_dwordx4 {v(OUT,4)}, v{vL16}, {WS}, s{cP} offen sc1')
            for t in g.fl_of(sN, sFl) + [f's_add_u32 s{sT0}, s{sN}, 1', f'v_mov_b32 v{vPoll}, s{sT0}', 's_waitcnt vmcnt(0)',
                                         f'buffer_store_dword v{vPoll}, v{vPoff}, {WS}, s{sFl} offen sc1']: a(t)
        g.stamp_store(AF, 4)
        if c.warm:
            lw = a.lab('warm')
            a(f's_cmp_lg_u32 s{sN}, {max(c.L-2, 0)}'); a(f's_cbranch_scc1 {lw}')
            for t in warm(1): a(t)
            a(f'{lw}:')
        a(f'v_xor_b32 v{vStg}, 0x4000, v{vStg}')
        a(f's_mov_b32 s{sN}, s{sN1}')
        a(f's_cmp_lt_u32 s{sN}, {c.NEND}'); a(f's_cbranch_scc1 {TOP}')
        g.endpgm()
        g.flush_tail()

def role_wm(g):
    a = g.a; c = g.c
    a('L_WM:')
    g.srd(12, P_WO, 0x800000); g.srd(16, P_MEM0, 0x4000)
    vIdx, vL16, vRes, vRw, vRr, vL8, vT0 = 5, 6, 8, 9, 10, 11, 0
    PZ = 12
    ACC, GA, WB = 16, 48, 80
    RED, REDSZ = STG, 17408
    cT, cM, cO, sTog, sTwin = (sC + 4 + i for i in range(5))
    sOm, sOm2, sTw, sTp, sTr, sMs, sMp, sB = (sX + i for i in range(8))
    chain_setup(g, vIdx, vL16, vRes)
    a(f'v_lshlrev_b32 v{vL8}, 3, v0')
    a(f's_lshl_b32 s{cM}, s{sIdx}, 2'); a(f's_add_u32 s{cM}, s{cM}, s{sW}')
    a(f's_lshr_b32 s{cT}, s{cM}, 3'); a(f's_lshl_b32 s{cT}, s{cT}, 14'); a(f's_and_b32 s{sT0}, s{cM}, 7'); a(f's_lshl_b32 s{sT0}, s{sT0}, 10')
    a(f's_add_u32 s{cT}, s{cT}, s{sT0}'); a(f's_mul_i32 s{sT0}, s{sG}, {TW_SZ:#x}'); a(f's_add_u32 s{cT}, s{cT}, s{sT0}')
    a(f's_add_u32 s{cT}, s{cT}, {TWB:#x}')
    a('v_bfe_u32 v1, v0, 3, 2'); a('v_lshlrev_b32 v1, 12, v1'); a('v_and_b32 v2, 2, v0'); a('v_lshlrev_b32 v2, 10, v2'); a('v_add_u32 v1, v1, v2')
    a('v_and_b32 v2, 32, v0'); a('v_add_u32 v1, v1, v2'); a('v_and_b32 v2, 4, v0'); a('v_lshlrev_b32 v2, 2, v2'); a('v_add_u32 v1, v1, v2')
    a('v_and_b32 v2, 1, v0'); a('v_lshlrev_b32 v2, 3, v2'); a('v_add_u32 v1, v1, v2')
    a(f's_lshl_b32 s{sT0}, s{cM}, 6')
    a(f'buffer_load_dwordx2 v[20:21], v1, {W2}, s{sT0} offen')
    a(f's_lshl_b32 s{cM}, s{cM}, 9')
    vHu = 7
    a(f's_cmp_eq_u32 s{cM}, 0'); a(f's_cselect_b32 s{sT0}, s{sWoff}, {OOB:#x}'); g.lane0_off(vHu, sT0)
    a('v_mov_b32 v1, 0'); a(f'buffer_store_dword v1, v{vHu}, {WS}, 0 offen sc1')
    a('v_mov_b32 v2, 64'); a(f'buffer_store_dword v2, v{vHu}, {WS}, 0 offen offset:512 sc1')
    poison_init(g, vL8, cM, R_MEM, 0x4000, 2, first=1)
    for l in range(2):
        for sl in range(4):
            for hf in range(2):
                a(f's_add_u32 s{sT0}, s{cT}, {l*2*TW_SZ + sl*0x10000 + hf*0x2000:#x}')
                a(f'buffer_store_dwordx4 v[16:19], v{vL16}, {WS}, s{sT0} offen sc1')
    a('s_waitcnt vmcnt(0)')
    for l in range(2):
        a(f's_add_u32 s{sT0}, s{sR0}, {l*2*RING_SZ + R_MEM:#x}'); a(f's_add_u32 s{sT0}, s{sT0}, s{cM}')
        a(f'buffer_store_dwordx2 v[20:21], v{vL8}, {WS}, s{sT0} offen sc1')
    g.arrive(later=True)
    fm = frag_map(lambda st, n: st < 6 and n in (5, 7), 8, 8)
    a(f's_lshl_b32 s{sWb}, s{sG}, 2'); a(f's_add_u32 s{sWb}, s{sWb}, s{sW}'); a(f's_lshl_b32 s{sWb}, s{sWb}, 20')
    a(f's_lshl_b32 s{sT0}, s{sIdx}, 8'); a(f's_add_u32 s{sWb}, s{sWb}, s{sT0}')
    chain_load(g, fm, lambda st, p: ([], sWb, st * 64 * 2048 + p * 128), 8, 2, vRes,
               (8, 16, 4), lambda hq, i: 32 * hq + 8 * i, 2048)
    g.loaded()
    a('v_bfe_u32 v2, v0, 2, 2'); a('v_mul_u32_u24 v2, 1088, v2'); a('v_and_b32 v3, 3, v0'); a('v_mul_u32_u24 v3, 272, v3'); a('v_add_u32 v2, v2, v3')
    a('v_and_b32 v3, 48, v0'); a('v_add_u32 v2, v2, v3')
    a(f's_lshl_b32 s{sT0}, s{sW}, 6'); a(f's_add_u32 s{sT0}, s{sT0}, {RED}'); a(f'v_add_u32 v{vRw}, s{sT0}, v2')
    a('v_lshrrev_b32 v2, 5, v0'); a('v_lshlrev_b32 v2, 1, v2'); a('v_and_b32 v3, 1, v0'); a('v_add_u32 v2, v2, v3'); a('v_mul_u32_u24 v2, 1088, v2')
    a('v_bfe_u32 v3, v0, 1, 4'); a('v_lshlrev_b32 v3, 2, v3'); a('v_add_u32 v2, v2, v3')
    a(f's_mul_i32 s{sT0}, s{sW}, 4352'); a(f's_add_u32 s{sT0}, s{sT0}, {RED}'); a(f'v_add_u32 v{vRr}, s{sT0}, v2')
    a('v_and_b32 v1, 27, v0'); a('v_lshlrev_b32 v1, 3, v1'); a('v_and_b32 v2, 4, v0'); a('v_lshlrev_b32 v2, 6, v2'); a('v_add_u32 v1, v1, v2')
    a('v_and_b32 v2, 32, v0'); a(f'v_add_u32 v{vL8}, v1, v2')
    a(f's_lshl_b32 s{cO}, s{sW}, 13'); a(f's_add_u32 s{cO}, s{cO}, {R_OM:#x}')
    for i in range(4): a(f'v_mov_b32 v{PZ+i}, -1')
    a(f's_mov_b32 s{sTog}, {REDSZ}')
    a(f's_cmp_eq_u32 s{sG}, 0'); a(f's_mov_b32 s{sTwin}, {TW_SZ:#x}'); a(f's_cselect_b32 s{sTwin}, s{sTwin}, {(-TW_SZ)&0xffffffff:#x}')
    pick_mode(g, 'WM')
    g.get_par(sT2, 0); a(f's_add_u32 s{cT}, s{cT}, s{sT2}')
    om_off = lambda n: ring_calc(n, sB, s15=sOm) + [f's_add_u32 s{sOm}, s{sOm}, s{cO}', f's_add_u32 s{sOm2}, s{sOm}, 4096']
    tw_off = lambda n: [f's_and_b32 s{sB}, s{n}, 64', f's_lshl_b32 s{sB}, s{sB}, 13', f's_add_u32 s{sB}, s{sB}, s{cT}',
                        f's_and_b32 s{sTw}, s{n}, 3', f's_lshl_b32 s{sTw}, s{sTw}, 16', f's_xor_b32 s{sTp}, s{sTw}, 0x20000',
                        f's_add_u32 s{sTw}, s{sTw}, s{sB}', f's_add_u32 s{sTp}, s{sTp}, s{sB}']
    assert 2 * TW_SZ == 64 << 13
    a(f's_mov_b32 s{sN}, 0')
    a(f's_mov_b32 s{sMp}, {OOB:#x}')
    for t in om_off(sN) + tw_off(sN) + w_pre(WB, vRes) + [f'v_mov_b32 v{ACC+i}, 0' for i in range(32)]: a(t)
    g.mini_init(2)
    a(f's_cmp_lg_u32 s{sRdy}, 1'); a('s_cbranch_scc1 LWM_poll_s')
    RD, SM = GA + 12, GA + 28
    NP0 = c.WMP
    for mode in ('f', 's'):
        LS = '' if mode == 'f' else ' sc1'
        POLL = f'LWM_poll_{mode}'
        lg = Lg(a); lg.q = [('W', 0), ('W', 0), ('W', 1), ('W', 1)]
        ld = lambda i: f'buffer_load_dwordx4 {v(GA+4*i,4)}, v{vL16}, {WS}, s{sOm if i < 4 else sOm2} offen offset:{(i&3)*1024} sc1'
        rdW = lambda u: [lg.rd(('W', u), f'ds_read_b128 {v(WB+8*(u%2)+4*hh,4)}, v{vRes} offset:{u*2048+hh*1024}') for hh in range(2)]
        GO = f'LWM_go_{mode}'
        a('.p2align 6'); a(f'{POLL}:')
        if c.PPW:
            for i in range(NP0): a(ld(i))
            a(f's_nop {c.PPW}'); a(f's_nop {c.PPW}'); a(f'{POLL}2:')
        for i in range(NP0): a(ld(i))
        for t in tick(g, 16): a(t)
        a(f's_waitcnt vmcnt({NP0 if c.PPW else 0})')
        for t in check4(vT0, GA): a(t)
        a(f's_cbranch_vccnz {POLL}' + ('2' if c.PPW else ''))
        a(f'{GO}:')
        for t in g.stamp(1) + g.mini_take(): a(t)
        def mm(st, n):
            kind, idx = fm[st, n]
            B = wreg(idx, 8, VB) if kind == 'r' else v(WB + 8 * (idx % 2), 8)
            a(f'v_smfmac_f32_16x16x64_bf16 {v(ACC+4*n,4)}, {v(GA+4*st,4)}, {B}, v{vIdx}')
        rd1 = lambda u, hh: a(lg.rd(('W', u), f'ds_read_b128 {v(WB+8*(u%2)+4*hh,4)}, v{vRes} offset:{u*2048+hh*1024}'))
        issued = NP0
        for st in range(6):
            i = st + 1
            if c.WCP and st % 2 == 0 and st > 0: ck = None
            elif st == 0 or (st < 5 and not c.WCP): ck = check4(vT0, GA + 4 * i); last = i
            else:
                d = GA + 4 * i; last = i + 1
                ck = [f'v_max3_u32 v{vT0}, v{d}, v{d+1}, v{d+2}', f'v_max3_u32 v{vT0}, v{vT0}, v{d+3}, v{d+4}',
                      f'v_max3_u32 v{vT0}, v{vT0}, v{d+5}, v{d+6}', f'v_max_u32 v{vT0}, v{vT0}, v{d+7}', f'v_cmp_eq_u32 vcc, -1, v{vT0}']
            c0 = 6 - len(ck) if ck else 9
            for n in range(8):
                mm(st, n)
                if n in (4, 6):
                    w = lg.wait(('W', 2 * st + (n == 6)))
                    if w: a(w)
                if n == c0 and last >= NP0: a(f's_waitcnt vmcnt({issued-1-last})')
                if n == 7 and ck:
                    lb, lc = a.lab('wb'), a.lab('wc')
                    a(f's_cbranch_vccnz {lb}'); a(f'{lc}:')
                    g.tail.append([f'{lb}:'] + [ld(k) for k in range(i, issued)] + tick(g, 17) + ['s_waitcnt vmcnt(0)' if i < NP0 - 1 else f's_waitcnt vmcnt({issued-1-last})'] + ck +
                                  [f's_cbranch_vccz {lc}', f's_branch {lb}'])
                if n < 2 and st > 0: rd1(2 * st + 1, n)
                if n in (6, 7) and st < 5: rd1(2 * st + 2, n - 6)
                if issued < 8 and (n == 2 or (st == 0 and n < 2) or (st == 1 and n == 0)): a(ld(issued)); issued += 1
                if c0 <= n < 6: a(ck[n - c0])
        def fold(p, packed=False):
            x, y = ACC + 8 * p, ACC + 8 * p + 4
            return fold_add(x, x, packed) + fold_add(x + 2, y, packed) + [f'ds_write_b128 v{vRw}, {v(x,4)} offset:{p*4352}']
        nn = glue(g.next_n(sN1, sN, c.L) + [f's_add_u32 s{sTr}, s{sTw}, s{sTwin}'])
        twp = f'buffer_store_dwordx4 {v(PZ,4)}, v{vL16}, {WS}, s{sTp} offen sc1'
        q = [twp, None, None, f'buffer_store_dwordx2 {v(PZ,2)}, v{vL8}, {WS}, s{sMp} offen{LS}']
        for k, (st, n) in enumerate([(s_, n_) for p in range(4) for n_ in (2 * p, 2 * p + 1) for s_ in (6, 7)]):
            mm(st, n)
            a(nn.pop(0) if nn else 's_nop 1')
            if k >= 4 and k % 4 == 0: q += fold(k // 4 - 1)
            t = q.pop(0)
            if t: a(t)
        for t in q + g.stamp(2) + fold(3, True): a(t)
        a('s_waitcnt lgkmcnt(0)'); a('s_barrier')
        for t in (g.stamp(5) if c.fine else []): a(t)
        for sr in range(4):
            for y2 in range(2):
                a(f'ds_read2_b32 {v(RD+4*sr+2*y2,2)}, v{vRr} offset0:{sr*16+y2*136} offset1:{sr*16+y2*136+68}')
        a('s_waitcnt lgkmcnt(4)')
        for y in (0, 2): a(f'v_pk_add_f32 {v(SM+y,2)}, {v(RD+y,2)}, {v(RD+4+y,2)}')
        a('s_waitcnt lgkmcnt(2)')
        for y in (0, 2): a(f'v_pk_add_f32 {v(SM+y,2)}, {v(SM+y,2)}, {v(RD+8+y,2)}')
        a('s_waitcnt lgkmcnt(0)')
        for y in (0, 2): a(f'v_pk_add_f32 {v(SM+y,2)}, {v(SM+y,2)}, {v(RD+12+y,2)}')
        a(f'buffer_store_dwordx4 {v(SM,4)}, v{vL16}, {WS}, s{sTw} offen sc1')
        if c.HU:
            a(f's_add_u32 s{sT0}, s{sN}, 1'); a(f'v_mov_b32 v{vT0}, s{sT0}'); a(f's_and_b32 s{sT1}, s{sN}, 64'); a(f's_lshl_b32 s{sT1}, s{sT1}, 3')
            a(f'buffer_store_dword v{vT0}, v{vHu}, {WS}, s{sT1} offen{LS}')
        for t in g.stamp(3) + g.mini_put(2): a(t)
        a(f'v_add_u32 v{vRw}, s{sTog}, v{vRw}'); a(f'v_add_u32 v{vRr}, s{sTog}, v{vRr}'); a(f's_sub_u32 s{sTog}, 0, s{sTog}')
        TW, RS_ = RD + 4, RD + 8
        tl = f'buffer_load_dwordx4 {v(TW,4)}, v{vL16}, {WS}, s{sTr} offen sc1'
        hk = w_pre(WB, vRes) + [f'v_mov_b32 v{ACC+i}, 0' for i in range(32)] + \
             ring_calc(sN, sB, s14=sMs, add14=1, s14x=sMp) + [f's_add_u32 s{sMs}, s{sMs}, s{cM}', f's_add_u32 s{sMp}, s{sMp}, s{cM}'] + \
             om_off(sN1) + tw_off(sN1)
        if c.TWS: hk, hk2 = hk[:c.TWS], hk[c.TWS:]
        for k, t in enumerate(hk):
            if k in c.TWE: a(tl)
            a(t)
        if c.TWS:
            lt2 = a.lab('tw2'); a(tl)
            for t in hk2: a(t)
            a(f's_branch {lt2}')
        pk = False
        if c.TWW < 0: a('s_waitcnt vmcnt(0)')
        for _ in range(c.TWW): a('s_nop 7')
        lt = a.lab('tw')
        a(f'{lt}:')
        a(tl)
        for t in tick(g, 18): a(t)
        if c.TWS: a(f'{lt2}:')
        a(f's_waitcnt vmcnt({len(c.TWE)})')
        for t in check4(vT0, TW): a(t)
        for y in (0, 2): a(f'v_pk_add_f32 {v(RS_+y,2)}, {v(SM+y,2)}, {v(TW+y,2)}')
        a(f's_cbranch_vccnz {lt}')
        for y in range(2): a(f'v_cvt_pk_bf16_f32 v{RS_+4+y}, v{RS_+2*y}, v{RS_+1+2*y}')
        a(f'buffer_store_dwordx2 {v(RS_+4,2)}, v{vL8}, {WS}, s{sMs} offen{LS}')
        for t in g.stamp(4): a(t)
        g.stamp_store(RD + 4, 5)
        for t in g.stamp(0): a(t)
        a(f's_mov_b32 s{sN}, s{sN1}')
        lx = a.lab('wmx')
        a(f's_cmp_ge_u32 s{sN}, {c.NEND}'); a(f's_cbranch_scc1 {lx}')
        if pk:
            a(f's_waitcnt vmcnt({1 + (2 if c.stamps else 0)})')
            for t in check4(vT0, GA): a(t)
            a(f's_cbranch_vccz {GO}')
        a(f's_branch {POLL}')
        a(f'{lx}:')
        g.endpgm()
        g.flush_tail()

def emit(g):
    r = g.c.roles
    if 'QK' in r: role_qk(g)
    if 'VM' in r: role_vm(g)
    if 'WM' in r: role_wm(g)
```
